```python
import torch

def _softmax(x, axis=-1):
    return torch.softmax(x, dim=axis)
def _gelu(x):
    return torch.nn.functional.gelu(x, approximate="tanh")
def _silu(x):
    return torch.nn.functional.silu(x)
def _sigmoid(x):
    return torch.sigmoid(x)
def _layernorm(x, axis=-1, eps=1e-5):
    m = x.mean(dim=axis, keepdim=True)
    v = x.var(dim=axis, keepdim=True, unbiased=False)
    return (x - m) / torch.sqrt(v + eps)
def _scatter_add(tgt, idx, src, axis=0):
    return tgt.clone().index_add_(axis, idx, src)
def _segment_sum(src, seg, n):
    out = torch.zeros((n,) + src.shape[1:], dtype=src.dtype)
    return out.index_add_(0, seg, src)
def _pad(x, pw):
    flat = tuple(v for pair in reversed(pw) for v in pair)
    return torch.nn.functional.pad(x, flat)

kernel_name = 'concat_heads__compressed_kv_cla__mha_block_cached__decode'

def setup_inputs():

    _w = (lambda a: (lambda t: t.to(torch.bfloat16) if t.is_floating_point() else t)(torch.as_tensor(a)))
    def _A_setup():
        B, H, Sq, Sk, D, M = 4, 32, 1, 4096, 128, 512
        Dc = 4 * D
        return {
            "x": _w((lambda *s: torch.randn(*s, dtype=torch.bfloat16) * 3.2)(B, Sq, M)),
            "c_kv": _w((lambda *s: torch.randn(*s, dtype=torch.bfloat16) * 0.1)(B, Sk, Dc)),
            "w_q": _w((lambda *s: torch.randn(*s, dtype=torch.bfloat16) * 6.4)(M, H, D) * (M ** -0.5)),
            "w_uk": _w((lambda *s: torch.randn(*s, dtype=torch.bfloat16) * 6.4)(Dc, H, D) * (Dc ** -0.5)),
            "w_uv": _w((lambda *s: torch.randn(*s, dtype=torch.bfloat16) * 0.1)(Dc, H, D) * (Dc ** -0.5)),
            "w_o": _w((lambda *s: torch.randn(*s, dtype=torch.bfloat16) * 0.1)(H, D, M) * ((H * D) ** -0.5)),
        }
    _A_in = _A_setup()

    def _B_setup():
        B, Sq, D = 4, 1, 512
        H, Sk, Dh = 32, 4096, 128
        return {
            "x": _w((lambda *s: torch.randn(*s, dtype=torch.bfloat16) * 1.6)(B, Sq, D)),
            "k_cache": _w((lambda *s: torch.randn(*s, dtype=torch.bfloat16) * 1.6)(B, H, Sk, Dh)),
            "v_cache": _w((lambda *s: torch.randn(*s, dtype=torch.bfloat16) * 0.05)(B, H, Sk, Dh)),
            "wq": _w((lambda *s: torch.randn(*s, dtype=torch.bfloat16) * 1.6)(D, H * Dh) * (D ** -0.5)),
            "wo": _w((lambda *s: torch.randn(*s, dtype=torch.bfloat16) * 0.05)(H * Dh, D) * ((H * Dh) ** -0.5)),
        }
    _B_in = _B_setup()

    return {
        "A_x": _A_in["x"],
        "A_c_kv": _A_in["c_kv"],
        "A_w_q": _A_in["w_q"],
        "A_w_uk": _A_in["w_uk"],
        "A_w_uv": _A_in["w_uv"],
        "A_w_o": _A_in["w_o"],
        "B_x": _B_in["x"],
        "B_k_cache": _B_in["k_cache"],
        "B_v_cache": _B_in["v_cache"],
        "B_wq": _B_in["wq"],
        "B_wo": _B_in["wo"],
    }

def reference(A_x, A_c_kv, A_w_q, A_w_uk, A_w_uv, A_w_o, B_x, B_k_cache, B_v_cache, B_wq, B_wo):
    def _A_ref(x, c_kv, w_q, w_uk, w_uv, w_o):
        B, Sq, M = x.shape[0], x.shape[1], x.shape[2]
        Sk = c_kv.shape[1]
        H, D = w_q.shape[1], w_q.shape[2]
        q = torch.einsum("bqm,mhd->bhqd", x, w_q)
        k = torch.einsum("bkc,chd->bhkd", c_kv, w_uk)
        v = torch.einsum("bkc,chd->bhkd", c_kv, w_uv)
        scores = torch.einsum("bhqd,bhkd->bhqk", q, k) * (D ** -0.5)
        off = Sk - Sq
        qi = torch.arange(Sq)[:, None]
        kj = torch.arange(Sk)[None, :]
        cmask = kj <= (qi + off)
        scores = torch.where(cmask[None, None], scores, -1e9)
        p = _softmax(scores, axis=-1)
        ctx = torch.einsum("bhqk,bhkd->bhqd", p, v)
        return torch.einsum("bhqd,hdm->bqm", ctx, w_o)

    def _B_ref(x, k_cache, v_cache, wq, wo):
        B, Sq, D = x.shape
        H, Dh = 32, 128
        q = (lambda x, *d: x.permute(*d))((x @ wq).reshape(B, Sq, H, Dh), 0, 2, 1, 3)
        scores = torch.einsum("bhqd,bhkd->bhqk", q, k_cache) * (Dh ** -0.5)
        p = _softmax(scores, axis=-1)
        o = torch.einsum("bhqk,bhkd->bhqd", p, v_cache)
        return (lambda x, *d: x.permute(*d))(o, 0, 2, 1, 3).reshape(B, Sq, H * Dh) @ wo

    a = _A_ref(A_x, A_c_kv, A_w_q, A_w_uk, A_w_uv, A_w_o)
    b = _B_ref(B_x, B_k_cache, B_v_cache, B_wq, B_wo)
    return torch.concatenate([a, b], axis=-1)
```

```python
import re

TRANS = ("v_exp_f32", "v_log_f32", "v_rcp_f32", "v_rsq_f32", "v_sqrt_f32", "v_sin_f32", "v_cos_f32")
NO_DST_S = ("s_cmp", "s_bitcmp", "s_cbranch", "s_branch", "s_waitcnt", "s_nop", "s_barrier", "s_sleep",
            "s_endpgm", "s_setprio", "s_setpc")

def regs_of(op):
    op = op.strip()
    if op.startswith("-"): op = op[1:]
    m = re.fullmatch(r"abs\((.*)\)", op)
    if m: op = m.group(1)
    m = re.fullmatch(r"([vas])(\d+)", op)
    if m: return {(m.group(1), int(m.group(2)))}
    m = re.fullmatch(r"([vas])\[(\d+):(\d+)\]", op)
    if m: return {(m.group(1), i) for i in range(int(m.group(2)), int(m.group(3)) + 1)}
    if op in ("vcc", "vcc_lo", "vcc_hi"): return {("s", "vcc")}
    if op in ("exec", "exec_lo", "exec_hi"): return {("s", "exec")}
    if op == "m0": return {("s", "m0")}
    return set()

def split_ops(s):
    out, depth, cur = [], 0, ""
    for ch in s:
        if ch in "[(": depth += 1
        if ch in "])": depth -= 1
        if ch == "," and depth == 0:
            out.append(cur.strip()); cur = ""
        else:
            cur += ch
    if cur.strip(): out.append(cur.strip())
    return out

class Ins:
    def __init__(self, text):
        self.text = text
        t = text.split(";")[0].strip()
        self.label = t[:-1] if t.endswith(":") else None
        self.op = None
        self.w, self.r = set(), set()
        self.kind = None
        if self.label or not t or t.startswith("."):
            return
        parts = t.split(None, 1)
        self.op = op = parts[0]
        ops = split_ops(parts[1]) if len(parts) > 1 else []
        mods = ""
        if ops:
            last = ops[-1].split(None, 1)
            ops[-1] = last[0]
            mods = last[1] if len(last) > 1 else ""
        self.ops, self.mods = ops, mods
        R = [regs_of(o) for o in ops]
        allr = lambda xs: set().union(*xs) if xs else set()
        self.dpp = "_dpp" in op
        if op.startswith("v_mfma"):
            self.kind = "mfma"; self.passes = 4 if "16x16" in op else 8
            self.w = R[0]; self.ab = R[1] | R[2]; self.c = R[3]; self.r = self.ab | self.c
        elif op.startswith("v_"):
            self.kind = "valu"
            self.trans = op.replace("_e32", "").replace("_e64", "") in TRANS
            if "permlane" in op:
                self.w = R[0] | R[1]; self.r = R[0] | R[1]
            elif op.startswith(("v_add_co", "v_sub_co", "v_addc_co")):
                self.w = R[0] | R[1]; self.r = allr(R[2:])
            else:
                self.w = R[0]; self.r = allr(R[1:])
                if op.startswith(("v_fmac", "v_writelane")): self.r |= R[0]
            self.dpp_src = self.r if self.dpp else set()
        elif op.startswith(("buffer_", "global_")):
            self.kind = "vmem"
            self.lds = bool(re.search(r"\blds\b", mods))
            self.wide = False
            if "load" in op and not self.lds:
                self.w = R[0]; self.r = allr(R[1:])
            elif "atomic" in op and re.search(r"\bsc0\b", mods):
                self.w = R[0]; self.r = allr(R if op.startswith("buffer") else R[1:])
            else:
                self.r = allr(R)
                if "store" in op and ("x4" in op or "x3" in op):
                    self.wide = True
                    self.data = R[0] if op.startswith("buffer") else R[1]
        elif op.startswith("ds_"):
            self.kind = "ds"
            if "read" in op or "permute" in op or "swizzle" in op:
                self.w = R[0]; self.r = allr(R[1:])
            else:
                self.r = allr(R)
        elif op.startswith("s_"):
            self.kind = "salu"
            if op.startswith(NO_DST_S):
                self.r = allr(R)
            else:
                self.w = R[0]; self.r = allr(R[1:])
                if "saveexec" in op: self.w = self.w | {("s", "exec")}
        else:
            raise ValueError("unknown instruction: " + text)

    def states(self):
        if self.op is None: return 0
        if self.op == "s_nop": return int(self.ops[0], 0) + 1
        return 1

def vec(s): return {x for x in s if x[0] in "va"}
def sca(s): return {x for x in s if x[0] == "s"}

def need(p, c):
    n = 0
    if p.kind == "valu":
        pv, ps = vec(p.w), sca(p.w)
        if c.kind == "mfma" and pv & c.r: n = max(n, 2)
        if c.kind == "valu":
            if c.dpp and pv & c.dpp_src: n = max(n, 2)
            if "permlane" in c.op and pv & c.r: n = max(n, 2)
            if c.op.startswith(("v_readlane", "v_readfirstlane")) and pv & c.r: n = max(n, 1)
            if p.trans and pv & c.r: n = max(n, 1)
            if ps & c.r: n = max(n, 4 if c.op.startswith(("v_readlane", "v_writelane")) else 2)
        if c.kind == "vmem" and ps & c.r: n = max(n, 5)
        if c.kind == "salu" and ps & c.r: n = max(n, 1)
    elif p.kind == "mfma":
        long = 8 if p.passes == 4 else 12
        if c.kind == "mfma":
            if p.w & c.ab: n = max(n, long)
            if p.w & c.c and not (p.w == c.c and p.passes == c.passes): n = max(n, long - 2)
            if p.w & c.w and not (p.w == c.c): n = max(n, long)
        elif c.kind in ("valu", "vmem", "ds"):
            if p.w & (c.r | c.w): n = max(n, long)
            if c.kind == "valu" and p.c & c.w: n = max(n, 3 if p.passes == 4 else 7)
    elif p.kind == "salu":
        if ("s", "m0") in p.w and c.kind == "vmem" and c.lds: n = max(n, 1)
    elif p.kind == "vmem":
        if p.wide and p.data & c.w: n = max(n, 2)
    return n

class Asm:
    def __init__(self):
        self.lines = []
        self.q = []
        self.uid = 0

    def __call__(self, text):
        for t in text.split("\n"):
            t = t.strip()
            if t: self.lines.append(t)

    def label(self, base):
        self.uid += 1
        return f"L_{base}_{self.uid}"

    def vm(self, text, tag):
        self(text); self.q.append(tag)

    def wait(self, tag, extra=""):
        idx = max(i for i, t in enumerate(self.q) if t == tag)
        n = len(self.q) - 1 - idx
        assert n <= 63
        self.q = self.q[idx + 1:]
        self(f"s_waitcnt vmcnt({n}){extra}")

    def finish(self):
        ins = [Ins(t) for t in self.lines]
        total = 0
        changed = True
        while changed:
            changed = False
            labels = {x.label: i for i, x in enumerate(ins) if x.label}
            jumps = {}
            for i, x in enumerate(ins):
                if x.op and x.op.startswith(("s_cbranch", "s_branch")):
                    jumps.setdefault(labels[x.ops[0]], []).append(i)
            def worst(i, c, dist, seen):
                miss = 0
                k = i - 1
                while k >= 0 and dist < 13:
                    x = ins[k]
                    if x.label:
                        for jmp in jumps.get(k, []):
                            if (jmp, dist) not in seen:
                                seen.add((jmp, dist))
                                miss = max(miss, worst(jmp, c, dist + 1, seen))
                    elif x.op:
                        if x.op in ("s_branch", "s_endpgm", "s_setpc_b64"): break
                        miss = max(miss, need(x, c) - dist)
                        dist += x.states()
                    k -= 1
                return miss
            for i, c in enumerate(ins):
                if not c.op or c.op == "s_nop": continue
                m = worst(i, c, 0, set())
                if m > 0:
                    ins.insert(i, Ins(f"s_nop {m-1}"))
                    total += 1
                    changed = True
                    break
        self.nops = total
        return "\n".join(("" if x.label else "    ") + x.text for x in ins) + "\n"
```

```python
import sys, os
sys.path.insert(0, os.path.dirname(os.path.abspath(__file__)))
from asmlib import Asm

NAME = "concat_heads__compressed_kv_cla__mha_block_cached__decode"
KB, MB = 1024, 1 << 20
WS_QP, WS_QL, WS_CS, WS_YA, WS_YB, WS_CP, WS_OP, WS_ST, WS_SIZE = 1*MB, 2*MB, 2*MB + 512*KB, 3*MB, 3*MB + 512*KB, 4*MB, 5*MB, 6*MB, 8*MB
SCALE = 128 ** -0.5 * 1.4426950408889634
LDS_EX = 128 * KB
LDS_O = LDS_EX + 16 * KB
SPIN = 1 << 20

import struct
def f32(x): return struct.unpack("<I", struct.pack("<f", x))[0]
def V(a, n=1): return f"v{a}" if n == 1 else f"v[{a}:{a+n-1}]"
def A(a, n=1): return f"a{a}" if n == 1 else f"a[{a}:{a+n-1}]"
def S(a, n=1): return f"s{a}" if n == 1 else f"s[{a}:{a+n-1}]"
DPP = "row_mask:0xf bank_mask:0xf"

pAX, pCK, pAWQ, pUK, pUV, pAWO, pBX, pK, pV, pBWQ, pBWO, pOUT, pDBG, pWS = range(4, 32, 2)
sH, sP, sW, sTAG, sT0, sT1, sT2, sT3 = 32, 33, 34, 35, 36, 37, 38, 39
rW, rX, rWS, rK, rV, rUV, rWA, rWB, rOUT, rDBG = 40, 44, 48, 52, 56, 60, 64, 68, 72, 76
rCK, rUK = rK, rV
sSELLO, sSELHI, sHI24, sC, sSPIN = 80, 81, 82, 83, 84
sU0, sU1, sTK, sROT, sBASE = 85, 86, 87, 88, 89
sM0, sMODE, sIT, sSLOT, sCKO, sYO, sOUTO = 90, 92, 93, 94, 95, 96, 97
sTS = 98


def generate(D=5, GS=0, ROTH=8, ROTW=1, POLLAT=22, STAMP=False):
    a = Asm()

    def srd(r, p, size):
        a(f"s_mov_b32 s{r}, s{p}\ns_and_b32 s{r+1}, s{p+1}, 0xffff\ns_mov_b32 s{r+2}, {size}\ns_mov_b32 s{r+3}, 0x20000")

    def stamp(i):
        if not STAMP: return
        a(f"s_memrealtime s[{sTS}:{sTS+1}]\ns_waitcnt lgkmcnt(0)")
        a(f"v_mov_b32 v{vST1}, s{sTS}\ns_mov_b64 s[100:101], exec\ns_mov_b64 exec, 1")
        a(f"buffer_store_dword v{vST1}, v{vST0}, s[{rWS}:{rWS+3}], 0 offen offset:{4*i}")
        a("s_mov_b64 exec, s[100:101]")

    def spin_guard(lbl_retry):
        a(f"s_sub_u32 s{sSPIN}, s{sSPIN}, 1\ns_cmp_lg_u32 s{sSPIN}, 0\ns_cbranch_scc1 {lbl_retry}\ns_branch L_end")

    def untag(regs, acc):
        for r in regs:
            a(f"v_xor_b32 v{r}, s{sTAG}, v{r}")
        a(f"v_or_b32 v{acc}, v{regs[0]}, v{regs[1]}")
        for i in range(2, len(regs), 2):
            a(f"v_or3_b32 v{acc}, v{acc}, v{regs[i]}, v{regs[i+1]}")
        a(f"v_and_b32 v{acc}, 0xff, v{acc}\nv_cmp_ne_u32 vcc, 0, v{acc}")

    def tag(regs):
        for r in regs:
            a(f"v_and_or_b32 v{r}, v{r}, s{sHI24}, v{vTAG}")

    def quadsum(dst, src, tmp):
        a(f"v_mov_b32_dpp v{dst}, v{src} quad_perm:[0,0,0,0] {DPP}")
        a(f"v_mov_b32_dpp v{tmp}, v{src+2} quad_perm:[2,2,2,2] {DPP}")
        a(f"v_add_f32_dpp v{dst}, v{src+1}, v{dst} quad_perm:[1,1,1,1] {DPP}")
        a(f"v_add_f32_dpp v{tmp}, v{src+3}, v{tmp} quad_perm:[3,3,3,3] {DPP}")
        a(f"v_add_f32 v{dst}, v{dst}, v{tmp}")

    def setexec(mask):
        lo, hi = mask & 0xffffffff, mask >> 32
        if mask == (1 << 64) - 1: a("s_mov_b64 exec, -1")
        elif mask <= 64: a(f"s_mov_b64 exec, {mask}")
        else: a(f"s_mov_b32 exec_lo, {lo:#x}\ns_mov_b32 exec_hi, {hi:#x}")
    FULL = (1 << 64) - 1

    vL, vG, vJ, vT0, vT1, vT2, vT3, vTAG = 1, 2, 3, 4, 5, 6, 7, 8
    vMASK = 10
    vOW, vOX = 14, 15
    vST0, vST1 = 16, 17
    vX = 20
    vB = 28
    vACC = 36
    vW = 44

    hdr = [f"; @launch grid=(256,1,1) block=(256,1,1) lds={160*KB}"]
    a(f'.amdgcn_target "amdgcn-amd-amdhsa--gfx950"\n.text\n.globl {NAME}_kernel\n.p2align 8\n.type {NAME}_kernel,@function')
    a(f"{NAME}_kernel:")
    a("s_cmp_ge_u32 s2, 256\ns_cbranch_scc1 L_end")
    a("s_load_dwordx16 s[4:19], s[0:1], 0\ns_load_dwordx8 s[20:27], s[0:1], 64\ns_load_dwordx4 s[28:31], s[0:1], 96")
    if STAMP: a(f"s_memrealtime s[{sTS}:{sTS+1}]")
    a(f"v_lshrrev_b32 v{vT0}, 6, v0\nv_and_b32 v{vL}, 63, v0\nv_readfirstlane_b32 s{sW}, v{vT0}")
    a(f"s_lshr_b32 s{sH}, s2, 3\ns_sub_u32 s{sP}, s2, s{sH}\ns_sub_u32 s{sP}, s{sP}, 1\ns_and_b32 s{sP}, s{sP}, 7")
    a(f"v_lshrrev_b32 v{vG}, 4, v{vL}\nv_and_b32 v{vJ}, 15, v{vL}")
    a(f"v_lshlrev_b32 v{vT0}, 16, v{vG}\nv_lshl_add_u32 v{vOW}, v{vJ}, 4, v{vT0}")
    a(f"v_lshrrev_b32 v{vT1}, 3, v{vJ}\nv_lshlrev_b32 v{vT1}, 10, v{vT1}\nv_lshl_add_u32 v{vOX}, v{vG}, 4, v{vT1}")
    a(f"s_and_b32 s{sT0}, s{sP}, 3\ns_lshl_b32 s{sT0}, s{sT0}, 2\ns_add_u32 s{sT0}, s{sT0}, s{sW}")
    a(f"s_lshl_b32 s{sT1}, s{sT0}, 6\ns_lshl_b32 s{sT0}, s{sT0}, 18\ns_lshl_b32 s{sT2}, s{sH}, 8\ns_add_u32 s{sT0}, s{sT0}, s{sT2}")
    a(f"s_mov_b32 s{rW+2}, {4*MB}\ns_mov_b32 s{rW+3}, 0x20000\ns_mov_b32 s{rX+2}, 4096\ns_mov_b32 s{rX+3}, 0x20000")
    a(f"s_cmp_ge_u32 s{sP}, 4\ns_waitcnt lgkmcnt(0)")
    a(f"s_cselect_b64 s[{rW}:{rW+1}], s[{pAWQ}:{pAWQ+1}], s[{pBWQ}:{pBWQ+1}]")
    a(f"s_cselect_b64 s[{rX}:{rX+1}], s[{pAX}:{pAX+1}], s[{pBX}:{pBX+1}]")
    a(f"s_load_dword s{sTAG}, s[{pWS}:{pWS+1}], 0")
    for u in range(2):
        a.vm(f"buffer_load_dwordx4 {V(vX+4*u,4)}, v{vOX}, s[{rX}:{rX+3}], s{sT1} offen offset:{2048*u}", "X")
    for t in range(8):
        a.vm(f"buffer_load_dwordx4 {V(vW+4*t,4)}, v{vOW}, s[{rW}:{rW+3}], s{sT0} offen nt", f"W{t}")
        if t < 7: a(f"s_add_u32 s{sT0}, s{sT0}, 8192")
    srd(rWS, pWS, WS_SIZE)
    a(f"s_mov_b32 s{sSELLO}, 0x01000100\ns_mov_b32 s{sSELHI}, 0x03020302\ns_mov_b32 s{sHI24}, 0xffffff00")
    a(f"s_mov_b32 s{sC}, {f32(SCALE):#x}\ns_mov_b32 s{sSPIN}, {SPIN}")
    a(f"v_and_b32 v{vT0}, 1, v{vL}\nv_lshlrev_b32 v{vT0}, 4, v{vT0}\nv_mov_b32 v{vT1}, 0xffff\nv_lshlrev_b32 v{vT0}, v{vT0}, v{vT1}")
    a(f"v_bfe_u32 v{vT1}, v{vL}, 1, 2")
    for r in range(4):
        a(f"v_cmp_eq_u32 vcc, {r}, v{vT1}\nv_cndmask_b32 v{vMASK+r}, 0, v{vT0}, vcc")
    if STAMP:
        a(f"s_lshl_b32 s{sT2}, s2, 2\ns_add_u32 s{sT2}, s{sT2}, s{sW}\ns_lshl_b32 s{sT2}, s{sT2}, 6\ns_add_u32 s{sT2}, s{sT2}, {WS_ST}\nv_mov_b32 v{vST0}, s{sT2}")
        a(f"v_mov_b32 v{vST1}, s{sTS}\ns_mov_b64 exec, 1")
        a(f"buffer_store_dword v{vST1}, v{vST0}, s[{rWS}:{rWS+3}], 0 offen\ns_mov_b64 exec, -1")
    a(f"s_cmp_eq_u32 s{sP}, 7\ns_cbranch_scc1 L_aux")
    q_entry = list(a.q)

    def qpart(next_load):
        for t in range(8):
            a.wait(f"W{t}")
            next_load(t)
            for u in range(2):
                a(f"v_perm_b32 v{vT0+u}, v{vX+4*u+(t>>1)}, v{vX+4*u+(t>>1)}, s{sSELHI if t & 1 else sSELLO}")
            for u in range(2):
                for r in range(4):
                    a(f"v_and_b32 v{vB+4*u+r}, v{vT0+u}, v{vMASK+r}")
            for u in range(2):
                c = V(vACC+4*u, 4) if t else "0"
                a(f"v_mfma_f32_16x16x32_bf16 {V(vACC+4*u,4)}, {V(vW+4*t,4)}, {V(vB+4*u,4)}, {c}")
        a(f"s_lshl_b32 s{sT2}, s{sW}, 11\ns_add_u32 s{sT2}, s{sT2}, {LDS_EX}")
        a(f"v_lshrrev_b32 v{vT0}, 3, v{vJ}\nv_lshlrev_b32 v{vT0}, 9, v{vT0}\nv_lshl_add_u32 v{vT0}, v{vG}, 7, v{vT0}")
        a(f"v_and_b32 v{vT1}, 7, v{vJ}\nv_lshl_add_u32 v{vT0}, v{vT1}, 2, v{vT0}\nv_add_u32 v{vT0}, s{sT2}, v{vT0}")
        a(f"s_lshl_b32 s{sT2}, s{sW}, 9\nv_and_b32 v{vT1}, 31, v{vL}\nv_lshl_add_u32 v{vT1}, v{vT1}, 4, s{sT2}")
        a(f"v_add_u32 v{vT2}, {LDS_EX}, v{vT1}")
        for u in range(2):
            for r in range(4):
                a(f"ds_write_b32 v{vT0}, v{vACC+4*u+r} offset:{u*1024+r*32}")
        a("s_waitcnt lgkmcnt(0)\ns_barrier")
        for p in range(4):
            a(f"ds_read_b128 {V(vW+4*p,4)}, v{vT2} offset:{p*2048}")
        a(f"s_add_u32 s{sTAG}, s{sTAG}, 0x5b\ns_and_b32 s{sTAG}, s{sTAG}, 0xff\nv_mov_b32 v{vTAG}, s{sTAG}")
        a(f"s_lshl_b32 s{sT2}, s{sH}, 3\ns_add_u32 s{sT2}, s{sT2}, s{sP}\ns_lshl_b32 s{sT2}, s{sT2}, 11\ns_add_u32 s{sT2}, s{sT2}, {WS_QP}")
        a("s_waitcnt lgkmcnt(0)")
        for r in range(4):
            a(f"v_add_f32 v{vW+r}, v{vW+r}, v{vW+4+r}\nv_add_f32 v{vW+8+r}, v{vW+8+r}, v{vW+12+r}")
        for r in range(4):
            a(f"v_add_f32 v{vW+r}, v{vW+r}, v{vW+8+r}")
        tag(range(vW, vW+4))
        setexec(0xffffffff)
        a.vm(f"buffer_store_dwordx4 {V(vW,4)}, v{vT1}, s[{rWS}:{rWS+3}], s{sT2} offen sc1", "QPst")
        setexec(FULL)

    vOK, vOV, vOQ, vOP = 76, 77, 78, 79
    vBQ = 80
    vPB = 96
    vS, vO = 112, 116
    vMC, vLS, vSC, vP, vU0, vU1 = 120, 121, 122, 123, 124, 125
    vQ = 44
    RING = 128
    srd(rK, pK, 128*MB); srd(rV, pV, 128*MB)
    gs = GS if GS else 8
    tstep = 256 if GS else 1024
    a(f"v_lshrrev_b32 v{vT0}, 2, v{vJ}\nv_and_b32 v{vT1}, 3, v{vJ}")
    a(f"v_lshlrev_b32 v{vOK}, {gs}, v{vT0}\nv_lshl_add_u32 v{vOK}, v{vG}, 6, v{vOK}\nv_lshl_add_u32 v{vOK}, v{vT1}, 4, v{vOK}")
    a(f"v_lshlrev_b32 v{vOV}, {gs}, v{vG}\nv_lshl_add_u32 v{vOV}, v{vJ}, 4, v{vOV}")
    a(f"v_lshlrev_b32 v{vOQ}, 11, v{vT0}\nv_lshl_add_u32 v{vOQ}, v{vG}, 7, v{vOQ}\nv_lshl_add_u32 v{vOQ}, v{vT1}, 5, v{vOQ}")
    a(f"s_lshl_b32 s{sBASE}, s{sW}, 5\ns_add_u32 s{sBASE}, s{sBASE}, s{sH}\ns_lshl_b32 s{sBASE}, s{sBASE}, 20")
    a(f"s_mul_i32 s{sROT}, s{sH}, {ROTH}\ns_mul_i32 s{sT2}, s{sW}, {ROTW}\ns_add_u32 s{sROT}, s{sROT}, s{sT2}")
    a(f"s_mov_b32 s{sTK}, s{sP}")

    def unit_addr(dst, guard=True):
        a(f"s_add_u32 s{sT3}, s{sTK}, s{sROT}\ns_and_b32 s{sT3}, s{sT3}, 255")
        if GS:
            lo = GS - 10
            a(f"s_lshr_b32 s{dst}, s{sT3}, {lo}\ns_lshl_b32 s{dst}, s{dst}, {GS+2}\ns_and_b32 s{sT3}, s{sT3}, {(1<<lo)-1}")
            a(f"s_lshl_b32 s{sT3}, s{sT3}, 10\ns_add_u32 s{dst}, s{dst}, s{sT3}\ns_add_u32 s{dst}, s{dst}, s{sBASE}")
        else:
            a(f"s_lshl_b32 s{sT3}, s{sT3}, 12\ns_add_u32 s{dst}, s{sT3}, s{sBASE}")
        if guard:
            a(f"s_cmp_ge_u32 s{sTK}, 256\ns_cselect_b32 s{dst}, {128*MB}, s{dst}")

    def kv_load(slot, r, base, tg):
        isv = r >= 4
        a.vm(f"buffer_load_dwordx4 {V(RING+4*slot,4)}, v{vOV if isv else vOK}, s[{rV if isv else rK}:{(rV if isv else rK)+3}], s{base} offen offset:{(r%4)*tstep} nt", tg)

    def pre_load(n):
        if n % 8 == 0:
            if n: a(f"s_add_u32 s{sTK}, s{sTK}, 7")
            unit_addr(sU0, guard=False)
        kv_load(n, n % 8, sU0, f"P{n}")

    def softmax_part():
        quadsum(vSC, vS, vU0)
        skip = a.label("nomax")
        a(f"v_fma_f32 v{vP}, v{vSC}, s{sC}, -v{vMC}\nv_cmp_lt_f32 vcc, 0, v{vP}\ns_cbranch_vccz {skip}")
        a(f"v_mul_f32 v{vSC}, s{sC}, v{vSC}")
        a(f"v_max_f32_dpp v{vU0}, v{vSC}, v{vSC} row_ror:4 {DPP}")
        a(f"v_max_f32_dpp v{vU0}, v{vU0}, v{vU0} row_ror:8 {DPP}")
        a(f"v_mov_b32 v{vU1}, v{vU0}\nv_permlane16_swap_b32 v{vU0}, v{vU1}\nv_max_f32 v{vU0}, v{vU0}, v{vU1}")
        a(f"v_mov_b32 v{vU1}, v{vU0}\nv_permlane32_swap_b32 v{vU0}, v{vU1}\nv_max_f32 v{vU0}, v{vU0}, v{vU1}")
        a(f"v_and_b32 v{vU0}, s{sHI24}, v{vU0}\nv_max_f32 v{vU0}, v{vU0}, v{vMC}")
        a(f"v_sub_f32 v{vU1}, v{vMC}, v{vU0}\nv_exp_f32 v{vU1}, v{vU1}\nv_mov_b32 v{vMC}, v{vU0}\nv_sub_f32 v{vP}, v{vSC}, v{vU0}")
        a(f"v_mul_f32 v{vLS}, v{vLS}, v{vU1}")
        for r in range(4):
            a(f"v_mul_f32 v{vO+r}, v{vO+r}, v{vU1}")
        a(f"{skip}:")
        a(f"v_exp_f32 v{vP}, v{vP}")
        a(f"v_cvt_pk_bf16_f32 v{vU0}, v{vP}, v{vP}\nv_add_f32 v{vLS}, v{vLS}, v{vP}")
        for t in range(4):
            for r in range(4):
                a(f"v_and_b32_dpp v{vPB+4*t+r}, v{vU0}, v{vMASK+r} row_newbcast:{4*t} {DPP}")

    def consume(slot, r):
        if r < 4:
            c = V(vS, 4) if r else "0"
            a(f"v_mfma_f32_16x16x32_bf16 {V(vS,4)}, {V(RING+4*slot,4)}, {V(vBQ+4*r,4)}, {c}")
            if r == 3: softmax_part()
        else:
            a(f"v_mfma_f32_16x16x32_bf16 {V(vO,4)}, {V(RING+4*slot,4)}, {V(vPB+4*(r-4),4)}, {V(vO,4)}")

    def q_poll():
        for i in range(2):
            a.vm(f"buffer_load_dwordx4 {V(vQ+4*i,4)}, v{vOQ}, s[{rWS}:{rWS+3}], s{sU1} offen offset:{16*i} sc1", "Q")

    npre = [0]
    def b_next(t):
        if t >= 8 - D:
            pre_load(npre[0]); npre[0] += 1
    qpart(b_next)
    stamp(1)
    a(f"s_lshl_b32 s{sU1}, s{sH}, 14\ns_lshl_b32 s{sT2}, s{sW}, 9\ns_add_u32 s{sU1}, s{sU1}, s{sT2}\ns_add_u32 s{sU1}, s{sU1}, {WS_QP}")
    a(f"v_mov_b32 v{vMC}, 0xff7f0000\nv_mov_b32 v{vLS}, 0")
    for r in range(4): a(f"v_mov_b32 v{vO+r}, 0")
    a(f"v_lshlrev_b32 v{vT0}, 7, v{vG}\nv_lshl_add_u32 v{vT0}, v{vJ}, 4, v{vT0}\nv_mov_b32 v{vT1}, 512")
    a(f"v_cmp_gt_u32 vcc, 8, v{vJ}\nv_cndmask_b32 v{vOP}, v{vT1}, v{vT0}, vcc")
    while npre[0] < 32:
        n = npre[0]
        a.wait(f"P{n-D}")
        if n == POLLAT: q_poll()
        pre_load(n); npre[0] += 1
    if "Q" in a.q: a.wait("Q")
    qcheck, qok = a.label("qcheck"), a.label("qok")
    a(f"{qcheck}:")
    untag(list(range(vQ, vQ+8)), vT0)
    a(f"s_cbranch_vccz {qok}")
    saved = list(a.q)
    q_poll()
    a("s_waitcnt vmcnt(0)")
    spin_guard(qcheck)
    a.q = saved
    a(f"{qok}:")
    stamp(2)
    for ror in (8, 4):
        for i in range(8):
            a(f"v_add_f32_dpp v{vQ+i}, v{vQ+i}, v{vQ+i} row_ror:{ror} {DPP}")
    for r in range(4):
        a(f"v_cvt_pk_bf16_f32 v{vQ+r}, v{vQ+2*r}, v{vQ+2*r+1}")
    for t in range(4):
        m = 0x000f000f << (4*t)
        a(f"s_mov_b32 vcc_lo, {m:#x}\ns_mov_b32 vcc_hi, {m:#x}")
        for r in range(4):
            a(f"v_cndmask_b32 v{vBQ+4*t+r}, 0, v{vQ+r}, vcc")
    a(f"s_add_u32 s{sTK}, s{sTK}, 7")
    unit_addr(sU0, guard=False)
    for n in range(32):
        if f"P{n}" in a.q: a.wait(f"P{n}")
        consume(n, n % 8)
        if n < D: kv_load(n, n, sU0, f"L{n}")
    stamp(3)
    a("L_bloop:")
    for half in range(2):
        cur, nxt = (sU0, sU1) if half == 0 else (sU1, sU0)
        for r in range(8):
            n = r + D
            a(f"s_waitcnt vmcnt({D-1})")
            if n == 8:
                a(f"s_add_u32 s{sTK}, s{sTK}, 7")
                unit_addr(nxt)
            kv_load((half*8 + n) % 16, n % 8, cur if n < 8 else nxt, "loop")
            consume(half*8 + r, r)
        a(f"s_cmp_ge_u32 s{sTK}, 256")
        a("s_cbranch_scc1 L_bdone" if half == 0 else "s_cbranch_scc0 L_bloop")
    a("L_bdone:")
    a(f"v_add_f32_dpp v{vLS}, v{vLS}, v{vLS} row_ror:8 {DPP}")
    a(f"s_lshl_b32 s{sT2}, s{sH}, 2\ns_add_u32 s{sT2}, s{sT2}, s{sW}")
    a(f"v_add_f32_dpp v{vLS}, v{vLS}, v{vLS} row_ror:4 {DPP}")
    a(f"v_mov_b32 v{vU1}, v{vLS}")
    a(f"s_lshl_b32 s{sT2}, s{sT2}, 3\ns_add_u32 s{sT2}, s{sT2}, s{sP}")
    a(f"v_permlane16_swap_b32 v{vLS}, v{vU1}\nv_add_f32 v{vLS}, v{vLS}, v{vU1}\nv_mov_b32 v{vU1}, v{vLS}")
    a(f"s_lshl_b32 s{sT2}, s{sT2}, 10\ns_add_u32 s{sT2}, s{sT2}, {WS_OP}")
    a(f"v_permlane32_swap_b32 v{vLS}, v{vU1}")
    setexec(1 << 8)
    a(f"v_add_f32 v{vO+1}, v{vLS}, v{vU1}\nv_mov_b32 v{vO}, v{vMC}")
    setexec(0x00ff00ff00ff01ff)
    tag(range(vO, vO+4))
    a(f"buffer_store_dwordx4 {V(vO,4)}, v{vOP}, s[{rWS}:{rWS+3}], s{sT2} offen sc1")
    stamp(4)
    a("s_endpgm")

    a("L_aux:")
    a.q = list(q_entry)
    A0, A1 = 0, 128
    vOU, vOR8, vOR1 = 18, 19, 9
    vOC = 76
    vAQ, vAP = 80, 81
    vAD = 82
    vM, vLL, vAL, vEX = 90, 91, 92, 94
    vWR = 96
    vTRB, vZ = 95, 100
    vQL = 104
    vCT = 136
    vSS = 200
    vKA = 20
    vPP = 52
    vE1 = 60
    vE2 = 216
    srd(rUK, pUK, 4*MB); srd(rCK, pCK, 16*MB)
    a(f"v_lshrrev_b32 v{vT0}, 2, v{vJ}\nv_and_b32 v{vT1}, 3, v{vJ}")
    a(f"v_lshlrev_b32 v{vOU}, 18, v{vT0}\nv_lshl_add_u32 v{vOU}, v{vG}, 6, v{vOU}\nv_lshl_add_u32 v{vOU}, v{vT1}, 4, v{vOU}")
    a(f"s_lshl_b32 s{sU0}, s{sW}, 20\ns_lshl_b32 s{sT2}, s{sH}, 8\ns_add_u32 s{sU0}, s{sU0}, s{sT2}\ns_mov_b32 s{sBASE}, s{sU0}")
    def uk_load(t):
        a.vm(f"buffer_load_dwordx4 {A(A0+4*t,4)}, v{vOU}, s[{rUK}:{rUK+3}], s{sU0} offen nt", f"UK{t}")
        a(f"s_add_u32 s{sU0}, s{sU0}, 8192")
    qpart(uk_load)
    stamp(1)
    for t in range(8, 32): uk_load(t)
    vQA = 136
    a(f"v_lshrrev_b32 v{vT0}, 2, v{vJ}\nv_and_b32 v{vT1}, 3, v{vJ}")
    a(f"v_lshlrev_b32 v{vT2}, 9, v{vT0}\nv_lshl_add_u32 v{vT2}, v{vG}, 7, v{vT2}\nv_lshl_add_u32 v{vT2}, v{vT1}, 5, v{vT2}")
    a(f"s_lshl_b32 s{sU1}, s{sH}, 14\ns_add_u32 s{sU1}, s{sU1}, {WS_QP + 4*2048}\ns_add_u32 s{sT0}, s{sU1}, 4096")
    def qa_poll():
        for p in range(4):
            for i in range(2):
                a.vm(f"buffer_load_dwordx4 {V(vQA+8*p+4*i,4)}, v{vT2}, s[{rWS}:{rWS+3}], s{sU1 if p < 2 else sT0} offen offset:{(p&1)*2048+16*i} sc1", "QA")
    qa_poll()
    a(f"v_lshlrev_b32 v{vT0}, 2, v{vG}\nv_xor_b32 v{vT0}, v{vT0}, v{vJ}")
    for i in range(4):
        a(f"v_xor_b32 v{vT1}, {i}, v{vT0}\nv_lshlrev_b32 v{vT1}, 4, v{vT1}\nv_lshl_add_u32 v{vOC+i}, v{vG}, 10, v{vT1}")
        a(f"v_lshl_add_u32 v{vWR+i}, v{vG}, 8, v{vT1}")
        if i: a(f"v_add_u32 v{vOC+i}, {i*3072}, v{vOC+i}")
    a(f"s_lshl_b32 s{sM0}, s{sW}, 15")
    for i in range(4):
        a(f"v_add_u32 v{vWR+i}, s{sM0}, v{vWR+i}")
    a(f"s_lshl_b32 s{sCKO}, s{sH}, 19\ns_lshl_b32 s{sT2}, s{sW}, 8\ns_add_u32 s{sCKO}, s{sCKO}, s{sT2}")
    a(f"s_mov_b32 s{sSLOT}, 0")
    def ck_tile(tg):
        for hf in range(2):
            a(f"s_add_u32 s{sT3}, s{sM0}, s{sSLOT}")
            if hf: a(f"s_add_u32 s{sT3}, s{sT3}, 4096")
            a(f"s_mov_b32 m0, s{sT3}")
            for i in range(4):
                a.vm(f"buffer_load_dwordx4 v{vOC+i}, s[{rCK}:{rCK+3}], s{sCKO} offen offset:{i*1024} nt lds", tg)
            a(f"s_add_u32 s{sCKO}, s{sCKO}, 16384")
    def next_slot():
        a(f"s_add_u32 s{sSLOT}, s{sSLOT}, 8192\ns_and_b32 s{sSLOT}, s{sSLOT}, 0x7fff")
    ck_tile("CK0"); next_slot()
    a.wait("QA")
    chk, ok = a.label("qacheck"), a.label("qaok")
    a(f"{chk}:")
    untag(list(range(vQA, vQA+32)), vT0)
    a(f"s_cbranch_vccz {ok}")
    saved = list(a.q)
    qa_poll()
    a("s_waitcnt vmcnt(0)")
    spin_guard(chk)
    a.q = saved
    a(f"{ok}:")
    stamp(2)
    for i in range(8):
        a(f"v_add_f32 v{vQA+i}, v{vQA+i}, v{vQA+16+i}\nv_add_f32 v{vQA+8+i}, v{vQA+8+i}, v{vQA+24+i}")
    for i in range(8):
        a(f"v_add_f32 v{vQA+i}, v{vQA+i}, v{vQA+8+i}")
    for r in range(4):
        a(f"v_cvt_pk_bf16_f32 v{vB+r}, v{vQA+2*r}, v{vQA+2*r+1}")
    ck_tile("CK1"); next_slot()
    vD, vR, vPK = 136, 168, 200
    def fold(t):
        quadsum(vR+t, vD + 4*(t % 8), vT0)
    for t in range(32):
        a(f"v_mfma_f32_16x16x32_bf16 {V(vD+4*(t%8),4)}, {A(A0+4*t,4)}, {V(vB,4)}, 0")
        if t >= 3: fold(t - 3)
    for t in range(29, 32): fold(t)
    for i in range(16):
        a(f"v_cvt_pk_bf16_f32 v{vPK+i}, v{vR+2*i}, v{vR+2*i+1}")
    for q in range(1, 4):
        setexec(0x1111111111111111 << q)
        for r in range(4):
            a(f"v_mov_b32 v{vPK+r}, v{vPK+4*q+r}")
    setexec(FULL)
    a(f"v_lshrrev_b32 v{vT0}, 2, v{vJ}\nv_and_b32 v{vT1}, 3, v{vJ}")
    a(f"v_lshlrev_b32 v{vT2}, 15, v{vT0}\nv_lshl_add_u32 v{vT2}, v{vG}, 6, v{vT2}\nv_lshl_add_u32 v{vT2}, v{vT1}, 4, v{vT2}")
    a(f"s_lshl_b32 s{sT0}, s{sH}, 10\ns_lshl_b32 s{sT2}, s{sW}, 8\ns_add_u32 s{sT0}, s{sT0}, s{sT2}\ns_add_u32 s{sT0}, s{sT0}, {WS_QL}")
    a.vm(f"buffer_store_dwordx4 {V(vPK,4)}, v{vT2}, s[{rWS}:{rWS+3}], s{sT0} offen sc1", "QLst")
    ck_tile("CK2"); next_slot()
    srd(rDBG, pDBG, 256); srd(rUV, pUV, 4*MB); srd(rWA, pAWO, 4*MB); srd(rWB, pBWO, 4*MB); srd(rOUT, pOUT, 8192)
    a(f"v_mov_b32 v{vZ}, 0\nv_mov_b32 v{vZ+1}, 1")
    a(f"v_lshlrev_b32 v{vT0}, 4, v{vJ}\nv_lshl_add_u32 v{vOR8}, v{vG}, 13, v{vT0}\nv_lshl_add_u32 v{vOR1}, v{vG}, 10, v{vT0}")

    def signal(tg, off):
        a.wait(tg)
        a("s_barrier")
        skip = a.label("nosig")
        a(f"s_cmp_lg_u32 s{sW}, 0\ns_cbranch_scc1 {skip}")
        setexec(1)
        a(f"buffer_atomic_add v{vZ+1}, v{vZ}, s[{rDBG}:{rDBG+3}], 0 offen offset:{off} sc1")
        setexec(FULL)
        a(f"{skip}:")

    def flag_load(off):
        a.vm(f"buffer_load_dword v{vT3}, v{vZ}, s[{rDBG}:{rDBG+3}], 0 offen offset:{off} sc1", "FL")

    def flag_wait(off):
        a.wait("FL")
        chk, ok = a.label("fcheck"), a.label("fok")
        a(f"{chk}:\nv_cmp_ne_u32 vcc, 32, v{vT3}\ns_cbranch_vccz {ok}")
        saved = list(a.q)
        a("s_sleep 4")
        flag_load(off)
        a("s_waitcnt vmcnt(0)")
        spin_guard(chk)
        a.q = saved
        a(f"{ok}:")

    sUV, sWO = sU0, sU1
    def uv_load(i):
        a.vm(f"buffer_load_dwordx4 {A(A1+4*i,4)}, v{vOR8}, s[{rUV}:{rUV+3}], s{sUV} offen nt", f"UV{i}")
        a(f"s_add_u32 s{sUV}, s{sUV}, 32768")
    def wo_load(i, isb):
        r = rWB if isb else rWA
        a.vm(f"buffer_load_dwordx4 {A((A1 if isb else A0)+4*i,4)}, v{vOR1}, s[{r}:{r+3}], s{sWO} offen nt", f"W{'B' if isb else 'A'}{i}")
        a(f"s_add_u32 s{sWO}, s{sWO}, 4096")
    def wo_base():
        a(f"s_lshl_b32 s{sWO}, s{sH}, 17\ns_lshl_b32 s{sT2}, s{sW}, 8\ns_add_u32 s{sWO}, s{sWO}, s{sT2}")

    signal("QLst", 0)
    stamp(3)
    ck_tile("CK3"); next_slot()
    a(f"s_mov_b32 s{sUV}, s{sBASE}")
    wo_base()
    flag_load(0)
    for i in range(8): uv_load(i)
    flag_wait(0)
    stamp(4)
    a(f"s_lshr_b32 s{sT0}, s{sH}, 3\ns_lshl_b32 s{sT0}, s{sT0}, 15\ns_lshl_b32 s{sT2}, s{sW}, 8\ns_add_u32 s{sT0}, s{sT0}, s{sT2}\ns_add_u32 s{sT0}, s{sT0}, {WS_QL}")
    for i in range(8):
        a.vm(f"buffer_load_dwordx4 {V(vKA+4*i,4)}, v{vOR1}, s[{rWS}:{rWS+3}], s{sT0} offen sc1", "QLg")
        if i < 7: a(f"s_add_u32 s{sT0}, s{sT0}, 4096")
    for i in range(8, 16): uv_load(i)
    a(f"v_and_b32 v{vT0}, 3, v{vL}\nv_bfe_u32 v{vT1}, v{vL}, 2, 2\nv_lshrrev_b32 v{vT2}, 5, v{vL}")
    a(f"v_lshl_add_u32 v{vT3}, v{vT0}, 2, v{vT1}\nv_xor_b32 v{vT3}, v{vT3}, v{vT2}\nv_lshlrev_b32 v{vT3}, 4, v{vT3}")
    a(f"v_and_b32 v{vAQ}, 31, v{vL}\nv_lshl_add_u32 v{vAQ}, v{vAQ}, 8, v{vT3}")
    a(f"v_lshl_add_u32 v{vAP}, v{vT2}, 2, v{vT1}\nv_lshlrev_b32 v{vAP}, 8, v{vAP}\nv_lshl_add_u32 v{vAP}, v{vT1}, 6, v{vAP}")
    a(f"v_bfe_u32 v{vT3}, v{vL}, 4, 1\nv_lshlrev_b32 v{vT3}, 1, v{vT3}\nv_bfe_u32 v{vU0}, v{vL}, 1, 1\nv_add_u32 v{vT3}, v{vT3}, v{vU0}")
    a(f"v_xor_b32 v{vT3}, v{vT3}, v{vT2}\nv_lshl_add_u32 v{vAP}, v{vT3}, 4, v{vAP}")
    a(f"v_and_b32 v{vT3}, 1, v{vL}\nv_lshl_add_u32 v{vAP}, v{vT3}, 3, v{vAP}")
    a(f"v_lshl_add_u32 v{vTRB}, v{vG}, 3, v{vT1}\nv_lshlrev_b32 v{vTRB}, 8, v{vTRB}\nv_lshl_add_u32 v{vTRB}, v{vT1}, 6, v{vTRB}")
    a(f"v_bfe_u32 v{vT0}, v{vL}, 4, 1\nv_lshl_add_u32 v{vT0}, v{vT0}, 1, v{vU0}\nv_lshl_add_u32 v{vTRB}, v{vT0}, 4, v{vTRB}")
    a(f"v_lshl_add_u32 v{vTRB}, v{vT3}, 3, v{vTRB}\nv_add_u32 v{vTRB}, s{sM0}, v{vTRB}")
    a(f"s_lshl_b32 s{sT1}, s{sW}, 13\ns_add_u32 s{sT1}, s{sT1}, {LDS_EX}\nv_lshl_add_u32 v{vEX}, v{vL}, 4, s{sT1}")
    a(f"s_sub_u32 s{sT2}, s{sT1}, s{sM0}")
    for i in range(4):
        a(f"v_add_u32 v{vAD+i}, s{sT2}, v{vWR+i}")
    a.wait("QLg")
    for i in range(8):
        a(f"ds_write_b128 v{vAD+(i&3)}, {V(vKA+4*i,4)} offset:{i*1024}")
    a(f"v_add_u32 v{vT0}, s{sT1}, v{vAQ}")
    for k in range(8):
        a(f"v_xor_b32 v{vAD+k}, {32*k}, v{vT0}")
    a("s_waitcnt lgkmcnt(0)")
    for k in range(8):
        a(f"ds_read_b128 {V(vQL+4*k,4)}, v{vAD+k}")
    for i in range(64): a(f"v_mov_b32 v{vCT+i}, 0")
    a(f"v_mov_b32 v{vM}, 0xff7f0000\nv_mov_b32 v{vLL}, 0\ns_mov_b32 s{sIT}, 0")
    a(f"v_add_u32 v{vAQ}, s{sM0}, v{vAQ}\nv_add_u32 v{vAP}, s{sM0}, v{vAP}")
    a("s_waitcnt lgkmcnt(0)")
    stamp(5)
    a("L_att:")
    a(f"v_add_u32 v{vT0}, s{sSLOT}, v{vAQ}")
    for k in range(8):
        a(f"v_xor_b32 v{vAD+k}, {32*k}, v{vT0}")
    a("s_waitcnt vmcnt(24)")
    for k in range(8):
        a(f"ds_read_b128 {V(vKA+4*k,4)}, v{vAD+k}")
    a(f"v_add_u32 v{vT0}, s{sSLOT}, v{vAP}")
    for k in range(8):
        a(f"s_waitcnt lgkmcnt({7-k})")
        c = V(vSS, 16) if k else "0"
        a(f"v_mfma_f32_32x32x16_bf16 {V(vSS,16)}, {V(vKA+4*k,4)}, {V(vQL+4*k,4)}, {c}")
        a(f"v_xor_b32 v{vAD+k}, {32*k}, v{vT0}")
    for nt in range(4):
        for sg in range(2):
            for pi in range(2):
                a(f"ds_read_b64_tr_b16 {V(vKA+8*nt+4*sg+2*pi,2)}, v{vAD+2*nt+pi} offset:{4096*sg+2048*pi}")
    a(f"v_xor_b32 v{vT1}, 0x2000, v{vEX}\nv_xor_b32 v{vT2}, 0x4000, v{vEX}\nv_xor_b32 v{vT3}, 0x6000, v{vEX}")
    for q in range(4):
        a(f"ds_write_b128 v{vEX}, {V(vSS+4*q,4)} offset:{1024*q}")
    a("s_waitcnt lgkmcnt(0)\ns_barrier")
    for q in range(4):
        a(f"ds_read_b128 {V(vE1+4*q,4)}, v{vT1} offset:{1024*q}")
        a(f"ds_read_b128 {V(vE2+4*q,4)}, v{vT2} offset:{1024*q}")
        a(f"ds_read_b128 {V(vE2+16+4*q,4)}, v{vT3} offset:{1024*q}")
    a(f"v_xor_b32 v{vEX}, 0x1000, v{vEX}")
    blocks = [a.label(f"fill{i}") for i in range(4)]
    filled = a.label("filled")
    a(f"s_cmp_ge_u32 s{sIT}, 12\ns_cbranch_scc1 {blocks[0]}")
    saved = list(a.q)
    ck_tile("loop")
    a.q = saved
    a(f"{filled}:")
    next_slot()
    for q in range(4):
        a(f"s_waitcnt lgkmcnt({9-3*q})")
        for r in range(4*q, 4*q+4):
            a(f"v_add_f32 v{vSS+r}, v{vSS+r}, v{vE1+r}\nv_add_f32 v{vE2+r}, v{vE2+r}, v{vE2+16+r}")
        for r in range(4*q, 4*q+4):
            a(f"v_add_f32 v{vSS+r}, v{vSS+r}, v{vE2+r}")
    a(f"v_max_f32 v{vT0}, v{vSS}, v{vSS+1}")
    for r in range(2, 16, 2):
        a(f"v_max3_f32 v{vT0}, v{vT0}, v{vSS+r}, v{vSS+r+1}")
    a(f"v_mov_b32 v{vT1}, v{vT0}\nv_permlane32_swap_b32 v{vT0}, v{vT1}\nv_max_f32 v{vT0}, v{vT0}, v{vT1}")
    a(f"v_mul_f32 v{vT0}, s{sC}, v{vT0}\nv_max_f32 v{vT0}, v{vT0}, v{vM}")
    a(f"v_sub_f32 v{vAL}, v{vM}, v{vT0}\nv_exp_f32 v{vAL}, v{vAL}\nv_mov_b32 v{vM}, v{vT0}")
    for r in range(16):
        a(f"v_fma_f32 v{vSS+r}, v{vSS+r}, s{sC}, -v{vM}")
    a(f"v_mul_f32 v{vLL}, v{vLL}, v{vAL}")
    for r in range(16):
        a(f"v_exp_f32 v{vSS+r}, v{vSS+r}")
        for i in range(2):
            c = vCT + 4*r + 2*i
            a(f"v_pk_mul_f32 {V(c,2)}, {V(c,2)}, {V(vAL,2)} op_sel_hi:[1,0]")
    for r in range(8):
        a(f"v_cvt_pk_bf16_f32 v{vPP+r}, v{vSS+2*r}, v{vSS+2*r+1}")
    k = 0
    for sg in range(2):
        for nt in range(4):
            a(f"v_mfma_f32_32x32x16_bf16 {V(vCT+16*nt,16)}, {V(vKA+8*nt+4*sg,4)}, {V(vPP+4*sg,4)}, {V(vCT+16*nt,16)}")
            a(f"v_add_f32 v{vLL}, v{vLL}, v{vSS+k}\nv_add_f32 v{vLL}, v{vLL}, v{vSS+k+1}")
            k += 2
    a(f"s_add_u32 s{sIT}, s{sIT}, 1\ns_cmp_lt_u32 s{sIT}, 16\ns_cbranch_scc1 L_att")
    a("s_branch L_attdone")
    a.q = []
    for i in range(4):
        a(f"{blocks[i]}:")
        if i < 3: a(f"s_cmp_lg_u32 s{sIT}, {12+i}\ns_cbranch_scc1 {blocks[i+1]}")
        for n in range(8):
            if i < 2: uv_load(16 + 8*i + n)
            else: wo_load(8*(i-2) + n, False)
        a(f"s_branch {filled}")
    a("L_attdone:")
    stamp(6)
    a(f"v_mov_b32 v{vT1}, v{vLL}\nv_permlane32_swap_b32 v{vLL}, v{vT1}\nv_add_f32 v{vLL}, v{vLL}, v{vT1}")
    a(f"v_and_b32 v{vT0}, 31, v{vL}\nv_mul_u32_u24 v{vT1}, 272, v{vT0}\nv_lshrrev_b32 v{vT2}, 5, v{vL}\nv_lshl_add_u32 v{vT1}, v{vT2}, 3, v{vT1}\nv_add_u32 v{vT1}, s{sM0}, v{vT1}")
    for i in range(32):
        a(f"v_cvt_pk_bf16_f32 v{vKA+i}, v{vCT+2*i}, v{vCT+2*i+1}")
    for nt in range(4):
        for q in range(4):
            a(f"ds_write_b64 v{vT1}, {V(vKA+8*nt+2*q,2)} offset:{64*nt+16*q}")
    a(f"v_mul_u32_u24 v{vT2}, 272, v{vG}\nv_lshl_add_u32 v{vT2}, v{vJ}, 4, v{vT2}\nv_add_u32 v{vT2}, s{sM0}, v{vT2}")
    a(f"v_lshlrev_b32 v{vT3}, 4, v{vJ}\nv_lshl_add_u32 v{vT3}, v{vG}, 15, v{vT3}")
    a(f"s_lshl_b32 s{sT0}, s{sH}, 10\ns_lshl_b32 s{sT2}, s{sW}, 8\ns_add_u32 s{sT0}, s{sT0}, s{sT2}\ns_add_u32 s{sT0}, s{sT0}, {WS_CP}")
    a("s_waitcnt lgkmcnt(0)")
    for i in range(8):
        a(f"ds_read_b128 {V(vCT+4*i,4)}, v{vT2} offset:{1088*i}")
    a(f"v_lshlrev_b32 v{vT0}, 3, v{vT0}\ns_lshl_b32 s{sT1}, s{sH}, 8\ns_add_u32 s{sT1}, s{sT1}, {WS_CS}")
    a(f"s_lshl_b32 s{sT2}, s{sW}, 3\ns_lshl_b32 exec_lo, 0xff, s{sT2}\ns_mov_b32 exec_hi, 0")
    a.vm(f"buffer_store_dwordx2 {V(vM,2)}, v{vT0}, s[{rWS}:{rWS+3}], s{sT1} offen sc1", "CPst")
    setexec(FULL)
    for i in range(8):
        a(f"s_waitcnt lgkmcnt({7-i})")
        a.vm(f"buffer_store_dwordx4 {V(vCT+4*i,4)}, v{vT3}, s[{rWS}:{rWS+3}], s{sT0} offen sc1", "CPst")
        if i < 7: a(f"s_add_u32 s{sT0}, s{sT0}, {4*32*KB}")
    for i in range(16, 24): wo_load(i, False)
    signal("CPst", 128)
    stamp(7)
    for i in range(24, 32): wo_load(i, False)

    vWT = 128
    def slab_in(src):
        for i in range(32):
            a(f"ds_write_b128 v{vWR+(i&3)}, {A(src+4*i,4)} offset:{1024*i}")
        a("s_waitcnt lgkmcnt(0)")
    def slab_out():
        for nt in range(8):
            for pi in range(2):
                a(f"v_xor_b32 v{vT0+pi}, {16*(2*nt+pi)}, v{vTRB}")
                for k in range(4):
                    a(f"ds_read_b64_tr_b16 {V(vWT+16*nt+4*k+2*pi,2)}, v{vT0+pi} offset:{8192*k+1024*pi}")
        a("s_waitcnt lgkmcnt(0)")

    slab_in(A1)
    wo_base()
    flag_load(128)
    for i in range(8): wo_load(i, True)
    slab_out()
    flag_wait(128)
    stamp(8)
    vCB, vSTAT, vDD, vRES = 20, 52, 60, 104
    a(f"v_and_b32 v{vT0}, 3, v{vJ}\nv_lshrrev_b32 v{vT1}, 2, v{vJ}\nv_lshl_add_u32 v{vT2}, v{vT0}, 3, v{vT1}")
    a(f"v_lshlrev_b32 v{vT3}, 8, v{vT2}\nv_lshlrev_b32 v{vT2}, 10, v{vT2}\nv_lshl_add_u32 v{vT2}, v{vG}, 4, v{vT2}")
    a(f"s_lshl_b32 s{sT0}, s{sH}, 15\ns_lshl_b32 s{sT2}, s{sW}, 8\ns_add_u32 s{sT0}, s{sT0}, s{sT2}\ns_add_u32 s{sT0}, s{sT0}, {WS_CP}")
    a(f"s_lshl_b32 s{sT1}, s{sH}, 3\ns_add_u32 s{sT1}, s{sT1}, {WS_CS}")
    for hf in range(2):
        a.vm(f"buffer_load_dwordx2 {V(vSTAT+2*hf,2)}, v{vT3}, s[{rWS}:{rWS+3}], s{sT1} offen offset:{1024*hf} sc1", "CSg")
    for hf in range(2):
        for k in range(4):
            a.vm(f"buffer_load_dwordx4 {V(vCB+16*hf+4*k,4)}, v{vT2}, s[{rWS}:{rWS+3}], s{sT0} offen offset:{64*k} sc1", "CPg")
        a(f"s_add_u32 s{sT0}, s{sT0}, 4096")
    for i in range(8, 32): wo_load(i, True)
    a.wait("CSg")
    a(f"v_max_f32 v{vT0}, v{vSTAT}, v{vSTAT+2}")
    a(f"v_max_f32_dpp v{vT0}, v{vT0}, v{vT0} row_ror:8 {DPP}\nv_max_f32_dpp v{vT0}, v{vT0}, v{vT0} row_ror:4 {DPP}")
    a(f"v_sub_f32 v{vSTAT}, v{vSTAT}, v{vT0}\nv_sub_f32 v{vSTAT+2}, v{vSTAT+2}, v{vT0}")
    a(f"v_exp_f32 v{vSTAT}, v{vSTAT}\nv_exp_f32 v{vSTAT+2}, v{vSTAT+2}")
    a(f"v_mul_f32 v{vT1}, v{vSTAT}, v{vSTAT+1}\nv_fmac_f32 v{vT1}, v{vSTAT+2}, v{vSTAT+3}")
    a(f"v_add_f32_dpp v{vT1}, v{vT1}, v{vT1} row_ror:8 {DPP}\nv_add_f32_dpp v{vT1}, v{vT1}, v{vT1} row_ror:4 {DPP}")
    a(f"v_rcp_f32 v{vT1}, v{vT1}")
    a(f"v_mul_f32 v{vSTAT}, v{vSTAT}, v{vT1}\nv_mul_f32 v{vSTAT+2}, v{vSTAT+2}, v{vT1}")
    a(f"s_lshl_b32 s{sT2}, s{sW}, 11\ns_add_u32 s{sT2}, s{sT2}, {LDS_EX}")
    a(f"v_and_b32 v{vT0}, 3, v{vJ}\nv_lshlrev_b32 v{vT0}, 9, v{vT0}\nv_lshl_add_u32 v{vT0}, v{vG}, 4, v{vT0}\nv_add_u32 v{vT0}, s{sT2}, v{vT0}")
    a.wait("CPg")
    def ctx_fold(nt):
        d = vDD + 8*(nt % 2)
        res = vRES + 4*(nt % 2)
        for r in range(4):
            a(f"v_mul_f32 v{res+r}, v{d+r}, v{vSTAT}")
        for r in range(4):
            a(f"v_fmac_f32 v{res+r}, v{d+4+r}, v{vSTAT+2}")
        for ror in (8, 4):
            for r in range(4):
                a(f"v_add_f32_dpp v{res+r}, v{res+r}, v{res+r} row_ror:{ror} {DPP}")
        a(f"ds_write_b128 v{vT0}, {V(res,4)} offset:{64*nt}")
    for nt in range(8):
        d = vDD + 8*(nt % 2)
        for k in range(4):
            for hf in range(2):
                c = V(d+4*hf, 4) if k else "0"
                a(f"v_mfma_f32_16x16x32_bf16 {V(d+4*hf,4)}, {V(vWT+16*nt+4*k,4)}, {V(vCB+16*hf+4*k,4)}, {c}")
        if nt: ctx_fold(nt - 1)
    ctx_fold(7)
    a(f"s_lshl_b32 s{sT2}, s{sW}, 9\ns_add_u32 s{sT2}, s{sT2}, {LDS_EX}\nv_and_b32 v{vT1}, 31, v{vL}\nv_lshl_add_u32 v{vT2}, v{vT1}, 4, s{sT2}")
    a(f"s_mul_i32 s{sT2}, s{sW}, 320\ns_add_u32 s{sT2}, s{sT2}, {LDS_O}\nv_lshl_add_u32 v{vT3}, v{vT1}, 3, s{sT2}")
    a("s_waitcnt lgkmcnt(0)\ns_barrier")
    for p in range(4):
        a(f"ds_read_b128 {V(vCB+4*p,4)}, v{vT2} offset:{p*2048}")
    a("s_waitcnt lgkmcnt(0)")
    for r in range(4):
        a(f"v_add_f32 v{vCB+r}, v{vCB+r}, v{vCB+4+r}\nv_add_f32 v{vCB+8+r}, v{vCB+8+r}, v{vCB+12+r}")
    for r in range(4):
        a(f"v_add_f32 v{vCB+r}, v{vCB+r}, v{vCB+8+r}")
    a(f"v_cvt_pk_bf16_f32 v{vCB}, v{vCB}, v{vCB+1}\nv_cvt_pk_bf16_f32 v{vCB+1}, v{vCB+2}, v{vCB+3}")
    a(f"ds_write_b64 v{vT3}, {V(vCB,2)}")
    slab_in(A0)
    slab_out()
    stamp(9)

    vBU, vY = 20, 84
    vAO, vAY, vAG, vAF, vAM, vAW = 100, 101, 102, 103, 92, 93
    vG2 = 104
    for i in range(64): a(f"v_mov_b32 v{vBU+i}, 0")
    a(f"v_and_b32 v{vT0}, 3, v{vJ}\nv_mul_u32_u24 v{vAO}, 320, v{vT0}\nv_lshl_add_u32 v{vAO}, v{vG}, 4, v{vAO}\nv_add_u32 v{vAO}, {LDS_O}, v{vAO}")
    a(f"s_lshl_b32 s{sT0}, s{sW}, 16\ns_lshl_b32 s{sT2}, s{sH}, 8\ns_add_u32 s{sT0}, s{sT0}, s{sT2}\nv_add_u32 v{vAY}, s{sT0}, v{vOR8}")
    a(f"s_lshl_b32 s{sT0}, s{sH}, 13\ns_lshl_b32 s{sT2}, s{sW}, 6\ns_add_u32 s{sT0}, s{sT0}, s{sT2}")
    a(f"v_lshrrev_b32 v{vT1}, 2, v{vL}\nv_lshlrev_b32 v{vT1}, 8, v{vT1}\nv_lshl_add_u32 v{vT1}, v{vT0}, 4, v{vT1}\nv_add_u32 v{vAG}, s{sT0}, v{vT1}")
    a(f"s_lshr_b32 s{sT0}, s{sH}, 2\ns_lshl_b32 s{sT0}, s{sT0}, 7\ns_lshl_b32 s{sT2}, s{sW}, 5\ns_add_u32 s{sT0}, s{sT0}, s{sT2}")
    a(f"s_and_b32 s{sT2}, s{sH}, 3\ns_lshl_b32 s{sT2}, s{sT2}, 3\ns_add_u32 s{sT0}, s{sT0}, s{sT2}")
    a(f"v_lshlrev_b32 v{vT1}, 11, v{vT0}\nv_lshl_add_u32 v{vT1}, v{vG}, 1, v{vT1}\nv_add_u32 v{vAF}, s{sT0}, v{vT1}")
    a(f"v_lshlrev_b32 v{vT0}, 7, v{vG}\nv_lshl_add_u32 v{vT0}, v{vJ}, 4, v{vT0}\nv_mov_b32 v{vT1}, 512")
    a(f"v_cmp_gt_u32 vcc, 8, v{vJ}\nv_cndmask_b32 v{vAM}, v{vT1}, v{vT0}, vcc")
    a(f"s_mul_i32 s{sT2}, s{sW}, 320\ns_add_u32 s{sT2}, s{sT2}, {LDS_O}\nv_lshlrev_b32 v{vT0}, 6, v{vG}\nv_lshl_add_u32 v{vT0}, v{vJ}, 1, v{vT0}\nv_add_u32 v{vAW}, s{sT2}, v{vT0}")
    a(f"s_mov_b32 s{sMODE}, 0\ns_mov_b32 s{sYO}, {WS_YA}\ns_mov_b32 s{sOUTO}, 0")
    a("L_final:")
    a("s_waitcnt lgkmcnt(0)\ns_barrier")
    for u in range(4):
        setexec(0x000f000f000f000f << (4*u))
        for k in range(4):
            a(f"ds_read_b128 {V(vBU+16*u+4*k,4)}, v{vAO} offset:{64*k}")
    setexec(FULL)
    a(f"s_add_u32 s{sT0}, s{sYO}, 32768")
    for u in range(4):
        a(f"s_waitcnt lgkmcnt({12-4*u})")
        for k in range(4):
            for v in range(2):
                c = V(vY+4*v, 4) if (u or k) else "0"
                a(f"v_mfma_f32_16x16x32_bf16 {V(vY+4*v,4)}, {V(vWT+16*(4*v+u)+4*k,4)}, {V(vBU+16*u+4*k,4)}, {c}")
    for v in range(2):
        tag(range(vY+4*v, vY+4*v+4))
        a(f"buffer_store_dwordx4 {V(vY+4*v,4)}, v{vAY}, s[{rWS}:{rWS+3}], s{sT0 if v else sYO} offen sc1")
    a(f"s_cmp_eq_u32 s{sMODE}, 0\ns_cbranch_scc1 L_prepb")
    a("L_hop2:")
    a(f"s_add_u32 s{sT0}, s{sYO}, 4096")
    for i in range(2):
        a(f"buffer_load_dwordx4 {V(vG2+4*i,4)}, v{vAG}, s[{rWS}:{rWS+3}], s{sT0 if i else sYO} offen sc1")
    a("s_waitcnt vmcnt(0)")
    untag(list(range(vG2, vG2+8)), vT0)
    a("s_cbranch_vccz L_hop2ok")
    spin_guard("L_hop2")
    a("L_hop2ok:")
    for r in range(4):
        a(f"v_add_f32 v{vG2+r}, v{vG2+r}, v{vG2+4+r}")
    a(f"v_permlane16_swap_b32 v{vG2}, v{vG2+1}\nv_permlane16_swap_b32 v{vG2+2}, v{vG2+3}")
    a(f"v_add_f32 v{vG2}, v{vG2}, v{vG2+1}\nv_add_f32 v{vG2+2}, v{vG2+2}, v{vG2+3}")
    a(f"v_permlane32_swap_b32 v{vG2}, v{vG2+2}\nv_add_f32 v{vG2}, v{vG2}, v{vG2+2}")
    a(f"v_add_f32_dpp v{vG2}, v{vG2}, v{vG2} row_ror:8 {DPP}\nv_add_f32_dpp v{vG2}, v{vG2}, v{vG2} row_ror:4 {DPP}")
    a(f"v_cvt_pk_bf16_f32 v{vG2}, v{vG2}, v{vG2}")
    setexec(0x000f000f000f000f)
    a(f"buffer_store_short v{vG2}, v{vAF}, s[{rOUT}:{rOUT+3}], s{sOUTO} offen")
    setexec(FULL)
    a(f"s_cmp_lg_u32 s{sMODE}, 0\ns_cbranch_scc1 L_fin")
    stamp(11)
    a(f"s_mov_b32 s{sMODE}, 1\ns_mov_b32 s{sYO}, {WS_YB}\ns_mov_b32 s{sOUTO}, 1024")
    a(f"s_lshl_b32 s{sU0}, s{sH}, 2\ns_add_u32 s{sU0}, s{sU0}, s{sW}\ns_lshl_b32 s{sU0}, s{sU0}, 13\ns_add_u32 s{sU0}, s{sU0}, {WS_OP}\ns_add_u32 s{sU1}, s{sU0}, 4096")
    a(f"v_min_u32 v{vT1}, 6, v{vL}\nv_lshlrev_b32 v{vT1}, 10, v{vT1}")
    a("L_light:")
    a(f"buffer_load_dword v{vT2}, v{vT1}, s[{rWS}:{rWS+3}], s{sU0} offen offset:512 sc1\ns_waitcnt vmcnt(0)")
    a(f"v_xor_b32 v{vT2}, s{sTAG}, v{vT2}\nv_and_b32 v{vT2}, 0xff, v{vT2}\nv_cmp_ne_u32 vcc, 0, v{vT2}")
    a(f"s_and_b32 s{sT0}, vcc_lo, 0x7f\ns_bcnt1_i32_b32 s{sT0}, s{sT0}\ns_cmp_le_u32 s{sT0}, 2\ns_cbranch_scc1 L_hop1")
    a("s_sleep 2")
    spin_guard("L_light")
    vMS = [104, 108, 112, 116, 120, 124, 84]
    vWS7 = [4, 5, 6, 7, 88, 89, 90]
    a("L_hop1:")
    for s in range(7):
        a(f"buffer_load_dwordx4 {V(vMS[s],4)}, v{vAM}, s[{rWS}:{rWS+3}], s{sU0 if s < 4 else sU1} offen offset:{1024*(s&3)} sc1")
    a("s_waitcnt vmcnt(0)")
    untag([m + r for m in vMS for r in range(4)], vT0)
    a("s_cbranch_vccz L_hop1ok")
    spin_guard("L_hop1")
    a("L_hop1ok:")
    stamp(12)
    vMX, vOO = 91, 10
    a(f"v_max3_f32 v{vMX}, v{vMS[0]}, v{vMS[1]}, v{vMS[2]}")
    a(f"v_max3_f32 v{vMX}, v{vMX}, v{vMS[3]}, v{vMS[4]}\nv_max3_f32 v{vMX}, v{vMX}, v{vMS[5]}, v{vMS[6]}")
    for s in range(7):
        a(f"v_sub_f32 v{vWS7[s]}, v{vMS[s]}, v{vMX}")
    for s in range(7):
        a(f"v_exp_f32 v{vWS7[s]}, v{vWS7[s]}")
    for s in range(7):
        for r in (1, 0, 2, 3):
            op = "v_fmac_f32_dpp" if s else "v_mul_f32_dpp"
            a(f"{op} v{vOO+r}, v{vWS7[s]}, v{vMS[s]+r} row_newbcast:8 {DPP}")
    a(f"v_rcp_f32 v{vMX}, v{vOO+1}")
    for r in range(4):
        a(f"v_mul_f32_dpp v{vOO+r}, v{vMX}, v{vOO+r} row_newbcast:8 {DPP}")
    a(f"v_cvt_pk_bf16_f32 v{vOO}, v{vOO}, v{vOO+1}\nv_cvt_pk_bf16_f32 v{vOO+2}, v{vOO+2}, v{vOO+3}")
    setexec(0x00ff00ff00ff00ff)
    a(f"ds_write_b16 v{vAW}, v{vOO}\nds_write_b16_d16_hi v{vAW}, v{vOO} offset:16")
    a(f"ds_write_b16 v{vAW}, v{vOO+2} offset:32\nds_write_b16_d16_hi v{vAW}, v{vOO+2} offset:48")
    setexec(FULL)
    a("s_branch L_final")
    a("L_prepb:")
    stamp(10)
    a("s_waitcnt vmcnt(0)")
    slab_in(A1)
    slab_out()
    a("s_barrier")
    a("s_branch L_hop2")
    a("L_fin:")
    stamp(13)
    a(f"s_or_b32 s{sT0}, s{sH}, s{sW}\ns_cmp_lg_u32 s{sT0}, 0\ns_cbranch_scc1 L_end")
    a(f"v_mov_b32 v{vT0}, 0")
    setexec(1)
    a(f"buffer_store_dword v{vTAG}, v{vT0}, s[{rWS}:{rWS+3}], 0 offen")
    a("L_end:\ns_endpgm")
    body = a.finish()
    ref = open(os.path.join(os.path.dirname(os.path.abspath(__file__)), "..", NAME + ".s.ref")).read().split("\n")
    layout = [l for l in ref if l.startswith(";") and "@launch" not in l and "Override" not in l and "grid=ceil" not in l]
    tail = f""".section .rodata,"a"
.p2align 6
.amdhsa_kernel {NAME}_kernel
  .amdhsa_next_free_vgpr 512
  .amdhsa_next_free_sgpr 102
  .amdhsa_accum_offset 256
  .amdhsa_group_segment_fixed_size 0
  .amdhsa_kernarg_size 112
  .amdhsa_user_sgpr_count 2
  .amdhsa_user_sgpr_kernarg_segment_ptr 1
  .amdhsa_system_sgpr_workgroup_id_x 1
.end_amdhsa_kernel
"""
    return "\n".join(layout + hdr + ["; generated by tools/gen.py"]) + "\n" + body + tail

if __name__ == "__main__":
    kw = eval("dict(" + (sys.argv[2] if len(sys.argv) > 2 else "") + ")")
    out = sys.argv[1] if len(sys.argv) > 1 else os.path.join(os.path.dirname(os.path.abspath(__file__)), "..", NAME + ".s")
    open(out, "w").write(generate(**kw))
    print("wrote", out)
```

```python
import sys, os
sys.path.insert(0, os.path.dirname(os.path.abspath(__file__)))
from asmlib import Asm

NAME = "concat_heads__compressed_kv_cla__mha_block_cached__decode"
KB, MB = 1024, 1 << 20
WS_QP, WS_QL, WS_CS, WS_YA, WS_YB, WS_CP, WS_OP, WS_ST, WS_SIZE = 1*MB, 2*MB, 2*MB + 512*KB, 3*MB, 3*MB + 512*KB, 4*MB, 5*MB, 6*MB, 8*MB
SCALE = 128 ** -0.5 * 1.4426950408889634
LDS_EX = 128 * KB
LDS_O = LDS_EX + 16 * KB
SPIN = 1 << 20

import struct
def f32(x): return struct.unpack("<I", struct.pack("<f", x))[0]
def V(a, n=1): return f"v{a}" if n == 1 else f"v[{a}:{a+n-1}]"
def A(a, n=1): return f"a{a}" if n == 1 else f"a[{a}:{a+n-1}]"
def S(a, n=1): return f"s{a}" if n == 1 else f"s[{a}:{a+n-1}]"
DPP = "row_mask:0xf bank_mask:0xf"

pAX, pCK, pAWQ, pUK, pUV, pAWO, pBX, pK, pV, pBWQ, pBWO, pOUT, pDBG, pWS = range(4, 32, 2)
sH, sP, sW, sTAG, sT0, sT1, sT2, sT3 = 32, 33, 34, 35, 36, 37, 38, 39
rW, rX, rWS, rK, rV, rUV, rWA, rWB, rOUT, rDBG = 40, 44, 48, 52, 56, 60, 64, 68, 72, 76
rCK, rUK = rK, rV
sSELLO, sSELHI, sHI24, sC, sSPIN = 80, 81, 82, 83, 84
sU0, sU1, sTK, sROT, sBASE = 85, 86, 87, 88, 89
sM0, sMODE, sIT, sSLOT, sCKO, sYO, sOUTO = 90, 92, 93, 94, 95, 96, 97
sTS = 98


def generate(D=5, GS=0, ROTH=8, ROTW=1, POLLAT=22, STAMP=False, DBG=None):
    a = Asm()
    role = ["B"]

    def srd(r, p, size):
        a(f"s_mov_b32 s{r}, s{p}\ns_and_b32 s{r+1}, s{p+1}, 0xffff\ns_mov_b32 s{r+2}, {size}\ns_mov_b32 s{r+3}, 0x20000")

    def stamp(i):
        if DBG is not None:
            key = (role[0], i)
            if key in DBG:
                a(f"s_memrealtime s[{sTS}:{sTS+1}]\ns_waitcnt lgkmcnt(0)")
                a(f"v_mov_b32 v{vST1}, s{sTS}\ns_mov_b64 s[100:101], exec\ns_mov_b64 exec, 1")
                a(f"global_atomic_umax v{vST0}, v{vST1}, s[{pDBG}:{pDBG+1}] offset:{4*(3+DBG.index(key))} sc1")
                a("s_mov_b64 exec, s[100:101]")
            return
        if not STAMP: return
        a(f"s_memrealtime s[{sTS}:{sTS+1}]\ns_waitcnt lgkmcnt(0)")
        a(f"v_mov_b32 v{vST1}, s{sTS}\ns_mov_b64 s[100:101], exec\ns_mov_b64 exec, 1")
        a(f"buffer_store_dword v{vST1}, v{vST0}, s[{rWS}:{rWS+3}], 0 offen offset:{4*i}")
        a("s_mov_b64 exec, s[100:101]")

    def spin_guard(lbl_retry):
        a(f"s_sub_u32 s{sSPIN}, s{sSPIN}, 1\ns_cmp_lg_u32 s{sSPIN}, 0\ns_cbranch_scc1 {lbl_retry}\ns_branch L_end")

    def untag(regs, acc):
        for r in regs:
            a(f"v_xor_b32 v{r}, s{sTAG}, v{r}")
        a(f"v_or_b32 v{acc}, v{regs[0]}, v{regs[1]}")
        for i in range(2, len(regs), 2):
            a(f"v_or3_b32 v{acc}, v{acc}, v{regs[i]}, v{regs[i+1]}")
        a(f"v_and_b32 v{acc}, 0xff, v{acc}\nv_cmp_ne_u32 vcc, 0, v{acc}")

    def tag(regs):
        for r in regs:
            a(f"v_and_or_b32 v{r}, v{r}, s{sHI24}, v{vTAG}")

    def quadsum(dst, src, tmp):
        a(f"v_mov_b32_dpp v{dst}, v{src} quad_perm:[0,0,0,0] {DPP}")
        a(f"v_mov_b32_dpp v{tmp}, v{src+2} quad_perm:[2,2,2,2] {DPP}")
        a(f"v_add_f32_dpp v{dst}, v{src+1}, v{dst} quad_perm:[1,1,1,1] {DPP}")
        a(f"v_add_f32_dpp v{tmp}, v{src+3}, v{tmp} quad_perm:[3,3,3,3] {DPP}")
        a(f"v_add_f32 v{dst}, v{dst}, v{tmp}")

    def setexec(mask):
        lo, hi = mask & 0xffffffff, mask >> 32
        if mask == (1 << 64) - 1: a("s_mov_b64 exec, -1")
        elif mask <= 64: a(f"s_mov_b64 exec, {mask}")
        else: a(f"s_mov_b32 exec_lo, {lo:#x}\ns_mov_b32 exec_hi, {hi:#x}")
    FULL = (1 << 64) - 1

    vL, vG, vJ, vT0, vT1, vT2, vT3, vTAG = 1, 2, 3, 4, 5, 6, 7, 8
    vMASK = 10
    vOW, vOX = 14, 15
    vST0, vST1 = 16, 17
    vX = 20
    vB = 28
    vACC = 36
    vW = 44

    hdr = [f"; @launch grid=(256,1,1) block=(256,1,1) lds={160*KB}"]
    a(f'.amdgcn_target "amdgcn-amd-amdhsa--gfx950"\n.text\n.globl {NAME}_kernel\n.p2align 8\n.type {NAME}_kernel,@function')
    a(f"{NAME}_kernel:")
    a("s_cmp_ge_u32 s2, 256\ns_cbranch_scc1 L_end")
    a("s_load_dwordx16 s[4:19], s[0:1], 0\ns_load_dwordx8 s[20:27], s[0:1], 64\ns_load_dwordx4 s[28:31], s[0:1], 96")
    if STAMP or DBG is not None: a(f"s_memrealtime s[{sTS}:{sTS+1}]")
    a(f"v_lshrrev_b32 v{vT0}, 6, v0\nv_and_b32 v{vL}, 63, v0\nv_readfirstlane_b32 s{sW}, v{vT0}")
    a(f"s_lshr_b32 s{sH}, s2, 3\ns_sub_u32 s{sP}, s2, s{sH}\ns_sub_u32 s{sP}, s{sP}, 1\ns_and_b32 s{sP}, s{sP}, 7")
    a(f"v_lshrrev_b32 v{vG}, 4, v{vL}\nv_and_b32 v{vJ}, 15, v{vL}")
    a(f"v_lshlrev_b32 v{vT0}, 16, v{vG}\nv_lshl_add_u32 v{vOW}, v{vJ}, 4, v{vT0}")
    a(f"v_lshrrev_b32 v{vT1}, 3, v{vJ}\nv_lshlrev_b32 v{vT1}, 10, v{vT1}\nv_lshl_add_u32 v{vOX}, v{vG}, 4, v{vT1}")
    a(f"s_and_b32 s{sT0}, s{sP}, 3\ns_lshl_b32 s{sT0}, s{sT0}, 2\ns_add_u32 s{sT0}, s{sT0}, s{sW}")
    a(f"s_lshl_b32 s{sT1}, s{sT0}, 6\ns_lshl_b32 s{sT0}, s{sT0}, 18\ns_lshl_b32 s{sT2}, s{sH}, 8\ns_add_u32 s{sT0}, s{sT0}, s{sT2}")
    a(f"s_mov_b32 s{rW+2}, {4*MB}\ns_mov_b32 s{rW+3}, 0x20000\ns_mov_b32 s{rX+2}, 4096\ns_mov_b32 s{rX+3}, 0x20000")
    a(f"s_cmp_ge_u32 s{sP}, 4\ns_waitcnt lgkmcnt(0)")
    a(f"s_cselect_b64 s[{rW}:{rW+1}], s[{pAWQ}:{pAWQ+1}], s[{pBWQ}:{pBWQ+1}]")
    a(f"s_cselect_b64 s[{rX}:{rX+1}], s[{pAX}:{pAX+1}], s[{pBX}:{pBX+1}]")
    a(f"s_load_dword s{sTAG}, s[{pWS}:{pWS+1}], 0")
    for u in range(2):
        a.vm(f"buffer_load_dwordx4 {V(vX+4*u,4)}, v{vOX}, s[{rX}:{rX+3}], s{sT1} offen offset:{2048*u}", "X")
    for t in range(8):
        a.vm(f"buffer_load_dwordx4 {V(vW+4*t,4)}, v{vOW}, s[{rW}:{rW+3}], s{sT0} offen nt", f"W{t}")
        if t < 7: a(f"s_add_u32 s{sT0}, s{sT0}, 8192")
    srd(rWS, pWS, WS_SIZE)
    a(f"s_mov_b32 s{sSELLO}, 0x01000100\ns_mov_b32 s{sSELHI}, 0x03020302\ns_mov_b32 s{sHI24}, 0xffffff00")
    a(f"s_mov_b32 s{sC}, {f32(SCALE):#x}\ns_mov_b32 s{sSPIN}, {SPIN}")
    a(f"v_and_b32 v{vT0}, 1, v{vL}\nv_lshlrev_b32 v{vT0}, 4, v{vT0}\nv_mov_b32 v{vT1}, 0xffff\nv_lshlrev_b32 v{vT0}, v{vT0}, v{vT1}")
    a(f"v_bfe_u32 v{vT1}, v{vL}, 1, 2")
    for r in range(4):
        a(f"v_cmp_eq_u32 vcc, {r}, v{vT1}\nv_cndmask_b32 v{vMASK+r}, 0, v{vT0}, vcc")
    if STAMP:
        a(f"s_lshl_b32 s{sT2}, s2, 2\ns_add_u32 s{sT2}, s{sT2}, s{sW}\ns_lshl_b32 s{sT2}, s{sT2}, 6\ns_add_u32 s{sT2}, s{sT2}, {WS_ST}\nv_mov_b32 v{vST0}, s{sT2}")
        a(f"v_mov_b32 v{vST1}, s{sTS}\ns_mov_b64 exec, 1")
        a(f"buffer_store_dword v{vST1}, v{vST0}, s[{rWS}:{rWS+3}], 0 offen\ns_mov_b64 exec, -1")
    if DBG is not None:
        a(f"v_mov_b32 v{vST0}, 0\nv_mov_b32 v{vST1}, s{sTS}\nv_not_b32 v{vT0}, v{vST1}\ns_cmp_lg_u32 s{sW}, 0\ns_cbranch_scc1 L_nodbg\ns_mov_b64 exec, 1")
        a(f"global_atomic_umax v{vST0}, v{vT0}, s[{pDBG}:{pDBG+1}] offset:4 sc1")
        a(f"global_atomic_umax v{vST0}, v{vST1}, s[{pDBG}:{pDBG+1}] offset:8 sc1\ns_mov_b64 exec, -1\nL_nodbg:")
    a(f"s_cmp_eq_u32 s{sP}, 7\ns_cbranch_scc1 L_aux")
    q_entry = list(a.q)

    def qpart(next_load):
        for t in range(8):
            a.wait(f"W{t}")
            next_load(t)
            for u in range(2):
                a(f"v_perm_b32 v{vT0+u}, v{vX+4*u+(t>>1)}, v{vX+4*u+(t>>1)}, s{sSELHI if t & 1 else sSELLO}")
            for u in range(2):
                for r in range(4):
                    a(f"v_and_b32 v{vB+4*u+r}, v{vT0+u}, v{vMASK+r}")
            for u in range(2):
                c = V(vACC+4*u, 4) if t else "0"
                a(f"v_mfma_f32_16x16x32_bf16 {V(vACC+4*u,4)}, {V(vW+4*t,4)}, {V(vB+4*u,4)}, {c}")
        a(f"s_lshl_b32 s{sT2}, s{sW}, 11\ns_add_u32 s{sT2}, s{sT2}, {LDS_EX}")
        a(f"v_lshrrev_b32 v{vT0}, 3, v{vJ}\nv_lshlrev_b32 v{vT0}, 9, v{vT0}\nv_lshl_add_u32 v{vT0}, v{vG}, 7, v{vT0}")
        a(f"v_and_b32 v{vT1}, 7, v{vJ}\nv_lshl_add_u32 v{vT0}, v{vT1}, 2, v{vT0}\nv_add_u32 v{vT0}, s{sT2}, v{vT0}")
        a(f"s_lshl_b32 s{sT2}, s{sW}, 9\nv_and_b32 v{vT1}, 31, v{vL}\nv_lshl_add_u32 v{vT1}, v{vT1}, 4, s{sT2}")
        a(f"v_add_u32 v{vT2}, {LDS_EX}, v{vT1}")
        for u in range(2):
            for r in range(4):
                a(f"ds_write_b32 v{vT0}, v{vACC+4*u+r} offset:{u*1024+r*32}")
        a("s_waitcnt lgkmcnt(0)\ns_barrier")
        for p in range(4):
            a(f"ds_read_b128 {V(vW+4*p,4)}, v{vT2} offset:{p*2048}")
        a(f"s_add_u32 s{sTAG}, s{sTAG}, 0x5b\ns_and_b32 s{sTAG}, s{sTAG}, 0xff\nv_mov_b32 v{vTAG}, s{sTAG}")
        a(f"s_lshl_b32 s{sT2}, s{sH}, 3\ns_add_u32 s{sT2}, s{sT2}, s{sP}\ns_lshl_b32 s{sT2}, s{sT2}, 11\ns_add_u32 s{sT2}, s{sT2}, {WS_QP}")
        a("s_waitcnt lgkmcnt(0)")
        for r in range(4):
            a(f"v_add_f32 v{vW+r}, v{vW+r}, v{vW+4+r}\nv_add_f32 v{vW+8+r}, v{vW+8+r}, v{vW+12+r}")
        for r in range(4):
            a(f"v_add_f32 v{vW+r}, v{vW+r}, v{vW+8+r}")
        tag(range(vW, vW+4))
        setexec(0xffffffff)
        a.vm(f"buffer_store_dwordx4 {V(vW,4)}, v{vT1}, s[{rWS}:{rWS+3}], s{sT2} offen sc1", "QPst")
        setexec(FULL)

    vOK, vOV, vOQ, vOP = 76, 77, 78, 79
    vBQ = 80
    vPB = 96
    vS, vO = 112, 116
    vMC, vLS, vSC, vP, vU0, vU1 = 120, 121, 122, 123, 124, 125
    vQ = 44
    RING = 128
    srd(rK, pK, 128*MB); srd(rV, pV, 128*MB)
    gs = GS if GS else 8
    tstep = 256 if GS else 1024
    a(f"v_lshrrev_b32 v{vT0}, 2, v{vJ}\nv_and_b32 v{vT1}, 3, v{vJ}")
    a(f"v_lshlrev_b32 v{vOK}, {gs}, v{vT0}\nv_lshl_add_u32 v{vOK}, v{vG}, 6, v{vOK}\nv_lshl_add_u32 v{vOK}, v{vT1}, 4, v{vOK}")
    a(f"v_lshlrev_b32 v{vOV}, {gs}, v{vG}\nv_lshl_add_u32 v{vOV}, v{vJ}, 4, v{vOV}")
    a(f"v_lshlrev_b32 v{vOQ}, 11, v{vT0}\nv_lshl_add_u32 v{vOQ}, v{vG}, 7, v{vOQ}\nv_lshl_add_u32 v{vOQ}, v{vT1}, 5, v{vOQ}")
    a(f"s_lshl_b32 s{sBASE}, s{sW}, 5\ns_add_u32 s{sBASE}, s{sBASE}, s{sH}\ns_lshl_b32 s{sBASE}, s{sBASE}, 20")
    a(f"s_mul_i32 s{sROT}, s{sH}, {ROTH}\ns_mul_i32 s{sT2}, s{sW}, {ROTW}\ns_add_u32 s{sROT}, s{sROT}, s{sT2}")
    a(f"s_mov_b32 s{sTK}, s{sP}")

    def unit_addr(dst, guard=True):
        a(f"s_add_u32 s{sT3}, s{sTK}, s{sROT}\ns_and_b32 s{sT3}, s{sT3}, 255")
        if GS:
            lo = GS - 10
            a(f"s_lshr_b32 s{dst}, s{sT3}, {lo}\ns_lshl_b32 s{dst}, s{dst}, {GS+2}\ns_and_b32 s{sT3}, s{sT3}, {(1<<lo)-1}")
            a(f"s_lshl_b32 s{sT3}, s{sT3}, 10\ns_add_u32 s{dst}, s{dst}, s{sT3}\ns_add_u32 s{dst}, s{dst}, s{sBASE}")
        else:
            a(f"s_lshl_b32 s{sT3}, s{sT3}, 12\ns_add_u32 s{dst}, s{sT3}, s{sBASE}")
        if guard:
            a(f"s_cmp_ge_u32 s{sTK}, 256\ns_cselect_b32 s{dst}, {128*MB}, s{dst}")

    def kv_load(slot, r, base, tg):
        isv = r >= 4
        a.vm(f"buffer_load_dwordx4 {V(RING+4*slot,4)}, v{vOV if isv else vOK}, s[{rV if isv else rK}:{(rV if isv else rK)+3}], s{base} offen offset:{(r%4)*tstep} nt", tg)

    def pre_load(n):
        if n % 8 == 0:
            if n: a(f"s_add_u32 s{sTK}, s{sTK}, 7")
            unit_addr(sU0, guard=False)
        kv_load(n, n % 8, sU0, f"P{n}")

    def softmax_part():
        quadsum(vSC, vS, vU0)
        skip = a.label("nomax")
        a(f"v_fma_f32 v{vP}, v{vSC}, s{sC}, -v{vMC}\nv_cmp_lt_f32 vcc, 0, v{vP}\ns_cbranch_vccz {skip}")
        a(f"v_mul_f32 v{vSC}, s{sC}, v{vSC}")
        a(f"v_max_f32_dpp v{vU0}, v{vSC}, v{vSC} row_ror:4 {DPP}")
        a(f"v_max_f32_dpp v{vU0}, v{vU0}, v{vU0} row_ror:8 {DPP}")
        a(f"v_mov_b32 v{vU1}, v{vU0}\nv_permlane16_swap_b32 v{vU0}, v{vU1}\nv_max_f32 v{vU0}, v{vU0}, v{vU1}")
        a(f"v_mov_b32 v{vU1}, v{vU0}\nv_permlane32_swap_b32 v{vU0}, v{vU1}\nv_max_f32 v{vU0}, v{vU0}, v{vU1}")
        a(f"v_and_b32 v{vU0}, s{sHI24}, v{vU0}\nv_max_f32 v{vU0}, v{vU0}, v{vMC}")
        a(f"v_sub_f32 v{vU1}, v{vMC}, v{vU0}\nv_exp_f32 v{vU1}, v{vU1}\nv_mov_b32 v{vMC}, v{vU0}\nv_sub_f32 v{vP}, v{vSC}, v{vU0}")
        a(f"v_mul_f32 v{vLS}, v{vLS}, v{vU1}")
        for r in range(4):
            a(f"v_mul_f32 v{vO+r}, v{vO+r}, v{vU1}")
        a(f"{skip}:")
        a(f"v_exp_f32 v{vP}, v{vP}")
        a(f"v_cvt_pk_bf16_f32 v{vU0}, v{vP}, v{vP}\nv_add_f32 v{vLS}, v{vLS}, v{vP}")
        for t in range(4):
            for r in range(4):
                a(f"v_and_b32_dpp v{vPB+4*t+r}, v{vU0}, v{vMASK+r} row_newbcast:{4*t} {DPP}")

    def consume(slot, r):
        if r < 4:
            c = V(vS, 4) if r else "0"
            a(f"v_mfma_f32_16x16x32_bf16 {V(vS,4)}, {V(RING+4*slot,4)}, {V(vBQ+4*r,4)}, {c}")
            if r == 3: softmax_part()
        else:
            a(f"v_mfma_f32_16x16x32_bf16 {V(vO,4)}, {V(RING+4*slot,4)}, {V(vPB+4*(r-4),4)}, {V(vO,4)}")

    def q_poll():
        for i in range(2):
            a.vm(f"buffer_load_dwordx4 {V(vQ+4*i,4)}, v{vOQ}, s[{rWS}:{rWS+3}], s{sU1} offen offset:{16*i} sc1", "Q")

    npre = [0]
    def b_next(t):
        if t >= 8 - D:
            pre_load(npre[0]); npre[0] += 1
    qpart(b_next)
    stamp(1)
    a(f"s_lshl_b32 s{sU1}, s{sH}, 14\ns_lshl_b32 s{sT2}, s{sW}, 9\ns_add_u32 s{sU1}, s{sU1}, s{sT2}\ns_add_u32 s{sU1}, s{sU1}, {WS_QP}")
    a(f"v_mov_b32 v{vMC}, 0xff7f0000\nv_mov_b32 v{vLS}, 0")
    for r in range(4): a(f"v_mov_b32 v{vO+r}, 0")
    a(f"v_lshlrev_b32 v{vT0}, 7, v{vG}\nv_lshl_add_u32 v{vT0}, v{vJ}, 4, v{vT0}\nv_mov_b32 v{vT1}, 512")
    a(f"v_cmp_gt_u32 vcc, 8, v{vJ}\nv_cndmask_b32 v{vOP}, v{vT1}, v{vT0}, vcc")
    while npre[0] < 32:
        n = npre[0]
        a.wait(f"P{n-D}")
        if n == POLLAT: q_poll()
        pre_load(n); npre[0] += 1
    if "Q" in a.q: a.wait("Q")
    qcheck, qok = a.label("qcheck"), a.label("qok")
    a(f"{qcheck}:")
    untag(list(range(vQ, vQ+8)), vT0)
    a(f"s_cbranch_vccz {qok}")
    saved = list(a.q)
    q_poll()
    a("s_waitcnt vmcnt(0)")
    spin_guard(qcheck)
    a.q = saved
    a(f"{qok}:")
    stamp(2)
    for ror in (8, 4):
        for i in range(8):
            a(f"v_add_f32_dpp v{vQ+i}, v{vQ+i}, v{vQ+i} row_ror:{ror} {DPP}")
    for r in range(4):
        a(f"v_cvt_pk_bf16_f32 v{vQ+r}, v{vQ+2*r}, v{vQ+2*r+1}")
    for t in range(4):
        m = 0x000f000f << (4*t)
        a(f"s_mov_b32 vcc_lo, {m:#x}\ns_mov_b32 vcc_hi, {m:#x}")
        for r in range(4):
            a(f"v_cndmask_b32 v{vBQ+4*t+r}, 0, v{vQ+r}, vcc")
    a(f"s_add_u32 s{sTK}, s{sTK}, 7")
    unit_addr(sU0, guard=False)
    for n in range(32):
        if f"P{n}" in a.q: a.wait(f"P{n}")
        consume(n, n % 8)
        if n < D: kv_load(n, n, sU0, f"L{n}")
    stamp(3)
    a("L_bloop:")
    for half in range(2):
        cur, nxt = (sU0, sU1) if half == 0 else (sU1, sU0)
        for r in range(8):
            n = r + D
            a(f"s_waitcnt vmcnt({D-1})")
            if n == 8:
                a(f"s_add_u32 s{sTK}, s{sTK}, 7")
                unit_addr(nxt)
            kv_load((half*8 + n) % 16, n % 8, cur if n < 8 else nxt, "loop")
            consume(half*8 + r, r)
        a(f"s_cmp_ge_u32 s{sTK}, 256")
        a("s_cbranch_scc1 L_bdone" if half == 0 else "s_cbranch_scc0 L_bloop")
    a("L_bdone:")
    a(f"v_add_f32_dpp v{vLS}, v{vLS}, v{vLS} row_ror:8 {DPP}")
    a(f"s_lshl_b32 s{sT2}, s{sH}, 2\ns_add_u32 s{sT2}, s{sT2}, s{sW}")
    a(f"v_add_f32_dpp v{vLS}, v{vLS}, v{vLS} row_ror:4 {DPP}")
    a(f"v_mov_b32 v{vU1}, v{vLS}")
    a(f"s_lshl_b32 s{sT2}, s{sT2}, 3\ns_add_u32 s{sT2}, s{sT2}, s{sP}")
    a(f"v_permlane16_swap_b32 v{vLS}, v{vU1}\nv_add_f32 v{vLS}, v{vLS}, v{vU1}\nv_mov_b32 v{vU1}, v{vLS}")
    a(f"s_lshl_b32 s{sT2}, s{sT2}, 10\ns_add_u32 s{sT2}, s{sT2}, {WS_OP}")
    a(f"v_permlane32_swap_b32 v{vLS}, v{vU1}")
    setexec(1 << 8)
    a(f"v_add_f32 v{vO+1}, v{vLS}, v{vU1}\nv_mov_b32 v{vO}, v{vMC}")
    setexec(0x00ff00ff00ff01ff)
    tag(range(vO, vO+4))
    a(f"buffer_store_dwordx4 {V(vO,4)}, v{vOP}, s[{rWS}:{rWS+3}], s{sT2} offen sc1")
    stamp(4)
    a("s_endpgm")

    a("L_aux:")
    role[0] = "A"
    a.q = list(q_entry)
    A0, A1 = 0, 128
    vOU, vOR8, vOR1 = 18, 19, 9
    vOC = 76
    vAQ, vAP = 80, 81
    vAD = 82
    vM, vLL, vAL, vEX = 90, 91, 92, 94
    vWR = 96
    vTRB, vZ = 95, 100
    vQL = 104
    vCT = 136
    vSS = 200
    vKA = 20
    vPP = 52
    vE1 = 60
    vE2 = 216
    srd(rUK, pUK, 4*MB); srd(rCK, pCK, 16*MB)
    a(f"v_lshrrev_b32 v{vT0}, 2, v{vJ}\nv_and_b32 v{vT1}, 3, v{vJ}")
    a(f"v_lshlrev_b32 v{vOU}, 18, v{vT0}\nv_lshl_add_u32 v{vOU}, v{vG}, 6, v{vOU}\nv_lshl_add_u32 v{vOU}, v{vT1}, 4, v{vOU}")
    a(f"s_lshl_b32 s{sU0}, s{sW}, 20\ns_lshl_b32 s{sT2}, s{sH}, 8\ns_add_u32 s{sU0}, s{sU0}, s{sT2}\ns_mov_b32 s{sBASE}, s{sU0}")
    def uk_load(t):
        a.vm(f"buffer_load_dwordx4 {A(A0+4*t,4)}, v{vOU}, s[{rUK}:{rUK+3}], s{sU0} offen nt", f"UK{t}")
        a(f"s_add_u32 s{sU0}, s{sU0}, 8192")
    qpart(uk_load)
    stamp(1)
    for t in range(8, 32): uk_load(t)
    vQA = 136
    a(f"v_lshrrev_b32 v{vT0}, 2, v{vJ}\nv_and_b32 v{vT1}, 3, v{vJ}")
    a(f"v_lshlrev_b32 v{vT2}, 9, v{vT0}\nv_lshl_add_u32 v{vT2}, v{vG}, 7, v{vT2}\nv_lshl_add_u32 v{vT2}, v{vT1}, 5, v{vT2}")
    a(f"s_lshl_b32 s{sU1}, s{sH}, 14\ns_add_u32 s{sU1}, s{sU1}, {WS_QP + 4*2048}\ns_add_u32 s{sT0}, s{sU1}, 4096")
    def qa_poll():
        for p in range(4):
            for i in range(2):
                a.vm(f"buffer_load_dwordx4 {V(vQA+8*p+4*i,4)}, v{vT2}, s[{rWS}:{rWS+3}], s{sU1 if p < 2 else sT0} offen offset:{(p&1)*2048+16*i} sc1", "QA")
    qa_poll()
    a(f"v_lshlrev_b32 v{vT0}, 2, v{vG}\nv_xor_b32 v{vT0}, v{vT0}, v{vJ}")
    for i in range(4):
        a(f"v_xor_b32 v{vT1}, {i}, v{vT0}\nv_lshlrev_b32 v{vT1}, 4, v{vT1}\nv_lshl_add_u32 v{vOC+i}, v{vG}, 10, v{vT1}")
        a(f"v_lshl_add_u32 v{vWR+i}, v{vG}, 8, v{vT1}")
        if i: a(f"v_add_u32 v{vOC+i}, {i*3072}, v{vOC+i}")
    a(f"s_lshl_b32 s{sM0}, s{sW}, 15")
    for i in range(4):
        a(f"v_add_u32 v{vWR+i}, s{sM0}, v{vWR+i}")
    a(f"s_lshl_b32 s{sCKO}, s{sH}, 19\ns_lshl_b32 s{sT2}, s{sW}, 8\ns_add_u32 s{sCKO}, s{sCKO}, s{sT2}")
    a(f"s_mov_b32 s{sSLOT}, 0")
    def ck_tile(tg):
        for hf in range(2):
            a(f"s_add_u32 s{sT3}, s{sM0}, s{sSLOT}")
            if hf: a(f"s_add_u32 s{sT3}, s{sT3}, 4096")
            a(f"s_mov_b32 m0, s{sT3}")
            for i in range(4):
                a.vm(f"buffer_load_dwordx4 v{vOC+i}, s[{rCK}:{rCK+3}], s{sCKO} offen offset:{i*1024} nt lds", tg)
            a(f"s_add_u32 s{sCKO}, s{sCKO}, 16384")
    def next_slot():
        a(f"s_add_u32 s{sSLOT}, s{sSLOT}, 8192\ns_and_b32 s{sSLOT}, s{sSLOT}, 0x7fff")
    ck_tile("CK0"); next_slot()
    a.wait("QA")
    chk, ok = a.label("qacheck"), a.label("qaok")
    a(f"{chk}:")
    untag(list(range(vQA, vQA+32)), vT0)
    a(f"s_cbranch_vccz {ok}")
    saved = list(a.q)
    qa_poll()
    a("s_waitcnt vmcnt(0)")
    spin_guard(chk)
    a.q = saved
    a(f"{ok}:")
    stamp(2)
    for i in range(8):
        a(f"v_add_f32 v{vQA+i}, v{vQA+i}, v{vQA+16+i}\nv_add_f32 v{vQA+8+i}, v{vQA+8+i}, v{vQA+24+i}")
    for i in range(8):
        a(f"v_add_f32 v{vQA+i}, v{vQA+i}, v{vQA+8+i}")
    for r in range(4):
        a(f"v_cvt_pk_bf16_f32 v{vB+r}, v{vQA+2*r}, v{vQA+2*r+1}")
    ck_tile("CK1"); next_slot()
    vD, vR, vPK = 136, 168, 200
    def fold(t):
        quadsum(vR+t, vD + 4*(t % 8), vT0)
    for t in range(32):
        a(f"v_mfma_f32_16x16x32_bf16 {V(vD+4*(t%8),4)}, {A(A0+4*t,4)}, {V(vB,4)}, 0")
        if t >= 3: fold(t - 3)
    for t in range(29, 32): fold(t)
    for i in range(16):
        a(f"v_cvt_pk_bf16_f32 v{vPK+i}, v{vR+2*i}, v{vR+2*i+1}")
    for q in range(1, 4):
        setexec(0x1111111111111111 << q)
        for r in range(4):
            a(f"v_mov_b32 v{vPK+r}, v{vPK+4*q+r}")
    setexec(FULL)
    a(f"v_lshrrev_b32 v{vT0}, 2, v{vJ}\nv_and_b32 v{vT1}, 3, v{vJ}")
    a(f"v_lshlrev_b32 v{vT2}, 15, v{vT0}\nv_lshl_add_u32 v{vT2}, v{vG}, 6, v{vT2}\nv_lshl_add_u32 v{vT2}, v{vT1}, 4, v{vT2}")
    a(f"s_lshl_b32 s{sT0}, s{sH}, 10\ns_lshl_b32 s{sT2}, s{sW}, 8\ns_add_u32 s{sT0}, s{sT0}, s{sT2}\ns_add_u32 s{sT0}, s{sT0}, {WS_QL}")
    a.vm(f"buffer_store_dwordx4 {V(vPK,4)}, v{vT2}, s[{rWS}:{rWS+3}], s{sT0} offen sc1", "QLst")
    ck_tile("CK2"); next_slot()
    srd(rDBG, pDBG, 256); srd(rUV, pUV, 4*MB); srd(rWA, pAWO, 4*MB); srd(rWB, pBWO, 4*MB); srd(rOUT, pOUT, 8192)
    a(f"v_mov_b32 v{vZ}, 0\nv_mov_b32 v{vZ+1}, 1")
    a(f"v_lshlrev_b32 v{vT0}, 4, v{vJ}\nv_lshl_add_u32 v{vOR8}, v{vG}, 13, v{vT0}\nv_lshl_add_u32 v{vOR1}, v{vG}, 10, v{vT0}")

    def signal(tg, off):
        a.wait(tg)
        a("s_barrier")
        skip = a.label("nosig")
        a(f"s_cmp_lg_u32 s{sW}, 0\ns_cbranch_scc1 {skip}")
        setexec(1)
        a(f"buffer_atomic_add v{vZ+1}, v{vZ}, s[{rDBG}:{rDBG+3}], 0 offen offset:{off} sc1")
        setexec(FULL)
        a(f"{skip}:")

    def flag_load(off):
        a.vm(f"buffer_load_dword v{vT3}, v{vZ}, s[{rDBG}:{rDBG+3}], 0 offen offset:{off} sc1", "FL")

    def flag_wait(off):
        a.wait("FL")
        chk, ok = a.label("fcheck"), a.label("fok")
        a(f"{chk}:\nv_cmp_gt_u32 vcc, 32, v{vT3}\ns_cbranch_vccz {ok}")
        saved = list(a.q)
        a("s_sleep 4")
        flag_load(off)
        a("s_waitcnt vmcnt(0)")
        spin_guard(chk)
        a.q = saved
        a(f"{ok}:")

    sUV, sWO = sU0, sU1
    def uv_load(i):
        a.vm(f"buffer_load_dwordx4 {A(A1+4*i,4)}, v{vOR8}, s[{rUV}:{rUV+3}], s{sUV} offen nt", f"UV{i}")
        a(f"s_add_u32 s{sUV}, s{sUV}, 32768")
    def wo_load(i, isb):
        r = rWB if isb else rWA
        a.vm(f"buffer_load_dwordx4 {A((A1 if isb else A0)+4*i,4)}, v{vOR1}, s[{r}:{r+3}], s{sWO} offen nt", f"W{'B' if isb else 'A'}{i}")
        a(f"s_add_u32 s{sWO}, s{sWO}, 4096")
    def wo_base():
        a(f"s_lshl_b32 s{sWO}, s{sH}, 17\ns_lshl_b32 s{sT2}, s{sW}, 8\ns_add_u32 s{sWO}, s{sWO}, s{sT2}")

    signal("QLst", 0)
    stamp(3)
    ck_tile("CK3"); next_slot()
    a(f"s_mov_b32 s{sUV}, s{sBASE}")
    wo_base()
    flag_load(0)
    for i in range(8): uv_load(i)
    flag_wait(0)
    stamp(4)
    a(f"s_lshr_b32 s{sT0}, s{sH}, 3\ns_lshl_b32 s{sT0}, s{sT0}, 15\ns_lshl_b32 s{sT2}, s{sW}, 8\ns_add_u32 s{sT0}, s{sT0}, s{sT2}\ns_add_u32 s{sT0}, s{sT0}, {WS_QL}")
    for i in range(8):
        a.vm(f"buffer_load_dwordx4 {V(vKA+4*i,4)}, v{vOR1}, s[{rWS}:{rWS+3}], s{sT0} offen sc1", "QLg")
        if i < 7: a(f"s_add_u32 s{sT0}, s{sT0}, 4096")
    for i in range(8, 16): uv_load(i)
    a(f"v_and_b32 v{vT0}, 3, v{vL}\nv_bfe_u32 v{vT1}, v{vL}, 2, 2\nv_lshrrev_b32 v{vT2}, 5, v{vL}")
    a(f"v_lshl_add_u32 v{vT3}, v{vT0}, 2, v{vT1}\nv_xor_b32 v{vT3}, v{vT3}, v{vT2}\nv_lshlrev_b32 v{vT3}, 4, v{vT3}")
    a(f"v_and_b32 v{vAQ}, 31, v{vL}\nv_lshl_add_u32 v{vAQ}, v{vAQ}, 8, v{vT3}")
    a(f"v_lshl_add_u32 v{vAP}, v{vT2}, 2, v{vT1}\nv_lshlrev_b32 v{vAP}, 8, v{vAP}\nv_lshl_add_u32 v{vAP}, v{vT1}, 6, v{vAP}")
    a(f"v_bfe_u32 v{vT3}, v{vL}, 4, 1\nv_lshlrev_b32 v{vT3}, 1, v{vT3}\nv_bfe_u32 v{vU0}, v{vL}, 1, 1\nv_add_u32 v{vT3}, v{vT3}, v{vU0}")
    a(f"v_xor_b32 v{vT3}, v{vT3}, v{vT2}\nv_lshl_add_u32 v{vAP}, v{vT3}, 4, v{vAP}")
    a(f"v_and_b32 v{vT3}, 1, v{vL}\nv_lshl_add_u32 v{vAP}, v{vT3}, 3, v{vAP}")
    a(f"v_lshl_add_u32 v{vTRB}, v{vG}, 3, v{vT1}\nv_lshlrev_b32 v{vTRB}, 8, v{vTRB}\nv_lshl_add_u32 v{vTRB}, v{vT1}, 6, v{vTRB}")
    a(f"v_bfe_u32 v{vT0}, v{vL}, 4, 1\nv_lshl_add_u32 v{vT0}, v{vT0}, 1, v{vU0}\nv_lshl_add_u32 v{vTRB}, v{vT0}, 4, v{vTRB}")
    a(f"v_lshl_add_u32 v{vTRB}, v{vT3}, 3, v{vTRB}\nv_add_u32 v{vTRB}, s{sM0}, v{vTRB}")
    a(f"s_lshl_b32 s{sT1}, s{sW}, 13\ns_add_u32 s{sT1}, s{sT1}, {LDS_EX}\nv_lshl_add_u32 v{vEX}, v{vL}, 4, s{sT1}")
    a(f"s_sub_u32 s{sT2}, s{sT1}, s{sM0}")
    for i in range(4):
        a(f"v_add_u32 v{vAD+i}, s{sT2}, v{vWR+i}")
    a.wait("QLg")
    for i in range(8):
        a(f"ds_write_b128 v{vAD+(i&3)}, {V(vKA+4*i,4)} offset:{i*1024}")
    a(f"v_add_u32 v{vT0}, s{sT1}, v{vAQ}")
    for k in range(8):
        a(f"v_xor_b32 v{vAD+k}, {32*k}, v{vT0}")
    a("s_waitcnt lgkmcnt(0)")
    for k in range(8):
        a(f"ds_read_b128 {V(vQL+4*k,4)}, v{vAD+k}")
    for i in range(64): a(f"v_mov_b32 v{vCT+i}, 0")
    a(f"v_mov_b32 v{vM}, 0xff7f0000\nv_mov_b32 v{vLL}, 0\ns_mov_b32 s{sIT}, 0")
    a(f"v_add_u32 v{vAQ}, s{sM0}, v{vAQ}\nv_add_u32 v{vAP}, s{sM0}, v{vAP}")
    a("s_waitcnt lgkmcnt(0)")
    stamp(5)
    a("L_att:")
    a(f"v_add_u32 v{vT0}, s{sSLOT}, v{vAQ}")
    for k in range(8):
        a(f"v_xor_b32 v{vAD+k}, {32*k}, v{vT0}")
    a("s_waitcnt vmcnt(24)")
    for k in range(8):
        a(f"ds_read_b128 {V(vKA+4*k,4)}, v{vAD+k}")
    a(f"v_add_u32 v{vT0}, s{sSLOT}, v{vAP}")
    for k in range(8):
        a(f"s_waitcnt lgkmcnt({7-k})")
        c = V(vSS, 16) if k else "0"
        a(f"v_mfma_f32_32x32x16_bf16 {V(vSS,16)}, {V(vKA+4*k,4)}, {V(vQL+4*k,4)}, {c}")
        a(f"v_xor_b32 v{vAD+k}, {32*k}, v{vT0}")
    for nt in range(4):
        for sg in range(2):
            for pi in range(2):
                a(f"ds_read_b64_tr_b16 {V(vKA+8*nt+4*sg+2*pi,2)}, v{vAD+2*nt+pi} offset:{4096*sg+2048*pi}")
    a(f"v_xor_b32 v{vT1}, 0x2000, v{vEX}\nv_xor_b32 v{vT2}, 0x4000, v{vEX}\nv_xor_b32 v{vT3}, 0x6000, v{vEX}")
    for q in range(4):
        a(f"ds_write_b128 v{vEX}, {V(vSS+4*q,4)} offset:{1024*q}")
    a("s_waitcnt lgkmcnt(0)\ns_barrier")
    for q in range(4):
        a(f"ds_read_b128 {V(vE1+4*q,4)}, v{vT1} offset:{1024*q}")
        a(f"ds_read_b128 {V(vE2+4*q,4)}, v{vT2} offset:{1024*q}")
        a(f"ds_read_b128 {V(vE2+16+4*q,4)}, v{vT3} offset:{1024*q}")
    a(f"v_xor_b32 v{vEX}, 0x1000, v{vEX}")
    blocks = [a.label(f"fill{i}") for i in range(4)]
    filled = a.label("filled")
    a(f"s_cmp_ge_u32 s{sIT}, 12\ns_cbranch_scc1 {blocks[0]}")
    saved = list(a.q)
    ck_tile("loop")
    a.q = saved
    a(f"{filled}:")
    next_slot()
    for q in range(4):
        a(f"s_waitcnt lgkmcnt({9-3*q})")
        for r in range(4*q, 4*q+4):
            a(f"v_add_f32 v{vSS+r}, v{vSS+r}, v{vE1+r}\nv_add_f32 v{vE2+r}, v{vE2+r}, v{vE2+16+r}")
        for r in range(4*q, 4*q+4):
            a(f"v_add_f32 v{vSS+r}, v{vSS+r}, v{vE2+r}")
    a(f"v_max_f32 v{vT0}, v{vSS}, v{vSS+1}")
    for r in range(2, 16, 2):
        a(f"v_max3_f32 v{vT0}, v{vT0}, v{vSS+r}, v{vSS+r+1}")
    a(f"v_mov_b32 v{vT1}, v{vT0}\nv_permlane32_swap_b32 v{vT0}, v{vT1}\nv_max_f32 v{vT0}, v{vT0}, v{vT1}")
    a(f"v_mul_f32 v{vT0}, s{sC}, v{vT0}\nv_max_f32 v{vT0}, v{vT0}, v{vM}")
    a(f"v_sub_f32 v{vAL}, v{vM}, v{vT0}\nv_exp_f32 v{vAL}, v{vAL}\nv_mov_b32 v{vM}, v{vT0}")
    for r in range(16):
        a(f"v_fma_f32 v{vSS+r}, v{vSS+r}, s{sC}, -v{vM}")
    a(f"v_mul_f32 v{vLL}, v{vLL}, v{vAL}")
    for r in range(16):
        a(f"v_exp_f32 v{vSS+r}, v{vSS+r}")
        for i in range(2):
            c = vCT + 4*r + 2*i
            a(f"v_pk_mul_f32 {V(c,2)}, {V(c,2)}, {V(vAL,2)} op_sel_hi:[1,0]")
    for r in range(8):
        a(f"v_cvt_pk_bf16_f32 v{vPP+r}, v{vSS+2*r}, v{vSS+2*r+1}")
    k = 0
    for sg in range(2):
        for nt in range(4):
            a(f"v_mfma_f32_32x32x16_bf16 {V(vCT+16*nt,16)}, {V(vKA+8*nt+4*sg,4)}, {V(vPP+4*sg,4)}, {V(vCT+16*nt,16)}")
            a(f"v_add_f32 v{vLL}, v{vLL}, v{vSS+k}\nv_add_f32 v{vLL}, v{vLL}, v{vSS+k+1}")
            k += 2
    a(f"s_add_u32 s{sIT}, s{sIT}, 1\ns_cmp_lt_u32 s{sIT}, 16\ns_cbranch_scc1 L_att")
    a("s_branch L_attdone")
    a.q = []
    for i in range(4):
        a(f"{blocks[i]}:")
        if i < 3: a(f"s_cmp_lg_u32 s{sIT}, {12+i}\ns_cbranch_scc1 {blocks[i+1]}")
        for n in range(8):
            if i < 2: uv_load(16 + 8*i + n)
            else: wo_load(8*(i-2) + n, False)
        a(f"s_branch {filled}")
    a("L_attdone:")
    stamp(6)
    a(f"v_mov_b32 v{vT1}, v{vLL}\nv_permlane32_swap_b32 v{vLL}, v{vT1}\nv_add_f32 v{vLL}, v{vLL}, v{vT1}")
    a(f"v_and_b32 v{vT0}, 31, v{vL}\nv_mul_u32_u24 v{vT1}, 272, v{vT0}\nv_lshrrev_b32 v{vT2}, 5, v{vL}\nv_lshl_add_u32 v{vT1}, v{vT2}, 3, v{vT1}\nv_add_u32 v{vT1}, s{sM0}, v{vT1}")
    for i in range(32):
        a(f"v_cvt_pk_bf16_f32 v{vKA+i}, v{vCT+2*i}, v{vCT+2*i+1}")
    for nt in range(4):
        for q in range(4):
            a(f"ds_write_b64 v{vT1}, {V(vKA+8*nt+2*q,2)} offset:{64*nt+16*q}")
    a(f"v_mul_u32_u24 v{vT2}, 272, v{vG}\nv_lshl_add_u32 v{vT2}, v{vJ}, 4, v{vT2}\nv_add_u32 v{vT2}, s{sM0}, v{vT2}")
    a(f"v_lshlrev_b32 v{vT3}, 4, v{vJ}\nv_lshl_add_u32 v{vT3}, v{vG}, 15, v{vT3}")
    a(f"s_lshl_b32 s{sT0}, s{sH}, 10\ns_lshl_b32 s{sT2}, s{sW}, 8\ns_add_u32 s{sT0}, s{sT0}, s{sT2}\ns_add_u32 s{sT0}, s{sT0}, {WS_CP}")
    a("s_waitcnt lgkmcnt(0)")
    for i in range(8):
        a(f"ds_read_b128 {V(vCT+4*i,4)}, v{vT2} offset:{1088*i}")
    a(f"v_lshlrev_b32 v{vT0}, 3, v{vT0}\ns_lshl_b32 s{sT1}, s{sH}, 8\ns_add_u32 s{sT1}, s{sT1}, {WS_CS}")
    a(f"s_lshl_b32 s{sT2}, s{sW}, 3\ns_lshl_b32 exec_lo, 0xff, s{sT2}\ns_mov_b32 exec_hi, 0")
    a.vm(f"buffer_store_dwordx2 {V(vM,2)}, v{vT0}, s[{rWS}:{rWS+3}], s{sT1} offen sc1", "CPst")
    setexec(FULL)
    for i in range(8):
        a(f"s_waitcnt lgkmcnt({7-i})")
        a.vm(f"buffer_store_dwordx4 {V(vCT+4*i,4)}, v{vT3}, s[{rWS}:{rWS+3}], s{sT0} offen sc1", "CPst")
        if i < 7: a(f"s_add_u32 s{sT0}, s{sT0}, {4*32*KB}")
    for i in range(16, 24): wo_load(i, False)
    signal("CPst", 128)
    stamp(7)
    for i in range(24, 32): wo_load(i, False)

    vWT = 128
    def slab_in(src):
        for i in range(32):
            a(f"ds_write_b128 v{vWR+(i&3)}, {A(src+4*i,4)} offset:{1024*i}")
        a("s_waitcnt lgkmcnt(0)")
    def slab_out():
        for nt in range(8):
            for pi in range(2):
                a(f"v_xor_b32 v{vT0+pi}, {16*(2*nt+pi)}, v{vTRB}")
                for k in range(4):
                    a(f"ds_read_b64_tr_b16 {V(vWT+16*nt+4*k+2*pi,2)}, v{vT0+pi} offset:{8192*k+1024*pi}")
        a("s_waitcnt lgkmcnt(0)")

    slab_in(A1)
    wo_base()
    flag_load(128)
    for i in range(8): wo_load(i, True)
    slab_out()
    flag_wait(128)
    stamp(8)
    vCB, vSTAT, vDD, vRES = 20, 52, 60, 104
    a(f"v_and_b32 v{vT0}, 3, v{vJ}\nv_lshrrev_b32 v{vT1}, 2, v{vJ}\nv_lshl_add_u32 v{vT2}, v{vT0}, 3, v{vT1}")
    a(f"v_lshlrev_b32 v{vT3}, 8, v{vT2}\nv_lshlrev_b32 v{vT2}, 10, v{vT2}\nv_lshl_add_u32 v{vT2}, v{vG}, 4, v{vT2}")
    a(f"s_lshl_b32 s{sT0}, s{sH}, 15\ns_lshl_b32 s{sT2}, s{sW}, 8\ns_add_u32 s{sT0}, s{sT0}, s{sT2}\ns_add_u32 s{sT0}, s{sT0}, {WS_CP}")
    a(f"s_lshl_b32 s{sT1}, s{sH}, 3\ns_add_u32 s{sT1}, s{sT1}, {WS_CS}")
    for hf in range(2):
        a.vm(f"buffer_load_dwordx2 {V(vSTAT+2*hf,2)}, v{vT3}, s[{rWS}:{rWS+3}], s{sT1} offen offset:{1024*hf} sc1", "CSg")
    for hf in range(2):
        for k in range(4):
            a.vm(f"buffer_load_dwordx4 {V(vCB+16*hf+4*k,4)}, v{vT2}, s[{rWS}:{rWS+3}], s{sT0} offen offset:{64*k} sc1", "CPg")
        a(f"s_add_u32 s{sT0}, s{sT0}, 4096")
    for i in range(8, 32): wo_load(i, True)
    a.wait("CSg")
    a(f"v_max_f32 v{vT0}, v{vSTAT}, v{vSTAT+2}")
    a(f"v_max_f32_dpp v{vT0}, v{vT0}, v{vT0} row_ror:8 {DPP}\nv_max_f32_dpp v{vT0}, v{vT0}, v{vT0} row_ror:4 {DPP}")
    a(f"v_sub_f32 v{vSTAT}, v{vSTAT}, v{vT0}\nv_sub_f32 v{vSTAT+2}, v{vSTAT+2}, v{vT0}")
    a(f"v_exp_f32 v{vSTAT}, v{vSTAT}\nv_exp_f32 v{vSTAT+2}, v{vSTAT+2}")
    a(f"v_mul_f32 v{vT1}, v{vSTAT}, v{vSTAT+1}\nv_fmac_f32 v{vT1}, v{vSTAT+2}, v{vSTAT+3}")
    a(f"v_add_f32_dpp v{vT1}, v{vT1}, v{vT1} row_ror:8 {DPP}\nv_add_f32_dpp v{vT1}, v{vT1}, v{vT1} row_ror:4 {DPP}")
    a(f"v_rcp_f32 v{vT1}, v{vT1}")
    a(f"v_mul_f32 v{vSTAT}, v{vSTAT}, v{vT1}\nv_mul_f32 v{vSTAT+2}, v{vSTAT+2}, v{vT1}")
    a(f"s_lshl_b32 s{sT2}, s{sW}, 11\ns_add_u32 s{sT2}, s{sT2}, {LDS_EX}")
    a(f"v_and_b32 v{vT0}, 3, v{vJ}\nv_lshlrev_b32 v{vT0}, 9, v{vT0}\nv_lshl_add_u32 v{vT0}, v{vG}, 4, v{vT0}\nv_add_u32 v{vT0}, s{sT2}, v{vT0}")
    a.wait("CPg")
    def ctx_fold(nt):
        d = vDD + 8*(nt % 2)
        res = vRES + 4*(nt % 2)
        for r in range(4):
            a(f"v_mul_f32 v{res+r}, v{d+r}, v{vSTAT}")
        for r in range(4):
            a(f"v_fmac_f32 v{res+r}, v{d+4+r}, v{vSTAT+2}")
        for ror in (8, 4):
            for r in range(4):
                a(f"v_add_f32_dpp v{res+r}, v{res+r}, v{res+r} row_ror:{ror} {DPP}")
        a(f"ds_write_b128 v{vT0}, {V(res,4)} offset:{64*nt}")
    for nt in range(8):
        d = vDD + 8*(nt % 2)
        for k in range(4):
            for hf in range(2):
                c = V(d+4*hf, 4) if k else "0"
                a(f"v_mfma_f32_16x16x32_bf16 {V(d+4*hf,4)}, {V(vWT+16*nt+4*k,4)}, {V(vCB+16*hf+4*k,4)}, {c}")
        if nt: ctx_fold(nt - 1)
    ctx_fold(7)
    a(f"s_lshl_b32 s{sT2}, s{sW}, 9\ns_add_u32 s{sT2}, s{sT2}, {LDS_EX}\nv_and_b32 v{vT1}, 31, v{vL}\nv_lshl_add_u32 v{vT2}, v{vT1}, 4, s{sT2}")
    a(f"s_mul_i32 s{sT2}, s{sW}, 320\ns_add_u32 s{sT2}, s{sT2}, {LDS_O}\nv_lshl_add_u32 v{vT3}, v{vT1}, 3, s{sT2}")
    a("s_waitcnt lgkmcnt(0)\ns_barrier")
    for p in range(4):
        a(f"ds_read_b128 {V(vCB+4*p,4)}, v{vT2} offset:{p*2048}")
    a("s_waitcnt lgkmcnt(0)")
    for r in range(4):
        a(f"v_add_f32 v{vCB+r}, v{vCB+r}, v{vCB+4+r}\nv_add_f32 v{vCB+8+r}, v{vCB+8+r}, v{vCB+12+r}")
    for r in range(4):
        a(f"v_add_f32 v{vCB+r}, v{vCB+r}, v{vCB+8+r}")
    a(f"v_cvt_pk_bf16_f32 v{vCB}, v{vCB}, v{vCB+1}\nv_cvt_pk_bf16_f32 v{vCB+1}, v{vCB+2}, v{vCB+3}")
    a(f"ds_write_b64 v{vT3}, {V(vCB,2)}")
    slab_in(A0)
    slab_out()
    stamp(9)

    vBU, vY = 20, 84
    vAO, vAY, vAG, vAF, vAM, vAW = 100, 101, 102, 103, 92, 93
    vG2 = 104
    for i in range(64): a(f"v_mov_b32 v{vBU+i}, 0")
    a(f"v_and_b32 v{vT0}, 3, v{vJ}\nv_mul_u32_u24 v{vAO}, 320, v{vT0}\nv_lshl_add_u32 v{vAO}, v{vG}, 4, v{vAO}\nv_add_u32 v{vAO}, {LDS_O}, v{vAO}")
    a(f"s_lshl_b32 s{sT0}, s{sW}, 16\ns_lshl_b32 s{sT2}, s{sH}, 8\ns_add_u32 s{sT0}, s{sT0}, s{sT2}\nv_add_u32 v{vAY}, s{sT0}, v{vOR8}")
    a(f"s_lshl_b32 s{sT0}, s{sH}, 13\ns_lshl_b32 s{sT2}, s{sW}, 6\ns_add_u32 s{sT0}, s{sT0}, s{sT2}")
    a(f"v_lshrrev_b32 v{vT1}, 2, v{vL}\nv_lshlrev_b32 v{vT1}, 8, v{vT1}\nv_lshl_add_u32 v{vT1}, v{vT0}, 4, v{vT1}\nv_add_u32 v{vAG}, s{sT0}, v{vT1}")
    a(f"s_lshr_b32 s{sT0}, s{sH}, 2\ns_lshl_b32 s{sT0}, s{sT0}, 7\ns_lshl_b32 s{sT2}, s{sW}, 5\ns_add_u32 s{sT0}, s{sT0}, s{sT2}")
    a(f"s_and_b32 s{sT2}, s{sH}, 3\ns_lshl_b32 s{sT2}, s{sT2}, 3\ns_add_u32 s{sT0}, s{sT0}, s{sT2}")
    a(f"v_lshlrev_b32 v{vT1}, 11, v{vT0}\nv_lshl_add_u32 v{vT1}, v{vG}, 1, v{vT1}\nv_add_u32 v{vAF}, s{sT0}, v{vT1}")
    a(f"v_lshlrev_b32 v{vT0}, 7, v{vG}\nv_lshl_add_u32 v{vT0}, v{vJ}, 4, v{vT0}\nv_mov_b32 v{vT1}, 512")
    a(f"v_cmp_gt_u32 vcc, 8, v{vJ}\nv_cndmask_b32 v{vAM}, v{vT1}, v{vT0}, vcc")
    a(f"s_mul_i32 s{sT2}, s{sW}, 320\ns_add_u32 s{sT2}, s{sT2}, {LDS_O}\nv_lshlrev_b32 v{vT0}, 6, v{vG}\nv_lshl_add_u32 v{vT0}, v{vJ}, 1, v{vT0}\nv_add_u32 v{vAW}, s{sT2}, v{vT0}")
    a(f"s_mov_b32 s{sMODE}, 0\ns_mov_b32 s{sYO}, {WS_YA}\ns_mov_b32 s{sOUTO}, 0")
    a("L_final:")
    a("s_waitcnt lgkmcnt(0)\ns_barrier")
    for u in range(4):
        setexec(0x000f000f000f000f << (4*u))
        for k in range(4):
            a(f"ds_read_b128 {V(vBU+16*u+4*k,4)}, v{vAO} offset:{64*k}")
    setexec(FULL)
    a(f"s_add_u32 s{sT0}, s{sYO}, 32768")
    for u in range(4):
        a(f"s_waitcnt lgkmcnt({12-4*u})")
        for k in range(4):
            for v in range(2):
                c = V(vY+4*v, 4) if (u or k) else "0"
                a(f"v_mfma_f32_16x16x32_bf16 {V(vY+4*v,4)}, {V(vWT+16*(4*v+u)+4*k,4)}, {V(vBU+16*u+4*k,4)}, {c}")
    for v in range(2):
        tag(range(vY+4*v, vY+4*v+4))
        a(f"buffer_store_dwordx4 {V(vY+4*v,4)}, v{vAY}, s[{rWS}:{rWS+3}], s{sT0 if v else sYO} offen sc1")
    a(f"s_cmp_eq_u32 s{sMODE}, 0\ns_cbranch_scc1 L_prepb")
    a("L_hop2:")
    a(f"s_add_u32 s{sT0}, s{sYO}, 4096")
    for i in range(2):
        a(f"buffer_load_dwordx4 {V(vG2+4*i,4)}, v{vAG}, s[{rWS}:{rWS+3}], s{sT0 if i else sYO} offen sc1")
    a("s_waitcnt vmcnt(0)")
    untag(list(range(vG2, vG2+8)), vT0)
    a("s_cbranch_vccz L_hop2ok")
    spin_guard("L_hop2")
    a("L_hop2ok:")
    for r in range(4):
        a(f"v_add_f32 v{vG2+r}, v{vG2+r}, v{vG2+4+r}")
    a(f"v_permlane16_swap_b32 v{vG2}, v{vG2+1}\nv_permlane16_swap_b32 v{vG2+2}, v{vG2+3}")
    a(f"v_add_f32 v{vG2}, v{vG2}, v{vG2+1}\nv_add_f32 v{vG2+2}, v{vG2+2}, v{vG2+3}")
    a(f"v_permlane32_swap_b32 v{vG2}, v{vG2+2}\nv_add_f32 v{vG2}, v{vG2}, v{vG2+2}")
    a(f"v_add_f32_dpp v{vG2}, v{vG2}, v{vG2} row_ror:8 {DPP}\nv_add_f32_dpp v{vG2}, v{vG2}, v{vG2} row_ror:4 {DPP}")
    a(f"v_cvt_pk_bf16_f32 v{vG2}, v{vG2}, v{vG2}")
    setexec(0x000f000f000f000f)
    a(f"buffer_store_short v{vG2}, v{vAF}, s[{rOUT}:{rOUT+3}], s{sOUTO} offen")
    setexec(FULL)
    a(f"s_cmp_lg_u32 s{sMODE}, 0\ns_cbranch_scc1 L_fin")
    stamp(11)
    a(f"s_mov_b32 s{sMODE}, 1\ns_mov_b32 s{sYO}, {WS_YB}\ns_mov_b32 s{sOUTO}, 1024")
    a(f"s_lshl_b32 s{sU0}, s{sH}, 2\ns_add_u32 s{sU0}, s{sU0}, s{sW}\ns_lshl_b32 s{sU0}, s{sU0}, 13\ns_add_u32 s{sU0}, s{sU0}, {WS_OP}\ns_add_u32 s{sU1}, s{sU0}, 4096")
    a(f"v_min_u32 v{vT1}, 6, v{vL}\nv_lshlrev_b32 v{vT1}, 10, v{vT1}")
    a("L_light:")
    a(f"buffer_load_dword v{vT2}, v{vT1}, s[{rWS}:{rWS+3}], s{sU0} offen offset:512 sc1\ns_waitcnt vmcnt(0)")
    a(f"v_xor_b32 v{vT2}, s{sTAG}, v{vT2}\nv_and_b32 v{vT2}, 0xff, v{vT2}\nv_cmp_ne_u32 vcc, 0, v{vT2}")
    a(f"s_and_b32 s{sT0}, vcc_lo, 0x7f\ns_bcnt1_i32_b32 s{sT0}, s{sT0}\ns_cmp_le_u32 s{sT0}, 2\ns_cbranch_scc1 L_hop1")
    a("s_sleep 2")
    spin_guard("L_light")
    vMS = [104, 108, 112, 116, 120, 124, 84]
    vWS7 = [4, 5, 6, 7, 88, 89, 90]
    a("L_hop1:")
    for s in range(7):
        a(f"buffer_load_dwordx4 {V(vMS[s],4)}, v{vAM}, s[{rWS}:{rWS+3}], s{sU0 if s < 4 else sU1} offen offset:{1024*(s&3)} sc1")
    a("s_waitcnt vmcnt(0)")
    untag([m + r for m in vMS for r in range(4)], vT0)
    a("s_cbranch_vccz L_hop1ok")
    spin_guard("L_hop1")
    a("L_hop1ok:")
    stamp(12)
    vMX, vOO = 91, 10
    a(f"v_max3_f32 v{vMX}, v{vMS[0]}, v{vMS[1]}, v{vMS[2]}")
    a(f"v_max3_f32 v{vMX}, v{vMX}, v{vMS[3]}, v{vMS[4]}\nv_max3_f32 v{vMX}, v{vMX}, v{vMS[5]}, v{vMS[6]}")
    for s in range(7):
        a(f"v_sub_f32 v{vWS7[s]}, v{vMS[s]}, v{vMX}")
    for s in range(7):
        a(f"v_exp_f32 v{vWS7[s]}, v{vWS7[s]}")
    for s in range(7):
        for r in (1, 0, 2, 3):
            op = "v_fmac_f32_dpp" if s else "v_mul_f32_dpp"
            a(f"{op} v{vOO+r}, v{vWS7[s]}, v{vMS[s]+r} row_newbcast:8 {DPP}")
    a(f"v_rcp_f32 v{vMX}, v{vOO+1}")
    for r in range(4):
        a(f"v_mul_f32_dpp v{vOO+r}, v{vMX}, v{vOO+r} row_newbcast:8 {DPP}")
    a(f"v_cvt_pk_bf16_f32 v{vOO}, v{vOO}, v{vOO+1}\nv_cvt_pk_bf16_f32 v{vOO+2}, v{vOO+2}, v{vOO+3}")
    setexec(0x00ff00ff00ff00ff)
    a(f"ds_write_b16 v{vAW}, v{vOO}\nds_write_b16_d16_hi v{vAW}, v{vOO} offset:16")
    a(f"ds_write_b16 v{vAW}, v{vOO+2} offset:32\nds_write_b16_d16_hi v{vAW}, v{vOO+2} offset:48")
    setexec(FULL)
    a("s_branch L_final")
    a("L_prepb:")
    stamp(10)
    a("s_waitcnt vmcnt(0)")
    slab_in(A1)
    slab_out()
    a("s_barrier")
    a("s_branch L_hop2")
    a("L_fin:")
    stamp(13)
    a(f"s_or_b32 s{sT0}, s{sH}, s{sW}\ns_cmp_lg_u32 s{sT0}, 0\ns_cbranch_scc1 L_end")
    a(f"v_mov_b32 v{vT0}, 0")
    setexec(1)
    a(f"buffer_store_dword v{vTAG}, v{vT0}, s[{rWS}:{rWS+3}], 0 offen")
    a("L_end:\ns_endpgm")
    body = a.finish()
    ref = open(os.path.join(os.path.dirname(os.path.abspath(__file__)), "..", NAME + ".s.ref")).read().split("\n")
    layout = [l for l in ref if l.startswith(";") and "@launch" not in l and "Override" not in l and "grid=ceil" not in l]
    tail = f""".section .rodata,"a"
.p2align 6
.amdhsa_kernel {NAME}_kernel
  .amdhsa_next_free_vgpr 512
  .amdhsa_next_free_sgpr 102
  .amdhsa_accum_offset 256
  .amdhsa_group_segment_fixed_size 0
  .amdhsa_kernarg_size 112
  .amdhsa_user_sgpr_count 2
  .amdhsa_user_sgpr_kernarg_segment_ptr 1
  .amdhsa_system_sgpr_workgroup_id_x 1
.end_amdhsa_kernel
"""
    return "\n".join(layout + hdr + ["; generated by tools/gen.py"]) + "\n" + body + tail

if __name__ == "__main__":
    kw = eval("dict(" + (sys.argv[2] if len(sys.argv) > 2 else "") + ")")
    out = sys.argv[1] if len(sys.argv) > 1 else os.path.join(os.path.dirname(os.path.abspath(__file__)), "..", NAME + ".s")
    open(out, "w").write(generate(**kw))
    print("wrote", out)
```

```python
import sys, os
sys.path.insert(0, os.path.dirname(os.path.abspath(__file__)))
from asmlib import Asm

NAME = "concat_heads__compressed_kv_cla__mha_block_cached__decode"
KB, MB = 1024, 1 << 20
WS_QP, WS_QL, WS_CS, WS_YA, WS_YB, WS_CP, WS_OP, WS_ST, WS_SIZE = 1*MB, 2*MB, 2*MB + 512*KB, 3*MB, 3*MB + 512*KB, 4*MB, 5*MB, 6*MB, 8*MB
SCALE = 128 ** -0.5 * 1.4426950408889634
LDS_EX = 128 * KB
LDS_O = LDS_EX + 16 * KB
SPIN = 1 << 20

import struct
def f32(x): return struct.unpack("<I", struct.pack("<f", x))[0]
def V(a, n=1): return f"v{a}" if n == 1 else f"v[{a}:{a+n-1}]"
def A(a, n=1): return f"a{a}" if n == 1 else f"a[{a}:{a+n-1}]"
def S(a, n=1): return f"s{a}" if n == 1 else f"s[{a}:{a+n-1}]"
DPP = "row_mask:0xf bank_mask:0xf"

pAX, pCK, pAWQ, pUK, pUV, pAWO, pBX, pK, pV, pBWQ, pBWO, pOUT, pDBG, pWS = range(4, 32, 2)
sH, sP, sW, sTAG, sT0, sT1, sT2, sT3 = 32, 33, 34, 35, 36, 37, 38, 39
rW, rX, rWS, rK, rV, rUV, rWA, rWB, rOUT, rDBG = 40, 44, 48, 52, 56, 60, 64, 68, 72, 76
rCK, rUK = rK, rV
sSELLO, sSELHI, sHI24, sC, sSPIN = 80, 81, 82, 83, 84
sU0, sU1, sTK, sROT, sBASE = 85, 86, 87, 88, 89
sM0, sMODE, sIT, sSLOT, sCKO, sYO, sOUTO = 90, 92, 93, 94, 95, 96, 97
sTS = 98


def generate(D=5, GS=0, ROTH=8, ROTW=1, POLLAT=22, STAMP=False, DBG=None, POLK='nt', POLV='nt', POLW='nt'):
    a = Asm()
    role = ["B"]

    def srd(r, p, size):
        a(f"s_mov_b32 s{r}, s{p}\ns_and_b32 s{r+1}, s{p+1}, 0xffff\ns_mov_b32 s{r+2}, {size}\ns_mov_b32 s{r+3}, 0x20000")

    def stamp(i):
        if DBG is not None:
            key = (role[0], i)
            if key in DBG:
                a(f"s_memrealtime s[{sTS}:{sTS+1}]\ns_waitcnt lgkmcnt(0)")
                a(f"v_mov_b32 v{vST1}, s{sTS}\ns_mov_b64 s[100:101], exec\ns_mov_b64 exec, 1")
                a(f"global_atomic_umax v{vST0}, v{vST1}, s[{pDBG}:{pDBG+1}] offset:{4*(3+DBG.index(key))} sc1")
                a("s_mov_b64 exec, s[100:101]")
            return
        if not STAMP: return
        a(f"s_memrealtime s[{sTS}:{sTS+1}]\ns_waitcnt lgkmcnt(0)")
        a(f"v_mov_b32 v{vST1}, s{sTS}\ns_mov_b64 s[100:101], exec\ns_mov_b64 exec, 1")
        a(f"buffer_store_dword v{vST1}, v{vST0}, s[{rWS}:{rWS+3}], 0 offen offset:{4*i}")
        a("s_mov_b64 exec, s[100:101]")

    def spin_guard(lbl_retry):
        a(f"s_sub_u32 s{sSPIN}, s{sSPIN}, 1\ns_cmp_lg_u32 s{sSPIN}, 0\ns_cbranch_scc1 {lbl_retry}\ns_branch L_end")

    def untag(regs, acc):
        for r in regs:
            a(f"v_xor_b32 v{r}, s{sTAG}, v{r}")
        a(f"v_or_b32 v{acc}, v{regs[0]}, v{regs[1]}")
        for i in range(2, len(regs), 2):
            a(f"v_or3_b32 v{acc}, v{acc}, v{regs[i]}, v{regs[i+1]}")
        a(f"v_and_b32 v{acc}, 0xff, v{acc}\nv_cmp_ne_u32 vcc, 0, v{acc}")

    def tag(regs):
        for r in regs:
            a(f"v_and_or_b32 v{r}, v{r}, s{sHI24}, v{vTAG}")

    def quadsum(dst, src, tmp):
        a(f"v_mov_b32_dpp v{dst}, v{src} quad_perm:[0,0,0,0] {DPP}")
        a(f"v_mov_b32_dpp v{tmp}, v{src+2} quad_perm:[2,2,2,2] {DPP}")
        a(f"v_add_f32_dpp v{dst}, v{src+1}, v{dst} quad_perm:[1,1,1,1] {DPP}")
        a(f"v_add_f32_dpp v{tmp}, v{src+3}, v{tmp} quad_perm:[3,3,3,3] {DPP}")
        a(f"v_add_f32 v{dst}, v{dst}, v{tmp}")

    def setexec(mask):
        lo, hi = mask & 0xffffffff, mask >> 32
        if mask == (1 << 64) - 1: a("s_mov_b64 exec, -1")
        elif mask <= 64: a(f"s_mov_b64 exec, {mask}")
        else: a(f"s_mov_b32 exec_lo, {lo:#x}\ns_mov_b32 exec_hi, {hi:#x}")
    FULL = (1 << 64) - 1

    vL, vG, vJ, vT0, vT1, vT2, vT3, vTAG = 1, 2, 3, 4, 5, 6, 7, 8
    vMASK = 10
    vOW, vOX = 14, 15
    vST0, vST1 = 16, 17
    vX = 20
    vB = 28
    vACC = 36
    vW = 44

    hdr = [f"; @launch grid=(256,1,1) block=(256,1,1) lds={160*KB}"]
    a(f'.amdgcn_target "amdgcn-amd-amdhsa--gfx950"\n.text\n.globl {NAME}_kernel\n.p2align 8\n.type {NAME}_kernel,@function')
    a(f"{NAME}_kernel:")
    a("s_cmp_ge_u32 s2, 256\ns_cbranch_scc1 L_end")
    a("s_load_dwordx16 s[4:19], s[0:1], 0\ns_load_dwordx8 s[20:27], s[0:1], 64\ns_load_dwordx4 s[28:31], s[0:1], 96")
    if STAMP or DBG is not None: a(f"s_memrealtime s[{sTS}:{sTS+1}]")
    a(f"v_lshrrev_b32 v{vT0}, 6, v0\nv_and_b32 v{vL}, 63, v0\nv_readfirstlane_b32 s{sW}, v{vT0}")
    a(f"s_lshr_b32 s{sH}, s2, 3\ns_sub_u32 s{sP}, s2, s{sH}\ns_sub_u32 s{sP}, s{sP}, 1\ns_and_b32 s{sP}, s{sP}, 7")
    a(f"v_lshrrev_b32 v{vG}, 4, v{vL}\nv_and_b32 v{vJ}, 15, v{vL}")
    a(f"v_lshlrev_b32 v{vT0}, 16, v{vG}\nv_lshl_add_u32 v{vOW}, v{vJ}, 4, v{vT0}")
    a(f"v_lshrrev_b32 v{vT1}, 3, v{vJ}\nv_lshlrev_b32 v{vT1}, 10, v{vT1}\nv_lshl_add_u32 v{vOX}, v{vG}, 4, v{vT1}")
    a(f"s_and_b32 s{sT0}, s{sP}, 3\ns_lshl_b32 s{sT0}, s{sT0}, 2\ns_add_u32 s{sT0}, s{sT0}, s{sW}")
    a(f"s_lshl_b32 s{sT1}, s{sT0}, 6\ns_lshl_b32 s{sT0}, s{sT0}, 18\ns_lshl_b32 s{sT2}, s{sH}, 8\ns_add_u32 s{sT0}, s{sT0}, s{sT2}")
    a(f"s_mov_b32 s{rW+2}, {4*MB}\ns_mov_b32 s{rW+3}, 0x20000\ns_mov_b32 s{rX+2}, 4096\ns_mov_b32 s{rX+3}, 0x20000")
    a(f"s_cmp_ge_u32 s{sP}, 4\ns_waitcnt lgkmcnt(0)")
    a(f"s_cselect_b64 s[{rW}:{rW+1}], s[{pAWQ}:{pAWQ+1}], s[{pBWQ}:{pBWQ+1}]")
    a(f"s_cselect_b64 s[{rX}:{rX+1}], s[{pAX}:{pAX+1}], s[{pBX}:{pBX+1}]")
    a(f"s_load_dword s{sTAG}, s[{pWS}:{pWS+1}], 0")
    for u in range(2):
        a.vm(f"buffer_load_dwordx4 {V(vX+4*u,4)}, v{vOX}, s[{rX}:{rX+3}], s{sT1} offen offset:{2048*u}", "X")
    for t in range(8):
        a.vm(f"buffer_load_dwordx4 {V(vW+4*t,4)}, v{vOW}, s[{rW}:{rW+3}], s{sT0} offen {POLW}", f"W{t}")
        if t < 7: a(f"s_add_u32 s{sT0}, s{sT0}, 8192")
    srd(rWS, pWS, WS_SIZE)
    a(f"s_mov_b32 s{sSELLO}, 0x01000100\ns_mov_b32 s{sSELHI}, 0x03020302\ns_mov_b32 s{sHI24}, 0xffffff00")
    a(f"s_mov_b32 s{sC}, {f32(SCALE):#x}\ns_mov_b32 s{sSPIN}, {SPIN}")
    a(f"v_and_b32 v{vT0}, 1, v{vL}\nv_lshlrev_b32 v{vT0}, 4, v{vT0}\nv_mov_b32 v{vT1}, 0xffff\nv_lshlrev_b32 v{vT0}, v{vT0}, v{vT1}")
    a(f"v_bfe_u32 v{vT1}, v{vL}, 1, 2")
    for r in range(4):
        a(f"v_cmp_eq_u32 vcc, {r}, v{vT1}\nv_cndmask_b32 v{vMASK+r}, 0, v{vT0}, vcc")
    if STAMP:
        a(f"s_lshl_b32 s{sT2}, s2, 2\ns_add_u32 s{sT2}, s{sT2}, s{sW}\ns_lshl_b32 s{sT2}, s{sT2}, 6\ns_add_u32 s{sT2}, s{sT2}, {WS_ST}\nv_mov_b32 v{vST0}, s{sT2}")
        a(f"v_mov_b32 v{vST1}, s{sTS}\ns_mov_b64 exec, 1")
        a(f"buffer_store_dword v{vST1}, v{vST0}, s[{rWS}:{rWS+3}], 0 offen\ns_mov_b64 exec, -1")
    if DBG is not None:
        a(f"v_mov_b32 v{vST0}, 0\nv_mov_b32 v{vST1}, s{sTS}\nv_not_b32 v{vT0}, v{vST1}\ns_cmp_lg_u32 s{sW}, 0\ns_cbranch_scc1 L_nodbg\ns_mov_b64 exec, 1")
        a(f"global_atomic_umax v{vST0}, v{vT0}, s[{pDBG}:{pDBG+1}] offset:4 sc1")
        a(f"global_atomic_umax v{vST0}, v{vST1}, s[{pDBG}:{pDBG+1}] offset:8 sc1\ns_mov_b64 exec, -1\nL_nodbg:")
    a(f"s_cmp_eq_u32 s{sP}, 7\ns_cbranch_scc1 L_aux")
    q_entry = list(a.q)

    def qpart(next_load):
        for t in range(8):
            a.wait(f"W{t}")
            next_load(t)
            for u in range(2):
                a(f"v_perm_b32 v{vT0+u}, v{vX+4*u+(t>>1)}, v{vX+4*u+(t>>1)}, s{sSELHI if t & 1 else sSELLO}")
            for u in range(2):
                for r in range(4):
                    a(f"v_and_b32 v{vB+4*u+r}, v{vT0+u}, v{vMASK+r}")
            for u in range(2):
                c = V(vACC+4*u, 4) if t else "0"
                a(f"v_mfma_f32_16x16x32_bf16 {V(vACC+4*u,4)}, {V(vW+4*t,4)}, {V(vB+4*u,4)}, {c}")
        a(f"s_lshl_b32 s{sT2}, s{sW}, 11\ns_add_u32 s{sT2}, s{sT2}, {LDS_EX}")
        a(f"v_lshrrev_b32 v{vT0}, 3, v{vJ}\nv_lshlrev_b32 v{vT0}, 9, v{vT0}\nv_lshl_add_u32 v{vT0}, v{vG}, 7, v{vT0}")
        a(f"v_and_b32 v{vT1}, 7, v{vJ}\nv_lshl_add_u32 v{vT0}, v{vT1}, 2, v{vT0}\nv_add_u32 v{vT0}, s{sT2}, v{vT0}")
        a(f"s_lshl_b32 s{sT2}, s{sW}, 9\nv_and_b32 v{vT1}, 31, v{vL}\nv_lshl_add_u32 v{vT1}, v{vT1}, 4, s{sT2}")
        a(f"v_add_u32 v{vT2}, {LDS_EX}, v{vT1}")
        for u in range(2):
            for r in range(4):
                a(f"ds_write_b32 v{vT0}, v{vACC+4*u+r} offset:{u*1024+r*32}")
        a("s_waitcnt lgkmcnt(0)\ns_barrier")
        for p in range(4):
            a(f"ds_read_b128 {V(vW+4*p,4)}, v{vT2} offset:{p*2048}")
        a(f"s_add_u32 s{sTAG}, s{sTAG}, 0x5b\ns_and_b32 s{sTAG}, s{sTAG}, 0xff\nv_mov_b32 v{vTAG}, s{sTAG}")
        a(f"s_lshl_b32 s{sT2}, s{sH}, 3\ns_add_u32 s{sT2}, s{sT2}, s{sP}\ns_lshl_b32 s{sT2}, s{sT2}, 11\ns_add_u32 s{sT2}, s{sT2}, {WS_QP}")
        a("s_waitcnt lgkmcnt(0)")
        for r in range(4):
            a(f"v_add_f32 v{vW+r}, v{vW+r}, v{vW+4+r}\nv_add_f32 v{vW+8+r}, v{vW+8+r}, v{vW+12+r}")
        for r in range(4):
            a(f"v_add_f32 v{vW+r}, v{vW+r}, v{vW+8+r}")
        tag(range(vW, vW+4))
        setexec(0xffffffff)
        a.vm(f"buffer_store_dwordx4 {V(vW,4)}, v{vT1}, s[{rWS}:{rWS+3}], s{sT2} offen sc1", "QPst")
        setexec(FULL)

    vOK, vOV, vOQ, vOP = 76, 77, 78, 79
    vBQ = 80
    vPB = 96
    vS, vO = 112, 116
    vMC, vLS, vSC, vP, vU0, vU1 = 120, 121, 122, 123, 124, 125
    vQ = 44
    RING = 128
    srd(rK, pK, 128*MB); srd(rV, pV, 128*MB)
    gs = GS if GS else 8
    tstep = 256 if GS else 1024
    a(f"v_lshrrev_b32 v{vT0}, 2, v{vJ}\nv_and_b32 v{vT1}, 3, v{vJ}")
    a(f"v_lshlrev_b32 v{vOK}, {gs}, v{vT0}\nv_lshl_add_u32 v{vOK}, v{vG}, 6, v{vOK}\nv_lshl_add_u32 v{vOK}, v{vT1}, 4, v{vOK}")
    a(f"v_lshlrev_b32 v{vOV}, {gs}, v{vG}\nv_lshl_add_u32 v{vOV}, v{vJ}, 4, v{vOV}")
    a(f"v_lshlrev_b32 v{vOQ}, 11, v{vT0}\nv_lshl_add_u32 v{vOQ}, v{vG}, 7, v{vOQ}\nv_lshl_add_u32 v{vOQ}, v{vT1}, 5, v{vOQ}")
    a(f"s_lshl_b32 s{sBASE}, s{sW}, 5\ns_add_u32 s{sBASE}, s{sBASE}, s{sH}\ns_lshl_b32 s{sBASE}, s{sBASE}, 20")
    a(f"s_mul_i32 s{sROT}, s{sH}, {ROTH}\ns_mul_i32 s{sT2}, s{sW}, {ROTW}\ns_add_u32 s{sROT}, s{sROT}, s{sT2}")
    a(f"s_mov_b32 s{sTK}, s{sP}")

    def unit_addr(dst, guard=True):
        a(f"s_add_u32 s{sT3}, s{sTK}, s{sROT}\ns_and_b32 s{sT3}, s{sT3}, 255")
        if GS:
            lo = GS - 10
            a(f"s_lshr_b32 s{dst}, s{sT3}, {lo}\ns_lshl_b32 s{dst}, s{dst}, {GS+2}\ns_and_b32 s{sT3}, s{sT3}, {(1<<lo)-1}")
            a(f"s_lshl_b32 s{sT3}, s{sT3}, 10\ns_add_u32 s{dst}, s{dst}, s{sT3}\ns_add_u32 s{dst}, s{dst}, s{sBASE}")
        else:
            a(f"s_lshl_b32 s{sT3}, s{sT3}, 12\ns_add_u32 s{dst}, s{sT3}, s{sBASE}")
        if guard:
            a(f"s_cmp_ge_u32 s{sTK}, 256\ns_cselect_b32 s{dst}, {128*MB}, s{dst}")

    def kv_load(slot, r, base, tg):
        isv = r >= 4
        a.vm(f"buffer_load_dwordx4 {V(RING+4*slot,4)}, v{vOV if isv else vOK}, s[{rV if isv else rK}:{(rV if isv else rK)+3}], s{base} offen offset:{(r%4)*tstep} {POLV if isv else POLK}", tg)

    def pre_load(n):
        if n % 8 == 0:
            if n: a(f"s_add_u32 s{sTK}, s{sTK}, 7")
            unit_addr(sU0, guard=False)
        kv_load(n, n % 8, sU0, f"P{n}")

    def softmax_part():
        quadsum(vSC, vS, vU0)
        skip = a.label("nomax")
        a(f"v_fma_f32 v{vP}, v{vSC}, s{sC}, -v{vMC}\nv_cmp_lt_f32 vcc, 0, v{vP}\ns_cbranch_vccz {skip}")
        a(f"v_mul_f32 v{vSC}, s{sC}, v{vSC}")
        a(f"v_max_f32_dpp v{vU0}, v{vSC}, v{vSC} row_ror:4 {DPP}")
        a(f"v_max_f32_dpp v{vU0}, v{vU0}, v{vU0} row_ror:8 {DPP}")
        a(f"v_mov_b32 v{vU1}, v{vU0}\nv_permlane16_swap_b32 v{vU0}, v{vU1}\nv_max_f32 v{vU0}, v{vU0}, v{vU1}")
        a(f"v_mov_b32 v{vU1}, v{vU0}\nv_permlane32_swap_b32 v{vU0}, v{vU1}\nv_max_f32 v{vU0}, v{vU0}, v{vU1}")
        a(f"v_and_b32 v{vU0}, s{sHI24}, v{vU0}\nv_max_f32 v{vU0}, v{vU0}, v{vMC}")
        a(f"v_sub_f32 v{vU1}, v{vMC}, v{vU0}\nv_exp_f32 v{vU1}, v{vU1}\nv_mov_b32 v{vMC}, v{vU0}\nv_sub_f32 v{vP}, v{vSC}, v{vU0}")
        a(f"v_mul_f32 v{vLS}, v{vLS}, v{vU1}")
        for r in range(4):
            a(f"v_mul_f32 v{vO+r}, v{vO+r}, v{vU1}")
        a(f"{skip}:")
        a(f"v_exp_f32 v{vP}, v{vP}")
        a(f"v_cvt_pk_bf16_f32 v{vU0}, v{vP}, v{vP}\nv_add_f32 v{vLS}, v{vLS}, v{vP}")
        for t in range(4):
            for r in range(4):
                a(f"v_and_b32_dpp v{vPB+4*t+r}, v{vU0}, v{vMASK+r} row_newbcast:{4*t} {DPP}")

    def consume(slot, r):
        if r < 4:
            c = V(vS, 4) if r else "0"
            a(f"v_mfma_f32_16x16x32_bf16 {V(vS,4)}, {V(RING+4*slot,4)}, {V(vBQ+4*r,4)}, {c}")
            if r == 3: softmax_part()
        else:
            a(f"v_mfma_f32_16x16x32_bf16 {V(vO,4)}, {V(RING+4*slot,4)}, {V(vPB+4*(r-4),4)}, {V(vO,4)}")

    def q_poll():
        for i in range(2):
            a.vm(f"buffer_load_dwordx4 {V(vQ+4*i,4)}, v{vOQ}, s[{rWS}:{rWS+3}], s{sU1} offen offset:{16*i} sc1", "Q")

    npre = [0]
    def b_next(t):
        if t >= 8 - D:
            pre_load(npre[0]); npre[0] += 1
    qpart(b_next)
    stamp(1)
    a(f"s_lshl_b32 s{sU1}, s{sH}, 14\ns_lshl_b32 s{sT2}, s{sW}, 9\ns_add_u32 s{sU1}, s{sU1}, s{sT2}\ns_add_u32 s{sU1}, s{sU1}, {WS_QP}")
    a(f"v_mov_b32 v{vMC}, 0xff7f0000\nv_mov_b32 v{vLS}, 0")
    for r in range(4): a(f"v_mov_b32 v{vO+r}, 0")
    a(f"v_lshlrev_b32 v{vT0}, 7, v{vG}\nv_lshl_add_u32 v{vT0}, v{vJ}, 4, v{vT0}\nv_mov_b32 v{vT1}, 512")
    a(f"v_cmp_gt_u32 vcc, 8, v{vJ}\nv_cndmask_b32 v{vOP}, v{vT1}, v{vT0}, vcc")
    while npre[0] < 32:
        n = npre[0]
        a.wait(f"P{n-D}")
        if n == POLLAT: q_poll()
        pre_load(n); npre[0] += 1
    if "Q" in a.q: a.wait("Q")
    qcheck, qok = a.label("qcheck"), a.label("qok")
    a(f"{qcheck}:")
    untag(list(range(vQ, vQ+8)), vT0)
    a(f"s_cbranch_vccz {qok}")
    saved = list(a.q)
    q_poll()
    a("s_waitcnt vmcnt(0)")
    spin_guard(qcheck)
    a.q = saved
    a(f"{qok}:")
    stamp(2)
    for ror in (8, 4):
        for i in range(8):
            a(f"v_add_f32_dpp v{vQ+i}, v{vQ+i}, v{vQ+i} row_ror:{ror} {DPP}")
    for r in range(4):
        a(f"v_cvt_pk_bf16_f32 v{vQ+r}, v{vQ+2*r}, v{vQ+2*r+1}")
    for t in range(4):
        m = 0x000f000f << (4*t)
        a(f"s_mov_b32 vcc_lo, {m:#x}\ns_mov_b32 vcc_hi, {m:#x}")
        for r in range(4):
            a(f"v_cndmask_b32 v{vBQ+4*t+r}, 0, v{vQ+r}, vcc")
    a(f"s_add_u32 s{sTK}, s{sTK}, 7")
    unit_addr(sU0, guard=False)
    for n in range(32):
        if f"P{n}" in a.q: a.wait(f"P{n}")
        consume(n, n % 8)
        if n < D: kv_load(n, n, sU0, f"L{n}")
    stamp(3)
    a("L_bloop:")
    for half in range(2):
        cur, nxt = (sU0, sU1) if half == 0 else (sU1, sU0)
        for r in range(8):
            n = r + D
            a(f"s_waitcnt vmcnt({D-1})")
            if n == 8:
                a(f"s_add_u32 s{sTK}, s{sTK}, 7")
                unit_addr(nxt)
            kv_load((half*8 + n) % 16, n % 8, cur if n < 8 else nxt, "loop")
            consume(half*8 + r, r)
        a(f"s_cmp_ge_u32 s{sTK}, 256")
        a("s_cbranch_scc1 L_bdone" if half == 0 else "s_cbranch_scc0 L_bloop")
    a("L_bdone:")
    a(f"v_add_f32_dpp v{vLS}, v{vLS}, v{vLS} row_ror:8 {DPP}")
    a(f"s_lshl_b32 s{sT2}, s{sH}, 2\ns_add_u32 s{sT2}, s{sT2}, s{sW}")
    a(f"v_add_f32_dpp v{vLS}, v{vLS}, v{vLS} row_ror:4 {DPP}")
    a(f"v_mov_b32 v{vU1}, v{vLS}")
    a(f"s_lshl_b32 s{sT2}, s{sT2}, 3\ns_add_u32 s{sT2}, s{sT2}, s{sP}")
    a(f"v_permlane16_swap_b32 v{vLS}, v{vU1}\nv_add_f32 v{vLS}, v{vLS}, v{vU1}\nv_mov_b32 v{vU1}, v{vLS}")
    a(f"s_lshl_b32 s{sT2}, s{sT2}, 10\ns_add_u32 s{sT2}, s{sT2}, {WS_OP}")
    a(f"v_permlane32_swap_b32 v{vLS}, v{vU1}")
    setexec(1 << 8)
    a(f"v_add_f32 v{vO+1}, v{vLS}, v{vU1}\nv_mov_b32 v{vO}, v{vMC}")
    setexec(0x00ff00ff00ff01ff)
    tag(range(vO, vO+4))
    a(f"buffer_store_dwordx4 {V(vO,4)}, v{vOP}, s[{rWS}:{rWS+3}], s{sT2} offen sc1")
    stamp(4)
    a("s_endpgm")

    a("L_aux:")
    role[0] = "A"
    a.q = list(q_entry)
    A0, A1 = 0, 128
    vOU, vOR8, vOR1 = 18, 19, 9
    vOC = 76
    vAQ, vAP = 80, 81
    vAD = 82
    vM, vLL, vAL, vEX = 90, 91, 92, 94
    vWR = 96
    vTRB, vZ = 95, 100
    vQL = 104
    vCT = 136
    vSS = 200
    vKA = 20
    vPP = 52
    vE1 = 60
    vE2 = 216
    srd(rUK, pUK, 4*MB); srd(rCK, pCK, 16*MB)
    a(f"v_lshrrev_b32 v{vT0}, 2, v{vJ}\nv_and_b32 v{vT1}, 3, v{vJ}")
    a(f"v_lshlrev_b32 v{vOU}, 18, v{vT0}\nv_lshl_add_u32 v{vOU}, v{vG}, 6, v{vOU}\nv_lshl_add_u32 v{vOU}, v{vT1}, 4, v{vOU}")
    a(f"s_lshl_b32 s{sU0}, s{sW}, 20\ns_lshl_b32 s{sT2}, s{sH}, 8\ns_add_u32 s{sU0}, s{sU0}, s{sT2}\ns_mov_b32 s{sBASE}, s{sU0}")
    def uk_load(t):
        a.vm(f"buffer_load_dwordx4 {A(A0+4*t,4)}, v{vOU}, s[{rUK}:{rUK+3}], s{sU0} offen {POLW}", f"UK{t}")
        a(f"s_add_u32 s{sU0}, s{sU0}, 8192")
    qpart(uk_load)
    stamp(1)
    for t in range(8, 32): uk_load(t)
    vQA = 136
    a(f"v_lshrrev_b32 v{vT0}, 2, v{vJ}\nv_and_b32 v{vT1}, 3, v{vJ}")
    a(f"v_lshlrev_b32 v{vT2}, 9, v{vT0}\nv_lshl_add_u32 v{vT2}, v{vG}, 7, v{vT2}\nv_lshl_add_u32 v{vT2}, v{vT1}, 5, v{vT2}")
    a(f"s_lshl_b32 s{sU1}, s{sH}, 14\ns_add_u32 s{sU1}, s{sU1}, {WS_QP + 4*2048}\ns_add_u32 s{sT0}, s{sU1}, 4096")
    def qa_poll():
        for p in range(4):
            for i in range(2):
                a.vm(f"buffer_load_dwordx4 {V(vQA+8*p+4*i,4)}, v{vT2}, s[{rWS}:{rWS+3}], s{sU1 if p < 2 else sT0} offen offset:{(p&1)*2048+16*i} sc1", "QA")
    qa_poll()
    a(f"v_lshlrev_b32 v{vT0}, 2, v{vG}\nv_xor_b32 v{vT0}, v{vT0}, v{vJ}")
    for i in range(4):
        a(f"v_xor_b32 v{vT1}, {i}, v{vT0}\nv_lshlrev_b32 v{vT1}, 4, v{vT1}\nv_lshl_add_u32 v{vOC+i}, v{vG}, 10, v{vT1}")
        a(f"v_lshl_add_u32 v{vWR+i}, v{vG}, 8, v{vT1}")
        if i: a(f"v_add_u32 v{vOC+i}, {i*3072}, v{vOC+i}")
    a(f"s_lshl_b32 s{sM0}, s{sW}, 15")
    for i in range(4):
        a(f"v_add_u32 v{vWR+i}, s{sM0}, v{vWR+i}")
    a(f"s_lshl_b32 s{sCKO}, s{sH}, 19\ns_lshl_b32 s{sT2}, s{sW}, 8\ns_add_u32 s{sCKO}, s{sCKO}, s{sT2}")
    a(f"s_mov_b32 s{sSLOT}, 0")
    def ck_tile(tg):
        for hf in range(2):
            a(f"s_add_u32 s{sT3}, s{sM0}, s{sSLOT}")
            if hf: a(f"s_add_u32 s{sT3}, s{sT3}, 4096")
            a(f"s_mov_b32 m0, s{sT3}")
            for i in range(4):
                a.vm(f"buffer_load_dwordx4 v{vOC+i}, s[{rCK}:{rCK+3}], s{sCKO} offen offset:{i*1024} {POLW} lds", tg)
            a(f"s_add_u32 s{sCKO}, s{sCKO}, 16384")
    def next_slot():
        a(f"s_add_u32 s{sSLOT}, s{sSLOT}, 8192\ns_and_b32 s{sSLOT}, s{sSLOT}, 0x7fff")
    ck_tile("CK0"); next_slot()
    a.wait("QA")
    chk, ok = a.label("qacheck"), a.label("qaok")
    a(f"{chk}:")
    untag(list(range(vQA, vQA+32)), vT0)
    a(f"s_cbranch_vccz {ok}")
    saved = list(a.q)
    qa_poll()
    a("s_waitcnt vmcnt(0)")
    spin_guard(chk)
    a.q = saved
    a(f"{ok}:")
    stamp(2)
    for i in range(8):
        a(f"v_add_f32 v{vQA+i}, v{vQA+i}, v{vQA+16+i}\nv_add_f32 v{vQA+8+i}, v{vQA+8+i}, v{vQA+24+i}")
    for i in range(8):
        a(f"v_add_f32 v{vQA+i}, v{vQA+i}, v{vQA+8+i}")
    for r in range(4):
        a(f"v_cvt_pk_bf16_f32 v{vB+r}, v{vQA+2*r}, v{vQA+2*r+1}")
    ck_tile("CK1"); next_slot()
    vD, vR, vPK = 136, 168, 200
    def fold(t):
        quadsum(vR+t, vD + 4*(t % 8), vT0)
    for t in range(32):
        a(f"v_mfma_f32_16x16x32_bf16 {V(vD+4*(t%8),4)}, {A(A0+4*t,4)}, {V(vB,4)}, 0")
        if t >= 3: fold(t - 3)
    for t in range(29, 32): fold(t)
    for i in range(16):
        a(f"v_cvt_pk_bf16_f32 v{vPK+i}, v{vR+2*i}, v{vR+2*i+1}")
    for q in range(1, 4):
        setexec(0x1111111111111111 << q)
        for r in range(4):
            a(f"v_mov_b32 v{vPK+r}, v{vPK+4*q+r}")
    setexec(FULL)
    a(f"v_lshrrev_b32 v{vT0}, 2, v{vJ}\nv_and_b32 v{vT1}, 3, v{vJ}")
    a(f"v_lshlrev_b32 v{vT2}, 15, v{vT0}\nv_lshl_add_u32 v{vT2}, v{vG}, 6, v{vT2}\nv_lshl_add_u32 v{vT2}, v{vT1}, 4, v{vT2}")
    a(f"s_lshl_b32 s{sT0}, s{sH}, 10\ns_lshl_b32 s{sT2}, s{sW}, 8\ns_add_u32 s{sT0}, s{sT0}, s{sT2}\ns_add_u32 s{sT0}, s{sT0}, {WS_QL}")
    a.vm(f"buffer_store_dwordx4 {V(vPK,4)}, v{vT2}, s[{rWS}:{rWS+3}], s{sT0} offen sc1", "QLst")
    ck_tile("CK2"); next_slot()
    srd(rDBG, pDBG, 256); srd(rUV, pUV, 4*MB); srd(rWA, pAWO, 4*MB); srd(rWB, pBWO, 4*MB); srd(rOUT, pOUT, 8192)
    a(f"v_mov_b32 v{vZ}, 0\nv_mov_b32 v{vZ+1}, 1")
    a(f"v_lshlrev_b32 v{vT0}, 4, v{vJ}\nv_lshl_add_u32 v{vOR8}, v{vG}, 13, v{vT0}\nv_lshl_add_u32 v{vOR1}, v{vG}, 10, v{vT0}")

    def signal(tg, off):
        a.wait(tg)
        a("s_barrier")
        skip = a.label("nosig")
        a(f"s_cmp_lg_u32 s{sW}, 0\ns_cbranch_scc1 {skip}")
        setexec(1)
        a(f"buffer_atomic_add v{vZ+1}, v{vZ}, s[{rDBG}:{rDBG+3}], 0 offen offset:{off} sc1")
        setexec(FULL)
        a(f"{skip}:")

    def flag_load(off):
        a.vm(f"buffer_load_dword v{vT3}, v{vZ}, s[{rDBG}:{rDBG+3}], 0 offen offset:{off} sc1", "FL")

    def flag_wait(off):
        a.wait("FL")
        chk, ok = a.label("fcheck"), a.label("fok")
        a(f"{chk}:\nv_cmp_gt_u32 vcc, 32, v{vT3}\ns_cbranch_vccz {ok}")
        saved = list(a.q)
        a("s_sleep 4")
        flag_load(off)
        a("s_waitcnt vmcnt(0)")
        spin_guard(chk)
        a.q = saved
        a(f"{ok}:")

    sUV, sWO = sU0, sU1
    def uv_load(i):
        a.vm(f"buffer_load_dwordx4 {A(A1+4*i,4)}, v{vOR8}, s[{rUV}:{rUV+3}], s{sUV} offen {POLW}", f"UV{i}")
        a(f"s_add_u32 s{sUV}, s{sUV}, 32768")
    def wo_load(i, isb):
        r = rWB if isb else rWA
        a.vm(f"buffer_load_dwordx4 {A((A1 if isb else A0)+4*i,4)}, v{vOR1}, s[{r}:{r+3}], s{sWO} offen {POLW}", f"W{'B' if isb else 'A'}{i}")
        a(f"s_add_u32 s{sWO}, s{sWO}, 4096")
    def wo_base():
        a(f"s_lshl_b32 s{sWO}, s{sH}, 17\ns_lshl_b32 s{sT2}, s{sW}, 8\ns_add_u32 s{sWO}, s{sWO}, s{sT2}")

    signal("QLst", 0)
    stamp(3)
    ck_tile("CK3"); next_slot()
    a(f"s_mov_b32 s{sUV}, s{sBASE}")
    wo_base()
    flag_load(0)
    for i in range(8): uv_load(i)
    flag_wait(0)
    stamp(4)
    a(f"s_lshr_b32 s{sT0}, s{sH}, 3\ns_lshl_b32 s{sT0}, s{sT0}, 15\ns_lshl_b32 s{sT2}, s{sW}, 8\ns_add_u32 s{sT0}, s{sT0}, s{sT2}\ns_add_u32 s{sT0}, s{sT0}, {WS_QL}")
    for i in range(8):
        a.vm(f"buffer_load_dwordx4 {V(vKA+4*i,4)}, v{vOR1}, s[{rWS}:{rWS+3}], s{sT0} offen sc1", "QLg")
        if i < 7: a(f"s_add_u32 s{sT0}, s{sT0}, 4096")
    for i in range(8, 16): uv_load(i)
    a(f"v_and_b32 v{vT0}, 3, v{vL}\nv_bfe_u32 v{vT1}, v{vL}, 2, 2\nv_lshrrev_b32 v{vT2}, 5, v{vL}")
    a(f"v_lshl_add_u32 v{vT3}, v{vT0}, 2, v{vT1}\nv_xor_b32 v{vT3}, v{vT3}, v{vT2}\nv_lshlrev_b32 v{vT3}, 4, v{vT3}")
    a(f"v_and_b32 v{vAQ}, 31, v{vL}\nv_lshl_add_u32 v{vAQ}, v{vAQ}, 8, v{vT3}")
    a(f"v_lshl_add_u32 v{vAP}, v{vT2}, 2, v{vT1}\nv_lshlrev_b32 v{vAP}, 8, v{vAP}\nv_lshl_add_u32 v{vAP}, v{vT1}, 6, v{vAP}")
    a(f"v_bfe_u32 v{vT3}, v{vL}, 4, 1\nv_lshlrev_b32 v{vT3}, 1, v{vT3}\nv_bfe_u32 v{vU0}, v{vL}, 1, 1\nv_add_u32 v{vT3}, v{vT3}, v{vU0}")
    a(f"v_xor_b32 v{vT3}, v{vT3}, v{vT2}\nv_lshl_add_u32 v{vAP}, v{vT3}, 4, v{vAP}")
    a(f"v_and_b32 v{vT3}, 1, v{vL}\nv_lshl_add_u32 v{vAP}, v{vT3}, 3, v{vAP}")
    a(f"v_lshl_add_u32 v{vTRB}, v{vG}, 3, v{vT1}\nv_lshlrev_b32 v{vTRB}, 8, v{vTRB}\nv_lshl_add_u32 v{vTRB}, v{vT1}, 6, v{vTRB}")
    a(f"v_bfe_u32 v{vT0}, v{vL}, 4, 1\nv_lshl_add_u32 v{vT0}, v{vT0}, 1, v{vU0}\nv_lshl_add_u32 v{vTRB}, v{vT0}, 4, v{vTRB}")
    a(f"v_lshl_add_u32 v{vTRB}, v{vT3}, 3, v{vTRB}\nv_add_u32 v{vTRB}, s{sM0}, v{vTRB}")
    a(f"s_lshl_b32 s{sT1}, s{sW}, 13\ns_add_u32 s{sT1}, s{sT1}, {LDS_EX}\nv_lshl_add_u32 v{vEX}, v{vL}, 4, s{sT1}")
    a(f"s_sub_u32 s{sT2}, s{sT1}, s{sM0}")
    for i in range(4):
        a(f"v_add_u32 v{vAD+i}, s{sT2}, v{vWR+i}")
    a.wait("QLg")
    for i in range(8):
        a(f"ds_write_b128 v{vAD+(i&3)}, {V(vKA+4*i,4)} offset:{i*1024}")
    a(f"v_add_u32 v{vT0}, s{sT1}, v{vAQ}")
    for k in range(8):
        a(f"v_xor_b32 v{vAD+k}, {32*k}, v{vT0}")
    a("s_waitcnt lgkmcnt(0)")
    for k in range(8):
        a(f"ds_read_b128 {V(vQL+4*k,4)}, v{vAD+k}")
    for i in range(64): a(f"v_mov_b32 v{vCT+i}, 0")
    a(f"v_mov_b32 v{vM}, 0xff7f0000\nv_mov_b32 v{vLL}, 0\ns_mov_b32 s{sIT}, 0")
    a(f"v_add_u32 v{vAQ}, s{sM0}, v{vAQ}\nv_add_u32 v{vAP}, s{sM0}, v{vAP}")
    a("s_waitcnt lgkmcnt(0)")
    stamp(5)
    a("L_att:")
    a(f"v_add_u32 v{vT0}, s{sSLOT}, v{vAQ}")
    for k in range(8):
        a(f"v_xor_b32 v{vAD+k}, {32*k}, v{vT0}")
    a("s_waitcnt vmcnt(24)")
    for k in range(8):
        a(f"ds_read_b128 {V(vKA+4*k,4)}, v{vAD+k}")
    a(f"v_add_u32 v{vT0}, s{sSLOT}, v{vAP}")
    for k in range(8):
        a(f"s_waitcnt lgkmcnt({7-k})")
        c = V(vSS, 16) if k else "0"
        a(f"v_mfma_f32_32x32x16_bf16 {V(vSS,16)}, {V(vKA+4*k,4)}, {V(vQL+4*k,4)}, {c}")
        a(f"v_xor_b32 v{vAD+k}, {32*k}, v{vT0}")
    for nt in range(4):
        for sg in range(2):
            for pi in range(2):
                a(f"ds_read_b64_tr_b16 {V(vKA+8*nt+4*sg+2*pi,2)}, v{vAD+2*nt+pi} offset:{4096*sg+2048*pi}")
    a(f"v_xor_b32 v{vT1}, 0x2000, v{vEX}\nv_xor_b32 v{vT2}, 0x4000, v{vEX}\nv_xor_b32 v{vT3}, 0x6000, v{vEX}")
    for q in range(4):
        a(f"ds_write_b128 v{vEX}, {V(vSS+4*q,4)} offset:{1024*q}")
    a("s_waitcnt lgkmcnt(0)\ns_barrier")
    for q in range(4):
        a(f"ds_read_b128 {V(vE1+4*q,4)}, v{vT1} offset:{1024*q}")
        a(f"ds_read_b128 {V(vE2+4*q,4)}, v{vT2} offset:{1024*q}")
        a(f"ds_read_b128 {V(vE2+16+4*q,4)}, v{vT3} offset:{1024*q}")
    a(f"v_xor_b32 v{vEX}, 0x1000, v{vEX}")
    blocks = [a.label(f"fill{i}") for i in range(4)]
    filled = a.label("filled")
    a(f"s_cmp_ge_u32 s{sIT}, 12\ns_cbranch_scc1 {blocks[0]}")
    saved = list(a.q)
    ck_tile("loop")
    a.q = saved
    a(f"{filled}:")
    next_slot()
    for q in range(4):
        a(f"s_waitcnt lgkmcnt({9-3*q})")
        for r in range(4*q, 4*q+4):
            a(f"v_add_f32 v{vSS+r}, v{vSS+r}, v{vE1+r}\nv_add_f32 v{vE2+r}, v{vE2+r}, v{vE2+16+r}")
        for r in range(4*q, 4*q+4):
            a(f"v_add_f32 v{vSS+r}, v{vSS+r}, v{vE2+r}")
    a(f"v_max_f32 v{vT0}, v{vSS}, v{vSS+1}")
    for r in range(2, 16, 2):
        a(f"v_max3_f32 v{vT0}, v{vT0}, v{vSS+r}, v{vSS+r+1}")
    a(f"v_mov_b32 v{vT1}, v{vT0}\nv_permlane32_swap_b32 v{vT0}, v{vT1}\nv_max_f32 v{vT0}, v{vT0}, v{vT1}")
    a(f"v_mul_f32 v{vT0}, s{sC}, v{vT0}\nv_max_f32 v{vT0}, v{vT0}, v{vM}")
    a(f"v_sub_f32 v{vAL}, v{vM}, v{vT0}\nv_exp_f32 v{vAL}, v{vAL}\nv_mov_b32 v{vM}, v{vT0}")
    for r in range(16):
        a(f"v_fma_f32 v{vSS+r}, v{vSS+r}, s{sC}, -v{vM}")
    a(f"v_mul_f32 v{vLL}, v{vLL}, v{vAL}")
    for r in range(16):
        a(f"v_exp_f32 v{vSS+r}, v{vSS+r}")
        for i in range(2):
            c = vCT + 4*r + 2*i
            a(f"v_pk_mul_f32 {V(c,2)}, {V(c,2)}, {V(vAL,2)} op_sel_hi:[1,0]")
    for r in range(8):
        a(f"v_cvt_pk_bf16_f32 v{vPP+r}, v{vSS+2*r}, v{vSS+2*r+1}")
    k = 0
    for sg in range(2):
        for nt in range(4):
            a(f"v_mfma_f32_32x32x16_bf16 {V(vCT+16*nt,16)}, {V(vKA+8*nt+4*sg,4)}, {V(vPP+4*sg,4)}, {V(vCT+16*nt,16)}")
            a(f"v_add_f32 v{vLL}, v{vLL}, v{vSS+k}\nv_add_f32 v{vLL}, v{vLL}, v{vSS+k+1}")
            k += 2
    a(f"s_add_u32 s{sIT}, s{sIT}, 1\ns_cmp_lt_u32 s{sIT}, 16\ns_cbranch_scc1 L_att")
    a("s_branch L_attdone")
    a.q = []
    for i in range(4):
        a(f"{blocks[i]}:")
        if i < 3: a(f"s_cmp_lg_u32 s{sIT}, {12+i}\ns_cbranch_scc1 {blocks[i+1]}")
        for n in range(8):
            if i < 2: uv_load(16 + 8*i + n)
            else: wo_load(8*(i-2) + n, False)
        a(f"s_branch {filled}")
    a("L_attdone:")
    stamp(6)
    a(f"v_mov_b32 v{vT1}, v{vLL}\nv_permlane32_swap_b32 v{vLL}, v{vT1}\nv_add_f32 v{vLL}, v{vLL}, v{vT1}")
    a(f"v_and_b32 v{vT0}, 31, v{vL}\nv_mul_u32_u24 v{vT1}, 272, v{vT0}\nv_lshrrev_b32 v{vT2}, 5, v{vL}\nv_lshl_add_u32 v{vT1}, v{vT2}, 3, v{vT1}\nv_add_u32 v{vT1}, s{sM0}, v{vT1}")
    for i in range(32):
        a(f"v_cvt_pk_bf16_f32 v{vKA+i}, v{vCT+2*i}, v{vCT+2*i+1}")
    for nt in range(4):
        for q in range(4):
            a(f"ds_write_b64 v{vT1}, {V(vKA+8*nt+2*q,2)} offset:{64*nt+16*q}")
    a(f"v_mul_u32_u24 v{vT2}, 272, v{vG}\nv_lshl_add_u32 v{vT2}, v{vJ}, 4, v{vT2}\nv_add_u32 v{vT2}, s{sM0}, v{vT2}")
    a(f"v_lshlrev_b32 v{vT3}, 4, v{vJ}\nv_lshl_add_u32 v{vT3}, v{vG}, 15, v{vT3}")
    a(f"s_lshl_b32 s{sT0}, s{sH}, 10\ns_lshl_b32 s{sT2}, s{sW}, 8\ns_add_u32 s{sT0}, s{sT0}, s{sT2}\ns_add_u32 s{sT0}, s{sT0}, {WS_CP}")
    a("s_waitcnt lgkmcnt(0)")
    for i in range(8):
        a(f"ds_read_b128 {V(vCT+4*i,4)}, v{vT2} offset:{1088*i}")
    a(f"v_lshlrev_b32 v{vT0}, 3, v{vT0}\ns_lshl_b32 s{sT1}, s{sH}, 8\ns_add_u32 s{sT1}, s{sT1}, {WS_CS}")
    a(f"s_lshl_b32 s{sT2}, s{sW}, 3\ns_lshl_b32 exec_lo, 0xff, s{sT2}\ns_mov_b32 exec_hi, 0")
    a.vm(f"buffer_store_dwordx2 {V(vM,2)}, v{vT0}, s[{rWS}:{rWS+3}], s{sT1} offen sc1", "CPst")
    setexec(FULL)
    for i in range(8):
        a(f"s_waitcnt lgkmcnt({7-i})")
        a.vm(f"buffer_store_dwordx4 {V(vCT+4*i,4)}, v{vT3}, s[{rWS}:{rWS+3}], s{sT0} offen sc1", "CPst")
        if i < 7: a(f"s_add_u32 s{sT0}, s{sT0}, {4*32*KB}")
    for i in range(16, 24): wo_load(i, False)
    signal("CPst", 128)
    stamp(7)
    for i in range(24, 32): wo_load(i, False)

    vWT = 128
    def slab_in(src):
        for i in range(32):
            a(f"ds_write_b128 v{vWR+(i&3)}, {A(src+4*i,4)} offset:{1024*i}")
        a("s_waitcnt lgkmcnt(0)")
    def slab_out():
        for nt in range(8):
            for pi in range(2):
                a(f"v_xor_b32 v{vT0+pi}, {16*(2*nt+pi)}, v{vTRB}")
                for k in range(4):
                    a(f"ds_read_b64_tr_b16 {V(vWT+16*nt+4*k+2*pi,2)}, v{vT0+pi} offset:{8192*k+1024*pi}")
        a("s_waitcnt lgkmcnt(0)")

    slab_in(A1)
    wo_base()
    flag_load(128)
    for i in range(8): wo_load(i, True)
    slab_out()
    flag_wait(128)
    stamp(8)
    vCB, vSTAT, vDD, vRES = 20, 52, 60, 104
    a(f"v_and_b32 v{vT0}, 3, v{vJ}\nv_lshrrev_b32 v{vT1}, 2, v{vJ}\nv_lshl_add_u32 v{vT2}, v{vT0}, 3, v{vT1}")
    a(f"v_lshlrev_b32 v{vT3}, 8, v{vT2}\nv_lshlrev_b32 v{vT2}, 10, v{vT2}\nv_lshl_add_u32 v{vT2}, v{vG}, 4, v{vT2}")
    a(f"s_lshl_b32 s{sT0}, s{sH}, 15\ns_lshl_b32 s{sT2}, s{sW}, 8\ns_add_u32 s{sT0}, s{sT0}, s{sT2}\ns_add_u32 s{sT0}, s{sT0}, {WS_CP}")
    a(f"s_lshl_b32 s{sT1}, s{sH}, 3\ns_add_u32 s{sT1}, s{sT1}, {WS_CS}")
    for hf in range(2):
        a.vm(f"buffer_load_dwordx2 {V(vSTAT+2*hf,2)}, v{vT3}, s[{rWS}:{rWS+3}], s{sT1} offen offset:{1024*hf} sc1", "CSg")
    for hf in range(2):
        for k in range(4):
            a.vm(f"buffer_load_dwordx4 {V(vCB+16*hf+4*k,4)}, v{vT2}, s[{rWS}:{rWS+3}], s{sT0} offen offset:{64*k} sc1", "CPg")
        a(f"s_add_u32 s{sT0}, s{sT0}, 4096")
    for i in range(8, 32): wo_load(i, True)
    a.wait("CSg")
    a(f"v_max_f32 v{vT0}, v{vSTAT}, v{vSTAT+2}")
    a(f"v_max_f32_dpp v{vT0}, v{vT0}, v{vT0} row_ror:8 {DPP}\nv_max_f32_dpp v{vT0}, v{vT0}, v{vT0} row_ror:4 {DPP}")
    a(f"v_sub_f32 v{vSTAT}, v{vSTAT}, v{vT0}\nv_sub_f32 v{vSTAT+2}, v{vSTAT+2}, v{vT0}")
    a(f"v_exp_f32 v{vSTAT}, v{vSTAT}\nv_exp_f32 v{vSTAT+2}, v{vSTAT+2}")
    a(f"v_mul_f32 v{vT1}, v{vSTAT}, v{vSTAT+1}\nv_fmac_f32 v{vT1}, v{vSTAT+2}, v{vSTAT+3}")
    a(f"v_add_f32_dpp v{vT1}, v{vT1}, v{vT1} row_ror:8 {DPP}\nv_add_f32_dpp v{vT1}, v{vT1}, v{vT1} row_ror:4 {DPP}")
    a(f"v_rcp_f32 v{vT1}, v{vT1}")
    a(f"v_mul_f32 v{vSTAT}, v{vSTAT}, v{vT1}\nv_mul_f32 v{vSTAT+2}, v{vSTAT+2}, v{vT1}")
    a(f"s_lshl_b32 s{sT2}, s{sW}, 11\ns_add_u32 s{sT2}, s{sT2}, {LDS_EX}")
    a(f"v_and_b32 v{vT0}, 3, v{vJ}\nv_lshlrev_b32 v{vT0}, 9, v{vT0}\nv_lshl_add_u32 v{vT0}, v{vG}, 4, v{vT0}\nv_add_u32 v{vT0}, s{sT2}, v{vT0}")
    a.wait("CPg")
    def ctx_fold(nt):
        d = vDD + 8*(nt % 2)
        res = vRES + 4*(nt % 2)
        for r in range(4):
            a(f"v_mul_f32 v{res+r}, v{d+r}, v{vSTAT}")
        for r in range(4):
            a(f"v_fmac_f32 v{res+r}, v{d+4+r}, v{vSTAT+2}")
        for ror in (8, 4):
            for r in range(4):
                a(f"v_add_f32_dpp v{res+r}, v{res+r}, v{res+r} row_ror:{ror} {DPP}")
        a(f"ds_write_b128 v{vT0}, {V(res,4)} offset:{64*nt}")
    for nt in range(8):
        d = vDD + 8*(nt % 2)
        for k in range(4):
            for hf in range(2):
                c = V(d+4*hf, 4) if k else "0"
                a(f"v_mfma_f32_16x16x32_bf16 {V(d+4*hf,4)}, {V(vWT+16*nt+4*k,4)}, {V(vCB+16*hf+4*k,4)}, {c}")
        if nt: ctx_fold(nt - 1)
    ctx_fold(7)
    a(f"s_lshl_b32 s{sT2}, s{sW}, 9\ns_add_u32 s{sT2}, s{sT2}, {LDS_EX}\nv_and_b32 v{vT1}, 31, v{vL}\nv_lshl_add_u32 v{vT2}, v{vT1}, 4, s{sT2}")
    a(f"s_mul_i32 s{sT2}, s{sW}, 320\ns_add_u32 s{sT2}, s{sT2}, {LDS_O}\nv_lshl_add_u32 v{vT3}, v{vT1}, 3, s{sT2}")
    a("s_waitcnt lgkmcnt(0)\ns_barrier")
    for p in range(4):
        a(f"ds_read_b128 {V(vCB+4*p,4)}, v{vT2} offset:{p*2048}")
    a("s_waitcnt lgkmcnt(0)")
    for r in range(4):
        a(f"v_add_f32 v{vCB+r}, v{vCB+r}, v{vCB+4+r}\nv_add_f32 v{vCB+8+r}, v{vCB+8+r}, v{vCB+12+r}")
    for r in range(4):
        a(f"v_add_f32 v{vCB+r}, v{vCB+r}, v{vCB+8+r}")
    a(f"v_cvt_pk_bf16_f32 v{vCB}, v{vCB}, v{vCB+1}\nv_cvt_pk_bf16_f32 v{vCB+1}, v{vCB+2}, v{vCB+3}")
    a(f"ds_write_b64 v{vT3}, {V(vCB,2)}")
    slab_in(A0)
    slab_out()
    stamp(9)

    vBU, vY = 20, 84
    vAO, vAY, vAG, vAF, vAM, vAW = 100, 101, 102, 103, 92, 93
    vG2 = 104
    for i in range(64): a(f"v_mov_b32 v{vBU+i}, 0")
    a(f"v_and_b32 v{vT0}, 3, v{vJ}\nv_mul_u32_u24 v{vAO}, 320, v{vT0}\nv_lshl_add_u32 v{vAO}, v{vG}, 4, v{vAO}\nv_add_u32 v{vAO}, {LDS_O}, v{vAO}")
    a(f"s_lshl_b32 s{sT0}, s{sW}, 16\ns_lshl_b32 s{sT2}, s{sH}, 8\ns_add_u32 s{sT0}, s{sT0}, s{sT2}\nv_add_u32 v{vAY}, s{sT0}, v{vOR8}")
    a(f"s_lshl_b32 s{sT0}, s{sH}, 13\ns_lshl_b32 s{sT2}, s{sW}, 6\ns_add_u32 s{sT0}, s{sT0}, s{sT2}")
    a(f"v_lshrrev_b32 v{vT1}, 2, v{vL}\nv_lshlrev_b32 v{vT1}, 8, v{vT1}\nv_lshl_add_u32 v{vT1}, v{vT0}, 4, v{vT1}\nv_add_u32 v{vAG}, s{sT0}, v{vT1}")
    a(f"s_lshr_b32 s{sT0}, s{sH}, 2\ns_lshl_b32 s{sT0}, s{sT0}, 7\ns_lshl_b32 s{sT2}, s{sW}, 5\ns_add_u32 s{sT0}, s{sT0}, s{sT2}")
    a(f"s_and_b32 s{sT2}, s{sH}, 3\ns_lshl_b32 s{sT2}, s{sT2}, 3\ns_add_u32 s{sT0}, s{sT0}, s{sT2}")
    a(f"v_lshlrev_b32 v{vT1}, 11, v{vT0}\nv_lshl_add_u32 v{vT1}, v{vG}, 1, v{vT1}\nv_add_u32 v{vAF}, s{sT0}, v{vT1}")
    a(f"v_lshlrev_b32 v{vT0}, 7, v{vG}\nv_lshl_add_u32 v{vT0}, v{vJ}, 4, v{vT0}\nv_mov_b32 v{vT1}, 512")
    a(f"v_cmp_gt_u32 vcc, 8, v{vJ}\nv_cndmask_b32 v{vAM}, v{vT1}, v{vT0}, vcc")
    a(f"s_mul_i32 s{sT2}, s{sW}, 320\ns_add_u32 s{sT2}, s{sT2}, {LDS_O}\nv_lshlrev_b32 v{vT0}, 6, v{vG}\nv_lshl_add_u32 v{vT0}, v{vJ}, 1, v{vT0}\nv_add_u32 v{vAW}, s{sT2}, v{vT0}")
    a(f"s_mov_b32 s{sMODE}, 0\ns_mov_b32 s{sYO}, {WS_YA}\ns_mov_b32 s{sOUTO}, 0")
    a("L_final:")
    a("s_waitcnt lgkmcnt(0)\ns_barrier")
    for u in range(4):
        setexec(0x000f000f000f000f << (4*u))
        for k in range(4):
            a(f"ds_read_b128 {V(vBU+16*u+4*k,4)}, v{vAO} offset:{64*k}")
    setexec(FULL)
    a(f"s_add_u32 s{sT0}, s{sYO}, 32768")
    for u in range(4):
        a(f"s_waitcnt lgkmcnt({12-4*u})")
        for k in range(4):
            for v in range(2):
                c = V(vY+4*v, 4) if (u or k) else "0"
                a(f"v_mfma_f32_16x16x32_bf16 {V(vY+4*v,4)}, {V(vWT+16*(4*v+u)+4*k,4)}, {V(vBU+16*u+4*k,4)}, {c}")
    for v in range(2):
        tag(range(vY+4*v, vY+4*v+4))
        a(f"buffer_store_dwordx4 {V(vY+4*v,4)}, v{vAY}, s[{rWS}:{rWS+3}], s{sT0 if v else sYO} offen sc1")
    a(f"s_cmp_eq_u32 s{sMODE}, 0\ns_cbranch_scc1 L_prepb")
    a("L_hop2:")
    a(f"s_add_u32 s{sT0}, s{sYO}, 4096")
    for i in range(2):
        a(f"buffer_load_dwordx4 {V(vG2+4*i,4)}, v{vAG}, s[{rWS}:{rWS+3}], s{sT0 if i else sYO} offen sc1")
    a("s_waitcnt vmcnt(0)")
    untag(list(range(vG2, vG2+8)), vT0)
    a("s_cbranch_vccz L_hop2ok")
    spin_guard("L_hop2")
    a("L_hop2ok:")
    for r in range(4):
        a(f"v_add_f32 v{vG2+r}, v{vG2+r}, v{vG2+4+r}")
    a(f"v_permlane16_swap_b32 v{vG2}, v{vG2+1}\nv_permlane16_swap_b32 v{vG2+2}, v{vG2+3}")
    a(f"v_add_f32 v{vG2}, v{vG2}, v{vG2+1}\nv_add_f32 v{vG2+2}, v{vG2+2}, v{vG2+3}")
    a(f"v_permlane32_swap_b32 v{vG2}, v{vG2+2}\nv_add_f32 v{vG2}, v{vG2}, v{vG2+2}")
    a(f"v_add_f32_dpp v{vG2}, v{vG2}, v{vG2} row_ror:8 {DPP}\nv_add_f32_dpp v{vG2}, v{vG2}, v{vG2} row_ror:4 {DPP}")
    a(f"v_cvt_pk_bf16_f32 v{vG2}, v{vG2}, v{vG2}")
    setexec(0x000f000f000f000f)
    a(f"buffer_store_short v{vG2}, v{vAF}, s[{rOUT}:{rOUT+3}], s{sOUTO} offen")
    setexec(FULL)
    a(f"s_cmp_lg_u32 s{sMODE}, 0\ns_cbranch_scc1 L_fin")
    stamp(11)
    a(f"s_mov_b32 s{sMODE}, 1\ns_mov_b32 s{sYO}, {WS_YB}\ns_mov_b32 s{sOUTO}, 1024")
    a(f"s_lshl_b32 s{sU0}, s{sH}, 2\ns_add_u32 s{sU0}, s{sU0}, s{sW}\ns_lshl_b32 s{sU0}, s{sU0}, 13\ns_add_u32 s{sU0}, s{sU0}, {WS_OP}\ns_add_u32 s{sU1}, s{sU0}, 4096")
    a(f"v_min_u32 v{vT1}, 6, v{vL}\nv_lshlrev_b32 v{vT1}, 10, v{vT1}")
    a("L_light:")
    a(f"buffer_load_dword v{vT2}, v{vT1}, s[{rWS}:{rWS+3}], s{sU0} offen offset:512 sc1\ns_waitcnt vmcnt(0)")
    a(f"v_xor_b32 v{vT2}, s{sTAG}, v{vT2}\nv_and_b32 v{vT2}, 0xff, v{vT2}\nv_cmp_ne_u32 vcc, 0, v{vT2}")
    a(f"s_and_b32 s{sT0}, vcc_lo, 0x7f\ns_bcnt1_i32_b32 s{sT0}, s{sT0}\ns_cmp_le_u32 s{sT0}, 2\ns_cbranch_scc1 L_hop1")
    a("s_sleep 2")
    spin_guard("L_light")
    vMS = [104, 108, 112, 116, 120, 124, 84]
    vWS7 = [4, 5, 6, 7, 88, 89, 90]
    a("L_hop1:")
    for s in range(7):
        a(f"buffer_load_dwordx4 {V(vMS[s],4)}, v{vAM}, s[{rWS}:{rWS+3}], s{sU0 if s < 4 else sU1} offen offset:{1024*(s&3)} sc1")
    a("s_waitcnt vmcnt(0)")
    untag([m + r for m in vMS for r in range(4)], vT0)
    a("s_cbranch_vccz L_hop1ok")
    spin_guard("L_hop1")
    a("L_hop1ok:")
    stamp(12)
    vMX, vOO = 91, 10
    a(f"v_max3_f32 v{vMX}, v{vMS[0]}, v{vMS[1]}, v{vMS[2]}")
    a(f"v_max3_f32 v{vMX}, v{vMX}, v{vMS[3]}, v{vMS[4]}\nv_max3_f32 v{vMX}, v{vMX}, v{vMS[5]}, v{vMS[6]}")
    for s in range(7):
        a(f"v_sub_f32 v{vWS7[s]}, v{vMS[s]}, v{vMX}")
    for s in range(7):
        a(f"v_exp_f32 v{vWS7[s]}, v{vWS7[s]}")
    for s in range(7):
        for r in (1, 0, 2, 3):
            op = "v_fmac_f32_dpp" if s else "v_mul_f32_dpp"
            a(f"{op} v{vOO+r}, v{vWS7[s]}, v{vMS[s]+r} row_newbcast:8 {DPP}")
    a(f"v_rcp_f32 v{vMX}, v{vOO+1}")
    for r in range(4):
        a(f"v_mul_f32_dpp v{vOO+r}, v{vMX}, v{vOO+r} row_newbcast:8 {DPP}")
    a(f"v_cvt_pk_bf16_f32 v{vOO}, v{vOO}, v{vOO+1}\nv_cvt_pk_bf16_f32 v{vOO+2}, v{vOO+2}, v{vOO+3}")
    setexec(0x00ff00ff00ff00ff)
    a(f"ds_write_b16 v{vAW}, v{vOO}\nds_write_b16_d16_hi v{vAW}, v{vOO} offset:16")
    a(f"ds_write_b16 v{vAW}, v{vOO+2} offset:32\nds_write_b16_d16_hi v{vAW}, v{vOO+2} offset:48")
    setexec(FULL)
    a("s_branch L_final")
    a("L_prepb:")
    stamp(10)
    a("s_waitcnt vmcnt(0)")
    slab_in(A1)
    slab_out()
    a("s_barrier")
    a("s_branch L_hop2")
    a("L_fin:")
    stamp(13)
    a(f"s_or_b32 s{sT0}, s{sH}, s{sW}\ns_cmp_lg_u32 s{sT0}, 0\ns_cbranch_scc1 L_end")
    a(f"v_mov_b32 v{vT0}, 0")
    setexec(1)
    a(f"buffer_store_dword v{vTAG}, v{vT0}, s[{rWS}:{rWS+3}], 0 offen")
    a("L_end:\ns_endpgm")
    body = a.finish()
    ref = open(os.path.join(os.path.dirname(os.path.abspath(__file__)), "..", NAME + ".s.ref")).read().split("\n")
    layout = [l for l in ref if l.startswith(";") and "@launch" not in l and "Override" not in l and "grid=ceil" not in l]
    tail = f""".section .rodata,"a"
.p2align 6
.amdhsa_kernel {NAME}_kernel
  .amdhsa_next_free_vgpr 512
  .amdhsa_next_free_sgpr 102
  .amdhsa_accum_offset 256
  .amdhsa_group_segment_fixed_size 0
  .amdhsa_kernarg_size 112
  .amdhsa_user_sgpr_count 2
  .amdhsa_user_sgpr_kernarg_segment_ptr 1
  .amdhsa_system_sgpr_workgroup_id_x 1
.end_amdhsa_kernel
"""
    return "\n".join(layout + hdr + ["; generated by tools/gen.py"]) + "\n" + body + tail

if __name__ == "__main__":
    kw = eval("dict(" + (sys.argv[2] if len(sys.argv) > 2 else "") + ")")
    out = sys.argv[1] if len(sys.argv) > 1 else os.path.join(os.path.dirname(os.path.abspath(__file__)), "..", NAME + ".s")
    open(out, "w").write(generate(**kw))
    print("wrote", out)
```

```python
import sys, os
sys.path.insert(0, os.path.dirname(os.path.abspath(__file__)))
from asmlib import Asm

NAME = "concat_heads__compressed_kv_cla__mha_block_cached__decode"
KB, MB = 1024, 1 << 20
WS_QP, WS_QL, WS_CS, WS_YA, WS_YB, WS_CP, WS_OP, WS_ST, WS_SIZE = 1*MB, 2*MB, 2*MB + 512*KB, 3*MB, 3*MB + 512*KB, 4*MB, 5*MB, 6*MB, 8*MB
SCALE = 128 ** -0.5 * 1.4426950408889634
LDS_EX = 128 * KB
LDS_O = LDS_EX + 16 * KB
SPIN = 1 << 20

import struct
def f32(x): return struct.unpack("<I", struct.pack("<f", x))[0]
def V(a, n=1): return f"v{a}" if n == 1 else f"v[{a}:{a+n-1}]"
def A(a, n=1): return f"a{a}" if n == 1 else f"a[{a}:{a+n-1}]"
def S(a, n=1): return f"s{a}" if n == 1 else f"s[{a}:{a+n-1}]"
DPP = "row_mask:0xf bank_mask:0xf"

pAX, pCK, pAWQ, pUK, pUV, pAWO, pBX, pK, pV, pBWQ, pBWO, pOUT, pDBG, pWS = range(4, 32, 2)
sH, sP, sW, sTAG, sT0, sT1, sT2, sT3 = 32, 33, 34, 35, 36, 37, 38, 39
rW, rX, rWS, rK, rV, rUV, rWA, rWB, rOUT, rDBG = 40, 44, 48, 52, 56, 60, 64, 68, 72, 76
rCK, rUK = rK, rV
sSELLO, sSELHI, sHI24, sC, sSPIN = 80, 81, 82, 83, 84
sU0, sU1, sTK, sROT, sBASE = 85, 86, 87, 88, 89
sM0, sMODE, sIT, sSLOT, sCKO, sYO, sOUTO = 90, 92, 93, 94, 95, 96, 97
sTS = 98


def generate(D=5, GS=0, ROTH=8, ROTW=1, POLLAT=22, STAMP=False, DBG=None, POLK='nt', POLV='nt', POLW='nt', PROBE=None, PROBEX=None):
    a = Asm()
    role = ["B"]

    def srd(r, p, size):
        a(f"s_mov_b32 s{r}, s{p}\ns_and_b32 s{r+1}, s{p+1}, 0xffff\ns_mov_b32 s{r+2}, {size}\ns_mov_b32 s{r+3}, 0x20000")

    def stamp(i):
        if PROBE is not None:
            if PROBE == (role[0], i):
                a(f"s_memrealtime s[100:101]\ns_waitcnt lgkmcnt(0)")
            return
        if DBG is not None:
            key = (role[0], i)
            if key in DBG:
                a(f"s_memrealtime s[{sTS}:{sTS+1}]\ns_waitcnt lgkmcnt(0)")
                a(f"v_mov_b32 v{vST1}, s{sTS}\ns_mov_b64 s[100:101], exec\ns_mov_b64 exec, 1")
                a(f"global_atomic_umax v{vST0}, v{vST1}, s[{pDBG}:{pDBG+1}] offset:{4*(3+DBG.index(key))} sc1")
                a("s_mov_b64 exec, s[100:101]")
            return
        if not STAMP: return
        a(f"s_memrealtime s[{sTS}:{sTS+1}]\ns_waitcnt lgkmcnt(0)")
        a(f"v_mov_b32 v{vST1}, s{sTS}\ns_mov_b64 s[100:101], exec\ns_mov_b64 exec, 1")
        a(f"buffer_store_dword v{vST1}, v{vST0}, s[{rWS}:{rWS+3}], 0 offen offset:{4*i}")
        a("s_mov_b64 exec, s[100:101]")

    def probe_end():
        if PROBE is None or PROBE[0] != role[0]: return
        lbl = a.label("probe")
        if PROBEX is not None:
            a(f"s_getreg_b32 s101, hwreg(HW_REG_XCC_ID)\ns_and_b32 s101, s101, 15\ns_cmp_lg_u32 s101, {PROBEX}\ns_cbranch_scc1 {lbl}_x")
        a(f"s_add_u32 s100, s100, 10000\n{lbl}:\ns_memrealtime s[{sTS}:{sTS+1}]\ns_waitcnt lgkmcnt(0)")
        a(f"s_sub_u32 s{sTS}, s{sTS}, s100\ns_cmp_lt_i32 s{sTS}, 0\ns_cbranch_scc1 {lbl}\n{lbl}_x:")

    def spin_guard(lbl_retry):
        a(f"s_sub_u32 s{sSPIN}, s{sSPIN}, 1\ns_cmp_lg_u32 s{sSPIN}, 0\ns_cbranch_scc1 {lbl_retry}\ns_branch L_end")

    def untag(regs, acc):
        for r in regs:
            a(f"v_xor_b32 v{r}, s{sTAG}, v{r}")
        a(f"v_or_b32 v{acc}, v{regs[0]}, v{regs[1]}")
        for i in range(2, len(regs), 2):
            a(f"v_or3_b32 v{acc}, v{acc}, v{regs[i]}, v{regs[i+1]}")
        a(f"v_and_b32 v{acc}, 0xff, v{acc}\nv_cmp_ne_u32 vcc, 0, v{acc}")

    def tag(regs):
        for r in regs:
            a(f"v_and_or_b32 v{r}, v{r}, s{sHI24}, v{vTAG}")

    def quadsum(dst, src, tmp):
        a(f"v_mov_b32_dpp v{dst}, v{src} quad_perm:[0,0,0,0] {DPP}")
        a(f"v_mov_b32_dpp v{tmp}, v{src+2} quad_perm:[2,2,2,2] {DPP}")
        a(f"v_add_f32_dpp v{dst}, v{src+1}, v{dst} quad_perm:[1,1,1,1] {DPP}")
        a(f"v_add_f32_dpp v{tmp}, v{src+3}, v{tmp} quad_perm:[3,3,3,3] {DPP}")
        a(f"v_add_f32 v{dst}, v{dst}, v{tmp}")

    def setexec(mask):
        lo, hi = mask & 0xffffffff, mask >> 32
        if mask == (1 << 64) - 1: a("s_mov_b64 exec, -1")
        elif mask <= 64: a(f"s_mov_b64 exec, {mask}")
        else: a(f"s_mov_b32 exec_lo, {lo:#x}\ns_mov_b32 exec_hi, {hi:#x}")
    FULL = (1 << 64) - 1

    vL, vG, vJ, vT0, vT1, vT2, vT3, vTAG = 1, 2, 3, 4, 5, 6, 7, 8
    vMASK = 10
    vOW, vOX = 14, 15
    vST0, vST1 = 16, 17
    vX = 20
    vB = 28
    vACC = 36
    vW = 44

    hdr = [f"; @launch grid=(256,1,1) block=(256,1,1) lds={160*KB}"]
    a(f'.amdgcn_target "amdgcn-amd-amdhsa--gfx950"\n.text\n.globl {NAME}_kernel\n.p2align 8\n.type {NAME}_kernel,@function')
    a(f"{NAME}_kernel:")
    a("s_cmp_ge_u32 s2, 256\ns_cbranch_scc1 L_end")
    a("s_load_dwordx16 s[4:19], s[0:1], 0\ns_load_dwordx8 s[20:27], s[0:1], 64\ns_load_dwordx4 s[28:31], s[0:1], 96")
    if STAMP or DBG is not None or PROBE is not None: a(f"s_memrealtime s[{sTS}:{sTS+1}]")
    a(f"v_lshrrev_b32 v{vT0}, 6, v0\nv_and_b32 v{vL}, 63, v0\nv_readfirstlane_b32 s{sW}, v{vT0}")
    a(f"s_lshr_b32 s{sH}, s2, 3\ns_sub_u32 s{sP}, s2, s{sH}\ns_sub_u32 s{sP}, s{sP}, 1\ns_and_b32 s{sP}, s{sP}, 7")
    a(f"v_lshrrev_b32 v{vG}, 4, v{vL}\nv_and_b32 v{vJ}, 15, v{vL}")
    a(f"v_lshlrev_b32 v{vT0}, 16, v{vG}\nv_lshl_add_u32 v{vOW}, v{vJ}, 4, v{vT0}")
    a(f"v_lshrrev_b32 v{vT1}, 3, v{vJ}\nv_lshlrev_b32 v{vT1}, 10, v{vT1}\nv_lshl_add_u32 v{vOX}, v{vG}, 4, v{vT1}")
    a(f"s_and_b32 s{sT0}, s{sP}, 3\ns_lshl_b32 s{sT0}, s{sT0}, 2\ns_add_u32 s{sT0}, s{sT0}, s{sW}")
    a(f"s_lshl_b32 s{sT1}, s{sT0}, 6\ns_lshl_b32 s{sT0}, s{sT0}, 18\ns_lshl_b32 s{sT2}, s{sH}, 8\ns_add_u32 s{sT0}, s{sT0}, s{sT2}")
    a(f"s_mov_b32 s{rW+2}, {4*MB}\ns_mov_b32 s{rW+3}, 0x20000\ns_mov_b32 s{rX+2}, 4096\ns_mov_b32 s{rX+3}, 0x20000")
    a(f"s_cmp_ge_u32 s{sP}, 4\ns_waitcnt lgkmcnt(0)")
    a(f"s_cselect_b64 s[{rW}:{rW+1}], s[{pAWQ}:{pAWQ+1}], s[{pBWQ}:{pBWQ+1}]")
    a(f"s_cselect_b64 s[{rX}:{rX+1}], s[{pAX}:{pAX+1}], s[{pBX}:{pBX+1}]")
    a(f"s_load_dword s{sTAG}, s[{pWS}:{pWS+1}], 0")
    for u in range(2):
        a.vm(f"buffer_load_dwordx4 {V(vX+4*u,4)}, v{vOX}, s[{rX}:{rX+3}], s{sT1} offen offset:{2048*u}", "X")
    for t in range(8):
        a.vm(f"buffer_load_dwordx4 {V(vW+4*t,4)}, v{vOW}, s[{rW}:{rW+3}], s{sT0} offen {POLW}", f"W{t}")
        if t < 7: a(f"s_add_u32 s{sT0}, s{sT0}, 8192")
    if PROBE is not None: a(f"s_mov_b32 s100, s{sTS}")
    srd(rWS, pWS, WS_SIZE)
    a(f"s_mov_b32 s{sSELLO}, 0x01000100\ns_mov_b32 s{sSELHI}, 0x03020302\ns_mov_b32 s{sHI24}, 0xffffff00")
    a(f"s_mov_b32 s{sC}, {f32(SCALE):#x}\ns_mov_b32 s{sSPIN}, {SPIN}")
    a(f"v_and_b32 v{vT0}, 1, v{vL}\nv_lshlrev_b32 v{vT0}, 4, v{vT0}\nv_mov_b32 v{vT1}, 0xffff\nv_lshlrev_b32 v{vT0}, v{vT0}, v{vT1}")
    a(f"v_bfe_u32 v{vT1}, v{vL}, 1, 2")
    for r in range(4):
        a(f"v_cmp_eq_u32 vcc, {r}, v{vT1}\nv_cndmask_b32 v{vMASK+r}, 0, v{vT0}, vcc")
    if STAMP:
        a(f"s_lshl_b32 s{sT2}, s2, 2\ns_add_u32 s{sT2}, s{sT2}, s{sW}\ns_lshl_b32 s{sT2}, s{sT2}, 6\ns_add_u32 s{sT2}, s{sT2}, {WS_ST}\nv_mov_b32 v{vST0}, s{sT2}")
        a(f"v_mov_b32 v{vST1}, s{sTS}\ns_mov_b64 exec, 1")
        a(f"buffer_store_dword v{vST1}, v{vST0}, s[{rWS}:{rWS+3}], 0 offen\ns_mov_b64 exec, -1")
    if DBG is not None:
        a(f"v_mov_b32 v{vST0}, 0\nv_mov_b32 v{vST1}, s{sTS}\nv_not_b32 v{vT0}, v{vST1}\ns_cmp_lg_u32 s{sW}, 0\ns_cbranch_scc1 L_nodbg\ns_mov_b64 exec, 1")
        a(f"global_atomic_umax v{vST0}, v{vT0}, s[{pDBG}:{pDBG+1}] offset:4 sc1")
        a(f"global_atomic_umax v{vST0}, v{vST1}, s[{pDBG}:{pDBG+1}] offset:8 sc1\ns_mov_b64 exec, -1\nL_nodbg:")
    a(f"s_cmp_eq_u32 s{sP}, 7\ns_cbranch_scc1 L_aux")
    q_entry = list(a.q)

    def qpart(next_load):
        for t in range(8):
            a.wait(f"W{t}")
            next_load(t)
            for u in range(2):
                a(f"v_perm_b32 v{vT0+u}, v{vX+4*u+(t>>1)}, v{vX+4*u+(t>>1)}, s{sSELHI if t & 1 else sSELLO}")
            for u in range(2):
                for r in range(4):
                    a(f"v_and_b32 v{vB+4*u+r}, v{vT0+u}, v{vMASK+r}")
            for u in range(2):
                c = V(vACC+4*u, 4) if t else "0"
                a(f"v_mfma_f32_16x16x32_bf16 {V(vACC+4*u,4)}, {V(vW+4*t,4)}, {V(vB+4*u,4)}, {c}")
        a(f"s_lshl_b32 s{sT2}, s{sW}, 11\ns_add_u32 s{sT2}, s{sT2}, {LDS_EX}")
        a(f"v_lshrrev_b32 v{vT0}, 3, v{vJ}\nv_lshlrev_b32 v{vT0}, 9, v{vT0}\nv_lshl_add_u32 v{vT0}, v{vG}, 7, v{vT0}")
        a(f"v_and_b32 v{vT1}, 7, v{vJ}\nv_lshl_add_u32 v{vT0}, v{vT1}, 2, v{vT0}\nv_add_u32 v{vT0}, s{sT2}, v{vT0}")
        a(f"s_lshl_b32 s{sT2}, s{sW}, 9\nv_and_b32 v{vT1}, 31, v{vL}\nv_lshl_add_u32 v{vT1}, v{vT1}, 4, s{sT2}")
        a(f"v_add_u32 v{vT2}, {LDS_EX}, v{vT1}")
        for u in range(2):
            for r in range(4):
                a(f"ds_write_b32 v{vT0}, v{vACC+4*u+r} offset:{u*1024+r*32}")
        a("s_waitcnt lgkmcnt(0)\ns_barrier")
        for p in range(4):
            a(f"ds_read_b128 {V(vW+4*p,4)}, v{vT2} offset:{p*2048}")
        a(f"s_add_u32 s{sTAG}, s{sTAG}, 0x5b\ns_and_b32 s{sTAG}, s{sTAG}, 0xff\nv_mov_b32 v{vTAG}, s{sTAG}")
        a(f"s_lshl_b32 s{sT2}, s{sH}, 3\ns_add_u32 s{sT2}, s{sT2}, s{sP}\ns_lshl_b32 s{sT2}, s{sT2}, 11\ns_add_u32 s{sT2}, s{sT2}, {WS_QP}")
        a("s_waitcnt lgkmcnt(0)")
        for r in range(4):
            a(f"v_add_f32 v{vW+r}, v{vW+r}, v{vW+4+r}\nv_add_f32 v{vW+8+r}, v{vW+8+r}, v{vW+12+r}")
        for r in range(4):
            a(f"v_add_f32 v{vW+r}, v{vW+r}, v{vW+8+r}")
        tag(range(vW, vW+4))
        setexec(0xffffffff)
        a.vm(f"buffer_store_dwordx4 {V(vW,4)}, v{vT1}, s[{rWS}:{rWS+3}], s{sT2} offen sc1", "QPst")
        setexec(FULL)

    vOK, vOV, vOQ, vOP = 76, 77, 78, 79
    vBQ = 80
    vPB = 96
    vS, vO = 112, 116
    vMC, vLS, vSC, vP, vU0, vU1 = 120, 121, 122, 123, 124, 125
    vQ = 44
    RING = 128
    srd(rK, pK, 128*MB); srd(rV, pV, 128*MB)
    gs = GS if GS else 8
    tstep = 256 if GS else 1024
    a(f"v_lshrrev_b32 v{vT0}, 2, v{vJ}\nv_and_b32 v{vT1}, 3, v{vJ}")
    a(f"v_lshlrev_b32 v{vOK}, {gs}, v{vT0}\nv_lshl_add_u32 v{vOK}, v{vG}, 6, v{vOK}\nv_lshl_add_u32 v{vOK}, v{vT1}, 4, v{vOK}")
    a(f"v_lshlrev_b32 v{vOV}, {gs}, v{vG}\nv_lshl_add_u32 v{vOV}, v{vJ}, 4, v{vOV}")
    a(f"v_lshlrev_b32 v{vOQ}, 11, v{vT0}\nv_lshl_add_u32 v{vOQ}, v{vG}, 7, v{vOQ}\nv_lshl_add_u32 v{vOQ}, v{vT1}, 5, v{vOQ}")
    a(f"s_lshl_b32 s{sBASE}, s{sW}, 5\ns_add_u32 s{sBASE}, s{sBASE}, s{sH}\ns_lshl_b32 s{sBASE}, s{sBASE}, 20")
    a(f"s_mul_i32 s{sROT}, s{sH}, {ROTH}\ns_mul_i32 s{sT2}, s{sW}, {ROTW}\ns_add_u32 s{sROT}, s{sROT}, s{sT2}")
    a(f"s_mov_b32 s{sTK}, s{sP}")

    def unit_addr(dst, guard=True):
        a(f"s_add_u32 s{sT3}, s{sTK}, s{sROT}\ns_and_b32 s{sT3}, s{sT3}, 255")
        if GS:
            lo = GS - 10
            a(f"s_lshr_b32 s{dst}, s{sT3}, {lo}\ns_lshl_b32 s{dst}, s{dst}, {GS+2}\ns_and_b32 s{sT3}, s{sT3}, {(1<<lo)-1}")
            a(f"s_lshl_b32 s{sT3}, s{sT3}, 10\ns_add_u32 s{dst}, s{dst}, s{sT3}\ns_add_u32 s{dst}, s{dst}, s{sBASE}")
        else:
            a(f"s_lshl_b32 s{sT3}, s{sT3}, 12\ns_add_u32 s{dst}, s{sT3}, s{sBASE}")
        if guard:
            a(f"s_cmp_ge_u32 s{sTK}, 256\ns_cselect_b32 s{dst}, {128*MB}, s{dst}")

    def kv_load(slot, r, base, tg):
        isv = r >= 4
        a.vm(f"buffer_load_dwordx4 {V(RING+4*slot,4)}, v{vOV if isv else vOK}, s[{rV if isv else rK}:{(rV if isv else rK)+3}], s{base} offen offset:{(r%4)*tstep} {POLV if isv else POLK}", tg)

    def pre_load(n):
        if n % 8 == 0:
            if n: a(f"s_add_u32 s{sTK}, s{sTK}, 7")
            unit_addr(sU0, guard=False)
        kv_load(n, n % 8, sU0, f"P{n}")

    def softmax_part():
        quadsum(vSC, vS, vU0)
        skip = a.label("nomax")
        a(f"v_fma_f32 v{vP}, v{vSC}, s{sC}, -v{vMC}\nv_cmp_lt_f32 vcc, 0, v{vP}\ns_cbranch_vccz {skip}")
        a(f"v_mul_f32 v{vSC}, s{sC}, v{vSC}")
        a(f"v_max_f32_dpp v{vU0}, v{vSC}, v{vSC} row_ror:4 {DPP}")
        a(f"v_max_f32_dpp v{vU0}, v{vU0}, v{vU0} row_ror:8 {DPP}")
        a(f"v_mov_b32 v{vU1}, v{vU0}\nv_permlane16_swap_b32 v{vU0}, v{vU1}\nv_max_f32 v{vU0}, v{vU0}, v{vU1}")
        a(f"v_mov_b32 v{vU1}, v{vU0}\nv_permlane32_swap_b32 v{vU0}, v{vU1}\nv_max_f32 v{vU0}, v{vU0}, v{vU1}")
        a(f"v_and_b32 v{vU0}, s{sHI24}, v{vU0}\nv_max_f32 v{vU0}, v{vU0}, v{vMC}")
        a(f"v_sub_f32 v{vU1}, v{vMC}, v{vU0}\nv_exp_f32 v{vU1}, v{vU1}\nv_mov_b32 v{vMC}, v{vU0}\nv_sub_f32 v{vP}, v{vSC}, v{vU0}")
        a(f"v_mul_f32 v{vLS}, v{vLS}, v{vU1}")
        for r in range(4):
            a(f"v_mul_f32 v{vO+r}, v{vO+r}, v{vU1}")
        a(f"{skip}:")
        a(f"v_exp_f32 v{vP}, v{vP}")
        a(f"v_cvt_pk_bf16_f32 v{vU0}, v{vP}, v{vP}\nv_add_f32 v{vLS}, v{vLS}, v{vP}")
        for t in range(4):
            for r in range(4):
                a(f"v_and_b32_dpp v{vPB+4*t+r}, v{vU0}, v{vMASK+r} row_newbcast:{4*t} {DPP}")

    def consume(slot, r):
        if r < 4:
            c = V(vS, 4) if r else "0"
            a(f"v_mfma_f32_16x16x32_bf16 {V(vS,4)}, {V(RING+4*slot,4)}, {V(vBQ+4*r,4)}, {c}")
            if r == 3: softmax_part()
        else:
            a(f"v_mfma_f32_16x16x32_bf16 {V(vO,4)}, {V(RING+4*slot,4)}, {V(vPB+4*(r-4),4)}, {V(vO,4)}")

    def q_poll():
        for i in range(2):
            a.vm(f"buffer_load_dwordx4 {V(vQ+4*i,4)}, v{vOQ}, s[{rWS}:{rWS+3}], s{sU1} offen offset:{16*i} sc1", "Q")

    npre = [0]
    def b_next(t):
        if t >= 8 - D:
            pre_load(npre[0]); npre[0] += 1
    qpart(b_next)
    stamp(1)
    a(f"s_lshl_b32 s{sU1}, s{sH}, 14\ns_lshl_b32 s{sT2}, s{sW}, 9\ns_add_u32 s{sU1}, s{sU1}, s{sT2}\ns_add_u32 s{sU1}, s{sU1}, {WS_QP}")
    a(f"v_mov_b32 v{vMC}, 0xff7f0000\nv_mov_b32 v{vLS}, 0")
    for r in range(4): a(f"v_mov_b32 v{vO+r}, 0")
    a(f"v_lshlrev_b32 v{vT0}, 7, v{vG}\nv_lshl_add_u32 v{vT0}, v{vJ}, 4, v{vT0}\nv_mov_b32 v{vT1}, 512")
    a(f"v_cmp_gt_u32 vcc, 8, v{vJ}\nv_cndmask_b32 v{vOP}, v{vT1}, v{vT0}, vcc")
    while npre[0] < 32:
        n = npre[0]
        a.wait(f"P{n-D}")
        if n == POLLAT: q_poll()
        pre_load(n); npre[0] += 1
    if "Q" in a.q: a.wait("Q")
    qcheck, qok = a.label("qcheck"), a.label("qok")
    a(f"{qcheck}:")
    untag(list(range(vQ, vQ+8)), vT0)
    a(f"s_cbranch_vccz {qok}")
    saved = list(a.q)
    q_poll()
    a("s_waitcnt vmcnt(0)")
    spin_guard(qcheck)
    a.q = saved
    a(f"{qok}:")
    stamp(2)
    for ror in (8, 4):
        for i in range(8):
            a(f"v_add_f32_dpp v{vQ+i}, v{vQ+i}, v{vQ+i} row_ror:{ror} {DPP}")
    for r in range(4):
        a(f"v_cvt_pk_bf16_f32 v{vQ+r}, v{vQ+2*r}, v{vQ+2*r+1}")
    for t in range(4):
        m = 0x000f000f << (4*t)
        a(f"s_mov_b32 vcc_lo, {m:#x}\ns_mov_b32 vcc_hi, {m:#x}")
        for r in range(4):
            a(f"v_cndmask_b32 v{vBQ+4*t+r}, 0, v{vQ+r}, vcc")
    a(f"s_add_u32 s{sTK}, s{sTK}, 7")
    unit_addr(sU0, guard=False)
    for n in range(32):
        if f"P{n}" in a.q: a.wait(f"P{n}")
        consume(n, n % 8)
        if n < D: kv_load(n, n, sU0, f"L{n}")
    stamp(3)
    a("L_bloop:")
    for half in range(2):
        cur, nxt = (sU0, sU1) if half == 0 else (sU1, sU0)
        for r in range(8):
            n = r + D
            a(f"s_waitcnt vmcnt({D-1})")
            if n == 8:
                a(f"s_add_u32 s{sTK}, s{sTK}, 7")
                unit_addr(nxt)
            kv_load((half*8 + n) % 16, n % 8, cur if n < 8 else nxt, "loop")
            consume(half*8 + r, r)
        a(f"s_cmp_ge_u32 s{sTK}, 256")
        a("s_cbranch_scc1 L_bdone" if half == 0 else "s_cbranch_scc0 L_bloop")
    a("L_bdone:")
    a(f"v_add_f32_dpp v{vLS}, v{vLS}, v{vLS} row_ror:8 {DPP}")
    a(f"s_lshl_b32 s{sT2}, s{sH}, 2\ns_add_u32 s{sT2}, s{sT2}, s{sW}")
    a(f"v_add_f32_dpp v{vLS}, v{vLS}, v{vLS} row_ror:4 {DPP}")
    a(f"v_mov_b32 v{vU1}, v{vLS}")
    a(f"s_lshl_b32 s{sT2}, s{sT2}, 3\ns_add_u32 s{sT2}, s{sT2}, s{sP}")
    a(f"v_permlane16_swap_b32 v{vLS}, v{vU1}\nv_add_f32 v{vLS}, v{vLS}, v{vU1}\nv_mov_b32 v{vU1}, v{vLS}")
    a(f"s_lshl_b32 s{sT2}, s{sT2}, 10\ns_add_u32 s{sT2}, s{sT2}, {WS_OP}")
    a(f"v_permlane32_swap_b32 v{vLS}, v{vU1}")
    setexec(1 << 8)
    a(f"v_add_f32 v{vO+1}, v{vLS}, v{vU1}\nv_mov_b32 v{vO}, v{vMC}")
    setexec(0x00ff00ff00ff01ff)
    tag(range(vO, vO+4))
    a(f"buffer_store_dwordx4 {V(vO,4)}, v{vOP}, s[{rWS}:{rWS+3}], s{sT2} offen sc1")
    stamp(4)
    probe_end()
    a("s_endpgm")

    a("L_aux:")
    role[0] = "A"
    a.q = list(q_entry)
    A0, A1 = 0, 128
    vOU, vOR8, vOR1 = 18, 19, 9
    vOC = 76
    vAQ, vAP = 80, 81
    vAD = 82
    vM, vLL, vAL, vEX = 90, 91, 92, 94
    vWR = 96
    vTRB, vZ = 95, 100
    vQL = 104
    vCT = 136
    vSS = 200
    vKA = 20
    vPP = 52
    vE1 = 60
    vE2 = 216
    srd(rUK, pUK, 4*MB); srd(rCK, pCK, 16*MB)
    a(f"v_lshrrev_b32 v{vT0}, 2, v{vJ}\nv_and_b32 v{vT1}, 3, v{vJ}")
    a(f"v_lshlrev_b32 v{vOU}, 18, v{vT0}\nv_lshl_add_u32 v{vOU}, v{vG}, 6, v{vOU}\nv_lshl_add_u32 v{vOU}, v{vT1}, 4, v{vOU}")
    a(f"s_lshl_b32 s{sU0}, s{sW}, 20\ns_lshl_b32 s{sT2}, s{sH}, 8\ns_add_u32 s{sU0}, s{sU0}, s{sT2}\ns_mov_b32 s{sBASE}, s{sU0}")
    def uk_load(t):
        a.vm(f"buffer_load_dwordx4 {A(A0+4*t,4)}, v{vOU}, s[{rUK}:{rUK+3}], s{sU0} offen {POLW}", f"UK{t}")
        a(f"s_add_u32 s{sU0}, s{sU0}, 8192")
    qpart(uk_load)
    stamp(1)
    for t in range(8, 32): uk_load(t)
    vQA = 136
    a(f"v_lshrrev_b32 v{vT0}, 2, v{vJ}\nv_and_b32 v{vT1}, 3, v{vJ}")
    a(f"v_lshlrev_b32 v{vT2}, 9, v{vT0}\nv_lshl_add_u32 v{vT2}, v{vG}, 7, v{vT2}\nv_lshl_add_u32 v{vT2}, v{vT1}, 5, v{vT2}")
    a(f"s_lshl_b32 s{sU1}, s{sH}, 14\ns_add_u32 s{sU1}, s{sU1}, {WS_QP + 4*2048}\ns_add_u32 s{sT0}, s{sU1}, 4096")
    def qa_poll():
        for p in range(4):
            for i in range(2):
                a.vm(f"buffer_load_dwordx4 {V(vQA+8*p+4*i,4)}, v{vT2}, s[{rWS}:{rWS+3}], s{sU1 if p < 2 else sT0} offen offset:{(p&1)*2048+16*i} sc1", "QA")
    qa_poll()
    a(f"v_lshlrev_b32 v{vT0}, 2, v{vG}\nv_xor_b32 v{vT0}, v{vT0}, v{vJ}")
    for i in range(4):
        a(f"v_xor_b32 v{vT1}, {i}, v{vT0}\nv_lshlrev_b32 v{vT1}, 4, v{vT1}\nv_lshl_add_u32 v{vOC+i}, v{vG}, 10, v{vT1}")
        a(f"v_lshl_add_u32 v{vWR+i}, v{vG}, 8, v{vT1}")
        if i: a(f"v_add_u32 v{vOC+i}, {i*3072}, v{vOC+i}")
    a(f"s_lshl_b32 s{sM0}, s{sW}, 15")
    for i in range(4):
        a(f"v_add_u32 v{vWR+i}, s{sM0}, v{vWR+i}")
    a(f"s_lshl_b32 s{sCKO}, s{sH}, 19\ns_lshl_b32 s{sT2}, s{sW}, 8\ns_add_u32 s{sCKO}, s{sCKO}, s{sT2}")
    a(f"s_mov_b32 s{sSLOT}, 0")
    def ck_tile(tg):
        for hf in range(2):
            a(f"s_add_u32 s{sT3}, s{sM0}, s{sSLOT}")
            if hf: a(f"s_add_u32 s{sT3}, s{sT3}, 4096")
            a(f"s_mov_b32 m0, s{sT3}")
            for i in range(4):
                a.vm(f"buffer_load_dwordx4 v{vOC+i}, s[{rCK}:{rCK+3}], s{sCKO} offen offset:{i*1024} {POLW} lds", tg)
            a(f"s_add_u32 s{sCKO}, s{sCKO}, 16384")
    def next_slot():
        a(f"s_add_u32 s{sSLOT}, s{sSLOT}, 8192\ns_and_b32 s{sSLOT}, s{sSLOT}, 0x7fff")
    ck_tile("CK0"); next_slot()
    a.wait("QA")
    chk, ok = a.label("qacheck"), a.label("qaok")
    a(f"{chk}:")
    untag(list(range(vQA, vQA+32)), vT0)
    a(f"s_cbranch_vccz {ok}")
    saved = list(a.q)
    qa_poll()
    a("s_waitcnt vmcnt(0)")
    spin_guard(chk)
    a.q = saved
    a(f"{ok}:")
    stamp(2)
    for i in range(8):
        a(f"v_add_f32 v{vQA+i}, v{vQA+i}, v{vQA+16+i}\nv_add_f32 v{vQA+8+i}, v{vQA+8+i}, v{vQA+24+i}")
    for i in range(8):
        a(f"v_add_f32 v{vQA+i}, v{vQA+i}, v{vQA+8+i}")
    for r in range(4):
        a(f"v_cvt_pk_bf16_f32 v{vB+r}, v{vQA+2*r}, v{vQA+2*r+1}")
    ck_tile("CK1"); next_slot()
    vD, vR, vPK = 136, 168, 200
    def fold(t):
        quadsum(vR+t, vD + 4*(t % 8), vT0)
    for t in range(32):
        a(f"v_mfma_f32_16x16x32_bf16 {V(vD+4*(t%8),4)}, {A(A0+4*t,4)}, {V(vB,4)}, 0")
        if t >= 3: fold(t - 3)
    for t in range(29, 32): fold(t)
    for i in range(16):
        a(f"v_cvt_pk_bf16_f32 v{vPK+i}, v{vR+2*i}, v{vR+2*i+1}")
    for q in range(1, 4):
        setexec(0x1111111111111111 << q)
        for r in range(4):
            a(f"v_mov_b32 v{vPK+r}, v{vPK+4*q+r}")
    setexec(FULL)
    a(f"v_lshrrev_b32 v{vT0}, 2, v{vJ}\nv_and_b32 v{vT1}, 3, v{vJ}")
    a(f"v_lshlrev_b32 v{vT2}, 15, v{vT0}\nv_lshl_add_u32 v{vT2}, v{vG}, 6, v{vT2}\nv_lshl_add_u32 v{vT2}, v{vT1}, 4, v{vT2}")
    a(f"s_lshl_b32 s{sT0}, s{sH}, 10\ns_lshl_b32 s{sT2}, s{sW}, 8\ns_add_u32 s{sT0}, s{sT0}, s{sT2}\ns_add_u32 s{sT0}, s{sT0}, {WS_QL}")
    a.vm(f"buffer_store_dwordx4 {V(vPK,4)}, v{vT2}, s[{rWS}:{rWS+3}], s{sT0} offen sc1", "QLst")
    ck_tile("CK2"); next_slot()
    srd(rDBG, pDBG, 256); srd(rUV, pUV, 4*MB); srd(rWA, pAWO, 4*MB); srd(rWB, pBWO, 4*MB); srd(rOUT, pOUT, 8192)
    a(f"v_mov_b32 v{vZ}, 0\nv_mov_b32 v{vZ+1}, 1")
    a(f"v_lshlrev_b32 v{vT0}, 4, v{vJ}\nv_lshl_add_u32 v{vOR8}, v{vG}, 13, v{vT0}\nv_lshl_add_u32 v{vOR1}, v{vG}, 10, v{vT0}")

    def signal(tg, off):
        a.wait(tg)
        a("s_barrier")
        skip = a.label("nosig")
        a(f"s_cmp_lg_u32 s{sW}, 0\ns_cbranch_scc1 {skip}")
        setexec(1)
        a(f"buffer_atomic_add v{vZ+1}, v{vZ}, s[{rDBG}:{rDBG+3}], 0 offen offset:{off} sc1")
        setexec(FULL)
        a(f"{skip}:")

    def flag_load(off):
        a.vm(f"buffer_load_dword v{vT3}, v{vZ}, s[{rDBG}:{rDBG+3}], 0 offen offset:{off} sc1", "FL")

    def flag_wait(off):
        a.wait("FL")
        chk, ok = a.label("fcheck"), a.label("fok")
        a(f"{chk}:\nv_cmp_gt_u32 vcc, 32, v{vT3}\ns_cbranch_vccz {ok}")
        saved = list(a.q)
        a("s_sleep 4")
        flag_load(off)
        a("s_waitcnt vmcnt(0)")
        spin_guard(chk)
        a.q = saved
        a(f"{ok}:")

    sUV, sWO = sU0, sU1
    def uv_load(i):
        a.vm(f"buffer_load_dwordx4 {A(A1+4*i,4)}, v{vOR8}, s[{rUV}:{rUV+3}], s{sUV} offen {POLW}", f"UV{i}")
        a(f"s_add_u32 s{sUV}, s{sUV}, 32768")
    def wo_load(i, isb):
        r = rWB if isb else rWA
        a.vm(f"buffer_load_dwordx4 {A((A1 if isb else A0)+4*i,4)}, v{vOR1}, s[{r}:{r+3}], s{sWO} offen {POLW}", f"W{'B' if isb else 'A'}{i}")
        a(f"s_add_u32 s{sWO}, s{sWO}, 4096")
    def wo_base():
        a(f"s_lshl_b32 s{sWO}, s{sH}, 17\ns_lshl_b32 s{sT2}, s{sW}, 8\ns_add_u32 s{sWO}, s{sWO}, s{sT2}")

    signal("QLst", 0)
    stamp(3)
    ck_tile("CK3"); next_slot()
    a(f"s_mov_b32 s{sUV}, s{sBASE}")
    wo_base()
    flag_load(0)
    for i in range(8): uv_load(i)
    flag_wait(0)
    stamp(4)
    a(f"s_lshr_b32 s{sT0}, s{sH}, 3\ns_lshl_b32 s{sT0}, s{sT0}, 15\ns_lshl_b32 s{sT2}, s{sW}, 8\ns_add_u32 s{sT0}, s{sT0}, s{sT2}\ns_add_u32 s{sT0}, s{sT0}, {WS_QL}")
    for i in range(8):
        a.vm(f"buffer_load_dwordx4 {V(vKA+4*i,4)}, v{vOR1}, s[{rWS}:{rWS+3}], s{sT0} offen sc1", "QLg")
        if i < 7: a(f"s_add_u32 s{sT0}, s{sT0}, 4096")
    for i in range(8, 16): uv_load(i)
    a(f"v_and_b32 v{vT0}, 3, v{vL}\nv_bfe_u32 v{vT1}, v{vL}, 2, 2\nv_lshrrev_b32 v{vT2}, 5, v{vL}")
    a(f"v_lshl_add_u32 v{vT3}, v{vT0}, 2, v{vT1}\nv_xor_b32 v{vT3}, v{vT3}, v{vT2}\nv_lshlrev_b32 v{vT3}, 4, v{vT3}")
    a(f"v_and_b32 v{vAQ}, 31, v{vL}\nv_lshl_add_u32 v{vAQ}, v{vAQ}, 8, v{vT3}")
    a(f"v_lshl_add_u32 v{vAP}, v{vT2}, 2, v{vT1}\nv_lshlrev_b32 v{vAP}, 8, v{vAP}\nv_lshl_add_u32 v{vAP}, v{vT1}, 6, v{vAP}")
    a(f"v_bfe_u32 v{vT3}, v{vL}, 4, 1\nv_lshlrev_b32 v{vT3}, 1, v{vT3}\nv_bfe_u32 v{vU0}, v{vL}, 1, 1\nv_add_u32 v{vT3}, v{vT3}, v{vU0}")
    a(f"v_xor_b32 v{vT3}, v{vT3}, v{vT2}\nv_lshl_add_u32 v{vAP}, v{vT3}, 4, v{vAP}")
    a(f"v_and_b32 v{vT3}, 1, v{vL}\nv_lshl_add_u32 v{vAP}, v{vT3}, 3, v{vAP}")
    a(f"v_lshl_add_u32 v{vTRB}, v{vG}, 3, v{vT1}\nv_lshlrev_b32 v{vTRB}, 8, v{vTRB}\nv_lshl_add_u32 v{vTRB}, v{vT1}, 6, v{vTRB}")
    a(f"v_bfe_u32 v{vT0}, v{vL}, 4, 1\nv_lshl_add_u32 v{vT0}, v{vT0}, 1, v{vU0}\nv_lshl_add_u32 v{vTRB}, v{vT0}, 4, v{vTRB}")
    a(f"v_lshl_add_u32 v{vTRB}, v{vT3}, 3, v{vTRB}\nv_add_u32 v{vTRB}, s{sM0}, v{vTRB}")
    a(f"s_lshl_b32 s{sT1}, s{sW}, 13\ns_add_u32 s{sT1}, s{sT1}, {LDS_EX}\nv_lshl_add_u32 v{vEX}, v{vL}, 4, s{sT1}")
    a(f"s_sub_u32 s{sT2}, s{sT1}, s{sM0}")
    for i in range(4):
        a(f"v_add_u32 v{vAD+i}, s{sT2}, v{vWR+i}")
    a.wait("QLg")
    for i in range(8):
        a(f"ds_write_b128 v{vAD+(i&3)}, {V(vKA+4*i,4)} offset:{i*1024}")
    a(f"v_add_u32 v{vT0}, s{sT1}, v{vAQ}")
    for k in range(8):
        a(f"v_xor_b32 v{vAD+k}, {32*k}, v{vT0}")
    a("s_waitcnt lgkmcnt(0)")
    for k in range(8):
        a(f"ds_read_b128 {V(vQL+4*k,4)}, v{vAD+k}")
    for i in range(64): a(f"v_mov_b32 v{vCT+i}, 0")
    a(f"v_mov_b32 v{vM}, 0xff7f0000\nv_mov_b32 v{vLL}, 0\ns_mov_b32 s{sIT}, 0")
    a(f"v_add_u32 v{vAQ}, s{sM0}, v{vAQ}\nv_add_u32 v{vAP}, s{sM0}, v{vAP}")
    a("s_waitcnt lgkmcnt(0)")
    stamp(5)
    a("L_att:")
    a(f"v_add_u32 v{vT0}, s{sSLOT}, v{vAQ}")
    for k in range(8):
        a(f"v_xor_b32 v{vAD+k}, {32*k}, v{vT0}")
    a("s_waitcnt vmcnt(24)")
    for k in range(8):
        a(f"ds_read_b128 {V(vKA+4*k,4)}, v{vAD+k}")
    a(f"v_add_u32 v{vT0}, s{sSLOT}, v{vAP}")
    for k in range(8):
        a(f"s_waitcnt lgkmcnt({7-k})")
        c = V(vSS, 16) if k else "0"
        a(f"v_mfma_f32_32x32x16_bf16 {V(vSS,16)}, {V(vKA+4*k,4)}, {V(vQL+4*k,4)}, {c}")
        a(f"v_xor_b32 v{vAD+k}, {32*k}, v{vT0}")
    for nt in range(4):
        for sg in range(2):
            for pi in range(2):
                a(f"ds_read_b64_tr_b16 {V(vKA+8*nt+4*sg+2*pi,2)}, v{vAD+2*nt+pi} offset:{4096*sg+2048*pi}")
    a(f"v_xor_b32 v{vT1}, 0x2000, v{vEX}\nv_xor_b32 v{vT2}, 0x4000, v{vEX}\nv_xor_b32 v{vT3}, 0x6000, v{vEX}")
    for q in range(4):
        a(f"ds_write_b128 v{vEX}, {V(vSS+4*q,4)} offset:{1024*q}")
    a("s_waitcnt lgkmcnt(0)\ns_barrier")
    for q in range(4):
        a(f"ds_read_b128 {V(vE1+4*q,4)}, v{vT1} offset:{1024*q}")
        a(f"ds_read_b128 {V(vE2+4*q,4)}, v{vT2} offset:{1024*q}")
        a(f"ds_read_b128 {V(vE2+16+4*q,4)}, v{vT3} offset:{1024*q}")
    a(f"v_xor_b32 v{vEX}, 0x1000, v{vEX}")
    blocks = [a.label(f"fill{i}") for i in range(4)]
    filled = a.label("filled")
    a(f"s_cmp_ge_u32 s{sIT}, 12\ns_cbranch_scc1 {blocks[0]}")
    saved = list(a.q)
    ck_tile("loop")
    a.q = saved
    a(f"{filled}:")
    next_slot()
    for q in range(4):
        a(f"s_waitcnt lgkmcnt({9-3*q})")
        for r in range(4*q, 4*q+4):
            a(f"v_add_f32 v{vSS+r}, v{vSS+r}, v{vE1+r}\nv_add_f32 v{vE2+r}, v{vE2+r}, v{vE2+16+r}")
        for r in range(4*q, 4*q+4):
            a(f"v_add_f32 v{vSS+r}, v{vSS+r}, v{vE2+r}")
    a(f"v_max_f32 v{vT0}, v{vSS}, v{vSS+1}")
    for r in range(2, 16, 2):
        a(f"v_max3_f32 v{vT0}, v{vT0}, v{vSS+r}, v{vSS+r+1}")
    a(f"v_mov_b32 v{vT1}, v{vT0}\nv_permlane32_swap_b32 v{vT0}, v{vT1}\nv_max_f32 v{vT0}, v{vT0}, v{vT1}")
    a(f"v_mul_f32 v{vT0}, s{sC}, v{vT0}\nv_max_f32 v{vT0}, v{vT0}, v{vM}")
    a(f"v_sub_f32 v{vAL}, v{vM}, v{vT0}\nv_exp_f32 v{vAL}, v{vAL}\nv_mov_b32 v{vM}, v{vT0}")
    for r in range(16):
        a(f"v_fma_f32 v{vSS+r}, v{vSS+r}, s{sC}, -v{vM}")
    a(f"v_mul_f32 v{vLL}, v{vLL}, v{vAL}")
    for r in range(16):
        a(f"v_exp_f32 v{vSS+r}, v{vSS+r}")
        for i in range(2):
            c = vCT + 4*r + 2*i
            a(f"v_pk_mul_f32 {V(c,2)}, {V(c,2)}, {V(vAL,2)} op_sel_hi:[1,0]")
    for r in range(8):
        a(f"v_cvt_pk_bf16_f32 v{vPP+r}, v{vSS+2*r}, v{vSS+2*r+1}")
    k = 0
    for sg in range(2):
        for nt in range(4):
            a(f"v_mfma_f32_32x32x16_bf16 {V(vCT+16*nt,16)}, {V(vKA+8*nt+4*sg,4)}, {V(vPP+4*sg,4)}, {V(vCT+16*nt,16)}")
            a(f"v_add_f32 v{vLL}, v{vLL}, v{vSS+k}\nv_add_f32 v{vLL}, v{vLL}, v{vSS+k+1}")
            k += 2
    a(f"s_add_u32 s{sIT}, s{sIT}, 1\ns_cmp_lt_u32 s{sIT}, 16\ns_cbranch_scc1 L_att")
    a("s_branch L_attdone")
    a.q = []
    for i in range(4):
        a(f"{blocks[i]}:")
        if i < 3: a(f"s_cmp_lg_u32 s{sIT}, {12+i}\ns_cbranch_scc1 {blocks[i+1]}")
        for n in range(8):
            if i < 2: uv_load(16 + 8*i + n)
            else: wo_load(8*(i-2) + n, False)
        a(f"s_branch {filled}")
    a("L_attdone:")
    stamp(6)
    a(f"v_mov_b32 v{vT1}, v{vLL}\nv_permlane32_swap_b32 v{vLL}, v{vT1}\nv_add_f32 v{vLL}, v{vLL}, v{vT1}")
    a(f"v_and_b32 v{vT0}, 31, v{vL}\nv_mul_u32_u24 v{vT1}, 272, v{vT0}\nv_lshrrev_b32 v{vT2}, 5, v{vL}\nv_lshl_add_u32 v{vT1}, v{vT2}, 3, v{vT1}\nv_add_u32 v{vT1}, s{sM0}, v{vT1}")
    for i in range(32):
        a(f"v_cvt_pk_bf16_f32 v{vKA+i}, v{vCT+2*i}, v{vCT+2*i+1}")
    for nt in range(4):
        for q in range(4):
            a(f"ds_write_b64 v{vT1}, {V(vKA+8*nt+2*q,2)} offset:{64*nt+16*q}")
    a(f"v_mul_u32_u24 v{vT2}, 272, v{vG}\nv_lshl_add_u32 v{vT2}, v{vJ}, 4, v{vT2}\nv_add_u32 v{vT2}, s{sM0}, v{vT2}")
    a(f"v_lshlrev_b32 v{vT3}, 4, v{vJ}\nv_lshl_add_u32 v{vT3}, v{vG}, 15, v{vT3}")
    a(f"s_lshl_b32 s{sT0}, s{sH}, 10\ns_lshl_b32 s{sT2}, s{sW}, 8\ns_add_u32 s{sT0}, s{sT0}, s{sT2}\ns_add_u32 s{sT0}, s{sT0}, {WS_CP}")
    a("s_waitcnt lgkmcnt(0)")
    for i in range(8):
        a(f"ds_read_b128 {V(vCT+4*i,4)}, v{vT2} offset:{1088*i}")
    a(f"v_lshlrev_b32 v{vT0}, 3, v{vT0}\ns_lshl_b32 s{sT1}, s{sH}, 8\ns_add_u32 s{sT1}, s{sT1}, {WS_CS}")
    a(f"s_lshl_b32 s{sT2}, s{sW}, 3\ns_lshl_b32 exec_lo, 0xff, s{sT2}\ns_mov_b32 exec_hi, 0")
    a.vm(f"buffer_store_dwordx2 {V(vM,2)}, v{vT0}, s[{rWS}:{rWS+3}], s{sT1} offen sc1", "CPst")
    setexec(FULL)
    for i in range(8):
        a(f"s_waitcnt lgkmcnt({7-i})")
        a.vm(f"buffer_store_dwordx4 {V(vCT+4*i,4)}, v{vT3}, s[{rWS}:{rWS+3}], s{sT0} offen sc1", "CPst")
        if i < 7: a(f"s_add_u32 s{sT0}, s{sT0}, {4*32*KB}")
    for i in range(16, 24): wo_load(i, False)
    signal("CPst", 128)
    stamp(7)
    for i in range(24, 32): wo_load(i, False)

    vWT = 128
    def slab_in(src):
        for i in range(32):
            a(f"ds_write_b128 v{vWR+(i&3)}, {A(src+4*i,4)} offset:{1024*i}")
        a("s_waitcnt lgkmcnt(0)")
    def slab_out():
        for nt in range(8):
            for pi in range(2):
                a(f"v_xor_b32 v{vT0+pi}, {16*(2*nt+pi)}, v{vTRB}")
                for k in range(4):
                    a(f"ds_read_b64_tr_b16 {V(vWT+16*nt+4*k+2*pi,2)}, v{vT0+pi} offset:{8192*k+1024*pi}")
        a("s_waitcnt lgkmcnt(0)")

    slab_in(A1)
    wo_base()
    flag_load(128)
    for i in range(8): wo_load(i, True)
    slab_out()
    flag_wait(128)
    stamp(8)
    vCB, vSTAT, vDD, vRES = 20, 52, 60, 104
    a(f"v_and_b32 v{vT0}, 3, v{vJ}\nv_lshrrev_b32 v{vT1}, 2, v{vJ}\nv_lshl_add_u32 v{vT2}, v{vT0}, 3, v{vT1}")
    a(f"v_lshlrev_b32 v{vT3}, 8, v{vT2}\nv_lshlrev_b32 v{vT2}, 10, v{vT2}\nv_lshl_add_u32 v{vT2}, v{vG}, 4, v{vT2}")
    a(f"s_lshl_b32 s{sT0}, s{sH}, 15\ns_lshl_b32 s{sT2}, s{sW}, 8\ns_add_u32 s{sT0}, s{sT0}, s{sT2}\ns_add_u32 s{sT0}, s{sT0}, {WS_CP}")
    a(f"s_lshl_b32 s{sT1}, s{sH}, 3\ns_add_u32 s{sT1}, s{sT1}, {WS_CS}")
    for hf in range(2):
        a.vm(f"buffer_load_dwordx2 {V(vSTAT+2*hf,2)}, v{vT3}, s[{rWS}:{rWS+3}], s{sT1} offen offset:{1024*hf} sc1", "CSg")
    for hf in range(2):
        for k in range(4):
            a.vm(f"buffer_load_dwordx4 {V(vCB+16*hf+4*k,4)}, v{vT2}, s[{rWS}:{rWS+3}], s{sT0} offen offset:{64*k} sc1", "CPg")
        a(f"s_add_u32 s{sT0}, s{sT0}, 4096")
    for i in range(8, 32): wo_load(i, True)
    a.wait("CSg")
    a(f"v_max_f32 v{vT0}, v{vSTAT}, v{vSTAT+2}")
    a(f"v_max_f32_dpp v{vT0}, v{vT0}, v{vT0} row_ror:8 {DPP}\nv_max_f32_dpp v{vT0}, v{vT0}, v{vT0} row_ror:4 {DPP}")
    a(f"v_sub_f32 v{vSTAT}, v{vSTAT}, v{vT0}\nv_sub_f32 v{vSTAT+2}, v{vSTAT+2}, v{vT0}")
    a(f"v_exp_f32 v{vSTAT}, v{vSTAT}\nv_exp_f32 v{vSTAT+2}, v{vSTAT+2}")
    a(f"v_mul_f32 v{vT1}, v{vSTAT}, v{vSTAT+1}\nv_fmac_f32 v{vT1}, v{vSTAT+2}, v{vSTAT+3}")
    a(f"v_add_f32_dpp v{vT1}, v{vT1}, v{vT1} row_ror:8 {DPP}\nv_add_f32_dpp v{vT1}, v{vT1}, v{vT1} row_ror:4 {DPP}")
    a(f"v_rcp_f32 v{vT1}, v{vT1}")
    a(f"v_mul_f32 v{vSTAT}, v{vSTAT}, v{vT1}\nv_mul_f32 v{vSTAT+2}, v{vSTAT+2}, v{vT1}")
    a(f"s_lshl_b32 s{sT2}, s{sW}, 11\ns_add_u32 s{sT2}, s{sT2}, {LDS_EX}")
    a(f"v_and_b32 v{vT0}, 3, v{vJ}\nv_lshlrev_b32 v{vT0}, 9, v{vT0}\nv_lshl_add_u32 v{vT0}, v{vG}, 4, v{vT0}\nv_add_u32 v{vT0}, s{sT2}, v{vT0}")
    a.wait("CPg")
    def ctx_fold(nt):
        d = vDD + 8*(nt % 2)
        res = vRES + 4*(nt % 2)
        for r in range(4):
            a(f"v_mul_f32 v{res+r}, v{d+r}, v{vSTAT}")
        for r in range(4):
            a(f"v_fmac_f32 v{res+r}, v{d+4+r}, v{vSTAT+2}")
        for ror in (8, 4):
            for r in range(4):
                a(f"v_add_f32_dpp v{res+r}, v{res+r}, v{res+r} row_ror:{ror} {DPP}")
        a(f"ds_write_b128 v{vT0}, {V(res,4)} offset:{64*nt}")
    for nt in range(8):
        d = vDD + 8*(nt % 2)
        for k in range(4):
            for hf in range(2):
                c = V(d+4*hf, 4) if k else "0"
                a(f"v_mfma_f32_16x16x32_bf16 {V(d+4*hf,4)}, {V(vWT+16*nt+4*k,4)}, {V(vCB+16*hf+4*k,4)}, {c}")
        if nt: ctx_fold(nt - 1)
    ctx_fold(7)
    a(f"s_lshl_b32 s{sT2}, s{sW}, 9\ns_add_u32 s{sT2}, s{sT2}, {LDS_EX}\nv_and_b32 v{vT1}, 31, v{vL}\nv_lshl_add_u32 v{vT2}, v{vT1}, 4, s{sT2}")
    a(f"s_mul_i32 s{sT2}, s{sW}, 320\ns_add_u32 s{sT2}, s{sT2}, {LDS_O}\nv_lshl_add_u32 v{vT3}, v{vT1}, 3, s{sT2}")
    a("s_waitcnt lgkmcnt(0)\ns_barrier")
    for p in range(4):
        a(f"ds_read_b128 {V(vCB+4*p,4)}, v{vT2} offset:{p*2048}")
    a("s_waitcnt lgkmcnt(0)")
    for r in range(4):
        a(f"v_add_f32 v{vCB+r}, v{vCB+r}, v{vCB+4+r}\nv_add_f32 v{vCB+8+r}, v{vCB+8+r}, v{vCB+12+r}")
    for r in range(4):
        a(f"v_add_f32 v{vCB+r}, v{vCB+r}, v{vCB+8+r}")
    a(f"v_cvt_pk_bf16_f32 v{vCB}, v{vCB}, v{vCB+1}\nv_cvt_pk_bf16_f32 v{vCB+1}, v{vCB+2}, v{vCB+3}")
    a(f"ds_write_b64 v{vT3}, {V(vCB,2)}")
    slab_in(A0)
    slab_out()
    stamp(9)

    vBU, vY = 20, 84
    vAO, vAY, vAG, vAF, vAM, vAW = 100, 101, 102, 103, 92, 93
    vG2 = 104
    for i in range(64): a(f"v_mov_b32 v{vBU+i}, 0")
    a(f"v_and_b32 v{vT0}, 3, v{vJ}\nv_mul_u32_u24 v{vAO}, 320, v{vT0}\nv_lshl_add_u32 v{vAO}, v{vG}, 4, v{vAO}\nv_add_u32 v{vAO}, {LDS_O}, v{vAO}")
    a(f"s_lshl_b32 s{sT0}, s{sW}, 16\ns_lshl_b32 s{sT2}, s{sH}, 8\ns_add_u32 s{sT0}, s{sT0}, s{sT2}\nv_add_u32 v{vAY}, s{sT0}, v{vOR8}")
    a(f"s_lshl_b32 s{sT0}, s{sH}, 13\ns_lshl_b32 s{sT2}, s{sW}, 6\ns_add_u32 s{sT0}, s{sT0}, s{sT2}")
    a(f"v_lshrrev_b32 v{vT1}, 2, v{vL}\nv_lshlrev_b32 v{vT1}, 8, v{vT1}\nv_lshl_add_u32 v{vT1}, v{vT0}, 4, v{vT1}\nv_add_u32 v{vAG}, s{sT0}, v{vT1}")
    a(f"s_lshr_b32 s{sT0}, s{sH}, 2\ns_lshl_b32 s{sT0}, s{sT0}, 7\ns_lshl_b32 s{sT2}, s{sW}, 5\ns_add_u32 s{sT0}, s{sT0}, s{sT2}")
    a(f"s_and_b32 s{sT2}, s{sH}, 3\ns_lshl_b32 s{sT2}, s{sT2}, 3\ns_add_u32 s{sT0}, s{sT0}, s{sT2}")
    a(f"v_lshlrev_b32 v{vT1}, 11, v{vT0}\nv_lshl_add_u32 v{vT1}, v{vG}, 1, v{vT1}\nv_add_u32 v{vAF}, s{sT0}, v{vT1}")
    a(f"v_lshlrev_b32 v{vT0}, 7, v{vG}\nv_lshl_add_u32 v{vT0}, v{vJ}, 4, v{vT0}\nv_mov_b32 v{vT1}, 512")
    a(f"v_cmp_gt_u32 vcc, 8, v{vJ}\nv_cndmask_b32 v{vAM}, v{vT1}, v{vT0}, vcc")
    a(f"s_mul_i32 s{sT2}, s{sW}, 320\ns_add_u32 s{sT2}, s{sT2}, {LDS_O}\nv_lshlrev_b32 v{vT0}, 6, v{vG}\nv_lshl_add_u32 v{vT0}, v{vJ}, 1, v{vT0}\nv_add_u32 v{vAW}, s{sT2}, v{vT0}")
    a(f"s_mov_b32 s{sMODE}, 0\ns_mov_b32 s{sYO}, {WS_YA}\ns_mov_b32 s{sOUTO}, 0")
    a("L_final:")
    a("s_waitcnt lgkmcnt(0)\ns_barrier")
    for u in range(4):
        setexec(0x000f000f000f000f << (4*u))
        for k in range(4):
            a(f"ds_read_b128 {V(vBU+16*u+4*k,4)}, v{vAO} offset:{64*k}")
    setexec(FULL)
    a(f"s_add_u32 s{sT0}, s{sYO}, 32768")
    for u in range(4):
        a(f"s_waitcnt lgkmcnt({12-4*u})")
        for k in range(4):
            for v in range(2):
                c = V(vY+4*v, 4) if (u or k) else "0"
                a(f"v_mfma_f32_16x16x32_bf16 {V(vY+4*v,4)}, {V(vWT+16*(4*v+u)+4*k,4)}, {V(vBU+16*u+4*k,4)}, {c}")
    for v in range(2):
        tag(range(vY+4*v, vY+4*v+4))
        a(f"buffer_store_dwordx4 {V(vY+4*v,4)}, v{vAY}, s[{rWS}:{rWS+3}], s{sT0 if v else sYO} offen sc1")
    a(f"s_cmp_eq_u32 s{sMODE}, 0\ns_cbranch_scc1 L_prepb")
    a("L_hop2:")
    a(f"s_add_u32 s{sT0}, s{sYO}, 4096")
    for i in range(2):
        a(f"buffer_load_dwordx4 {V(vG2+4*i,4)}, v{vAG}, s[{rWS}:{rWS+3}], s{sT0 if i else sYO} offen sc1")
    a("s_waitcnt vmcnt(0)")
    untag(list(range(vG2, vG2+8)), vT0)
    a("s_cbranch_vccz L_hop2ok")
    spin_guard("L_hop2")
    a("L_hop2ok:")
    for r in range(4):
        a(f"v_add_f32 v{vG2+r}, v{vG2+r}, v{vG2+4+r}")
    a(f"v_permlane16_swap_b32 v{vG2}, v{vG2+1}\nv_permlane16_swap_b32 v{vG2+2}, v{vG2+3}")
    a(f"v_add_f32 v{vG2}, v{vG2}, v{vG2+1}\nv_add_f32 v{vG2+2}, v{vG2+2}, v{vG2+3}")
    a(f"v_permlane32_swap_b32 v{vG2}, v{vG2+2}\nv_add_f32 v{vG2}, v{vG2}, v{vG2+2}")
    a(f"v_add_f32_dpp v{vG2}, v{vG2}, v{vG2} row_ror:8 {DPP}\nv_add_f32_dpp v{vG2}, v{vG2}, v{vG2} row_ror:4 {DPP}")
    a(f"v_cvt_pk_bf16_f32 v{vG2}, v{vG2}, v{vG2}")
    setexec(0x000f000f000f000f)
    a(f"buffer_store_short v{vG2}, v{vAF}, s[{rOUT}:{rOUT+3}], s{sOUTO} offen")
    setexec(FULL)
    a(f"s_cmp_lg_u32 s{sMODE}, 0\ns_cbranch_scc1 L_fin")
    stamp(11)
    a(f"s_mov_b32 s{sMODE}, 1\ns_mov_b32 s{sYO}, {WS_YB}\ns_mov_b32 s{sOUTO}, 1024")
    a(f"s_lshl_b32 s{sU0}, s{sH}, 2\ns_add_u32 s{sU0}, s{sU0}, s{sW}\ns_lshl_b32 s{sU0}, s{sU0}, 13\ns_add_u32 s{sU0}, s{sU0}, {WS_OP}\ns_add_u32 s{sU1}, s{sU0}, 4096")
    a(f"v_min_u32 v{vT1}, 6, v{vL}\nv_lshlrev_b32 v{vT1}, 10, v{vT1}")
    a("L_light:")
    a(f"buffer_load_dword v{vT2}, v{vT1}, s[{rWS}:{rWS+3}], s{sU0} offen offset:512 sc1\ns_waitcnt vmcnt(0)")
    a(f"v_xor_b32 v{vT2}, s{sTAG}, v{vT2}\nv_and_b32 v{vT2}, 0xff, v{vT2}\nv_cmp_ne_u32 vcc, 0, v{vT2}")
    a(f"s_and_b32 s{sT0}, vcc_lo, 0x7f\ns_bcnt1_i32_b32 s{sT0}, s{sT0}\ns_cmp_le_u32 s{sT0}, 2\ns_cbranch_scc1 L_hop1")
    a("s_sleep 2")
    spin_guard("L_light")
    vMS = [104, 108, 112, 116, 120, 124, 84]
    vWS7 = [4, 5, 6, 7, 88, 89, 90]
    a("L_hop1:")
    for s in range(7):
        a(f"buffer_load_dwordx4 {V(vMS[s],4)}, v{vAM}, s[{rWS}:{rWS+3}], s{sU0 if s < 4 else sU1} offen offset:{1024*(s&3)} sc1")
    a("s_waitcnt vmcnt(0)")
    untag([m + r for m in vMS for r in range(4)], vT0)
    a("s_cbranch_vccz L_hop1ok")
    spin_guard("L_hop1")
    a("L_hop1ok:")
    stamp(12)
    vMX, vOO = 91, 10
    a(f"v_max3_f32 v{vMX}, v{vMS[0]}, v{vMS[1]}, v{vMS[2]}")
    a(f"v_max3_f32 v{vMX}, v{vMX}, v{vMS[3]}, v{vMS[4]}\nv_max3_f32 v{vMX}, v{vMX}, v{vMS[5]}, v{vMS[6]}")
    for s in range(7):
        a(f"v_sub_f32 v{vWS7[s]}, v{vMS[s]}, v{vMX}")
    for s in range(7):
        a(f"v_exp_f32 v{vWS7[s]}, v{vWS7[s]}")
    for s in range(7):
        for r in (1, 0, 2, 3):
            op = "v_fmac_f32_dpp" if s else "v_mul_f32_dpp"
            a(f"{op} v{vOO+r}, v{vWS7[s]}, v{vMS[s]+r} row_newbcast:8 {DPP}")
    a(f"v_rcp_f32 v{vMX}, v{vOO+1}")
    for r in range(4):
        a(f"v_mul_f32_dpp v{vOO+r}, v{vMX}, v{vOO+r} row_newbcast:8 {DPP}")
    a(f"v_cvt_pk_bf16_f32 v{vOO}, v{vOO}, v{vOO+1}\nv_cvt_pk_bf16_f32 v{vOO+2}, v{vOO+2}, v{vOO+3}")
    setexec(0x00ff00ff00ff00ff)
    a(f"ds_write_b16 v{vAW}, v{vOO}\nds_write_b16_d16_hi v{vAW}, v{vOO} offset:16")
    a(f"ds_write_b16 v{vAW}, v{vOO+2} offset:32\nds_write_b16_d16_hi v{vAW}, v{vOO+2} offset:48")
    setexec(FULL)
    a("s_branch L_final")
    a("L_prepb:")
    stamp(10)
    a("s_waitcnt vmcnt(0)")
    slab_in(A1)
    slab_out()
    a("s_barrier")
    a("s_branch L_hop2")
    a("L_fin:")
    stamp(13)
    probe_end()
    a(f"s_or_b32 s{sT0}, s{sH}, s{sW}\ns_cmp_lg_u32 s{sT0}, 0\ns_cbranch_scc1 L_end")
    a(f"v_mov_b32 v{vT0}, 0")
    setexec(1)
    a(f"buffer_store_dword v{vTAG}, v{vT0}, s[{rWS}:{rWS+3}], 0 offen")
    a("L_end:\ns_endpgm")
    body = a.finish()
    ref = open(os.path.join(os.path.dirname(os.path.abspath(__file__)), "..", NAME + ".s.ref")).read().split("\n")
    layout = [l for l in ref if l.startswith(";") and "@launch" not in l and "Override" not in l and "grid=ceil" not in l]
    tail = f""".section .rodata,"a"
.p2align 6
.amdhsa_kernel {NAME}_kernel
  .amdhsa_next_free_vgpr 512
  .amdhsa_next_free_sgpr 102
  .amdhsa_accum_offset 256
  .amdhsa_group_segment_fixed_size 0
  .amdhsa_kernarg_size 112
  .amdhsa_user_sgpr_count 2
  .amdhsa_user_sgpr_kernarg_segment_ptr 1
  .amdhsa_system_sgpr_workgroup_id_x 1
.end_amdhsa_kernel
"""
    return "\n".join(layout + hdr + ["; generated by tools/gen.py"]) + "\n" + body + tail

if __name__ == "__main__":
    kw = eval("dict(" + (sys.argv[2] if len(sys.argv) > 2 else "") + ")")
    out = sys.argv[1] if len(sys.argv) > 1 else os.path.join(os.path.dirname(os.path.abspath(__file__)), "..", NAME + ".s")
    open(out, "w").write(generate(**kw))
    print("wrote", out)
```

```python
import sys, os
sys.path.insert(0, os.path.dirname(os.path.abspath(__file__)))
from asmlib import Asm

NAME = "concat_heads__compressed_kv_cla__mha_block_cached__decode"
KB, MB = 1024, 1 << 20
WS_QP, WS_QL, WS_CS, WS_YA, WS_YB, WS_CP, WS_OP, WS_ST, WS_SIZE = 1*MB, 2*MB, 2*MB + 512*KB, 3*MB, 3*MB + 512*KB, 4*MB, 5*MB, 6*MB, 8*MB
SCALE = 128 ** -0.5 * 1.4426950408889634
LDS_EX = 128 * KB
LDS_O = LDS_EX + 16 * KB
SPIN = 1 << 20
TINY_GEOM = (1, 64)

import struct
def f32(x): return struct.unpack("<I", struct.pack("<f", x))[0]
def V(a, n=1): return f"v{a}" if n == 1 else f"v[{a}:{a+n-1}]"
def A(a, n=1): return f"a{a}" if n == 1 else f"a[{a}:{a+n-1}]"
def S(a, n=1): return f"s{a}" if n == 1 else f"s[{a}:{a+n-1}]"
DPP = "row_mask:0xf bank_mask:0xf"

pAX, pCK, pAWQ, pUK, pUV, pAWO, pBX, pK, pV, pBWQ, pBWO, pOUT, pDBG, pWS = range(4, 32, 2)
sH, sP, sW, sTAG, sT0, sT1, sT2, sT3 = 32, 33, 34, 35, 36, 37, 38, 39
rW, rX, rWS, rK, rV, rUV, rWA, rWB, rOUT, rDBG = 40, 44, 48, 52, 56, 60, 64, 68, 72, 76
rCK, rUK = rK, rV
sSELLO, sSELHI, sHI24, sC, sSPIN = 80, 81, 82, 83, 84
sU0, sU1, sTK, sROT, sBASE = 85, 86, 87, 88, 89
sM0, sMODE, sIT, sSLOT, sCKO, sYO, sOUTO = 90, 92, 93, 94, 95, 96, 97
sTS = 98


def generate(D=5, GS=0, ROTH=8, ROTW=1, POLLAT=22, STAMP=False, DBG=None, POLK='nt', POLV='nt', POLW='nt', PROBE=None, PROBEX=None, TINY=None, EARLY=False):
    a = Asm()
    role = ["B"]

    def srd(r, p, size):
        a(f"s_mov_b32 s{r}, s{p}\ns_and_b32 s{r+1}, s{p+1}, 0xffff\ns_mov_b32 s{r+2}, {size}\ns_mov_b32 s{r+3}, 0x20000")

    def stamp(i):
        if PROBE is not None:
            if PROBE == (role[0], i):
                a(f"s_memrealtime s[100:101]\ns_waitcnt lgkmcnt(0)")
            return
        if DBG is not None:
            key = (role[0], i)
            if key in DBG:
                a(f"s_memrealtime s[{sTS}:{sTS+1}]\ns_waitcnt lgkmcnt(0)")
                a(f"v_mov_b32 v{vST1}, s{sTS}\ns_mov_b64 s[100:101], exec\ns_mov_b64 exec, 1")
                a(f"global_atomic_umax v{vST0}, v{vST1}, s[{pDBG}:{pDBG+1}] offset:{4*(3+DBG.index(key))} sc1")
                a("s_mov_b64 exec, s[100:101]")
            return
        if not STAMP: return
        a(f"s_memrealtime s[{sTS}:{sTS+1}]\ns_waitcnt lgkmcnt(0)")
        a(f"v_mov_b32 v{vST1}, s{sTS}\ns_mov_b64 s[100:101], exec\ns_mov_b64 exec, 1")
        a(f"buffer_store_dword v{vST1}, v{vST0}, s[{rWS}:{rWS+3}], 0 offen offset:{4*i}")
        a("s_mov_b64 exec, s[100:101]")

    def probe_end():
        if PROBE is None or PROBE[0] != role[0]: return
        lbl = a.label("probe")
        if TINY == "first":
            a(f"s_load_dword s100, s[{pWS}:{pWS+1}], 4096\ns_waitcnt lgkmcnt(0)")
        if TINY == "last":
            a(f"v_mov_b32 v{vT0}, 4096\nv_mov_b32 v{vT1}, s100\nbuffer_store_dword v{vT1}, v{vT0}, s[{rWS}:{rWS+3}], 0 offen")
            return
        if PROBEX is not None:
            a(f"s_getreg_b32 s101, hwreg(HW_REG_XCC_ID)\ns_and_b32 s101, s101, 15\ns_cmp_lg_u32 s101, {PROBEX}\ns_cbranch_scc1 {lbl}_x")
        a(f"s_add_u32 s100, s100, 10000\n{lbl}:\ns_memrealtime s[{sTS}:{sTS+1}]\ns_waitcnt lgkmcnt(0)")
        a(f"s_sub_u32 s{sTS}, s{sTS}, s100\ns_cmp_lt_i32 s{sTS}, 0\ns_cbranch_scc0 {lbl}_x\ns_cmp_gt_i32 s{sTS}, -20000\ns_cbranch_scc1 {lbl}\n{lbl}_x:")

    def spin_guard(lbl_retry):
        a(f"s_sub_u32 s{sSPIN}, s{sSPIN}, 1\ns_cmp_lg_u32 s{sSPIN}, 0\ns_cbranch_scc1 {lbl_retry}\ns_branch L_end")

    def untag(regs, acc):
        for r in regs:
            a(f"v_xor_b32 v{r}, s{sTAG}, v{r}")
        a(f"v_or_b32 v{acc}, v{regs[0]}, v{regs[1]}")
        for i in range(2, len(regs), 2):
            a(f"v_or3_b32 v{acc}, v{acc}, v{regs[i]}, v{regs[i+1]}")
        a(f"v_and_b32 v{acc}, 0xff, v{acc}\nv_cmp_ne_u32 vcc, 0, v{acc}")

    def tag(regs):
        for r in regs:
            a(f"v_and_or_b32 v{r}, v{r}, s{sHI24}, v{vTAG}")

    def quadsum(dst, src, tmp):
        a(f"v_mov_b32_dpp v{dst}, v{src} quad_perm:[0,0,0,0] {DPP}")
        a(f"v_mov_b32_dpp v{tmp}, v{src+2} quad_perm:[2,2,2,2] {DPP}")
        a(f"v_add_f32_dpp v{dst}, v{src+1}, v{dst} quad_perm:[1,1,1,1] {DPP}")
        a(f"v_add_f32_dpp v{tmp}, v{src+3}, v{tmp} quad_perm:[3,3,3,3] {DPP}")
        a(f"v_add_f32 v{dst}, v{dst}, v{tmp}")

    def setexec(mask):
        lo, hi = mask & 0xffffffff, mask >> 32
        if mask == (1 << 64) - 1: a("s_mov_b64 exec, -1")
        elif mask <= 64: a(f"s_mov_b64 exec, {mask}")
        else: a(f"s_mov_b32 exec_lo, {lo:#x}\ns_mov_b32 exec_hi, {hi:#x}")
    FULL = (1 << 64) - 1

    vL, vG, vJ, vT0, vT1, vT2, vT3, vTAG = 1, 2, 3, 4, 5, 6, 7, 8
    vMASK = 10
    vOW, vOX = 14, 15
    vST0, vST1 = 16, 17
    vX = 20
    vB = 28
    vACC = 36
    vW = 44

    hdr = [f"; @launch grid=(256,1,1) block=(256,1,1) lds={160*KB}"]
    a(f'.amdgcn_target "amdgcn-amd-amdhsa--gfx950"\n.text\n.globl {NAME}_kernel\n.p2align 8\n.type {NAME}_kernel,@function')
    a(f"{NAME}_kernel:")
    if EARLY: a(f"s_memrealtime s[{sTS}:{sTS+1}]\ns_waitcnt lgkmcnt(0)")
    a("s_cmp_ge_u32 s2, 256\ns_cbranch_scc1 L_end")
    a("s_load_dwordx16 s[4:19], s[0:1], 0\ns_load_dwordx8 s[20:27], s[0:1], 64\ns_load_dwordx4 s[28:31], s[0:1], 96")
    if (STAMP or DBG is not None or PROBE is not None) and not EARLY: a(f"s_memrealtime s[{sTS}:{sTS+1}]")
    a(f"v_lshrrev_b32 v{vT0}, 6, v0\nv_and_b32 v{vL}, 63, v0\nv_readfirstlane_b32 s{sW}, v{vT0}")
    a(f"s_lshr_b32 s{sH}, s2, 3\ns_sub_u32 s{sP}, s2, s{sH}\ns_sub_u32 s{sP}, s{sP}, 1\ns_and_b32 s{sP}, s{sP}, 7")
    a(f"v_lshrrev_b32 v{vG}, 4, v{vL}\nv_and_b32 v{vJ}, 15, v{vL}")
    a(f"v_lshlrev_b32 v{vT0}, 16, v{vG}\nv_lshl_add_u32 v{vOW}, v{vJ}, 4, v{vT0}")
    a(f"v_lshrrev_b32 v{vT1}, 3, v{vJ}\nv_lshlrev_b32 v{vT1}, 10, v{vT1}\nv_lshl_add_u32 v{vOX}, v{vG}, 4, v{vT1}")
    a(f"s_and_b32 s{sT0}, s{sP}, 3\ns_lshl_b32 s{sT0}, s{sT0}, 2\ns_add_u32 s{sT0}, s{sT0}, s{sW}")
    a(f"s_lshl_b32 s{sT1}, s{sT0}, 6\ns_lshl_b32 s{sT0}, s{sT0}, 18\ns_lshl_b32 s{sT2}, s{sH}, 8\ns_add_u32 s{sT0}, s{sT0}, s{sT2}")
    a(f"s_mov_b32 s{rW+2}, {4*MB}\ns_mov_b32 s{rW+3}, 0x20000\ns_mov_b32 s{rX+2}, 4096\ns_mov_b32 s{rX+3}, 0x20000")
    a(f"s_cmp_ge_u32 s{sP}, 4\ns_waitcnt lgkmcnt(0)")
    a(f"s_cselect_b64 s[{rW}:{rW+1}], s[{pAWQ}:{pAWQ+1}], s[{pBWQ}:{pBWQ+1}]")
    a(f"s_cselect_b64 s[{rX}:{rX+1}], s[{pAX}:{pAX+1}], s[{pBX}:{pBX+1}]")
    a(f"s_load_dword s{sTAG}, s[{pWS}:{pWS+1}], 0")
    for u in range(2):
        a.vm(f"buffer_load_dwordx4 {V(vX+4*u,4)}, v{vOX}, s[{rX}:{rX+3}], s{sT1} offen offset:{2048*u}", "X")
    for t in range(8):
        a.vm(f"buffer_load_dwordx4 {V(vW+4*t,4)}, v{vOW}, s[{rW}:{rW+3}], s{sT0} offen {POLW}", f"W{t}")
        if t < 7: a(f"s_add_u32 s{sT0}, s{sT0}, 8192")
    if PROBE is not None: a(f"s_mov_b32 s100, s{sTS}")
    srd(rWS, pWS, WS_SIZE)
    a(f"s_mov_b32 s{sSELLO}, 0x01000100\ns_mov_b32 s{sSELHI}, 0x03020302\ns_mov_b32 s{sHI24}, 0xffffff00")
    a(f"s_mov_b32 s{sC}, {f32(SCALE):#x}\ns_mov_b32 s{sSPIN}, {SPIN}")
    a(f"v_and_b32 v{vT0}, 1, v{vL}\nv_lshlrev_b32 v{vT0}, 4, v{vT0}\nv_mov_b32 v{vT1}, 0xffff\nv_lshlrev_b32 v{vT0}, v{vT0}, v{vT1}")
    a(f"v_bfe_u32 v{vT1}, v{vL}, 1, 2")
    for r in range(4):
        a(f"v_cmp_eq_u32 vcc, {r}, v{vT1}\nv_cndmask_b32 v{vMASK+r}, 0, v{vT0}, vcc")
    if STAMP:
        a(f"s_lshl_b32 s{sT2}, s2, 2\ns_add_u32 s{sT2}, s{sT2}, s{sW}\ns_lshl_b32 s{sT2}, s{sT2}, 6\ns_add_u32 s{sT2}, s{sT2}, {WS_ST}\nv_mov_b32 v{vST0}, s{sT2}")
        a(f"v_mov_b32 v{vST1}, s{sTS}\ns_mov_b64 exec, 1")
        a(f"buffer_store_dword v{vST1}, v{vST0}, s[{rWS}:{rWS+3}], 0 offen\ns_mov_b64 exec, -1")
    if DBG is not None:
        a(f"v_mov_b32 v{vST0}, 0\nv_mov_b32 v{vST1}, s{sTS}\nv_not_b32 v{vT0}, v{vST1}\ns_cmp_lg_u32 s{sW}, 0\ns_cbranch_scc1 L_nodbg\ns_mov_b64 exec, 1")
        a(f"global_atomic_umax v{vST0}, v{vT0}, s[{pDBG}:{pDBG+1}] offset:4 sc1")
        a(f"global_atomic_umax v{vST0}, v{vST1}, s[{pDBG}:{pDBG+1}] offset:8 sc1\ns_mov_b64 exec, -1\nL_nodbg:")
    a(f"s_cmp_eq_u32 s{sP}, 7\ns_cbranch_scc1 L_aux")
    q_entry = list(a.q)

    def qpart(next_load):
        for t in range(8):
            a.wait(f"W{t}")
            next_load(t)
            for u in range(2):
                a(f"v_perm_b32 v{vT0+u}, v{vX+4*u+(t>>1)}, v{vX+4*u+(t>>1)}, s{sSELHI if t & 1 else sSELLO}")
            for u in range(2):
                for r in range(4):
                    a(f"v_and_b32 v{vB+4*u+r}, v{vT0+u}, v{vMASK+r}")
            for u in range(2):
                c = V(vACC+4*u, 4) if t else "0"
                a(f"v_mfma_f32_16x16x32_bf16 {V(vACC+4*u,4)}, {V(vW+4*t,4)}, {V(vB+4*u,4)}, {c}")
        a(f"s_lshl_b32 s{sT2}, s{sW}, 11\ns_add_u32 s{sT2}, s{sT2}, {LDS_EX}")
        a(f"v_lshrrev_b32 v{vT0}, 3, v{vJ}\nv_lshlrev_b32 v{vT0}, 9, v{vT0}\nv_lshl_add_u32 v{vT0}, v{vG}, 7, v{vT0}")
        a(f"v_and_b32 v{vT1}, 7, v{vJ}\nv_lshl_add_u32 v{vT0}, v{vT1}, 2, v{vT0}\nv_add_u32 v{vT0}, s{sT2}, v{vT0}")
        a(f"s_lshl_b32 s{sT2}, s{sW}, 9\nv_and_b32 v{vT1}, 31, v{vL}\nv_lshl_add_u32 v{vT1}, v{vT1}, 4, s{sT2}")
        a(f"v_add_u32 v{vT2}, {LDS_EX}, v{vT1}")
        for u in range(2):
            for r in range(4):
                a(f"ds_write_b32 v{vT0}, v{vACC+4*u+r} offset:{u*1024+r*32}")
        a("s_waitcnt lgkmcnt(0)\ns_barrier")
        for p in range(4):
            a(f"ds_read_b128 {V(vW+4*p,4)}, v{vT2} offset:{p*2048}")
        a(f"s_add_u32 s{sTAG}, s{sTAG}, 0x5b\ns_and_b32 s{sTAG}, s{sTAG}, 0xff\nv_mov_b32 v{vTAG}, s{sTAG}")
        a(f"s_lshl_b32 s{sT2}, s{sH}, 3\ns_add_u32 s{sT2}, s{sT2}, s{sP}\ns_lshl_b32 s{sT2}, s{sT2}, 11\ns_add_u32 s{sT2}, s{sT2}, {WS_QP}")
        a("s_waitcnt lgkmcnt(0)")
        for r in range(4):
            a(f"v_add_f32 v{vW+r}, v{vW+r}, v{vW+4+r}\nv_add_f32 v{vW+8+r}, v{vW+8+r}, v{vW+12+r}")
        for r in range(4):
            a(f"v_add_f32 v{vW+r}, v{vW+r}, v{vW+8+r}")
        tag(range(vW, vW+4))
        setexec(0xffffffff)
        a.vm(f"buffer_store_dwordx4 {V(vW,4)}, v{vT1}, s[{rWS}:{rWS+3}], s{sT2} offen sc1", "QPst")
        setexec(FULL)

    vOK, vOV, vOQ, vOP = 76, 77, 78, 79
    vBQ = 80
    vPB = 96
    vS, vO = 112, 116
    vMC, vLS, vSC, vP, vU0, vU1 = 120, 121, 122, 123, 124, 125
    vQ = 44
    RING = 128
    srd(rK, pK, 128*MB); srd(rV, pV, 128*MB)
    gs = GS if GS else 8
    tstep = 256 if GS else 1024
    a(f"v_lshrrev_b32 v{vT0}, 2, v{vJ}\nv_and_b32 v{vT1}, 3, v{vJ}")
    a(f"v_lshlrev_b32 v{vOK}, {gs}, v{vT0}\nv_lshl_add_u32 v{vOK}, v{vG}, 6, v{vOK}\nv_lshl_add_u32 v{vOK}, v{vT1}, 4, v{vOK}")
    a(f"v_lshlrev_b32 v{vOV}, {gs}, v{vG}\nv_lshl_add_u32 v{vOV}, v{vJ}, 4, v{vOV}")
    a(f"v_lshlrev_b32 v{vOQ}, 11, v{vT0}\nv_lshl_add_u32 v{vOQ}, v{vG}, 7, v{vOQ}\nv_lshl_add_u32 v{vOQ}, v{vT1}, 5, v{vOQ}")
    a(f"s_lshl_b32 s{sBASE}, s{sW}, 5\ns_add_u32 s{sBASE}, s{sBASE}, s{sH}\ns_lshl_b32 s{sBASE}, s{sBASE}, 20")
    a(f"s_mul_i32 s{sROT}, s{sH}, {ROTH}\ns_mul_i32 s{sT2}, s{sW}, {ROTW}\ns_add_u32 s{sROT}, s{sROT}, s{sT2}")
    a(f"s_mov_b32 s{sTK}, s{sP}")

    def unit_addr(dst, guard=True):
        a(f"s_add_u32 s{sT3}, s{sTK}, s{sROT}\ns_and_b32 s{sT3}, s{sT3}, 255")
        if GS:
            lo = GS - 10
            a(f"s_lshr_b32 s{dst}, s{sT3}, {lo}\ns_lshl_b32 s{dst}, s{dst}, {GS+2}\ns_and_b32 s{sT3}, s{sT3}, {(1<<lo)-1}")
            a(f"s_lshl_b32 s{sT3}, s{sT3}, 10\ns_add_u32 s{dst}, s{dst}, s{sT3}\ns_add_u32 s{dst}, s{dst}, s{sBASE}")
        else:
            a(f"s_lshl_b32 s{sT3}, s{sT3}, 12\ns_add_u32 s{dst}, s{sT3}, s{sBASE}")
        if guard:
            a(f"s_cmp_ge_u32 s{sTK}, 256\ns_cselect_b32 s{dst}, {128*MB}, s{dst}")

    def kv_load(slot, r, base, tg):
        isv = r >= 4
        a.vm(f"buffer_load_dwordx4 {V(RING+4*slot,4)}, v{vOV if isv else vOK}, s[{rV if isv else rK}:{(rV if isv else rK)+3}], s{base} offen offset:{(r%4)*tstep} {POLV if isv else POLK}", tg)

    def pre_load(n):
        if n % 8 == 0:
            if n: a(f"s_add_u32 s{sTK}, s{sTK}, 7")
            unit_addr(sU0, guard=False)
        kv_load(n, n % 8, sU0, f"P{n}")

    def softmax_part():
        quadsum(vSC, vS, vU0)
        skip = a.label("nomax")
        a(f"v_fma_f32 v{vP}, v{vSC}, s{sC}, -v{vMC}\nv_cmp_lt_f32 vcc, 0, v{vP}\ns_cbranch_vccz {skip}")
        a(f"v_mul_f32 v{vSC}, s{sC}, v{vSC}")
        a(f"v_max_f32_dpp v{vU0}, v{vSC}, v{vSC} row_ror:4 {DPP}")
        a(f"v_max_f32_dpp v{vU0}, v{vU0}, v{vU0} row_ror:8 {DPP}")
        a(f"v_mov_b32 v{vU1}, v{vU0}\nv_permlane16_swap_b32 v{vU0}, v{vU1}\nv_max_f32 v{vU0}, v{vU0}, v{vU1}")
        a(f"v_mov_b32 v{vU1}, v{vU0}\nv_permlane32_swap_b32 v{vU0}, v{vU1}\nv_max_f32 v{vU0}, v{vU0}, v{vU1}")
        a(f"v_and_b32 v{vU0}, s{sHI24}, v{vU0}\nv_max_f32 v{vU0}, v{vU0}, v{vMC}")
        a(f"v_sub_f32 v{vU1}, v{vMC}, v{vU0}\nv_exp_f32 v{vU1}, v{vU1}\nv_mov_b32 v{vMC}, v{vU0}\nv_sub_f32 v{vP}, v{vSC}, v{vU0}")
        a(f"v_mul_f32 v{vLS}, v{vLS}, v{vU1}")
        for r in range(4):
            a(f"v_mul_f32 v{vO+r}, v{vO+r}, v{vU1}")
        a(f"{skip}:")
        a(f"v_exp_f32 v{vP}, v{vP}")
        a(f"v_cvt_pk_bf16_f32 v{vU0}, v{vP}, v{vP}\nv_add_f32 v{vLS}, v{vLS}, v{vP}")
        for t in range(4):
            for r in range(4):
                a(f"v_and_b32_dpp v{vPB+4*t+r}, v{vU0}, v{vMASK+r} row_newbcast:{4*t} {DPP}")

    def consume(slot, r):
        if r < 4:
            c = V(vS, 4) if r else "0"
            a(f"v_mfma_f32_16x16x32_bf16 {V(vS,4)}, {V(RING+4*slot,4)}, {V(vBQ+4*r,4)}, {c}")
            if r == 3: softmax_part()
        else:
            a(f"v_mfma_f32_16x16x32_bf16 {V(vO,4)}, {V(RING+4*slot,4)}, {V(vPB+4*(r-4),4)}, {V(vO,4)}")

    def q_poll():
        for i in range(2):
            a.vm(f"buffer_load_dwordx4 {V(vQ+4*i,4)}, v{vOQ}, s[{rWS}:{rWS+3}], s{sU1} offen offset:{16*i} sc1", "Q")

    npre = [0]
    def b_next(t):
        if t >= 8 - D:
            pre_load(npre[0]); npre[0] += 1
    qpart(b_next)
    stamp(1)
    a(f"s_lshl_b32 s{sU1}, s{sH}, 14\ns_lshl_b32 s{sT2}, s{sW}, 9\ns_add_u32 s{sU1}, s{sU1}, s{sT2}\ns_add_u32 s{sU1}, s{sU1}, {WS_QP}")
    a(f"v_mov_b32 v{vMC}, 0xff7f0000\nv_mov_b32 v{vLS}, 0")
    for r in range(4): a(f"v_mov_b32 v{vO+r}, 0")
    a(f"v_lshlrev_b32 v{vT0}, 7, v{vG}\nv_lshl_add_u32 v{vT0}, v{vJ}, 4, v{vT0}\nv_mov_b32 v{vT1}, 512")
    a(f"v_cmp_gt_u32 vcc, 8, v{vJ}\nv_cndmask_b32 v{vOP}, v{vT1}, v{vT0}, vcc")
    while npre[0] < 32:
        n = npre[0]
        a.wait(f"P{n-D}")
        if n == POLLAT: q_poll()
        pre_load(n); npre[0] += 1
    if "Q" in a.q: a.wait("Q")
    qcheck, qok = a.label("qcheck"), a.label("qok")
    a(f"{qcheck}:")
    untag(list(range(vQ, vQ+8)), vT0)
    a(f"s_cbranch_vccz {qok}")
    saved = list(a.q)
    q_poll()
    a("s_waitcnt vmcnt(0)")
    spin_guard(qcheck)
    a.q = saved
    a(f"{qok}:")
    stamp(2)
    for ror in (8, 4):
        for i in range(8):
            a(f"v_add_f32_dpp v{vQ+i}, v{vQ+i}, v{vQ+i} row_ror:{ror} {DPP}")
    for r in range(4):
        a(f"v_cvt_pk_bf16_f32 v{vQ+r}, v{vQ+2*r}, v{vQ+2*r+1}")
    for t in range(4):
        m = 0x000f000f << (4*t)
        a(f"s_mov_b32 vcc_lo, {m:#x}\ns_mov_b32 vcc_hi, {m:#x}")
        for r in range(4):
            a(f"v_cndmask_b32 v{vBQ+4*t+r}, 0, v{vQ+r}, vcc")
    a(f"s_add_u32 s{sTK}, s{sTK}, 7")
    unit_addr(sU0, guard=False)
    for n in range(32):
        if f"P{n}" in a.q: a.wait(f"P{n}")
        consume(n, n % 8)
        if n < D: kv_load(n, n, sU0, f"L{n}")
    stamp(3)
    a("L_bloop:")
    for half in range(2):
        cur, nxt = (sU0, sU1) if half == 0 else (sU1, sU0)
        for r in range(8):
            n = r + D
            a(f"s_waitcnt vmcnt({D-1})")
            if n == 8:
                a(f"s_add_u32 s{sTK}, s{sTK}, 7")
                unit_addr(nxt)
            kv_load((half*8 + n) % 16, n % 8, cur if n < 8 else nxt, "loop")
            consume(half*8 + r, r)
        a(f"s_cmp_ge_u32 s{sTK}, 256")
        a("s_cbranch_scc1 L_bdone" if half == 0 else "s_cbranch_scc0 L_bloop")
    a("L_bdone:")
    a(f"v_add_f32_dpp v{vLS}, v{vLS}, v{vLS} row_ror:8 {DPP}")
    a(f"s_lshl_b32 s{sT2}, s{sH}, 2\ns_add_u32 s{sT2}, s{sT2}, s{sW}")
    a(f"v_add_f32_dpp v{vLS}, v{vLS}, v{vLS} row_ror:4 {DPP}")
    a(f"v_mov_b32 v{vU1}, v{vLS}")
    a(f"s_lshl_b32 s{sT2}, s{sT2}, 3\ns_add_u32 s{sT2}, s{sT2}, s{sP}")
    a(f"v_permlane16_swap_b32 v{vLS}, v{vU1}\nv_add_f32 v{vLS}, v{vLS}, v{vU1}\nv_mov_b32 v{vU1}, v{vLS}")
    a(f"s_lshl_b32 s{sT2}, s{sT2}, 10\ns_add_u32 s{sT2}, s{sT2}, {WS_OP}")
    a(f"v_permlane32_swap_b32 v{vLS}, v{vU1}")
    setexec(1 << 8)
    a(f"v_add_f32 v{vO+1}, v{vLS}, v{vU1}\nv_mov_b32 v{vO}, v{vMC}")
    setexec(0x00ff00ff00ff01ff)
    tag(range(vO, vO+4))
    a(f"buffer_store_dwordx4 {V(vO,4)}, v{vOP}, s[{rWS}:{rWS+3}], s{sT2} offen sc1")
    stamp(4)
    probe_end()
    a("s_endpgm")

    a("L_aux:")
    role[0] = "A"
    a.q = list(q_entry)
    A0, A1 = 0, 128
    vOU, vOR8, vOR1 = 18, 19, 9
    vOC = 76
    vAQ, vAP = 80, 81
    vAD = 82
    vM, vLL, vAL, vEX = 90, 91, 92, 94
    vWR = 96
    vTRB, vZ = 95, 100
    vQL = 104
    vCT = 136
    vSS = 200
    vKA = 20
    vPP = 52
    vE1 = 60
    vE2 = 216
    srd(rUK, pUK, 4*MB); srd(rCK, pCK, 16*MB)
    a(f"v_lshrrev_b32 v{vT0}, 2, v{vJ}\nv_and_b32 v{vT1}, 3, v{vJ}")
    a(f"v_lshlrev_b32 v{vOU}, 18, v{vT0}\nv_lshl_add_u32 v{vOU}, v{vG}, 6, v{vOU}\nv_lshl_add_u32 v{vOU}, v{vT1}, 4, v{vOU}")
    a(f"s_lshl_b32 s{sU0}, s{sW}, 20\ns_lshl_b32 s{sT2}, s{sH}, 8\ns_add_u32 s{sU0}, s{sU0}, s{sT2}\ns_mov_b32 s{sBASE}, s{sU0}")
    def uk_load(t):
        a.vm(f"buffer_load_dwordx4 {A(A0+4*t,4)}, v{vOU}, s[{rUK}:{rUK+3}], s{sU0} offen {POLW}", f"UK{t}")
        a(f"s_add_u32 s{sU0}, s{sU0}, 8192")
    qpart(uk_load)
    stamp(1)
    for t in range(8, 32): uk_load(t)
    vQA = 136
    a(f"v_lshrrev_b32 v{vT0}, 2, v{vJ}\nv_and_b32 v{vT1}, 3, v{vJ}")
    a(f"v_lshlrev_b32 v{vT2}, 9, v{vT0}\nv_lshl_add_u32 v{vT2}, v{vG}, 7, v{vT2}\nv_lshl_add_u32 v{vT2}, v{vT1}, 5, v{vT2}")
    a(f"s_lshl_b32 s{sU1}, s{sH}, 14\ns_add_u32 s{sU1}, s{sU1}, {WS_QP + 4*2048}\ns_add_u32 s{sT0}, s{sU1}, 4096")
    def qa_poll():
        for p in range(4):
            for i in range(2):
                a.vm(f"buffer_load_dwordx4 {V(vQA+8*p+4*i,4)}, v{vT2}, s[{rWS}:{rWS+3}], s{sU1 if p < 2 else sT0} offen offset:{(p&1)*2048+16*i} sc1", "QA")
    qa_poll()
    a(f"v_lshlrev_b32 v{vT0}, 2, v{vG}\nv_xor_b32 v{vT0}, v{vT0}, v{vJ}")
    for i in range(4):
        a(f"v_xor_b32 v{vT1}, {i}, v{vT0}\nv_lshlrev_b32 v{vT1}, 4, v{vT1}\nv_lshl_add_u32 v{vOC+i}, v{vG}, 10, v{vT1}")
        a(f"v_lshl_add_u32 v{vWR+i}, v{vG}, 8, v{vT1}")
        if i: a(f"v_add_u32 v{vOC+i}, {i*3072}, v{vOC+i}")
    a(f"s_lshl_b32 s{sM0}, s{sW}, 15")
    for i in range(4):
        a(f"v_add_u32 v{vWR+i}, s{sM0}, v{vWR+i}")
    a(f"s_lshl_b32 s{sCKO}, s{sH}, 19\ns_lshl_b32 s{sT2}, s{sW}, 8\ns_add_u32 s{sCKO}, s{sCKO}, s{sT2}")
    a(f"s_mov_b32 s{sSLOT}, 0")
    def ck_tile(tg):
        for hf in range(2):
            a(f"s_add_u32 s{sT3}, s{sM0}, s{sSLOT}")
            if hf: a(f"s_add_u32 s{sT3}, s{sT3}, 4096")
            a(f"s_mov_b32 m0, s{sT3}")
            for i in range(4):
                a.vm(f"buffer_load_dwordx4 v{vOC+i}, s[{rCK}:{rCK+3}], s{sCKO} offen offset:{i*1024} {POLW} lds", tg)
            a(f"s_add_u32 s{sCKO}, s{sCKO}, 16384")
    def next_slot():
        a(f"s_add_u32 s{sSLOT}, s{sSLOT}, 8192\ns_and_b32 s{sSLOT}, s{sSLOT}, 0x7fff")
    ck_tile("CK0"); next_slot()
    a.wait("QA")
    chk, ok = a.label("qacheck"), a.label("qaok")
    a(f"{chk}:")
    untag(list(range(vQA, vQA+32)), vT0)
    a(f"s_cbranch_vccz {ok}")
    saved = list(a.q)
    qa_poll()
    a("s_waitcnt vmcnt(0)")
    spin_guard(chk)
    a.q = saved
    a(f"{ok}:")
    stamp(2)
    for i in range(8):
        a(f"v_add_f32 v{vQA+i}, v{vQA+i}, v{vQA+16+i}\nv_add_f32 v{vQA+8+i}, v{vQA+8+i}, v{vQA+24+i}")
    for i in range(8):
        a(f"v_add_f32 v{vQA+i}, v{vQA+i}, v{vQA+8+i}")
    for r in range(4):
        a(f"v_cvt_pk_bf16_f32 v{vB+r}, v{vQA+2*r}, v{vQA+2*r+1}")
    ck_tile("CK1"); next_slot()
    vD, vR, vPK = 136, 168, 200
    def fold(t):
        quadsum(vR+t, vD + 4*(t % 8), vT0)
    for t in range(32):
        a(f"v_mfma_f32_16x16x32_bf16 {V(vD+4*(t%8),4)}, {A(A0+4*t,4)}, {V(vB,4)}, 0")
        if t >= 3: fold(t - 3)
    for t in range(29, 32): fold(t)
    for i in range(16):
        a(f"v_cvt_pk_bf16_f32 v{vPK+i}, v{vR+2*i}, v{vR+2*i+1}")
    for q in range(1, 4):
        setexec(0x1111111111111111 << q)
        for r in range(4):
            a(f"v_mov_b32 v{vPK+r}, v{vPK+4*q+r}")
    setexec(FULL)
    a(f"v_lshrrev_b32 v{vT0}, 2, v{vJ}\nv_and_b32 v{vT1}, 3, v{vJ}")
    a(f"v_lshlrev_b32 v{vT2}, 15, v{vT0}\nv_lshl_add_u32 v{vT2}, v{vG}, 6, v{vT2}\nv_lshl_add_u32 v{vT2}, v{vT1}, 4, v{vT2}")
    a(f"s_lshl_b32 s{sT0}, s{sH}, 10\ns_lshl_b32 s{sT2}, s{sW}, 8\ns_add_u32 s{sT0}, s{sT0}, s{sT2}\ns_add_u32 s{sT0}, s{sT0}, {WS_QL}")
    a.vm(f"buffer_store_dwordx4 {V(vPK,4)}, v{vT2}, s[{rWS}:{rWS+3}], s{sT0} offen sc1", "QLst")
    ck_tile("CK2"); next_slot()
    srd(rDBG, pDBG, 256); srd(rUV, pUV, 4*MB); srd(rWA, pAWO, 4*MB); srd(rWB, pBWO, 4*MB); srd(rOUT, pOUT, 8192)
    a(f"v_mov_b32 v{vZ}, 0\nv_mov_b32 v{vZ+1}, 1")
    a(f"v_lshlrev_b32 v{vT0}, 4, v{vJ}\nv_lshl_add_u32 v{vOR8}, v{vG}, 13, v{vT0}\nv_lshl_add_u32 v{vOR1}, v{vG}, 10, v{vT0}")

    def signal(tg, off):
        a.wait(tg)
        a("s_barrier")
        skip = a.label("nosig")
        a(f"s_cmp_lg_u32 s{sW}, 0\ns_cbranch_scc1 {skip}")
        setexec(1)
        a(f"buffer_atomic_add v{vZ+1}, v{vZ}, s[{rDBG}:{rDBG+3}], 0 offen offset:{off} sc1")
        setexec(FULL)
        a(f"{skip}:")

    def flag_load(off):
        a.vm(f"buffer_load_dword v{vT3}, v{vZ}, s[{rDBG}:{rDBG+3}], 0 offen offset:{off} sc1", "FL")

    def flag_wait(off):
        a.wait("FL")
        chk, ok = a.label("fcheck"), a.label("fok")
        a(f"{chk}:\nv_cmp_gt_u32 vcc, 32, v{vT3}\ns_cbranch_vccz {ok}")
        saved = list(a.q)
        a("s_sleep 4")
        flag_load(off)
        a("s_waitcnt vmcnt(0)")
        spin_guard(chk)
        a.q = saved
        a(f"{ok}:")

    sUV, sWO = sU0, sU1
    def uv_load(i):
        a.vm(f"buffer_load_dwordx4 {A(A1+4*i,4)}, v{vOR8}, s[{rUV}:{rUV+3}], s{sUV} offen {POLW}", f"UV{i}")
        a(f"s_add_u32 s{sUV}, s{sUV}, 32768")
    def wo_load(i, isb):
        r = rWB if isb else rWA
        a.vm(f"buffer_load_dwordx4 {A((A1 if isb else A0)+4*i,4)}, v{vOR1}, s[{r}:{r+3}], s{sWO} offen {POLW}", f"W{'B' if isb else 'A'}{i}")
        a(f"s_add_u32 s{sWO}, s{sWO}, 4096")
    def wo_base():
        a(f"s_lshl_b32 s{sWO}, s{sH}, 17\ns_lshl_b32 s{sT2}, s{sW}, 8\ns_add_u32 s{sWO}, s{sWO}, s{sT2}")

    signal("QLst", 0)
    stamp(3)
    ck_tile("CK3"); next_slot()
    a(f"s_mov_b32 s{sUV}, s{sBASE}")
    wo_base()
    flag_load(0)
    for i in range(8): uv_load(i)
    flag_wait(0)
    stamp(4)
    a(f"s_lshr_b32 s{sT0}, s{sH}, 3\ns_lshl_b32 s{sT0}, s{sT0}, 15\ns_lshl_b32 s{sT2}, s{sW}, 8\ns_add_u32 s{sT0}, s{sT0}, s{sT2}\ns_add_u32 s{sT0}, s{sT0}, {WS_QL}")
    for i in range(8):
        a.vm(f"buffer_load_dwordx4 {V(vKA+4*i,4)}, v{vOR1}, s[{rWS}:{rWS+3}], s{sT0} offen sc1", "QLg")
        if i < 7: a(f"s_add_u32 s{sT0}, s{sT0}, 4096")
    for i in range(8, 16): uv_load(i)
    a(f"v_and_b32 v{vT0}, 3, v{vL}\nv_bfe_u32 v{vT1}, v{vL}, 2, 2\nv_lshrrev_b32 v{vT2}, 5, v{vL}")
    a(f"v_lshl_add_u32 v{vT3}, v{vT0}, 2, v{vT1}\nv_xor_b32 v{vT3}, v{vT3}, v{vT2}\nv_lshlrev_b32 v{vT3}, 4, v{vT3}")
    a(f"v_and_b32 v{vAQ}, 31, v{vL}\nv_lshl_add_u32 v{vAQ}, v{vAQ}, 8, v{vT3}")
    a(f"v_lshl_add_u32 v{vAP}, v{vT2}, 2, v{vT1}\nv_lshlrev_b32 v{vAP}, 8, v{vAP}\nv_lshl_add_u32 v{vAP}, v{vT1}, 6, v{vAP}")
    a(f"v_bfe_u32 v{vT3}, v{vL}, 4, 1\nv_lshlrev_b32 v{vT3}, 1, v{vT3}\nv_bfe_u32 v{vU0}, v{vL}, 1, 1\nv_add_u32 v{vT3}, v{vT3}, v{vU0}")
    a(f"v_xor_b32 v{vT3}, v{vT3}, v{vT2}\nv_lshl_add_u32 v{vAP}, v{vT3}, 4, v{vAP}")
    a(f"v_and_b32 v{vT3}, 1, v{vL}\nv_lshl_add_u32 v{vAP}, v{vT3}, 3, v{vAP}")
    a(f"v_lshl_add_u32 v{vTRB}, v{vG}, 3, v{vT1}\nv_lshlrev_b32 v{vTRB}, 8, v{vTRB}\nv_lshl_add_u32 v{vTRB}, v{vT1}, 6, v{vTRB}")
    a(f"v_bfe_u32 v{vT0}, v{vL}, 4, 1\nv_lshl_add_u32 v{vT0}, v{vT0}, 1, v{vU0}\nv_lshl_add_u32 v{vTRB}, v{vT0}, 4, v{vTRB}")
    a(f"v_lshl_add_u32 v{vTRB}, v{vT3}, 3, v{vTRB}\nv_add_u32 v{vTRB}, s{sM0}, v{vTRB}")
    a(f"s_lshl_b32 s{sT1}, s{sW}, 13\ns_add_u32 s{sT1}, s{sT1}, {LDS_EX}\nv_lshl_add_u32 v{vEX}, v{vL}, 4, s{sT1}")
    a(f"s_sub_u32 s{sT2}, s{sT1}, s{sM0}")
    for i in range(4):
        a(f"v_add_u32 v{vAD+i}, s{sT2}, v{vWR+i}")
    a.wait("QLg")
    for i in range(8):
        a(f"ds_write_b128 v{vAD+(i&3)}, {V(vKA+4*i,4)} offset:{i*1024}")
    a(f"v_add_u32 v{vT0}, s{sT1}, v{vAQ}")
    for k in range(8):
        a(f"v_xor_b32 v{vAD+k}, {32*k}, v{vT0}")
    a("s_waitcnt lgkmcnt(0)")
    for k in range(8):
        a(f"ds_read_b128 {V(vQL+4*k,4)}, v{vAD+k}")
    for i in range(64): a(f"v_mov_b32 v{vCT+i}, 0")
    a(f"v_mov_b32 v{vM}, 0xff7f0000\nv_mov_b32 v{vLL}, 0\ns_mov_b32 s{sIT}, 0")
    a(f"v_add_u32 v{vAQ}, s{sM0}, v{vAQ}\nv_add_u32 v{vAP}, s{sM0}, v{vAP}")
    a("s_waitcnt lgkmcnt(0)")
    stamp(5)
    a("L_att:")
    a(f"v_add_u32 v{vT0}, s{sSLOT}, v{vAQ}")
    for k in range(8):
        a(f"v_xor_b32 v{vAD+k}, {32*k}, v{vT0}")
    a("s_waitcnt vmcnt(24)")
    for k in range(8):
        a(f"ds_read_b128 {V(vKA+4*k,4)}, v{vAD+k}")
    a(f"v_add_u32 v{vT0}, s{sSLOT}, v{vAP}")
    for k in range(8):
        a(f"s_waitcnt lgkmcnt({7-k})")
        c = V(vSS, 16) if k else "0"
        a(f"v_mfma_f32_32x32x16_bf16 {V(vSS,16)}, {V(vKA+4*k,4)}, {V(vQL+4*k,4)}, {c}")
        a(f"v_xor_b32 v{vAD+k}, {32*k}, v{vT0}")
    for nt in range(4):
        for sg in range(2):
            for pi in range(2):
                a(f"ds_read_b64_tr_b16 {V(vKA+8*nt+4*sg+2*pi,2)}, v{vAD+2*nt+pi} offset:{4096*sg+2048*pi}")
    a(f"v_xor_b32 v{vT1}, 0x2000, v{vEX}\nv_xor_b32 v{vT2}, 0x4000, v{vEX}\nv_xor_b32 v{vT3}, 0x6000, v{vEX}")
    for q in range(4):
        a(f"ds_write_b128 v{vEX}, {V(vSS+4*q,4)} offset:{1024*q}")
    a("s_waitcnt lgkmcnt(0)\ns_barrier")
    for q in range(4):
        a(f"ds_read_b128 {V(vE1+4*q,4)}, v{vT1} offset:{1024*q}")
        a(f"ds_read_b128 {V(vE2+4*q,4)}, v{vT2} offset:{1024*q}")
        a(f"ds_read_b128 {V(vE2+16+4*q,4)}, v{vT3} offset:{1024*q}")
    a(f"v_xor_b32 v{vEX}, 0x1000, v{vEX}")
    blocks = [a.label(f"fill{i}") for i in range(4)]
    filled = a.label("filled")
    a(f"s_cmp_ge_u32 s{sIT}, 12\ns_cbranch_scc1 {blocks[0]}")
    saved = list(a.q)
    ck_tile("loop")
    a.q = saved
    a(f"{filled}:")
    next_slot()
    for q in range(4):
        a(f"s_waitcnt lgkmcnt({9-3*q})")
        for r in range(4*q, 4*q+4):
            a(f"v_add_f32 v{vSS+r}, v{vSS+r}, v{vE1+r}\nv_add_f32 v{vE2+r}, v{vE2+r}, v{vE2+16+r}")
        for r in range(4*q, 4*q+4):
            a(f"v_add_f32 v{vSS+r}, v{vSS+r}, v{vE2+r}")
    a(f"v_max_f32 v{vT0}, v{vSS}, v{vSS+1}")
    for r in range(2, 16, 2):
        a(f"v_max3_f32 v{vT0}, v{vT0}, v{vSS+r}, v{vSS+r+1}")
    a(f"v_mov_b32 v{vT1}, v{vT0}\nv_permlane32_swap_b32 v{vT0}, v{vT1}\nv_max_f32 v{vT0}, v{vT0}, v{vT1}")
    a(f"v_mul_f32 v{vT0}, s{sC}, v{vT0}\nv_max_f32 v{vT0}, v{vT0}, v{vM}")
    a(f"v_sub_f32 v{vAL}, v{vM}, v{vT0}\nv_exp_f32 v{vAL}, v{vAL}\nv_mov_b32 v{vM}, v{vT0}")
    for r in range(16):
        a(f"v_fma_f32 v{vSS+r}, v{vSS+r}, s{sC}, -v{vM}")
    a(f"v_mul_f32 v{vLL}, v{vLL}, v{vAL}")
    for r in range(16):
        a(f"v_exp_f32 v{vSS+r}, v{vSS+r}")
        for i in range(2):
            c = vCT + 4*r + 2*i
            a(f"v_pk_mul_f32 {V(c,2)}, {V(c,2)}, {V(vAL,2)} op_sel_hi:[1,0]")
    for r in range(8):
        a(f"v_cvt_pk_bf16_f32 v{vPP+r}, v{vSS+2*r}, v{vSS+2*r+1}")
    k = 0
    for sg in range(2):
        for nt in range(4):
            a(f"v_mfma_f32_32x32x16_bf16 {V(vCT+16*nt,16)}, {V(vKA+8*nt+4*sg,4)}, {V(vPP+4*sg,4)}, {V(vCT+16*nt,16)}")
            a(f"v_add_f32 v{vLL}, v{vLL}, v{vSS+k}\nv_add_f32 v{vLL}, v{vLL}, v{vSS+k+1}")
            k += 2
    a(f"s_add_u32 s{sIT}, s{sIT}, 1\ns_cmp_lt_u32 s{sIT}, 16\ns_cbranch_scc1 L_att")
    a("s_branch L_attdone")
    a.q = []
    for i in range(4):
        a(f"{blocks[i]}:")
        if i < 3: a(f"s_cmp_lg_u32 s{sIT}, {12+i}\ns_cbranch_scc1 {blocks[i+1]}")
        for n in range(8):
            if i < 2: uv_load(16 + 8*i + n)
            else: wo_load(8*(i-2) + n, False)
        a(f"s_branch {filled}")
    a("L_attdone:")
    stamp(6)
    a(f"v_mov_b32 v{vT1}, v{vLL}\nv_permlane32_swap_b32 v{vLL}, v{vT1}\nv_add_f32 v{vLL}, v{vLL}, v{vT1}")
    a(f"v_and_b32 v{vT0}, 31, v{vL}\nv_mul_u32_u24 v{vT1}, 272, v{vT0}\nv_lshrrev_b32 v{vT2}, 5, v{vL}\nv_lshl_add_u32 v{vT1}, v{vT2}, 3, v{vT1}\nv_add_u32 v{vT1}, s{sM0}, v{vT1}")
    for i in range(32):
        a(f"v_cvt_pk_bf16_f32 v{vKA+i}, v{vCT+2*i}, v{vCT+2*i+1}")
    for nt in range(4):
        for q in range(4):
            a(f"ds_write_b64 v{vT1}, {V(vKA+8*nt+2*q,2)} offset:{64*nt+16*q}")
    a(f"v_mul_u32_u24 v{vT2}, 272, v{vG}\nv_lshl_add_u32 v{vT2}, v{vJ}, 4, v{vT2}\nv_add_u32 v{vT2}, s{sM0}, v{vT2}")
    a(f"v_lshlrev_b32 v{vT3}, 4, v{vJ}\nv_lshl_add_u32 v{vT3}, v{vG}, 15, v{vT3}")
    a(f"s_lshl_b32 s{sT0}, s{sH}, 10\ns_lshl_b32 s{sT2}, s{sW}, 8\ns_add_u32 s{sT0}, s{sT0}, s{sT2}\ns_add_u32 s{sT0}, s{sT0}, {WS_CP}")
    a("s_waitcnt lgkmcnt(0)")
    for i in range(8):
        a(f"ds_read_b128 {V(vCT+4*i,4)}, v{vT2} offset:{1088*i}")
    a(f"v_lshlrev_b32 v{vT0}, 3, v{vT0}\ns_lshl_b32 s{sT1}, s{sH}, 8\ns_add_u32 s{sT1}, s{sT1}, {WS_CS}")
    a(f"s_lshl_b32 s{sT2}, s{sW}, 3\ns_lshl_b32 exec_lo, 0xff, s{sT2}\ns_mov_b32 exec_hi, 0")
    a.vm(f"buffer_store_dwordx2 {V(vM,2)}, v{vT0}, s[{rWS}:{rWS+3}], s{sT1} offen sc1", "CPst")
    setexec(FULL)
    for i in range(8):
        a(f"s_waitcnt lgkmcnt({7-i})")
        a.vm(f"buffer_store_dwordx4 {V(vCT+4*i,4)}, v{vT3}, s[{rWS}:{rWS+3}], s{sT0} offen sc1", "CPst")
        if i < 7: a(f"s_add_u32 s{sT0}, s{sT0}, {4*32*KB}")
    for i in range(16, 24): wo_load(i, False)
    signal("CPst", 128)
    stamp(7)
    for i in range(24, 32): wo_load(i, False)

    vWT = 128
    def slab_in(src):
        for i in range(32):
            a(f"ds_write_b128 v{vWR+(i&3)}, {A(src+4*i,4)} offset:{1024*i}")
        a("s_waitcnt lgkmcnt(0)")
    def slab_out():
        for nt in range(8):
            for pi in range(2):
                a(f"v_xor_b32 v{vT0+pi}, {16*(2*nt+pi)}, v{vTRB}")
                for k in range(4):
                    a(f"ds_read_b64_tr_b16 {V(vWT+16*nt+4*k+2*pi,2)}, v{vT0+pi} offset:{8192*k+1024*pi}")
        a("s_waitcnt lgkmcnt(0)")

    slab_in(A1)
    wo_base()
    flag_load(128)
    for i in range(8): wo_load(i, True)
    slab_out()
    flag_wait(128)
    stamp(8)
    vCB, vSTAT, vDD, vRES = 20, 52, 60, 104
    a(f"v_and_b32 v{vT0}, 3, v{vJ}\nv_lshrrev_b32 v{vT1}, 2, v{vJ}\nv_lshl_add_u32 v{vT2}, v{vT0}, 3, v{vT1}")
    a(f"v_lshlrev_b32 v{vT3}, 8, v{vT2}\nv_lshlrev_b32 v{vT2}, 10, v{vT2}\nv_lshl_add_u32 v{vT2}, v{vG}, 4, v{vT2}")
    a(f"s_lshl_b32 s{sT0}, s{sH}, 15\ns_lshl_b32 s{sT2}, s{sW}, 8\ns_add_u32 s{sT0}, s{sT0}, s{sT2}\ns_add_u32 s{sT0}, s{sT0}, {WS_CP}")
    a(f"s_lshl_b32 s{sT1}, s{sH}, 3\ns_add_u32 s{sT1}, s{sT1}, {WS_CS}")
    for hf in range(2):
        a.vm(f"buffer_load_dwordx2 {V(vSTAT+2*hf,2)}, v{vT3}, s[{rWS}:{rWS+3}], s{sT1} offen offset:{1024*hf} sc1", "CSg")
    for hf in range(2):
        for k in range(4):
            a.vm(f"buffer_load_dwordx4 {V(vCB+16*hf+4*k,4)}, v{vT2}, s[{rWS}:{rWS+3}], s{sT0} offen offset:{64*k} sc1", "CPg")
        a(f"s_add_u32 s{sT0}, s{sT0}, 4096")
    for i in range(8, 32): wo_load(i, True)
    a.wait("CSg")
    a(f"v_max_f32 v{vT0}, v{vSTAT}, v{vSTAT+2}")
    a(f"v_max_f32_dpp v{vT0}, v{vT0}, v{vT0} row_ror:8 {DPP}\nv_max_f32_dpp v{vT0}, v{vT0}, v{vT0} row_ror:4 {DPP}")
    a(f"v_sub_f32 v{vSTAT}, v{vSTAT}, v{vT0}\nv_sub_f32 v{vSTAT+2}, v{vSTAT+2}, v{vT0}")
    a(f"v_exp_f32 v{vSTAT}, v{vSTAT}\nv_exp_f32 v{vSTAT+2}, v{vSTAT+2}")
    a(f"v_mul_f32 v{vT1}, v{vSTAT}, v{vSTAT+1}\nv_fmac_f32 v{vT1}, v{vSTAT+2}, v{vSTAT+3}")
    a(f"v_add_f32_dpp v{vT1}, v{vT1}, v{vT1} row_ror:8 {DPP}\nv_add_f32_dpp v{vT1}, v{vT1}, v{vT1} row_ror:4 {DPP}")
    a(f"v_rcp_f32 v{vT1}, v{vT1}")
    a(f"v_mul_f32 v{vSTAT}, v{vSTAT}, v{vT1}\nv_mul_f32 v{vSTAT+2}, v{vSTAT+2}, v{vT1}")
    a(f"s_lshl_b32 s{sT2}, s{sW}, 11\ns_add_u32 s{sT2}, s{sT2}, {LDS_EX}")
    a(f"v_and_b32 v{vT0}, 3, v{vJ}\nv_lshlrev_b32 v{vT0}, 9, v{vT0}\nv_lshl_add_u32 v{vT0}, v{vG}, 4, v{vT0}\nv_add_u32 v{vT0}, s{sT2}, v{vT0}")
    a.wait("CPg")
    def ctx_fold(nt):
        d = vDD + 8*(nt % 2)
        res = vRES + 4*(nt % 2)
        for r in range(4):
            a(f"v_mul_f32 v{res+r}, v{d+r}, v{vSTAT}")
        for r in range(4):
            a(f"v_fmac_f32 v{res+r}, v{d+4+r}, v{vSTAT+2}")
        for ror in (8, 4):
            for r in range(4):
                a(f"v_add_f32_dpp v{res+r}, v{res+r}, v{res+r} row_ror:{ror} {DPP}")
        a(f"ds_write_b128 v{vT0}, {V(res,4)} offset:{64*nt}")
    for nt in range(8):
        d = vDD + 8*(nt % 2)
        for k in range(4):
            for hf in range(2):
                c = V(d+4*hf, 4) if k else "0"
                a(f"v_mfma_f32_16x16x32_bf16 {V(d+4*hf,4)}, {V(vWT+16*nt+4*k,4)}, {V(vCB+16*hf+4*k,4)}, {c}")
        if nt: ctx_fold(nt - 1)
    ctx_fold(7)
    a(f"s_lshl_b32 s{sT2}, s{sW}, 9\ns_add_u32 s{sT2}, s{sT2}, {LDS_EX}\nv_and_b32 v{vT1}, 31, v{vL}\nv_lshl_add_u32 v{vT2}, v{vT1}, 4, s{sT2}")
    a(f"s_mul_i32 s{sT2}, s{sW}, 320\ns_add_u32 s{sT2}, s{sT2}, {LDS_O}\nv_lshl_add_u32 v{vT3}, v{vT1}, 3, s{sT2}")
    a("s_waitcnt lgkmcnt(0)\ns_barrier")
    for p in range(4):
        a(f"ds_read_b128 {V(vCB+4*p,4)}, v{vT2} offset:{p*2048}")
    a("s_waitcnt lgkmcnt(0)")
    for r in range(4):
        a(f"v_add_f32 v{vCB+r}, v{vCB+r}, v{vCB+4+r}\nv_add_f32 v{vCB+8+r}, v{vCB+8+r}, v{vCB+12+r}")
    for r in range(4):
        a(f"v_add_f32 v{vCB+r}, v{vCB+r}, v{vCB+8+r}")
    a(f"v_cvt_pk_bf16_f32 v{vCB}, v{vCB}, v{vCB+1}\nv_cvt_pk_bf16_f32 v{vCB+1}, v{vCB+2}, v{vCB+3}")
    a(f"ds_write_b64 v{vT3}, {V(vCB,2)}")
    slab_in(A0)
    slab_out()
    stamp(9)

    vBU, vY = 20, 84
    vAO, vAY, vAG, vAF, vAM, vAW = 100, 101, 102, 103, 92, 93
    vG2 = 104
    for i in range(64): a(f"v_mov_b32 v{vBU+i}, 0")
    a(f"v_and_b32 v{vT0}, 3, v{vJ}\nv_mul_u32_u24 v{vAO}, 320, v{vT0}\nv_lshl_add_u32 v{vAO}, v{vG}, 4, v{vAO}\nv_add_u32 v{vAO}, {LDS_O}, v{vAO}")
    a(f"s_lshl_b32 s{sT0}, s{sW}, 16\ns_lshl_b32 s{sT2}, s{sH}, 8\ns_add_u32 s{sT0}, s{sT0}, s{sT2}\nv_add_u32 v{vAY}, s{sT0}, v{vOR8}")
    a(f"s_lshl_b32 s{sT0}, s{sH}, 13\ns_lshl_b32 s{sT2}, s{sW}, 6\ns_add_u32 s{sT0}, s{sT0}, s{sT2}")
    a(f"v_lshrrev_b32 v{vT1}, 2, v{vL}\nv_lshlrev_b32 v{vT1}, 8, v{vT1}\nv_lshl_add_u32 v{vT1}, v{vT0}, 4, v{vT1}\nv_add_u32 v{vAG}, s{sT0}, v{vT1}")
    a(f"s_lshr_b32 s{sT0}, s{sH}, 2\ns_lshl_b32 s{sT0}, s{sT0}, 7\ns_lshl_b32 s{sT2}, s{sW}, 5\ns_add_u32 s{sT0}, s{sT0}, s{sT2}")
    a(f"s_and_b32 s{sT2}, s{sH}, 3\ns_lshl_b32 s{sT2}, s{sT2}, 3\ns_add_u32 s{sT0}, s{sT0}, s{sT2}")
    a(f"v_lshlrev_b32 v{vT1}, 11, v{vT0}\nv_lshl_add_u32 v{vT1}, v{vG}, 1, v{vT1}\nv_add_u32 v{vAF}, s{sT0}, v{vT1}")
    a(f"v_lshlrev_b32 v{vT0}, 7, v{vG}\nv_lshl_add_u32 v{vT0}, v{vJ}, 4, v{vT0}\nv_mov_b32 v{vT1}, 512")
    a(f"v_cmp_gt_u32 vcc, 8, v{vJ}\nv_cndmask_b32 v{vAM}, v{vT1}, v{vT0}, vcc")
    a(f"s_mul_i32 s{sT2}, s{sW}, 320\ns_add_u32 s{sT2}, s{sT2}, {LDS_O}\nv_lshlrev_b32 v{vT0}, 6, v{vG}\nv_lshl_add_u32 v{vT0}, v{vJ}, 1, v{vT0}\nv_add_u32 v{vAW}, s{sT2}, v{vT0}")
    a(f"s_mov_b32 s{sMODE}, 0\ns_mov_b32 s{sYO}, {WS_YA}\ns_mov_b32 s{sOUTO}, 0")
    a("L_final:")
    a("s_waitcnt lgkmcnt(0)\ns_barrier")
    for u in range(4):
        setexec(0x000f000f000f000f << (4*u))
        for k in range(4):
            a(f"ds_read_b128 {V(vBU+16*u+4*k,4)}, v{vAO} offset:{64*k}")
    setexec(FULL)
    a(f"s_add_u32 s{sT0}, s{sYO}, 32768")
    for u in range(4):
        a(f"s_waitcnt lgkmcnt({12-4*u})")
        for k in range(4):
            for v in range(2):
                c = V(vY+4*v, 4) if (u or k) else "0"
                a(f"v_mfma_f32_16x16x32_bf16 {V(vY+4*v,4)}, {V(vWT+16*(4*v+u)+4*k,4)}, {V(vBU+16*u+4*k,4)}, {c}")
    for v in range(2):
        tag(range(vY+4*v, vY+4*v+4))
        a(f"buffer_store_dwordx4 {V(vY+4*v,4)}, v{vAY}, s[{rWS}:{rWS+3}], s{sT0 if v else sYO} offen sc1")
    a(f"s_cmp_eq_u32 s{sMODE}, 0\ns_cbranch_scc1 L_prepb")
    a("L_hop2:")
    a(f"s_add_u32 s{sT0}, s{sYO}, 4096")
    for i in range(2):
        a(f"buffer_load_dwordx4 {V(vG2+4*i,4)}, v{vAG}, s[{rWS}:{rWS+3}], s{sT0 if i else sYO} offen sc1")
    a("s_waitcnt vmcnt(0)")
    untag(list(range(vG2, vG2+8)), vT0)
    a("s_cbranch_vccz L_hop2ok")
    spin_guard("L_hop2")
    a("L_hop2ok:")
    for r in range(4):
        a(f"v_add_f32 v{vG2+r}, v{vG2+r}, v{vG2+4+r}")
    a(f"v_permlane16_swap_b32 v{vG2}, v{vG2+1}\nv_permlane16_swap_b32 v{vG2+2}, v{vG2+3}")
    a(f"v_add_f32 v{vG2}, v{vG2}, v{vG2+1}\nv_add_f32 v{vG2+2}, v{vG2+2}, v{vG2+3}")
    a(f"v_permlane32_swap_b32 v{vG2}, v{vG2+2}\nv_add_f32 v{vG2}, v{vG2}, v{vG2+2}")
    a(f"v_add_f32_dpp v{vG2}, v{vG2}, v{vG2} row_ror:8 {DPP}\nv_add_f32_dpp v{vG2}, v{vG2}, v{vG2} row_ror:4 {DPP}")
    a(f"v_cvt_pk_bf16_f32 v{vG2}, v{vG2}, v{vG2}")
    setexec(0x000f000f000f000f)
    a(f"buffer_store_short v{vG2}, v{vAF}, s[{rOUT}:{rOUT+3}], s{sOUTO} offen")
    setexec(FULL)
    a(f"s_cmp_lg_u32 s{sMODE}, 0\ns_cbranch_scc1 L_fin")
    stamp(11)
    a(f"s_mov_b32 s{sMODE}, 1\ns_mov_b32 s{sYO}, {WS_YB}\ns_mov_b32 s{sOUTO}, 1024")
    a(f"s_lshl_b32 s{sU0}, s{sH}, 2\ns_add_u32 s{sU0}, s{sU0}, s{sW}\ns_lshl_b32 s{sU0}, s{sU0}, 13\ns_add_u32 s{sU0}, s{sU0}, {WS_OP}\ns_add_u32 s{sU1}, s{sU0}, 4096")
    a(f"v_min_u32 v{vT1}, 6, v{vL}\nv_lshlrev_b32 v{vT1}, 10, v{vT1}")
    a("L_light:")
    a(f"buffer_load_dword v{vT2}, v{vT1}, s[{rWS}:{rWS+3}], s{sU0} offen offset:512 sc1\ns_waitcnt vmcnt(0)")
    a(f"v_xor_b32 v{vT2}, s{sTAG}, v{vT2}\nv_and_b32 v{vT2}, 0xff, v{vT2}\nv_cmp_ne_u32 vcc, 0, v{vT2}")
    a(f"s_and_b32 s{sT0}, vcc_lo, 0x7f\ns_bcnt1_i32_b32 s{sT0}, s{sT0}\ns_cmp_le_u32 s{sT0}, 2\ns_cbranch_scc1 L_hop1")
    a("s_sleep 2")
    spin_guard("L_light")
    vMS = [104, 108, 112, 116, 120, 124, 84]
    vWS7 = [4, 5, 6, 7, 88, 89, 90]
    a("L_hop1:")
    for s in range(7):
        a(f"buffer_load_dwordx4 {V(vMS[s],4)}, v{vAM}, s[{rWS}:{rWS+3}], s{sU0 if s < 4 else sU1} offen offset:{1024*(s&3)} sc1")
    a("s_waitcnt vmcnt(0)")
    untag([m + r for m in vMS for r in range(4)], vT0)
    a("s_cbranch_vccz L_hop1ok")
    spin_guard("L_hop1")
    a("L_hop1ok:")
    stamp(12)
    vMX, vOO = 91, 10
    a(f"v_max3_f32 v{vMX}, v{vMS[0]}, v{vMS[1]}, v{vMS[2]}")
    a(f"v_max3_f32 v{vMX}, v{vMX}, v{vMS[3]}, v{vMS[4]}\nv_max3_f32 v{vMX}, v{vMX}, v{vMS[5]}, v{vMS[6]}")
    for s in range(7):
        a(f"v_sub_f32 v{vWS7[s]}, v{vMS[s]}, v{vMX}")
    for s in range(7):
        a(f"v_exp_f32 v{vWS7[s]}, v{vWS7[s]}")
    for s in range(7):
        for r in (1, 0, 2, 3):
            op = "v_fmac_f32_dpp" if s else "v_mul_f32_dpp"
            a(f"{op} v{vOO+r}, v{vWS7[s]}, v{vMS[s]+r} row_newbcast:8 {DPP}")
    a(f"v_rcp_f32 v{vMX}, v{vOO+1}")
    for r in range(4):
        a(f"v_mul_f32_dpp v{vOO+r}, v{vMX}, v{vOO+r} row_newbcast:8 {DPP}")
    a(f"v_cvt_pk_bf16_f32 v{vOO}, v{vOO}, v{vOO+1}\nv_cvt_pk_bf16_f32 v{vOO+2}, v{vOO+2}, v{vOO+3}")
    setexec(0x00ff00ff00ff00ff)
    a(f"ds_write_b16 v{vAW}, v{vOO}\nds_write_b16_d16_hi v{vAW}, v{vOO} offset:16")
    a(f"ds_write_b16 v{vAW}, v{vOO+2} offset:32\nds_write_b16_d16_hi v{vAW}, v{vOO+2} offset:48")
    setexec(FULL)
    a("s_branch L_final")
    a("L_prepb:")
    stamp(10)
    a("s_waitcnt vmcnt(0)")
    slab_in(A1)
    slab_out()
    a("s_barrier")
    a("s_branch L_hop2")
    a("L_fin:")
    stamp(13)
    probe_end()
    a(f"s_or_b32 s{sT0}, s{sH}, s{sW}\ns_cmp_lg_u32 s{sT0}, 0\ns_cbranch_scc1 L_end")
    a(f"v_mov_b32 v{vT0}, 0")
    setexec(1)
    a(f"buffer_store_dword v{vTAG}, v{vT0}, s[{rWS}:{rWS+3}], 0 offen")
    a("L_end:\ns_endpgm")
    extra = ""
    if TINY:
        tg, tb = TINY_GEOM
        a(".p2align 8\n.globl tiny_kernel\n.type tiny_kernel,@function\ntiny_kernel:")
        a(f"s_memrealtime s[4:5]\ns_waitcnt lgkmcnt(0)\ns_cmp_ge_u32 s2, 1\ns_cbranch_scc1 L_tend\ns_load_dwordx2 s[6:7], s[0:1], 104\ns_waitcnt lgkmcnt(0)")
        if TINY == "first":
            a("v_mov_b32 v1, 4096\nv_mov_b32 v2, s4\nglobal_store_dword v1, v2, s[6:7]")
        else:
            a("s_load_dword s8, s[6:7], 4096\ns_waitcnt lgkmcnt(0)\ns_add_u32 s8, s8, 10000")
            a("L_tspin:\ns_memrealtime s[4:5]\ns_waitcnt lgkmcnt(0)\ns_sub_u32 s4, s4, s8\ns_cmp_lt_i32 s4, 0\ns_cbranch_scc0 L_tend\ns_cmp_gt_i32 s4, -20000\ns_cbranch_scc1 L_tspin")
        a("L_tend:\ns_endpgm")
        m = f"; @launch kernel={NAME}_kernel grid=(256,1,1) block=(256,1,1) lds={160*KB}"
        t = f"; @launch kernel=tiny_kernel grid=({tg},1,1) block=({tb},1,1) lds=0"
        hdr[:] = [t, m] if TINY == "first" else [m, t]
        extra = """.p2align 6
.amdhsa_kernel tiny_kernel
  .amdhsa_next_free_vgpr 8
  .amdhsa_next_free_sgpr 16
  .amdhsa_accum_offset 8
  .amdhsa_group_segment_fixed_size 0
  .amdhsa_kernarg_size 112
  .amdhsa_user_sgpr_count 2
  .amdhsa_user_sgpr_kernarg_segment_ptr 1
  .amdhsa_system_sgpr_workgroup_id_x 1
.end_amdhsa_kernel
"""
    body = a.finish()
    ref = open(os.path.join(os.path.dirname(os.path.abspath(__file__)), "..", NAME + ".s.ref")).read().split("\n")
    layout = [l for l in ref if l.startswith(";") and "@launch" not in l and "Override" not in l and "grid=ceil" not in l]
    tail = f""".section .rodata,"a"
.p2align 6
.amdhsa_kernel {NAME}_kernel
  .amdhsa_next_free_vgpr 512
  .amdhsa_next_free_sgpr 102
  .amdhsa_accum_offset 256
  .amdhsa_group_segment_fixed_size 0
  .amdhsa_kernarg_size 112
  .amdhsa_user_sgpr_count 2
  .amdhsa_user_sgpr_kernarg_segment_ptr 1
  .amdhsa_system_sgpr_workgroup_id_x 1
.end_amdhsa_kernel
"""
    return "\n".join(layout + hdr + ["; generated by tools/gen.py"]) + "\n" + body + tail + extra

if __name__ == "__main__":
    kw = eval("dict(" + (sys.argv[2] if len(sys.argv) > 2 else "") + ")")
    out = sys.argv[1] if len(sys.argv) > 1 else os.path.join(os.path.dirname(os.path.abspath(__file__)), "..", NAME + ".s")
    open(out, "w").write(generate(**kw))
    print("wrote", out)
```

```python
import sys, os
sys.path.insert(0, os.path.dirname(os.path.abspath(__file__)))
from asmlib import Asm

NAME = "concat_heads__compressed_kv_cla__mha_block_cached__decode"
KB, MB = 1024, 1 << 20
WS_QP, WS_QL, WS_CS, WS_YA, WS_YB, WS_CP, WS_OP, WS_ST, WS_SIZE = 1*MB, 2*MB, 2*MB + 512*KB, 3*MB, 3*MB + 512*KB, 4*MB, 5*MB, 6*MB, 8*MB
SCALE = 128 ** -0.5 * 1.4426950408889634
LDS_EX = 128 * KB
LDS_O = LDS_EX + 16 * KB
SPIN = 1 << 20
TINY_GEOM = (1, 64)

import struct
def f32(x): return struct.unpack("<I", struct.pack("<f", x))[0]
def V(a, n=1): return f"v{a}" if n == 1 else f"v[{a}:{a+n-1}]"
def A(a, n=1): return f"a{a}" if n == 1 else f"a[{a}:{a+n-1}]"
def S(a, n=1): return f"s{a}" if n == 1 else f"s[{a}:{a+n-1}]"
DPP = "row_mask:0xf bank_mask:0xf"

pAX, pCK, pAWQ, pUK, pUV, pAWO, pBX, pK, pV, pBWQ, pBWO, pOUT, pDBG, pWS = range(4, 32, 2)
sH, sP, sW, sTAG, sT0, sT1, sT2, sT3 = 32, 33, 34, 35, 36, 37, 38, 39
rW, rX, rWS, rK, rV, rUV, rWA, rWB, rOUT, rDBG = 40, 44, 48, 52, 56, 60, 64, 68, 72, 76
rCK, rUK = rK, rV
sSELLO, sSELHI, sHI24, sC, sSPIN = 80, 81, 82, 83, 84
sU0, sU1, sTK, sROT, sBASE = 85, 86, 87, 88, 89
sM0, sMODE, sIT, sSLOT, sCKO, sYO, sOUTO = 90, 92, 93, 94, 95, 96, 97
sTS = 98


def generate(D=5, GS=0, ROTH=8, ROTW=1, POLLAT=22, STAMP=False, DBG=None, POLK='nt', POLV='nt', POLW='nt', PROBE=None, PROBEX=None, TINY=None, EARLY=False, AMP=0):
    a = Asm()
    role = ["B"]

    def srd(r, p, size):
        a(f"s_mov_b32 s{r}, s{p}\ns_and_b32 s{r+1}, s{p+1}, 0xffff\ns_mov_b32 s{r+2}, {size}\ns_mov_b32 s{r+3}, 0x20000")

    def stamp(i):
        if PROBE is not None:
            if PROBE == (role[0], i):
                a(f"s_memrealtime s[100:101]\ns_waitcnt lgkmcnt(0)")
            return
        if DBG is not None:
            key = (role[0], i)
            if key in DBG:
                a(f"s_memrealtime s[{sTS}:{sTS+1}]\ns_waitcnt lgkmcnt(0)")
                a(f"v_mov_b32 v{vST1}, s{sTS}\ns_mov_b64 s[100:101], exec\ns_mov_b64 exec, 1")
                a(f"global_atomic_umax v{vST0}, v{vST1}, s[{pDBG}:{pDBG+1}] offset:{4*(3+DBG.index(key))} sc1")
                a("s_mov_b64 exec, s[100:101]")
            return
        if not STAMP: return
        a(f"s_memrealtime s[{sTS}:{sTS+1}]\ns_waitcnt lgkmcnt(0)")
        a(f"v_mov_b32 v{vST1}, s{sTS}\ns_mov_b64 s[100:101], exec\ns_mov_b64 exec, 1")
        a(f"buffer_store_dword v{vST1}, v{vST0}, s[{rWS}:{rWS+3}], 0 offen offset:{4*i}")
        a("s_mov_b64 exec, s[100:101]")

    def probe_end():
        if PROBE is None or PROBE[0] != role[0]: return
        lbl = a.label("probe")
        if TINY == "first":
            a(f"s_load_dword s100, s[{pWS}:{pWS+1}], 4096\ns_waitcnt lgkmcnt(0)")
        if TINY == "last":
            a(f"v_mov_b32 v{vT0}, 4096\nv_mov_b32 v{vT1}, s100\nbuffer_store_dword v{vT1}, v{vT0}, s[{rWS}:{rWS+3}], 0 offen")
            return
        if PROBEX is not None:
            a(f"s_getreg_b32 s101, hwreg(HW_REG_XCC_ID)\ns_and_b32 s101, s101, 15\ns_cmp_lg_u32 s101, {PROBEX}\ns_cbranch_scc1 {lbl}_x")
        if AMP:
            a(f"s_sub_u32 s100, s100, s{sTS}\ns_lshl_b32 s100, s100, {AMP}\ns_add_u32 s100, s100, s{sTS}")
        a(f"s_add_u32 s100, s100, 10000\n{lbl}:\ns_memrealtime s[{sTS}:{sTS+1}]\ns_waitcnt lgkmcnt(0)")
        a(f"s_sub_u32 s{sTS}, s{sTS}, s100\ns_cmp_lt_i32 s{sTS}, 0\ns_cbranch_scc0 {lbl}_x\ns_cmp_gt_i32 s{sTS}, -100000\ns_cbranch_scc1 {lbl}\n{lbl}_x:")

    def spin_guard(lbl_retry):
        a(f"s_sub_u32 s{sSPIN}, s{sSPIN}, 1\ns_cmp_lg_u32 s{sSPIN}, 0\ns_cbranch_scc1 {lbl_retry}\ns_branch L_end")

    def untag(regs, acc):
        for r in regs:
            a(f"v_xor_b32 v{r}, s{sTAG}, v{r}")
        a(f"v_or_b32 v{acc}, v{regs[0]}, v{regs[1]}")
        for i in range(2, len(regs), 2):
            a(f"v_or3_b32 v{acc}, v{acc}, v{regs[i]}, v{regs[i+1]}")
        a(f"v_and_b32 v{acc}, 0xff, v{acc}\nv_cmp_ne_u32 vcc, 0, v{acc}")

    def tag(regs):
        for r in regs:
            a(f"v_and_or_b32 v{r}, v{r}, s{sHI24}, v{vTAG}")

    def quadsum(dst, src, tmp):
        a(f"v_mov_b32_dpp v{dst}, v{src} quad_perm:[0,0,0,0] {DPP}")
        a(f"v_mov_b32_dpp v{tmp}, v{src+2} quad_perm:[2,2,2,2] {DPP}")
        a(f"v_add_f32_dpp v{dst}, v{src+1}, v{dst} quad_perm:[1,1,1,1] {DPP}")
        a(f"v_add_f32_dpp v{tmp}, v{src+3}, v{tmp} quad_perm:[3,3,3,3] {DPP}")
        a(f"v_add_f32 v{dst}, v{dst}, v{tmp}")

    def setexec(mask):
        lo, hi = mask & 0xffffffff, mask >> 32
        if mask == (1 << 64) - 1: a("s_mov_b64 exec, -1")
        elif mask <= 64: a(f"s_mov_b64 exec, {mask}")
        else: a(f"s_mov_b32 exec_lo, {lo:#x}\ns_mov_b32 exec_hi, {hi:#x}")
    FULL = (1 << 64) - 1

    vL, vG, vJ, vT0, vT1, vT2, vT3, vTAG = 1, 2, 3, 4, 5, 6, 7, 8
    vMASK = 10
    vOW, vOX = 14, 15
    vST0, vST1 = 16, 17
    vX = 20
    vB = 28
    vACC = 36
    vW = 44

    hdr = [f"; @launch grid=(256,1,1) block=(256,1,1) lds={160*KB}"]
    a(f'.amdgcn_target "amdgcn-amd-amdhsa--gfx950"\n.text\n.globl {NAME}_kernel\n.p2align 8\n.type {NAME}_kernel,@function')
    a(f"{NAME}_kernel:")
    if EARLY: a(f"s_memrealtime s[{sTS}:{sTS+1}]\ns_waitcnt lgkmcnt(0)")
    a("s_cmp_ge_u32 s2, 256\ns_cbranch_scc1 L_end")
    a("s_load_dwordx16 s[4:19], s[0:1], 0\ns_load_dwordx8 s[20:27], s[0:1], 64\ns_load_dwordx4 s[28:31], s[0:1], 96")
    if (STAMP or DBG is not None or PROBE is not None) and not EARLY: a(f"s_memrealtime s[{sTS}:{sTS+1}]")
    a(f"v_lshrrev_b32 v{vT0}, 6, v0\nv_and_b32 v{vL}, 63, v0\nv_readfirstlane_b32 s{sW}, v{vT0}")
    a(f"s_lshr_b32 s{sH}, s2, 3\ns_sub_u32 s{sP}, s2, s{sH}\ns_sub_u32 s{sP}, s{sP}, 1\ns_and_b32 s{sP}, s{sP}, 7")
    a(f"v_lshrrev_b32 v{vG}, 4, v{vL}\nv_and_b32 v{vJ}, 15, v{vL}")
    a(f"v_lshlrev_b32 v{vT0}, 16, v{vG}\nv_lshl_add_u32 v{vOW}, v{vJ}, 4, v{vT0}")
    a(f"v_lshrrev_b32 v{vT1}, 3, v{vJ}\nv_lshlrev_b32 v{vT1}, 10, v{vT1}\nv_lshl_add_u32 v{vOX}, v{vG}, 4, v{vT1}")
    a(f"s_and_b32 s{sT0}, s{sP}, 3\ns_lshl_b32 s{sT0}, s{sT0}, 2\ns_add_u32 s{sT0}, s{sT0}, s{sW}")
    a(f"s_lshl_b32 s{sT1}, s{sT0}, 6\ns_lshl_b32 s{sT0}, s{sT0}, 18\ns_lshl_b32 s{sT2}, s{sH}, 8\ns_add_u32 s{sT0}, s{sT0}, s{sT2}")
    a(f"s_mov_b32 s{rW+2}, {4*MB}\ns_mov_b32 s{rW+3}, 0x20000\ns_mov_b32 s{rX+2}, 4096\ns_mov_b32 s{rX+3}, 0x20000")
    a(f"s_cmp_ge_u32 s{sP}, 4\ns_waitcnt lgkmcnt(0)")
    a(f"s_cselect_b64 s[{rW}:{rW+1}], s[{pAWQ}:{pAWQ+1}], s[{pBWQ}:{pBWQ+1}]")
    a(f"s_cselect_b64 s[{rX}:{rX+1}], s[{pAX}:{pAX+1}], s[{pBX}:{pBX+1}]")
    if PROBE is not None and PROBE[1] == 20: a(f"s_memrealtime s[100:101]\ns_waitcnt lgkmcnt(0)")
    a(f"s_load_dword s{sTAG}, s[{pWS}:{pWS+1}], 0")
    for u in range(2):
        a.vm(f"buffer_load_dwordx4 {V(vX+4*u,4)}, v{vOX}, s[{rX}:{rX+3}], s{sT1} offen offset:{2048*u}", "X")
    for t in range(8):
        a.vm(f"buffer_load_dwordx4 {V(vW+4*t,4)}, v{vOW}, s[{rW}:{rW+3}], s{sT0} offen {POLW}", f"W{t}")
        if t < 7: a(f"s_add_u32 s{sT0}, s{sT0}, 8192")
    if PROBE is not None and PROBE[1] == 0: a(f"s_mov_b32 s100, s{sTS}")
    srd(rWS, pWS, WS_SIZE)
    a(f"s_mov_b32 s{sSELLO}, 0x01000100\ns_mov_b32 s{sSELHI}, 0x03020302\ns_mov_b32 s{sHI24}, 0xffffff00")
    a(f"s_mov_b32 s{sC}, {f32(SCALE):#x}\ns_mov_b32 s{sSPIN}, {SPIN}")
    a(f"v_and_b32 v{vT0}, 1, v{vL}\nv_lshlrev_b32 v{vT0}, 4, v{vT0}\nv_mov_b32 v{vT1}, 0xffff\nv_lshlrev_b32 v{vT0}, v{vT0}, v{vT1}")
    a(f"v_bfe_u32 v{vT1}, v{vL}, 1, 2")
    for r in range(4):
        a(f"v_cmp_eq_u32 vcc, {r}, v{vT1}\nv_cndmask_b32 v{vMASK+r}, 0, v{vT0}, vcc")
    if STAMP:
        a(f"s_lshl_b32 s{sT2}, s2, 2\ns_add_u32 s{sT2}, s{sT2}, s{sW}\ns_lshl_b32 s{sT2}, s{sT2}, 6\ns_add_u32 s{sT2}, s{sT2}, {WS_ST}\nv_mov_b32 v{vST0}, s{sT2}")
        a(f"v_mov_b32 v{vST1}, s{sTS}\ns_mov_b64 exec, 1")
        a(f"buffer_store_dword v{vST1}, v{vST0}, s[{rWS}:{rWS+3}], 0 offen\ns_mov_b64 exec, -1")
    if DBG is not None:
        a(f"v_mov_b32 v{vST0}, 0\nv_mov_b32 v{vST1}, s{sTS}\nv_not_b32 v{vT0}, v{vST1}\ns_cmp_lg_u32 s{sW}, 0\ns_cbranch_scc1 L_nodbg\ns_mov_b64 exec, 1")
        a(f"global_atomic_umax v{vST0}, v{vT0}, s[{pDBG}:{pDBG+1}] offset:4 sc1")
        a(f"global_atomic_umax v{vST0}, v{vST1}, s[{pDBG}:{pDBG+1}] offset:8 sc1\ns_mov_b64 exec, -1\nL_nodbg:")
    a(f"s_cmp_eq_u32 s{sP}, 7\ns_cbranch_scc1 L_aux")
    q_entry = list(a.q)

    def qpart(next_load):
        for t in range(8):
            if PROBE is not None and t == 0: stamp(21)
            a.wait(f"W{t}")
            if PROBE is not None and t in (0, 7): stamp(22 if t == 0 else 23)
            next_load(t)
            for u in range(2):
                a(f"v_perm_b32 v{vT0+u}, v{vX+4*u+(t>>1)}, v{vX+4*u+(t>>1)}, s{sSELHI if t & 1 else sSELLO}")
            for u in range(2):
                for r in range(4):
                    a(f"v_and_b32 v{vB+4*u+r}, v{vT0+u}, v{vMASK+r}")
            for u in range(2):
                c = V(vACC+4*u, 4) if t else "0"
                a(f"v_mfma_f32_16x16x32_bf16 {V(vACC+4*u,4)}, {V(vW+4*t,4)}, {V(vB+4*u,4)}, {c}")
        a(f"s_lshl_b32 s{sT2}, s{sW}, 11\ns_add_u32 s{sT2}, s{sT2}, {LDS_EX}")
        a(f"v_lshrrev_b32 v{vT0}, 3, v{vJ}\nv_lshlrev_b32 v{vT0}, 9, v{vT0}\nv_lshl_add_u32 v{vT0}, v{vG}, 7, v{vT0}")
        a(f"v_and_b32 v{vT1}, 7, v{vJ}\nv_lshl_add_u32 v{vT0}, v{vT1}, 2, v{vT0}\nv_add_u32 v{vT0}, s{sT2}, v{vT0}")
        a(f"s_lshl_b32 s{sT2}, s{sW}, 9\nv_and_b32 v{vT1}, 31, v{vL}\nv_lshl_add_u32 v{vT1}, v{vT1}, 4, s{sT2}")
        a(f"v_add_u32 v{vT2}, {LDS_EX}, v{vT1}")
        for u in range(2):
            for r in range(4):
                a(f"ds_write_b32 v{vT0}, v{vACC+4*u+r} offset:{u*1024+r*32}")
        a("s_waitcnt lgkmcnt(0)\ns_barrier")
        if PROBE is not None: stamp(24)
        for p in range(4):
            a(f"ds_read_b128 {V(vW+4*p,4)}, v{vT2} offset:{p*2048}")
        a(f"s_add_u32 s{sTAG}, s{sTAG}, 0x5b\ns_and_b32 s{sTAG}, s{sTAG}, 0xff\nv_mov_b32 v{vTAG}, s{sTAG}")
        a(f"s_lshl_b32 s{sT2}, s{sH}, 3\ns_add_u32 s{sT2}, s{sT2}, s{sP}\ns_lshl_b32 s{sT2}, s{sT2}, 11\ns_add_u32 s{sT2}, s{sT2}, {WS_QP}")
        a("s_waitcnt lgkmcnt(0)")
        for r in range(4):
            a(f"v_add_f32 v{vW+r}, v{vW+r}, v{vW+4+r}\nv_add_f32 v{vW+8+r}, v{vW+8+r}, v{vW+12+r}")
        for r in range(4):
            a(f"v_add_f32 v{vW+r}, v{vW+r}, v{vW+8+r}")
        tag(range(vW, vW+4))
        setexec(0xffffffff)
        a.vm(f"buffer_store_dwordx4 {V(vW,4)}, v{vT1}, s[{rWS}:{rWS+3}], s{sT2} offen sc1", "QPst")
        setexec(FULL)

    vOK, vOV, vOQ, vOP = 76, 77, 78, 79
    vBQ = 80
    vPB = 96
    vS, vO = 112, 116
    vMC, vLS, vSC, vP, vU0, vU1 = 120, 121, 122, 123, 124, 125
    vQ = 44
    RING = 128
    srd(rK, pK, 128*MB); srd(rV, pV, 128*MB)
    gs = GS if GS else 8
    tstep = 256 if GS else 1024
    a(f"v_lshrrev_b32 v{vT0}, 2, v{vJ}\nv_and_b32 v{vT1}, 3, v{vJ}")
    a(f"v_lshlrev_b32 v{vOK}, {gs}, v{vT0}\nv_lshl_add_u32 v{vOK}, v{vG}, 6, v{vOK}\nv_lshl_add_u32 v{vOK}, v{vT1}, 4, v{vOK}")
    a(f"v_lshlrev_b32 v{vOV}, {gs}, v{vG}\nv_lshl_add_u32 v{vOV}, v{vJ}, 4, v{vOV}")
    a(f"v_lshlrev_b32 v{vOQ}, 11, v{vT0}\nv_lshl_add_u32 v{vOQ}, v{vG}, 7, v{vOQ}\nv_lshl_add_u32 v{vOQ}, v{vT1}, 5, v{vOQ}")
    a(f"s_lshl_b32 s{sBASE}, s{sW}, 5\ns_add_u32 s{sBASE}, s{sBASE}, s{sH}\ns_lshl_b32 s{sBASE}, s{sBASE}, 20")
    a(f"s_mul_i32 s{sROT}, s{sH}, {ROTH}\ns_mul_i32 s{sT2}, s{sW}, {ROTW}\ns_add_u32 s{sROT}, s{sROT}, s{sT2}")
    a(f"s_mov_b32 s{sTK}, s{sP}")

    def unit_addr(dst, guard=True):
        a(f"s_add_u32 s{sT3}, s{sTK}, s{sROT}\ns_and_b32 s{sT3}, s{sT3}, 255")
        if GS:
            lo = GS - 10
            a(f"s_lshr_b32 s{dst}, s{sT3}, {lo}\ns_lshl_b32 s{dst}, s{dst}, {GS+2}\ns_and_b32 s{sT3}, s{sT3}, {(1<<lo)-1}")
            a(f"s_lshl_b32 s{sT3}, s{sT3}, 10\ns_add_u32 s{dst}, s{dst}, s{sT3}\ns_add_u32 s{dst}, s{dst}, s{sBASE}")
        else:
            a(f"s_lshl_b32 s{sT3}, s{sT3}, 12\ns_add_u32 s{dst}, s{sT3}, s{sBASE}")
        if guard:
            a(f"s_cmp_ge_u32 s{sTK}, 256\ns_cselect_b32 s{dst}, {128*MB}, s{dst}")

    def kv_load(slot, r, base, tg):
        isv = r >= 4
        a.vm(f"buffer_load_dwordx4 {V(RING+4*slot,4)}, v{vOV if isv else vOK}, s[{rV if isv else rK}:{(rV if isv else rK)+3}], s{base} offen offset:{(r%4)*tstep} {POLV if isv else POLK}", tg)

    def pre_load(n):
        if n % 8 == 0:
            if n: a(f"s_add_u32 s{sTK}, s{sTK}, 7")
            unit_addr(sU0, guard=False)
        kv_load(n, n % 8, sU0, f"P{n}")

    def softmax_part():
        quadsum(vSC, vS, vU0)
        skip = a.label("nomax")
        a(f"v_fma_f32 v{vP}, v{vSC}, s{sC}, -v{vMC}\nv_cmp_lt_f32 vcc, 0, v{vP}\ns_cbranch_vccz {skip}")
        a(f"v_mul_f32 v{vSC}, s{sC}, v{vSC}")
        a(f"v_max_f32_dpp v{vU0}, v{vSC}, v{vSC} row_ror:4 {DPP}")
        a(f"v_max_f32_dpp v{vU0}, v{vU0}, v{vU0} row_ror:8 {DPP}")
        a(f"v_mov_b32 v{vU1}, v{vU0}\nv_permlane16_swap_b32 v{vU0}, v{vU1}\nv_max_f32 v{vU0}, v{vU0}, v{vU1}")
        a(f"v_mov_b32 v{vU1}, v{vU0}\nv_permlane32_swap_b32 v{vU0}, v{vU1}\nv_max_f32 v{vU0}, v{vU0}, v{vU1}")
        a(f"v_and_b32 v{vU0}, s{sHI24}, v{vU0}\nv_max_f32 v{vU0}, v{vU0}, v{vMC}")
        a(f"v_sub_f32 v{vU1}, v{vMC}, v{vU0}\nv_exp_f32 v{vU1}, v{vU1}\nv_mov_b32 v{vMC}, v{vU0}\nv_sub_f32 v{vP}, v{vSC}, v{vU0}")
        a(f"v_mul_f32 v{vLS}, v{vLS}, v{vU1}")
        for r in range(4):
            a(f"v_mul_f32 v{vO+r}, v{vO+r}, v{vU1}")
        a(f"{skip}:")
        a(f"v_exp_f32 v{vP}, v{vP}")
        a(f"v_cvt_pk_bf16_f32 v{vU0}, v{vP}, v{vP}\nv_add_f32 v{vLS}, v{vLS}, v{vP}")
        for t in range(4):
            for r in range(4):
                a(f"v_and_b32_dpp v{vPB+4*t+r}, v{vU0}, v{vMASK+r} row_newbcast:{4*t} {DPP}")

    def consume(slot, r):
        if r < 4:
            c = V(vS, 4) if r else "0"
            a(f"v_mfma_f32_16x16x32_bf16 {V(vS,4)}, {V(RING+4*slot,4)}, {V(vBQ+4*r,4)}, {c}")
            if r == 3: softmax_part()
        else:
            a(f"v_mfma_f32_16x16x32_bf16 {V(vO,4)}, {V(RING+4*slot,4)}, {V(vPB+4*(r-4),4)}, {V(vO,4)}")

    def q_poll():
        for i in range(2):
            a.vm(f"buffer_load_dwordx4 {V(vQ+4*i,4)}, v{vOQ}, s[{rWS}:{rWS+3}], s{sU1} offen offset:{16*i} sc1", "Q")

    npre = [0]
    def b_next(t):
        if t >= 8 - D:
            pre_load(npre[0]); npre[0] += 1
    qpart(b_next)
    stamp(1)
    a(f"s_lshl_b32 s{sU1}, s{sH}, 14\ns_lshl_b32 s{sT2}, s{sW}, 9\ns_add_u32 s{sU1}, s{sU1}, s{sT2}\ns_add_u32 s{sU1}, s{sU1}, {WS_QP}")
    a(f"v_mov_b32 v{vMC}, 0xff7f0000\nv_mov_b32 v{vLS}, 0")
    for r in range(4): a(f"v_mov_b32 v{vO+r}, 0")
    a(f"v_lshlrev_b32 v{vT0}, 7, v{vG}\nv_lshl_add_u32 v{vT0}, v{vJ}, 4, v{vT0}\nv_mov_b32 v{vT1}, 512")
    a(f"v_cmp_gt_u32 vcc, 8, v{vJ}\nv_cndmask_b32 v{vOP}, v{vT1}, v{vT0}, vcc")
    while npre[0] < 32:
        n = npre[0]
        a.wait(f"P{n-D}")
        if n == POLLAT: q_poll()
        pre_load(n); npre[0] += 1
    if "Q" in a.q: a.wait("Q")
    qcheck, qok = a.label("qcheck"), a.label("qok")
    a(f"{qcheck}:")
    untag(list(range(vQ, vQ+8)), vT0)
    a(f"s_cbranch_vccz {qok}")
    saved = list(a.q)
    q_poll()
    a("s_waitcnt vmcnt(0)")
    spin_guard(qcheck)
    a.q = saved
    a(f"{qok}:")
    stamp(2)
    for ror in (8, 4):
        for i in range(8):
            a(f"v_add_f32_dpp v{vQ+i}, v{vQ+i}, v{vQ+i} row_ror:{ror} {DPP}")
    for r in range(4):
        a(f"v_cvt_pk_bf16_f32 v{vQ+r}, v{vQ+2*r}, v{vQ+2*r+1}")
    for t in range(4):
        m = 0x000f000f << (4*t)
        a(f"s_mov_b32 vcc_lo, {m:#x}\ns_mov_b32 vcc_hi, {m:#x}")
        for r in range(4):
            a(f"v_cndmask_b32 v{vBQ+4*t+r}, 0, v{vQ+r}, vcc")
    a(f"s_add_u32 s{sTK}, s{sTK}, 7")
    unit_addr(sU0, guard=False)
    for n in range(32):
        if f"P{n}" in a.q: a.wait(f"P{n}")
        consume(n, n % 8)
        if n < D: kv_load(n, n, sU0, f"L{n}")
    stamp(3)
    a("L_bloop:")
    for half in range(2):
        cur, nxt = (sU0, sU1) if half == 0 else (sU1, sU0)
        for r in range(8):
            n = r + D
            a(f"s_waitcnt vmcnt({D-1})")
            if n == 8:
                a(f"s_add_u32 s{sTK}, s{sTK}, 7")
                unit_addr(nxt)
            kv_load((half*8 + n) % 16, n % 8, cur if n < 8 else nxt, "loop")
            consume(half*8 + r, r)
        a(f"s_cmp_ge_u32 s{sTK}, 256")
        a("s_cbranch_scc1 L_bdone" if half == 0 else "s_cbranch_scc0 L_bloop")
    a("L_bdone:")
    a(f"v_add_f32_dpp v{vLS}, v{vLS}, v{vLS} row_ror:8 {DPP}")
    a(f"s_lshl_b32 s{sT2}, s{sH}, 2\ns_add_u32 s{sT2}, s{sT2}, s{sW}")
    a(f"v_add_f32_dpp v{vLS}, v{vLS}, v{vLS} row_ror:4 {DPP}")
    a(f"v_mov_b32 v{vU1}, v{vLS}")
    a(f"s_lshl_b32 s{sT2}, s{sT2}, 3\ns_add_u32 s{sT2}, s{sT2}, s{sP}")
    a(f"v_permlane16_swap_b32 v{vLS}, v{vU1}\nv_add_f32 v{vLS}, v{vLS}, v{vU1}\nv_mov_b32 v{vU1}, v{vLS}")
    a(f"s_lshl_b32 s{sT2}, s{sT2}, 10\ns_add_u32 s{sT2}, s{sT2}, {WS_OP}")
    a(f"v_permlane32_swap_b32 v{vLS}, v{vU1}")
    setexec(1 << 8)
    a(f"v_add_f32 v{vO+1}, v{vLS}, v{vU1}\nv_mov_b32 v{vO}, v{vMC}")
    setexec(0x00ff00ff00ff01ff)
    tag(range(vO, vO+4))
    a(f"buffer_store_dwordx4 {V(vO,4)}, v{vOP}, s[{rWS}:{rWS+3}], s{sT2} offen sc1")
    stamp(4)
    probe_end()
    a("s_endpgm")

    a("L_aux:")
    role[0] = "A"
    a.q = list(q_entry)
    A0, A1 = 0, 128
    vOU, vOR8, vOR1 = 18, 19, 9
    vOC = 76
    vAQ, vAP = 80, 81
    vAD = 82
    vM, vLL, vAL, vEX = 90, 91, 92, 94
    vWR = 96
    vTRB, vZ = 95, 100
    vQL = 104
    vCT = 136
    vSS = 200
    vKA = 20
    vPP = 52
    vE1 = 60
    vE2 = 216
    srd(rUK, pUK, 4*MB); srd(rCK, pCK, 16*MB)
    a(f"v_lshrrev_b32 v{vT0}, 2, v{vJ}\nv_and_b32 v{vT1}, 3, v{vJ}")
    a(f"v_lshlrev_b32 v{vOU}, 18, v{vT0}\nv_lshl_add_u32 v{vOU}, v{vG}, 6, v{vOU}\nv_lshl_add_u32 v{vOU}, v{vT1}, 4, v{vOU}")
    a(f"s_lshl_b32 s{sU0}, s{sW}, 20\ns_lshl_b32 s{sT2}, s{sH}, 8\ns_add_u32 s{sU0}, s{sU0}, s{sT2}\ns_mov_b32 s{sBASE}, s{sU0}")
    def uk_load(t):
        a.vm(f"buffer_load_dwordx4 {A(A0+4*t,4)}, v{vOU}, s[{rUK}:{rUK+3}], s{sU0} offen {POLW}", f"UK{t}")
        a(f"s_add_u32 s{sU0}, s{sU0}, 8192")
    qpart(uk_load)
    stamp(1)
    for t in range(8, 32): uk_load(t)
    vQA = 136
    a(f"v_lshrrev_b32 v{vT0}, 2, v{vJ}\nv_and_b32 v{vT1}, 3, v{vJ}")
    a(f"v_lshlrev_b32 v{vT2}, 9, v{vT0}\nv_lshl_add_u32 v{vT2}, v{vG}, 7, v{vT2}\nv_lshl_add_u32 v{vT2}, v{vT1}, 5, v{vT2}")
    a(f"s_lshl_b32 s{sU1}, s{sH}, 14\ns_add_u32 s{sU1}, s{sU1}, {WS_QP + 4*2048}\ns_add_u32 s{sT0}, s{sU1}, 4096")
    def qa_poll():
        for p in range(4):
            for i in range(2):
                a.vm(f"buffer_load_dwordx4 {V(vQA+8*p+4*i,4)}, v{vT2}, s[{rWS}:{rWS+3}], s{sU1 if p < 2 else sT0} offen offset:{(p&1)*2048+16*i} sc1", "QA")
    qa_poll()
    a(f"v_lshlrev_b32 v{vT0}, 2, v{vG}\nv_xor_b32 v{vT0}, v{vT0}, v{vJ}")
    for i in range(4):
        a(f"v_xor_b32 v{vT1}, {i}, v{vT0}\nv_lshlrev_b32 v{vT1}, 4, v{vT1}\nv_lshl_add_u32 v{vOC+i}, v{vG}, 10, v{vT1}")
        a(f"v_lshl_add_u32 v{vWR+i}, v{vG}, 8, v{vT1}")
        if i: a(f"v_add_u32 v{vOC+i}, {i*3072}, v{vOC+i}")
    a(f"s_lshl_b32 s{sM0}, s{sW}, 15")
    for i in range(4):
        a(f"v_add_u32 v{vWR+i}, s{sM0}, v{vWR+i}")
    a(f"s_lshl_b32 s{sCKO}, s{sH}, 19\ns_lshl_b32 s{sT2}, s{sW}, 8\ns_add_u32 s{sCKO}, s{sCKO}, s{sT2}")
    a(f"s_mov_b32 s{sSLOT}, 0")
    def ck_tile(tg):
        for hf in range(2):
            a(f"s_add_u32 s{sT3}, s{sM0}, s{sSLOT}")
            if hf: a(f"s_add_u32 s{sT3}, s{sT3}, 4096")
            a(f"s_mov_b32 m0, s{sT3}")
            for i in range(4):
                a.vm(f"buffer_load_dwordx4 v{vOC+i}, s[{rCK}:{rCK+3}], s{sCKO} offen offset:{i*1024} {POLW} lds", tg)
            a(f"s_add_u32 s{sCKO}, s{sCKO}, 16384")
    def next_slot():
        a(f"s_add_u32 s{sSLOT}, s{sSLOT}, 8192\ns_and_b32 s{sSLOT}, s{sSLOT}, 0x7fff")
    ck_tile("CK0"); next_slot()
    a.wait("QA")
    chk, ok = a.label("qacheck"), a.label("qaok")
    a(f"{chk}:")
    untag(list(range(vQA, vQA+32)), vT0)
    a(f"s_cbranch_vccz {ok}")
    saved = list(a.q)
    qa_poll()
    a("s_waitcnt vmcnt(0)")
    spin_guard(chk)
    a.q = saved
    a(f"{ok}:")
    stamp(2)
    for i in range(8):
        a(f"v_add_f32 v{vQA+i}, v{vQA+i}, v{vQA+16+i}\nv_add_f32 v{vQA+8+i}, v{vQA+8+i}, v{vQA+24+i}")
    for i in range(8):
        a(f"v_add_f32 v{vQA+i}, v{vQA+i}, v{vQA+8+i}")
    for r in range(4):
        a(f"v_cvt_pk_bf16_f32 v{vB+r}, v{vQA+2*r}, v{vQA+2*r+1}")
    ck_tile("CK1"); next_slot()
    vD, vR, vPK = 136, 168, 200
    def fold(t):
        quadsum(vR+t, vD + 4*(t % 8), vT0)
    for t in range(32):
        a(f"v_mfma_f32_16x16x32_bf16 {V(vD+4*(t%8),4)}, {A(A0+4*t,4)}, {V(vB,4)}, 0")
        if t >= 3: fold(t - 3)
    for t in range(29, 32): fold(t)
    for i in range(16):
        a(f"v_cvt_pk_bf16_f32 v{vPK+i}, v{vR+2*i}, v{vR+2*i+1}")
    for q in range(1, 4):
        setexec(0x1111111111111111 << q)
        for r in range(4):
            a(f"v_mov_b32 v{vPK+r}, v{vPK+4*q+r}")
    setexec(FULL)
    a(f"v_lshrrev_b32 v{vT0}, 2, v{vJ}\nv_and_b32 v{vT1}, 3, v{vJ}")
    a(f"v_lshlrev_b32 v{vT2}, 15, v{vT0}\nv_lshl_add_u32 v{vT2}, v{vG}, 6, v{vT2}\nv_lshl_add_u32 v{vT2}, v{vT1}, 4, v{vT2}")
    a(f"s_lshl_b32 s{sT0}, s{sH}, 10\ns_lshl_b32 s{sT2}, s{sW}, 8\ns_add_u32 s{sT0}, s{sT0}, s{sT2}\ns_add_u32 s{sT0}, s{sT0}, {WS_QL}")
    a.vm(f"buffer_store_dwordx4 {V(vPK,4)}, v{vT2}, s[{rWS}:{rWS+3}], s{sT0} offen sc1", "QLst")
    ck_tile("CK2"); next_slot()
    srd(rDBG, pDBG, 256); srd(rUV, pUV, 4*MB); srd(rWA, pAWO, 4*MB); srd(rWB, pBWO, 4*MB); srd(rOUT, pOUT, 8192)
    a(f"v_mov_b32 v{vZ}, 0\nv_mov_b32 v{vZ+1}, 1")
    a(f"v_lshlrev_b32 v{vT0}, 4, v{vJ}\nv_lshl_add_u32 v{vOR8}, v{vG}, 13, v{vT0}\nv_lshl_add_u32 v{vOR1}, v{vG}, 10, v{vT0}")

    def signal(tg, off):
        a.wait(tg)
        a("s_barrier")
        skip = a.label("nosig")
        a(f"s_cmp_lg_u32 s{sW}, 0\ns_cbranch_scc1 {skip}")
        setexec(1)
        a(f"buffer_atomic_add v{vZ+1}, v{vZ}, s[{rDBG}:{rDBG+3}], 0 offen offset:{off} sc1")
        setexec(FULL)
        a(f"{skip}:")

    def flag_load(off):
        a.vm(f"buffer_load_dword v{vT3}, v{vZ}, s[{rDBG}:{rDBG+3}], 0 offen offset:{off} sc1", "FL")

    def flag_wait(off):
        a.wait("FL")
        chk, ok = a.label("fcheck"), a.label("fok")
        a(f"{chk}:\nv_cmp_gt_u32 vcc, 32, v{vT3}\ns_cbranch_vccz {ok}")
        saved = list(a.q)
        a("s_sleep 4")
        flag_load(off)
        a("s_waitcnt vmcnt(0)")
        spin_guard(chk)
        a.q = saved
        a(f"{ok}:")

    sUV, sWO = sU0, sU1
    def uv_load(i):
        a.vm(f"buffer_load_dwordx4 {A(A1+4*i,4)}, v{vOR8}, s[{rUV}:{rUV+3}], s{sUV} offen {POLW}", f"UV{i}")
        a(f"s_add_u32 s{sUV}, s{sUV}, 32768")
    def wo_load(i, isb):
        r = rWB if isb else rWA
        a.vm(f"buffer_load_dwordx4 {A((A1 if isb else A0)+4*i,4)}, v{vOR1}, s[{r}:{r+3}], s{sWO} offen {POLW}", f"W{'B' if isb else 'A'}{i}")
        a(f"s_add_u32 s{sWO}, s{sWO}, 4096")
    def wo_base():
        a(f"s_lshl_b32 s{sWO}, s{sH}, 17\ns_lshl_b32 s{sT2}, s{sW}, 8\ns_add_u32 s{sWO}, s{sWO}, s{sT2}")

    signal("QLst", 0)
    stamp(3)
    ck_tile("CK3"); next_slot()
    a(f"s_mov_b32 s{sUV}, s{sBASE}")
    wo_base()
    flag_load(0)
    for i in range(8): uv_load(i)
    flag_wait(0)
    stamp(4)
    a(f"s_lshr_b32 s{sT0}, s{sH}, 3\ns_lshl_b32 s{sT0}, s{sT0}, 15\ns_lshl_b32 s{sT2}, s{sW}, 8\ns_add_u32 s{sT0}, s{sT0}, s{sT2}\ns_add_u32 s{sT0}, s{sT0}, {WS_QL}")
    for i in range(8):
        a.vm(f"buffer_load_dwordx4 {V(vKA+4*i,4)}, v{vOR1}, s[{rWS}:{rWS+3}], s{sT0} offen sc1", "QLg")
        if i < 7: a(f"s_add_u32 s{sT0}, s{sT0}, 4096")
    for i in range(8, 16): uv_load(i)
    a(f"v_and_b32 v{vT0}, 3, v{vL}\nv_bfe_u32 v{vT1}, v{vL}, 2, 2\nv_lshrrev_b32 v{vT2}, 5, v{vL}")
    a(f"v_lshl_add_u32 v{vT3}, v{vT0}, 2, v{vT1}\nv_xor_b32 v{vT3}, v{vT3}, v{vT2}\nv_lshlrev_b32 v{vT3}, 4, v{vT3}")
    a(f"v_and_b32 v{vAQ}, 31, v{vL}\nv_lshl_add_u32 v{vAQ}, v{vAQ}, 8, v{vT3}")
    a(f"v_lshl_add_u32 v{vAP}, v{vT2}, 2, v{vT1}\nv_lshlrev_b32 v{vAP}, 8, v{vAP}\nv_lshl_add_u32 v{vAP}, v{vT1}, 6, v{vAP}")
    a(f"v_bfe_u32 v{vT3}, v{vL}, 4, 1\nv_lshlrev_b32 v{vT3}, 1, v{vT3}\nv_bfe_u32 v{vU0}, v{vL}, 1, 1\nv_add_u32 v{vT3}, v{vT3}, v{vU0}")
    a(f"v_xor_b32 v{vT3}, v{vT3}, v{vT2}\nv_lshl_add_u32 v{vAP}, v{vT3}, 4, v{vAP}")
    a(f"v_and_b32 v{vT3}, 1, v{vL}\nv_lshl_add_u32 v{vAP}, v{vT3}, 3, v{vAP}")
    a(f"v_lshl_add_u32 v{vTRB}, v{vG}, 3, v{vT1}\nv_lshlrev_b32 v{vTRB}, 8, v{vTRB}\nv_lshl_add_u32 v{vTRB}, v{vT1}, 6, v{vTRB}")
    a(f"v_bfe_u32 v{vT0}, v{vL}, 4, 1\nv_lshl_add_u32 v{vT0}, v{vT0}, 1, v{vU0}\nv_lshl_add_u32 v{vTRB}, v{vT0}, 4, v{vTRB}")
    a(f"v_lshl_add_u32 v{vTRB}, v{vT3}, 3, v{vTRB}\nv_add_u32 v{vTRB}, s{sM0}, v{vTRB}")
    a(f"s_lshl_b32 s{sT1}, s{sW}, 13\ns_add_u32 s{sT1}, s{sT1}, {LDS_EX}\nv_lshl_add_u32 v{vEX}, v{vL}, 4, s{sT1}")
    a(f"s_sub_u32 s{sT2}, s{sT1}, s{sM0}")
    for i in range(4):
        a(f"v_add_u32 v{vAD+i}, s{sT2}, v{vWR+i}")
    a.wait("QLg")
    for i in range(8):
        a(f"ds_write_b128 v{vAD+(i&3)}, {V(vKA+4*i,4)} offset:{i*1024}")
    a(f"v_add_u32 v{vT0}, s{sT1}, v{vAQ}")
    for k in range(8):
        a(f"v_xor_b32 v{vAD+k}, {32*k}, v{vT0}")
    a("s_waitcnt lgkmcnt(0)")
    for k in range(8):
        a(f"ds_read_b128 {V(vQL+4*k,4)}, v{vAD+k}")
    for i in range(64): a(f"v_mov_b32 v{vCT+i}, 0")
    a(f"v_mov_b32 v{vM}, 0xff7f0000\nv_mov_b32 v{vLL}, 0\ns_mov_b32 s{sIT}, 0")
    a(f"v_add_u32 v{vAQ}, s{sM0}, v{vAQ}\nv_add_u32 v{vAP}, s{sM0}, v{vAP}")
    a("s_waitcnt lgkmcnt(0)")
    stamp(5)
    a("L_att:")
    a(f"v_add_u32 v{vT0}, s{sSLOT}, v{vAQ}")
    for k in range(8):
        a(f"v_xor_b32 v{vAD+k}, {32*k}, v{vT0}")
    a("s_waitcnt vmcnt(24)")
    for k in range(8):
        a(f"ds_read_b128 {V(vKA+4*k,4)}, v{vAD+k}")
    a(f"v_add_u32 v{vT0}, s{sSLOT}, v{vAP}")
    for k in range(8):
        a(f"s_waitcnt lgkmcnt({7-k})")
        c = V(vSS, 16) if k else "0"
        a(f"v_mfma_f32_32x32x16_bf16 {V(vSS,16)}, {V(vKA+4*k,4)}, {V(vQL+4*k,4)}, {c}")
        a(f"v_xor_b32 v{vAD+k}, {32*k}, v{vT0}")
    for nt in range(4):
        for sg in range(2):
            for pi in range(2):
                a(f"ds_read_b64_tr_b16 {V(vKA+8*nt+4*sg+2*pi,2)}, v{vAD+2*nt+pi} offset:{4096*sg+2048*pi}")
    a(f"v_xor_b32 v{vT1}, 0x2000, v{vEX}\nv_xor_b32 v{vT2}, 0x4000, v{vEX}\nv_xor_b32 v{vT3}, 0x6000, v{vEX}")
    for q in range(4):
        a(f"ds_write_b128 v{vEX}, {V(vSS+4*q,4)} offset:{1024*q}")
    a("s_waitcnt lgkmcnt(0)\ns_barrier")
    for q in range(4):
        a(f"ds_read_b128 {V(vE1+4*q,4)}, v{vT1} offset:{1024*q}")
        a(f"ds_read_b128 {V(vE2+4*q,4)}, v{vT2} offset:{1024*q}")
        a(f"ds_read_b128 {V(vE2+16+4*q,4)}, v{vT3} offset:{1024*q}")
    a(f"v_xor_b32 v{vEX}, 0x1000, v{vEX}")
    blocks = [a.label(f"fill{i}") for i in range(4)]
    filled = a.label("filled")
    a(f"s_cmp_ge_u32 s{sIT}, 12\ns_cbranch_scc1 {blocks[0]}")
    saved = list(a.q)
    ck_tile("loop")
    a.q = saved
    a(f"{filled}:")
    next_slot()
    for q in range(4):
        a(f"s_waitcnt lgkmcnt({9-3*q})")
        for r in range(4*q, 4*q+4):
            a(f"v_add_f32 v{vSS+r}, v{vSS+r}, v{vE1+r}\nv_add_f32 v{vE2+r}, v{vE2+r}, v{vE2+16+r}")
        for r in range(4*q, 4*q+4):
            a(f"v_add_f32 v{vSS+r}, v{vSS+r}, v{vE2+r}")
    a(f"v_max_f32 v{vT0}, v{vSS}, v{vSS+1}")
    for r in range(2, 16, 2):
        a(f"v_max3_f32 v{vT0}, v{vT0}, v{vSS+r}, v{vSS+r+1}")
    a(f"v_mov_b32 v{vT1}, v{vT0}\nv_permlane32_swap_b32 v{vT0}, v{vT1}\nv_max_f32 v{vT0}, v{vT0}, v{vT1}")
    a(f"v_mul_f32 v{vT0}, s{sC}, v{vT0}\nv_max_f32 v{vT0}, v{vT0}, v{vM}")
    a(f"v_sub_f32 v{vAL}, v{vM}, v{vT0}\nv_exp_f32 v{vAL}, v{vAL}\nv_mov_b32 v{vM}, v{vT0}")
    for r in range(16):
        a(f"v_fma_f32 v{vSS+r}, v{vSS+r}, s{sC}, -v{vM}")
    a(f"v_mul_f32 v{vLL}, v{vLL}, v{vAL}")
    for r in range(16):
        a(f"v_exp_f32 v{vSS+r}, v{vSS+r}")
        for i in range(2):
            c = vCT + 4*r + 2*i
            a(f"v_pk_mul_f32 {V(c,2)}, {V(c,2)}, {V(vAL,2)} op_sel_hi:[1,0]")
    for r in range(8):
        a(f"v_cvt_pk_bf16_f32 v{vPP+r}, v{vSS+2*r}, v{vSS+2*r+1}")
    k = 0
    for sg in range(2):
        for nt in range(4):
            a(f"v_mfma_f32_32x32x16_bf16 {V(vCT+16*nt,16)}, {V(vKA+8*nt+4*sg,4)}, {V(vPP+4*sg,4)}, {V(vCT+16*nt,16)}")
            a(f"v_add_f32 v{vLL}, v{vLL}, v{vSS+k}\nv_add_f32 v{vLL}, v{vLL}, v{vSS+k+1}")
            k += 2
    a(f"s_add_u32 s{sIT}, s{sIT}, 1\ns_cmp_lt_u32 s{sIT}, 16\ns_cbranch_scc1 L_att")
    a("s_branch L_attdone")
    a.q = []
    for i in range(4):
        a(f"{blocks[i]}:")
        if i < 3: a(f"s_cmp_lg_u32 s{sIT}, {12+i}\ns_cbranch_scc1 {blocks[i+1]}")
        for n in range(8):
            if i < 2: uv_load(16 + 8*i + n)
            else: wo_load(8*(i-2) + n, False)
        a(f"s_branch {filled}")
    a("L_attdone:")
    stamp(6)
    a(f"v_mov_b32 v{vT1}, v{vLL}\nv_permlane32_swap_b32 v{vLL}, v{vT1}\nv_add_f32 v{vLL}, v{vLL}, v{vT1}")
    a(f"v_and_b32 v{vT0}, 31, v{vL}\nv_mul_u32_u24 v{vT1}, 272, v{vT0}\nv_lshrrev_b32 v{vT2}, 5, v{vL}\nv_lshl_add_u32 v{vT1}, v{vT2}, 3, v{vT1}\nv_add_u32 v{vT1}, s{sM0}, v{vT1}")
    for i in range(32):
        a(f"v_cvt_pk_bf16_f32 v{vKA+i}, v{vCT+2*i}, v{vCT+2*i+1}")
    for nt in range(4):
        for q in range(4):
            a(f"ds_write_b64 v{vT1}, {V(vKA+8*nt+2*q,2)} offset:{64*nt+16*q}")
    a(f"v_mul_u32_u24 v{vT2}, 272, v{vG}\nv_lshl_add_u32 v{vT2}, v{vJ}, 4, v{vT2}\nv_add_u32 v{vT2}, s{sM0}, v{vT2}")
    a(f"v_lshlrev_b32 v{vT3}, 4, v{vJ}\nv_lshl_add_u32 v{vT3}, v{vG}, 15, v{vT3}")
    a(f"s_lshl_b32 s{sT0}, s{sH}, 10\ns_lshl_b32 s{sT2}, s{sW}, 8\ns_add_u32 s{sT0}, s{sT0}, s{sT2}\ns_add_u32 s{sT0}, s{sT0}, {WS_CP}")
    a("s_waitcnt lgkmcnt(0)")
    for i in range(8):
        a(f"ds_read_b128 {V(vCT+4*i,4)}, v{vT2} offset:{1088*i}")
    a(f"v_lshlrev_b32 v{vT0}, 3, v{vT0}\ns_lshl_b32 s{sT1}, s{sH}, 8\ns_add_u32 s{sT1}, s{sT1}, {WS_CS}")
    a(f"s_lshl_b32 s{sT2}, s{sW}, 3\ns_lshl_b32 exec_lo, 0xff, s{sT2}\ns_mov_b32 exec_hi, 0")
    a.vm(f"buffer_store_dwordx2 {V(vM,2)}, v{vT0}, s[{rWS}:{rWS+3}], s{sT1} offen sc1", "CPst")
    setexec(FULL)
    for i in range(8):
        a(f"s_waitcnt lgkmcnt({7-i})")
        a.vm(f"buffer_store_dwordx4 {V(vCT+4*i,4)}, v{vT3}, s[{rWS}:{rWS+3}], s{sT0} offen sc1", "CPst")
        if i < 7: a(f"s_add_u32 s{sT0}, s{sT0}, {4*32*KB}")
    for i in range(16, 24): wo_load(i, False)
    signal("CPst", 128)
    stamp(7)
    for i in range(24, 32): wo_load(i, False)

    vWT = 128
    def slab_in(src):
        for i in range(32):
            a(f"ds_write_b128 v{vWR+(i&3)}, {A(src+4*i,4)} offset:{1024*i}")
        a("s_waitcnt lgkmcnt(0)")
    def slab_out():
        for nt in range(8):
            for pi in range(2):
                a(f"v_xor_b32 v{vT0+pi}, {16*(2*nt+pi)}, v{vTRB}")
                for k in range(4):
                    a(f"ds_read_b64_tr_b16 {V(vWT+16*nt+4*k+2*pi,2)}, v{vT0+pi} offset:{8192*k+1024*pi}")
        a("s_waitcnt lgkmcnt(0)")

    slab_in(A1)
    wo_base()
    flag_load(128)
    for i in range(8): wo_load(i, True)
    slab_out()
    flag_wait(128)
    stamp(8)
    vCB, vSTAT, vDD, vRES = 20, 52, 60, 104
    a(f"v_and_b32 v{vT0}, 3, v{vJ}\nv_lshrrev_b32 v{vT1}, 2, v{vJ}\nv_lshl_add_u32 v{vT2}, v{vT0}, 3, v{vT1}")
    a(f"v_lshlrev_b32 v{vT3}, 8, v{vT2}\nv_lshlrev_b32 v{vT2}, 10, v{vT2}\nv_lshl_add_u32 v{vT2}, v{vG}, 4, v{vT2}")
    a(f"s_lshl_b32 s{sT0}, s{sH}, 15\ns_lshl_b32 s{sT2}, s{sW}, 8\ns_add_u32 s{sT0}, s{sT0}, s{sT2}\ns_add_u32 s{sT0}, s{sT0}, {WS_CP}")
    a(f"s_lshl_b32 s{sT1}, s{sH}, 3\ns_add_u32 s{sT1}, s{sT1}, {WS_CS}")
    for hf in range(2):
        a.vm(f"buffer_load_dwordx2 {V(vSTAT+2*hf,2)}, v{vT3}, s[{rWS}:{rWS+3}], s{sT1} offen offset:{1024*hf} sc1", "CSg")
    for hf in range(2):
        for k in range(4):
            a.vm(f"buffer_load_dwordx4 {V(vCB+16*hf+4*k,4)}, v{vT2}, s[{rWS}:{rWS+3}], s{sT0} offen offset:{64*k} sc1", "CPg")
        a(f"s_add_u32 s{sT0}, s{sT0}, 4096")
    for i in range(8, 32): wo_load(i, True)
    a.wait("CSg")
    a(f"v_max_f32 v{vT0}, v{vSTAT}, v{vSTAT+2}")
    a(f"v_max_f32_dpp v{vT0}, v{vT0}, v{vT0} row_ror:8 {DPP}\nv_max_f32_dpp v{vT0}, v{vT0}, v{vT0} row_ror:4 {DPP}")
    a(f"v_sub_f32 v{vSTAT}, v{vSTAT}, v{vT0}\nv_sub_f32 v{vSTAT+2}, v{vSTAT+2}, v{vT0}")
    a(f"v_exp_f32 v{vSTAT}, v{vSTAT}\nv_exp_f32 v{vSTAT+2}, v{vSTAT+2}")
    a(f"v_mul_f32 v{vT1}, v{vSTAT}, v{vSTAT+1}\nv_fmac_f32 v{vT1}, v{vSTAT+2}, v{vSTAT+3}")
    a(f"v_add_f32_dpp v{vT1}, v{vT1}, v{vT1} row_ror:8 {DPP}\nv_add_f32_dpp v{vT1}, v{vT1}, v{vT1} row_ror:4 {DPP}")
    a(f"v_rcp_f32 v{vT1}, v{vT1}")
    a(f"v_mul_f32 v{vSTAT}, v{vSTAT}, v{vT1}\nv_mul_f32 v{vSTAT+2}, v{vSTAT+2}, v{vT1}")
    a(f"s_lshl_b32 s{sT2}, s{sW}, 11\ns_add_u32 s{sT2}, s{sT2}, {LDS_EX}")
    a(f"v_and_b32 v{vT0}, 3, v{vJ}\nv_lshlrev_b32 v{vT0}, 9, v{vT0}\nv_lshl_add_u32 v{vT0}, v{vG}, 4, v{vT0}\nv_add_u32 v{vT0}, s{sT2}, v{vT0}")
    a.wait("CPg")
    def ctx_fold(nt):
        d = vDD + 8*(nt % 2)
        res = vRES + 4*(nt % 2)
        for r in range(4):
            a(f"v_mul_f32 v{res+r}, v{d+r}, v{vSTAT}")
        for r in range(4):
            a(f"v_fmac_f32 v{res+r}, v{d+4+r}, v{vSTAT+2}")
        for ror in (8, 4):
            for r in range(4):
                a(f"v_add_f32_dpp v{res+r}, v{res+r}, v{res+r} row_ror:{ror} {DPP}")
        a(f"ds_write_b128 v{vT0}, {V(res,4)} offset:{64*nt}")
    for nt in range(8):
        d = vDD + 8*(nt % 2)
        for k in range(4):
            for hf in range(2):
                c = V(d+4*hf, 4) if k else "0"
                a(f"v_mfma_f32_16x16x32_bf16 {V(d+4*hf,4)}, {V(vWT+16*nt+4*k,4)}, {V(vCB+16*hf+4*k,4)}, {c}")
        if nt: ctx_fold(nt - 1)
    ctx_fold(7)
    a(f"s_lshl_b32 s{sT2}, s{sW}, 9\ns_add_u32 s{sT2}, s{sT2}, {LDS_EX}\nv_and_b32 v{vT1}, 31, v{vL}\nv_lshl_add_u32 v{vT2}, v{vT1}, 4, s{sT2}")
    a(f"s_mul_i32 s{sT2}, s{sW}, 320\ns_add_u32 s{sT2}, s{sT2}, {LDS_O}\nv_lshl_add_u32 v{vT3}, v{vT1}, 3, s{sT2}")
    a("s_waitcnt lgkmcnt(0)\ns_barrier")
    for p in range(4):
        a(f"ds_read_b128 {V(vCB+4*p,4)}, v{vT2} offset:{p*2048}")
    a("s_waitcnt lgkmcnt(0)")
    for r in range(4):
        a(f"v_add_f32 v{vCB+r}, v{vCB+r}, v{vCB+4+r}\nv_add_f32 v{vCB+8+r}, v{vCB+8+r}, v{vCB+12+r}")
    for r in range(4):
        a(f"v_add_f32 v{vCB+r}, v{vCB+r}, v{vCB+8+r}")
    a(f"v_cvt_pk_bf16_f32 v{vCB}, v{vCB}, v{vCB+1}\nv_cvt_pk_bf16_f32 v{vCB+1}, v{vCB+2}, v{vCB+3}")
    a(f"ds_write_b64 v{vT3}, {V(vCB,2)}")
    slab_in(A0)
    slab_out()
    stamp(9)

    vBU, vY = 20, 84
    vAO, vAY, vAG, vAF, vAM, vAW = 100, 101, 102, 103, 92, 93
    vG2 = 104
    for i in range(64): a(f"v_mov_b32 v{vBU+i}, 0")
    a(f"v_and_b32 v{vT0}, 3, v{vJ}\nv_mul_u32_u24 v{vAO}, 320, v{vT0}\nv_lshl_add_u32 v{vAO}, v{vG}, 4, v{vAO}\nv_add_u32 v{vAO}, {LDS_O}, v{vAO}")
    a(f"s_lshl_b32 s{sT0}, s{sW}, 16\ns_lshl_b32 s{sT2}, s{sH}, 8\ns_add_u32 s{sT0}, s{sT0}, s{sT2}\nv_add_u32 v{vAY}, s{sT0}, v{vOR8}")
    a(f"s_lshl_b32 s{sT0}, s{sH}, 13\ns_lshl_b32 s{sT2}, s{sW}, 6\ns_add_u32 s{sT0}, s{sT0}, s{sT2}")
    a(f"v_lshrrev_b32 v{vT1}, 2, v{vL}\nv_lshlrev_b32 v{vT1}, 8, v{vT1}\nv_lshl_add_u32 v{vT1}, v{vT0}, 4, v{vT1}\nv_add_u32 v{vAG}, s{sT0}, v{vT1}")
    a(f"s_lshr_b32 s{sT0}, s{sH}, 2\ns_lshl_b32 s{sT0}, s{sT0}, 7\ns_lshl_b32 s{sT2}, s{sW}, 5\ns_add_u32 s{sT0}, s{sT0}, s{sT2}")
    a(f"s_and_b32 s{sT2}, s{sH}, 3\ns_lshl_b32 s{sT2}, s{sT2}, 3\ns_add_u32 s{sT0}, s{sT0}, s{sT2}")
    a(f"v_lshlrev_b32 v{vT1}, 11, v{vT0}\nv_lshl_add_u32 v{vT1}, v{vG}, 1, v{vT1}\nv_add_u32 v{vAF}, s{sT0}, v{vT1}")
    a(f"v_lshlrev_b32 v{vT0}, 7, v{vG}\nv_lshl_add_u32 v{vT0}, v{vJ}, 4, v{vT0}\nv_mov_b32 v{vT1}, 512")
    a(f"v_cmp_gt_u32 vcc, 8, v{vJ}\nv_cndmask_b32 v{vAM}, v{vT1}, v{vT0}, vcc")
    a(f"s_mul_i32 s{sT2}, s{sW}, 320\ns_add_u32 s{sT2}, s{sT2}, {LDS_O}\nv_lshlrev_b32 v{vT0}, 6, v{vG}\nv_lshl_add_u32 v{vT0}, v{vJ}, 1, v{vT0}\nv_add_u32 v{vAW}, s{sT2}, v{vT0}")
    a(f"s_mov_b32 s{sMODE}, 0\ns_mov_b32 s{sYO}, {WS_YA}\ns_mov_b32 s{sOUTO}, 0")
    a("L_final:")
    a("s_waitcnt lgkmcnt(0)\ns_barrier")
    for u in range(4):
        setexec(0x000f000f000f000f << (4*u))
        for k in range(4):
            a(f"ds_read_b128 {V(vBU+16*u+4*k,4)}, v{vAO} offset:{64*k}")
    setexec(FULL)
    a(f"s_add_u32 s{sT0}, s{sYO}, 32768")
    for u in range(4):
        a(f"s_waitcnt lgkmcnt({12-4*u})")
        for k in range(4):
            for v in range(2):
                c = V(vY+4*v, 4) if (u or k) else "0"
                a(f"v_mfma_f32_16x16x32_bf16 {V(vY+4*v,4)}, {V(vWT+16*(4*v+u)+4*k,4)}, {V(vBU+16*u+4*k,4)}, {c}")
    for v in range(2):
        tag(range(vY+4*v, vY+4*v+4))
        a(f"buffer_store_dwordx4 {V(vY+4*v,4)}, v{vAY}, s[{rWS}:{rWS+3}], s{sT0 if v else sYO} offen sc1")
    a(f"s_cmp_eq_u32 s{sMODE}, 0\ns_cbranch_scc1 L_prepb")
    a("L_hop2:")
    a(f"s_add_u32 s{sT0}, s{sYO}, 4096")
    for i in range(2):
        a(f"buffer_load_dwordx4 {V(vG2+4*i,4)}, v{vAG}, s[{rWS}:{rWS+3}], s{sT0 if i else sYO} offen sc1")
    a("s_waitcnt vmcnt(0)")
    untag(list(range(vG2, vG2+8)), vT0)
    a("s_cbranch_vccz L_hop2ok")
    spin_guard("L_hop2")
    a("L_hop2ok:")
    for r in range(4):
        a(f"v_add_f32 v{vG2+r}, v{vG2+r}, v{vG2+4+r}")
    a(f"v_permlane16_swap_b32 v{vG2}, v{vG2+1}\nv_permlane16_swap_b32 v{vG2+2}, v{vG2+3}")
    a(f"v_add_f32 v{vG2}, v{vG2}, v{vG2+1}\nv_add_f32 v{vG2+2}, v{vG2+2}, v{vG2+3}")
    a(f"v_permlane32_swap_b32 v{vG2}, v{vG2+2}\nv_add_f32 v{vG2}, v{vG2}, v{vG2+2}")
    a(f"v_add_f32_dpp v{vG2}, v{vG2}, v{vG2} row_ror:8 {DPP}\nv_add_f32_dpp v{vG2}, v{vG2}, v{vG2} row_ror:4 {DPP}")
    a(f"v_cvt_pk_bf16_f32 v{vG2}, v{vG2}, v{vG2}")
    setexec(0x000f000f000f000f)
    a(f"buffer_store_short v{vG2}, v{vAF}, s[{rOUT}:{rOUT+3}], s{sOUTO} offen")
    setexec(FULL)
    a(f"s_cmp_lg_u32 s{sMODE}, 0\ns_cbranch_scc1 L_fin")
    stamp(11)
    a(f"s_mov_b32 s{sMODE}, 1\ns_mov_b32 s{sYO}, {WS_YB}\ns_mov_b32 s{sOUTO}, 1024")
    a(f"s_lshl_b32 s{sU0}, s{sH}, 2\ns_add_u32 s{sU0}, s{sU0}, s{sW}\ns_lshl_b32 s{sU0}, s{sU0}, 13\ns_add_u32 s{sU0}, s{sU0}, {WS_OP}\ns_add_u32 s{sU1}, s{sU0}, 4096")
    a(f"v_min_u32 v{vT1}, 6, v{vL}\nv_lshlrev_b32 v{vT1}, 10, v{vT1}")
    a("L_light:")
    a(f"buffer_load_dword v{vT2}, v{vT1}, s[{rWS}:{rWS+3}], s{sU0} offen offset:512 sc1\ns_waitcnt vmcnt(0)")
    a(f"v_xor_b32 v{vT2}, s{sTAG}, v{vT2}\nv_and_b32 v{vT2}, 0xff, v{vT2}\nv_cmp_ne_u32 vcc, 0, v{vT2}")
    a(f"s_and_b32 s{sT0}, vcc_lo, 0x7f\ns_bcnt1_i32_b32 s{sT0}, s{sT0}\ns_cmp_le_u32 s{sT0}, 2\ns_cbranch_scc1 L_hop1")
    a("s_sleep 2")
    spin_guard("L_light")
    vMS = [104, 108, 112, 116, 120, 124, 84]
    vWS7 = [4, 5, 6, 7, 88, 89, 90]
    a("L_hop1:")
    for s in range(7):
        a(f"buffer_load_dwordx4 {V(vMS[s],4)}, v{vAM}, s[{rWS}:{rWS+3}], s{sU0 if s < 4 else sU1} offen offset:{1024*(s&3)} sc1")
    a("s_waitcnt vmcnt(0)")
    untag([m + r for m in vMS for r in range(4)], vT0)
    a("s_cbranch_vccz L_hop1ok")
    spin_guard("L_hop1")
    a("L_hop1ok:")
    stamp(12)
    vMX, vOO = 91, 10
    a(f"v_max3_f32 v{vMX}, v{vMS[0]}, v{vMS[1]}, v{vMS[2]}")
    a(f"v_max3_f32 v{vMX}, v{vMX}, v{vMS[3]}, v{vMS[4]}\nv_max3_f32 v{vMX}, v{vMX}, v{vMS[5]}, v{vMS[6]}")
    for s in range(7):
        a(f"v_sub_f32 v{vWS7[s]}, v{vMS[s]}, v{vMX}")
    for s in range(7):
        a(f"v_exp_f32 v{vWS7[s]}, v{vWS7[s]}")
    for s in range(7):
        for r in (1, 0, 2, 3):
            op = "v_fmac_f32_dpp" if s else "v_mul_f32_dpp"
            a(f"{op} v{vOO+r}, v{vWS7[s]}, v{vMS[s]+r} row_newbcast:8 {DPP}")
    a(f"v_rcp_f32 v{vMX}, v{vOO+1}")
    for r in range(4):
        a(f"v_mul_f32_dpp v{vOO+r}, v{vMX}, v{vOO+r} row_newbcast:8 {DPP}")
    a(f"v_cvt_pk_bf16_f32 v{vOO}, v{vOO}, v{vOO+1}\nv_cvt_pk_bf16_f32 v{vOO+2}, v{vOO+2}, v{vOO+3}")
    setexec(0x00ff00ff00ff00ff)
    a(f"ds_write_b16 v{vAW}, v{vOO}\nds_write_b16_d16_hi v{vAW}, v{vOO} offset:16")
    a(f"ds_write_b16 v{vAW}, v{vOO+2} offset:32\nds_write_b16_d16_hi v{vAW}, v{vOO+2} offset:48")
    setexec(FULL)
    a("s_branch L_final")
    a("L_prepb:")
    stamp(10)
    a("s_waitcnt vmcnt(0)")
    slab_in(A1)
    slab_out()
    a("s_barrier")
    a("s_branch L_hop2")
    a("L_fin:")
    stamp(13)
    probe_end()
    a(f"s_or_b32 s{sT0}, s{sH}, s{sW}\ns_cmp_lg_u32 s{sT0}, 0\ns_cbranch_scc1 L_end")
    a(f"v_mov_b32 v{vT0}, 0")
    setexec(1)
    a(f"buffer_store_dword v{vTAG}, v{vT0}, s[{rWS}:{rWS+3}], 0 offen")
    a("L_end:\ns_endpgm")
    extra = ""
    if TINY:
        tg, tb = TINY_GEOM
        a(".p2align 8\n.globl tiny_kernel\n.type tiny_kernel,@function\ntiny_kernel:")
        a(f"s_memrealtime s[4:5]\ns_waitcnt lgkmcnt(0)\ns_cmp_ge_u32 s2, 1\ns_cbranch_scc1 L_tend\ns_load_dwordx2 s[6:7], s[0:1], 104\ns_waitcnt lgkmcnt(0)")
        if TINY == "first":
            a("v_mov_b32 v1, 4096\nv_mov_b32 v2, s4\nglobal_store_dword v1, v2, s[6:7]")
        else:
            a("s_load_dword s8, s[6:7], 4096\ns_waitcnt lgkmcnt(0)\ns_add_u32 s8, s8, 10000")
            a("L_tspin:\ns_memrealtime s[4:5]\ns_waitcnt lgkmcnt(0)\ns_sub_u32 s4, s4, s8\ns_cmp_lt_i32 s4, 0\ns_cbranch_scc0 L_tend\ns_cmp_gt_i32 s4, -20000\ns_cbranch_scc1 L_tspin")
        a("L_tend:\ns_endpgm")
        m = f"; @launch kernel={NAME}_kernel grid=(256,1,1) block=(256,1,1) lds={160*KB}"
        t = f"; @launch kernel=tiny_kernel grid=({tg},1,1) block=({tb},1,1) lds=0"
        hdr[:] = [t, m] if TINY == "first" else [m, t]
        extra = """.p2align 6
.amdhsa_kernel tiny_kernel
  .amdhsa_next_free_vgpr 8
  .amdhsa_next_free_sgpr 16
  .amdhsa_accum_offset 8
  .amdhsa_group_segment_fixed_size 0
  .amdhsa_kernarg_size 112
  .amdhsa_user_sgpr_count 2
  .amdhsa_user_sgpr_kernarg_segment_ptr 1
  .amdhsa_system_sgpr_workgroup_id_x 1
.end_amdhsa_kernel
"""
    body = a.finish()
    ref = open(os.path.join(os.path.dirname(os.path.abspath(__file__)), "..", NAME + ".s.ref")).read().split("\n")
    layout = [l for l in ref if l.startswith(";") and "@launch" not in l and "Override" not in l and "grid=ceil" not in l]
    tail = f""".section .rodata,"a"
.p2align 6
.amdhsa_kernel {NAME}_kernel
  .amdhsa_next_free_vgpr 512
  .amdhsa_next_free_sgpr 102
  .amdhsa_accum_offset 256
  .amdhsa_group_segment_fixed_size 0
  .amdhsa_kernarg_size 112
  .amdhsa_user_sgpr_count 2
  .amdhsa_user_sgpr_kernarg_segment_ptr 1
  .amdhsa_system_sgpr_workgroup_id_x 1
.end_amdhsa_kernel
"""
    return "\n".join(layout + hdr + ["; generated by tools/gen.py"]) + "\n" + body + tail + extra

if __name__ == "__main__":
    kw = eval("dict(" + (sys.argv[2] if len(sys.argv) > 2 else "") + ")")
    out = sys.argv[1] if len(sys.argv) > 1 else os.path.join(os.path.dirname(os.path.abspath(__file__)), "..", NAME + ".s")
    open(out, "w").write(generate(**kw))
    print("wrote", out)
```

```python
import re

TRANS = ("v_exp_f32", "v_log_f32", "v_rcp_f32", "v_rsq_f32", "v_sqrt_f32", "v_sin_f32", "v_cos_f32")
NO_DST_S = ("s_cmp", "s_bitcmp", "s_cbranch", "s_branch", "s_waitcnt", "s_nop", "s_barrier", "s_sleep",
            "s_endpgm", "s_setprio", "s_setpc")

def regs_of(op):
    op = op.strip()
    if op.startswith("-"): op = op[1:]
    m = re.fullmatch(r"abs\((.*)\)", op)
    if m: op = m.group(1)
    m = re.fullmatch(r"([vas])(\d+)", op)
    if m: return {(m.group(1), int(m.group(2)))}
    m = re.fullmatch(r"([vas])\[(\d+):(\d+)\]", op)
    if m: return {(m.group(1), i) for i in range(int(m.group(2)), int(m.group(3)) + 1)}
    if op in ("vcc", "vcc_lo", "vcc_hi"): return {("s", "vcc")}
    if op in ("exec", "exec_lo", "exec_hi"): return {("s", "exec")}
    if op == "m0": return {("s", "m0")}
    return set()

def split_ops(s):
    out, depth, cur = [], 0, ""
    for ch in s:
        if ch in "[(": depth += 1
        if ch in "])": depth -= 1
        if ch == "," and depth == 0:
            out.append(cur.strip()); cur = ""
        else:
            cur += ch
    if cur.strip(): out.append(cur.strip())
    return out

class Ins:
    def __init__(self, text):
        self.text = text
        t = text.split(";")[0].strip()
        self.label = t[:-1] if t.endswith(":") else None
        self.op = None
        self.w, self.r = set(), set()
        self.kind = None
        if self.label or not t or t.startswith("."):
            return
        parts = t.split(None, 1)
        self.op = op = parts[0]
        ops = split_ops(parts[1]) if len(parts) > 1 else []
        mods = ""
        if ops:
            last = ops[-1].split(None, 1)
            ops[-1] = last[0]
            mods = last[1] if len(last) > 1 else ""
        self.ops, self.mods = ops, mods
        R = [regs_of(o) for o in ops]
        allr = lambda xs: set().union(*xs) if xs else set()
        self.dpp = "_dpp" in op
        if op.startswith("v_mfma"):
            self.kind = "mfma"; self.passes = 4 if "16x16" in op else 8
            self.w = R[0]; self.ab = R[1] | R[2]; self.c = R[3]; self.r = self.ab | self.c
        elif op.startswith("v_"):
            self.kind = "valu"
            self.trans = op.replace("_e32", "").replace("_e64", "") in TRANS
            if "permlane" in op or op.startswith("v_swap"):
                self.w = R[0] | R[1]; self.r = R[0] | R[1]
            elif op.startswith(("v_add_co", "v_sub_co", "v_addc_co")):
                self.w = R[0] | R[1]; self.r = allr(R[2:])
            else:
                self.w = R[0]; self.r = allr(R[1:])
                if op.startswith(("v_fmac", "v_writelane")) or "bank_mask:0x3" in mods: self.r |= R[0]
            self.dpp_src = self.r if self.dpp else set()
        elif op.startswith(("buffer_", "global_")):
            self.kind = "vmem"
            self.lds = bool(re.search(r"\blds\b", mods))
            self.wide = False
            if op in ("buffer_wbl2", "buffer_inv"): return
            if "load" in op and not self.lds:
                self.w = R[0]; self.r = allr(R[1:])
            elif "atomic" in op and re.search(r"\bsc0\b", mods):
                self.w = R[0]; self.r = allr(R if op.startswith("buffer") else R[1:])
            else:
                self.r = allr(R)
                if "store" in op and ("x4" in op or "x3" in op):
                    self.wide = True
                    self.data = R[0] if op.startswith("buffer") else R[1]
        elif op.startswith("ds_"):
            self.kind = "ds"
            if "read" in op or "permute" in op or "swizzle" in op or "_rtn" in op:
                self.w = R[0]; self.r = allr(R[1:])
            else:
                self.r = allr(R)
        elif op.startswith("s_"):
            self.kind = "salu"
            if op.startswith(NO_DST_S):
                self.r = allr(R)
            else:
                self.w = R[0]; self.r = allr(R[1:])
                if op.startswith("s_bitset"): self.r |= R[0]
                if "saveexec" in op: self.w = self.w | {("s", "exec")}
        else:
            raise ValueError("unknown instruction: " + text)

    def states(self):
        if self.op is None: return 0
        if self.op == "s_nop": return int(self.ops[0], 0) + 1
        return 1

def vec(s): return {x for x in s if x[0] in "va"}
def sca(s): return {x for x in s if x[0] == "s"}

def need(p, c):
    n = 0
    if p.kind == "valu":
        pv, ps = vec(p.w), sca(p.w)
        if c.kind == "mfma" and pv & c.r: n = max(n, 2)
        if c.kind == "valu":
            if c.dpp and pv & c.dpp_src: n = max(n, 2)
            if "permlane" in c.op and pv & c.r: n = max(n, 2)
            if c.op.startswith(("v_readlane", "v_readfirstlane")) and pv & c.r: n = max(n, 1)
            if p.trans and pv & c.r: n = max(n, 1)
            if ps & c.r: n = max(n, 4 if c.op.startswith(("v_readlane", "v_writelane")) else 2)
        if c.kind == "vmem" and ps & c.r: n = max(n, 5)
        if c.kind == "salu" and ps & c.r: n = max(n, 1)
    elif p.kind == "mfma":
        long = 8 if p.passes == 4 else 12
        if c.kind == "mfma":
            if p.w & c.ab: n = max(n, long)
            if p.w & c.c and not (p.w == c.c and p.passes == c.passes): n = max(n, long - 2)
            if p.w & c.w and not (p.w == c.c): n = max(n, long)
        elif c.kind in ("valu", "vmem", "ds"):
            if p.w & (c.r | c.w): n = max(n, long)
            if c.kind == "valu" and p.c & c.w: n = max(n, 3 if p.passes == 4 else 7)
    elif p.kind == "salu":
        if ("s", "m0") in p.w and c.kind == "vmem" and c.lds: n = max(n, 1)
    elif p.kind == "vmem":
        if p.wide and p.data & c.w: n = max(n, 2)
    return n

class Asm:
    def __init__(self):
        self.lines = []
        self.q = []
        self.uid = 0

    def __call__(self, text):
        for t in text.split("\n"):
            t = t.strip()
            if t: self.lines.append(t)

    def label(self, base):
        self.uid += 1
        return f"L_{base}_{self.uid}"

    def vm(self, text, tag):
        self(text); self.q.append(tag)

    def wait(self, tag, extra=""):
        idx = max(i for i, t in enumerate(self.q) if t == tag)
        n = len(self.q) - 1 - idx
        assert n <= 63
        self.q = self.q[idx + 1:]
        self(f"s_waitcnt vmcnt({n}){extra}")

    def finish(self):
        ins = [Ins(t) for t in self.lines]
        labels = {x.label: i for i, x in enumerate(ins) if x.label}
        jumps = {}
        for i, x in enumerate(ins):
            x.pad = 0
            if x.op and x.op.startswith(("s_cbranch", "s_branch")):
                jumps.setdefault(labels[x.ops[0]], []).append(i)
        def worst(i, c, dist, seen):
            miss = 0
            k = i - 1
            while k >= 0 and dist < 13:
                x = ins[k]
                if x.label:
                    for jmp in jumps.get(k, []):
                        if (jmp, dist) not in seen:
                            seen.add((jmp, dist))
                            miss = max(miss, worst(jmp, c, dist + 1 + ins[jmp].pad, seen))
                elif x.op:
                    if x.op in ("s_branch", "s_endpgm", "s_setpc_b64"): break
                    miss = max(miss, need(x, c) - dist)
                    dist += x.states() + x.pad
                k -= 1
            return miss
        for i, c in enumerate(ins):
            if c.op and c.op != "s_nop":
                c.pad = max(worst(i, c, 0, set()), 0)
        out = []
        for x in ins:
            if x.pad: out.append(f"    s_nop {x.pad - 1}")
            out.append(("" if x.label else "    ") + x.text)
        return "\n".join(out) + "\n"
```

```python
import sys, os, struct
sys.path.insert(0, os.path.dirname(os.path.abspath(__file__)))
from asmlib import Asm

NAME = "concat_heads__compressed_kv_cla__mha_block_cached__decode"
KB, MB = 1024, 1 << 20
WS_CT, WS_F1, WS_F2 = 64 * KB, 128 * KB, 192 * KB
WS_QP, WS_QL, WS_CS, WS_YA, WS_YB, WS_CP, WS_OP, WS_ST, WS_SIZE = 1*MB, 2*MB, 2*MB + 512*KB, 3*MB, 3*MB + 512*KB, 4*MB, 5*MB, 6*MB, 8*MB
SCALE = 128 ** -0.5 * 1.4426950408889634
LDS_EX = 128 * KB
LDS_O = LDS_EX + 16 * KB
SPIN = 1 << 20

def f32(x): return struct.unpack("<I", struct.pack("<f", x))[0]
def V(a, n=1): return f"v{a}" if n == 1 else f"v[{a}:{a+n-1}]"
def A(a, n=1): return f"a{a}" if n == 1 else f"a[{a}:{a+n-1}]"
def R(r): return f"s[{r}:{r+3}]"
DPP = "row_mask:0xf bank_mask:0xf"
FULL = (1 << 64) - 1

pAX, pCK, pAWQ, pUK, pUV, pAWO, pBX, pK, pV, pBWQ, pBWO, pOUT, pDBG, pWS = range(4, 32, 2)
sH, sP, sW, sTAG, sT0, sT1, sT2, sT3 = 32, 33, 34, 35, 36, 37, 38, 39
rW, rX, rWS, rK, rV, rUK, rOUT, rDBG = 40, 44, 48, 52, 56, 64, 72, 76
rCK = rK
sC2, sFILL, sWO = 60, 62, 63
sSELLO, sSELHI, sHI24, sC, sSPIN = 80, 81, 82, 83, 84
sU0, sU1, sTK, sROT, sBASE = 85, 86, 87, 88, 89
sM0, sQO, sMODE, sIT, sSLOT, sCKO, sYO, sOUTO = 90, 91, 92, 93, 94, 95, 96, 97
sTS = 98
sFLAG, sXT = 68, 69

MAPS = {
    'L': ([[8], [9]], [[10], [11]], [12, 13, 14, 15, 16, 17, 18, 19]),
    'A': ([[12], [13]], [[15, 8], [8]], [14, 9, 10, 11, 16, 17, 18, 19]),
    'C': ([[8], [9]], [[15], [10]], [12, 13, 14, 11, 16, 17, 18, 19]),
}

def generate(D=5, DP=7, NS=34, D2=8, MAP='C', ROTH=8, ROTW=1, NQ=2, PU=6, POLLP=36, POLLQ=20, SKL=8, PRE=1, LIGHT=2, WARM=1, HX=0,
             STAMP=False, PROBE=None, AMP=0, ABL=()):
    a = Asm()
    role = ["B"]
    if ABL:
        real_vm = a.vm
        a.vm = lambda text, tg: real_vm(text.replace(R(rWS), R(rDBG)) if tg.rstrip("0123456789") in ABL else text, tg)

    vL, vG, vJ, vT0, vT1, vT2, vT3, vTAG = 1, 2, 3, 4, 5, 6, 7, 8
    vMASK = 10
    vST0, vST1 = 16, 17

    def srd(r, p, size):
        a(f"s_mov_b32 s{r}, s{p}\ns_and_b32 s{r+1}, s{p+1}, 0xffff\ns_mov_b32 s{r+2}, {size}\ns_mov_b32 s{r+3}, 0x20000")

    def stamp(i):
        if PROBE is not None:
            if PROBE == (role[0], i): a("s_memrealtime s[100:101]\ns_waitcnt lgkmcnt(0)")
            return
        if not STAMP: return
        if i: a(f"s_memrealtime s[{sTS}:{sTS+1}]\ns_waitcnt lgkmcnt(0)")
        else: a(f"s_lshl_b32 s100, s2, 2\ns_add_u32 s100, s100, s{sW}\ns_lshl_b32 s100, s100, 6\ns_add_u32 s100, s100, {WS_ST}\nv_mov_b32 v{vST0}, s100")
        a(f"v_mov_b32 v{vST1}, s{sTS}\ns_mov_b64 s[100:101], exec\ns_mov_b64 exec, 1")
        a(f"buffer_store_dword v{vST1}, v{vST0}, {R(rWS)}, 0 offen offset:{4*i}")
        if i == 0:
            a(f"s_getreg_b32 s{sTS}, hwreg(HW_REG_XCC_ID)\nv_mov_b32 v{vST1}, s{sTS}\nbuffer_store_dword v{vST1}, v{vST0}, {R(rWS)}, 0 offen offset:60")
        a("s_mov_b64 exec, s[100:101]")

    def probe_end():
        if PROBE is None or PROBE[0] != role[0]: return
        lbl = a.label("probe")
        a(f"s_sub_u32 s100, s100, s{sTS}\ns_lshl_b32 s100, s100, {AMP}\ns_add_u32 s100, s100, s{sTS}")
        a(f"s_add_u32 s100, s100, 10000\n{lbl}:\ns_memrealtime s[{sTS}:{sTS+1}]\ns_waitcnt lgkmcnt(0)")
        a(f"s_sub_u32 s{sTS}, s{sTS}, s100\ns_cmp_lt_i32 s{sTS}, 0\ns_cbranch_scc0 {lbl}_x\ns_cmp_gt_i32 s{sTS}, -100000\ns_cbranch_scc1 {lbl}\n{lbl}_x:")

    def spin_guard(lbl_retry):
        a(f"s_sub_u32 s{sSPIN}, s{sSPIN}, 1\ns_cmp_lg_u32 s{sSPIN}, 0\ns_cbranch_scc1 {lbl_retry}\ns_branch L_end")

    def untag(regs, acc):
        for r in regs:
            a(f"v_xor_b32 v{r}, s{sTAG}, v{r}")
        a(f"v_or_b32 v{acc}, v{regs[0]}, v{regs[1]}")
        for i in range(2, len(regs), 2):
            a(f"v_or3_b32 v{acc}, v{acc}, v{regs[i]}, v{regs[i+1]}")
        a(f"v_and_b32 v{acc}, 0xff, v{acc}\nv_cmp_ne_u32 vcc, 0, v{acc}")

    def tag(regs):
        for r in regs:
            a(f"v_and_or_b32 v{r}, v{r}, s{sHI24}, v{vTAG}")

    def quadsum(dst, src, tmp):
        a(f"v_mov_b32_dpp v{dst}, v{src} quad_perm:[0,0,0,0] {DPP}")
        a(f"v_mov_b32_dpp v{tmp}, v{src+2} quad_perm:[2,2,2,2] {DPP}")
        a(f"v_add_f32_dpp v{dst}, v{src+1}, v{dst} quad_perm:[1,1,1,1] {DPP}")
        a(f"v_add_f32_dpp v{tmp}, v{src+3}, v{tmp} quad_perm:[3,3,3,3] {DPP}")
        a(f"v_add_f32 v{dst}, v{dst}, v{tmp}")

    def setexec(mask):
        if mask == FULL: a("s_mov_b64 exec, -1")
        elif mask <= 64: a(f"s_mov_b64 exec, {mask}")
        else: a(f"s_mov_b32 exec_lo, {mask & 0xffffffff:#x}\ns_mov_b32 exec_hi, {mask >> 32:#x}")

    def consts():
        a(f"s_load_dword s{sTAG}, s[{pWS}:{pWS+1}], 0")
        srd(rWS, pWS, WS_SIZE)
        if ABL: srd(rDBG, pDBG, 256)
        a(f"s_mov_b32 s{sHI24}, 0xffffff00\ns_mov_b32 s{sC}, {f32(SCALE):#x}\ns_mov_b32 s{sSPIN}, {SPIN}")
        stamp(0)

    def take_tag(flag=False):
        a(f"s_waitcnt lgkmcnt(0)\ns_add_u32 s{sTAG}, s{sTAG}, 0x5b\ns_and_b32 s{sTAG}, s{sTAG}, 0xff\nv_mov_b32 v{vTAG}, s{sTAG}")
        if flag: a(f"s_or_b32 s{sFLAG}, s{sTAG}, 0x6b3ac500")

    def signal(tg, base, tmp):
        a(f"s_lshl_b32 s{sT2}, s{sW}, 5\ns_add_u32 s{sT2}, s{sT2}, s{sH}\ns_lshl_b32 s{sT2}, s{sT2}, 8\ns_add_u32 s{sT2}, s{sT2}, {base}")
        a(f"v_mov_b32 v{tmp}, s{sT2}\nv_mov_b32 v{tmp+1}, s{sFLAG}")
        if tg in a.q: a.wait(tg)
        setexec(1)
        a.vm(f"buffer_store_dword v{tmp+1}, v{tmp}, {R(rWS)}, 0 offen sc1", "SIG")
        setexec(FULL)

    hdr = [f"; @launch grid=(256,1,1) block=(256,1,1) lds={160*KB}"]
    a(f'.amdgcn_target "amdgcn-amd-amdhsa--gfx950"\n.text\n.globl {NAME}_kernel\n.p2align 8\n.type {NAME}_kernel,@function')
    a(f"{NAME}_kernel:")
    if STAMP or PROBE is not None: a(f"s_memrealtime s[{sTS}:{sTS+1}]")
    a("s_cmp_ge_u32 s2, 256\ns_cbranch_scc1 L_end")
    a("s_load_dwordx16 s[4:19], s[0:1], 0\ns_load_dwordx8 s[20:27], s[0:1], 64\ns_load_dwordx4 s[28:31], s[0:1], 96")
    a(f"v_lshrrev_b32 v{vT0}, 6, v0\nv_and_b32 v{vL}, 63, v0\nv_readfirstlane_b32 s{sW}, v{vT0}")
    a(f"s_lshr_b32 s{sH}, s2, 3\ns_sub_u32 s{sP}, s2, s{sH}\ns_sub_u32 s{sP}, s{sP}, 1\ns_and_b32 s{sP}, s{sP}, 7")
    if HX: a(f"s_xor_b32 s{sH}, s{sH}, {HX}")
    if WARM:
        a(f"s_getpc_b64 s[{sT0}:{sT0+1}]\nL_pc:\ns_lshl_b32 s{sT2}, s{sH}, 10\nv_lshl_add_u32 v{vT2}, v0, 2, s{sT2}")
        a(f"v_mov_b32 v{vT3}, s{sT0+1}\nv_add_co_u32 v{vT2}, vcc, s{sT0}, v{vT2}\nv_addc_co_u32 v{vT3}, vcc, 0, v{vT3}, vcc")
        a(f"global_load_dword v0, v[{vT2}:{vT3}], off")
    a(f"v_lshrrev_b32 v{vG}, 4, v{vL}\nv_and_b32 v{vJ}, 15, v{vL}")
    a(f"s_cmp_lt_u32 s{sP}, {NQ}\ns_cbranch_scc1 L_qb\ns_cmp_eq_u32 s{sP}, 2\ns_cbranch_scc1 L_ql\ns_cmp_eq_u32 s{sP}, 7\ns_cbranch_scc1 L_aux")

    vCA, vONE, vTK = 9, 18, 19
    vOW, vOX = 14, 15
    vX, vB, vACC, vQ = 20, 52, 60, 68
    vOK, vOQ, vOP, vOV = 76, 78, 79, 126
    vBQ, vPB = 80, 96
    vS, vO = 112, 116
    vMC, vLS, vSC, vP, vU0, vU1 = 120, 121, 122, 123, 124, 125
    RING = 128
    A0, A1 = 0, 128
    gv, tv, ub = MAPS[MAP] if isinstance(MAP, str) else MAP
    mk = lambda bits: sum(1 << b for b in bits)
    sup = set(sum(gv + tv, []))
    XOR = len(sup) > 4
    basis = []
    for r_ in [mk(v) for v in gv + tv] + [1 << b for b in ub]:
        for b_ in basis: r_ = min(r_, r_ ^ b_)
        assert r_, "key mapping is not a bijection"
        basis.append(r_)
    assert sup | set(ub) == set(range(8, 20))
    tval = [(mk(tv[0]) if t & 1 else 0) ^ (mk(tv[1]) if t & 2 else 0) for t in range(4)]
    gmask = mk(gv[0]) | mk(gv[1])
    timm = [v & 0xfff & ~gmask for v in tval]
    treg = sorted(set(v ^ i for v, i in zip(tval, timm)))
    tidx = [treg.index(v ^ i) for v, i in zip(tval, timm)]
    XOR = XOR or len(treg) > 2
    vAX = vOK + 1
    runs = []
    for i, b in enumerate(ub):
        if runs and runs[-1][1] + runs[-1][2] == b: runs[-1][2] += 1
        else: runs.append([i, b, 1])
    SKQ = 4 // NQ
    NTAIL = 256 - 7 * NS
    NDYN = NTAIL + SKL + 4
    assert NQ in (1, 2) and NS % 2 == 0 and PU % 2 == 0 and SKL % 2 == 0 and NTAIL >= 0 and 5 <= D2 <= 8 and 4 <= D <= D2

    def kv_setup(skip):
        a(f"v_lshrrev_b32 v{vT0}, 2, v{vJ}\nv_and_b32 v{vT1}, 3, v{vJ}")
        for dst, sel in ((vOK, vT0), (vOV, vG)):
            if len(gv[0]) == 1 and gv[1] == [gv[0][0] + 1]:
                a(f"v_lshlrev_b32 v{dst}, {gv[0][0]}, v{sel}")
            else:
                a(f"v_and_b32 v{vT2}, 1, v{sel}\nv_mul_u32_u24 v{vT2}, {mk(gv[0])}, v{vT2}\nv_lshrrev_b32 v{vT3}, 1, v{sel}\nv_mul_u32_u24 v{vT3}, {mk(gv[1])}, v{vT3}\nv_xor_b32 v{dst}, v{vT2}, v{vT3}")
        a(f"v_lshl_add_u32 v{vOK}, v{vG}, 6, v{vOK}\nv_lshl_add_u32 v{vOK}, v{vT1}, 4, v{vOK}\nv_lshl_add_u32 v{vOV}, v{vJ}, 4, v{vOV}")
        if len(treg) == 2 and not XOR:
            a(f"v_xor_b32 v{vOK+1}, {treg[1]}, v{vOK}\nv_xor_b32 v{vOV+1}, {treg[1]}, v{vOV}")
        a(f"s_lshl_b32 s{sBASE}, s{sW}, 5\ns_add_u32 s{sBASE}, s{sBASE}, s{sH}\ns_lshl_b32 s{sBASE}, s{sBASE}, 20")
        a(f"s_mul_i32 s{sROT}, s{sH}, {ROTH}\ns_mul_i32 s{sT2}, s{sW}, {ROTW}\ns_add_u32 s{sROT}, s{sROT}, s{sT2}")
        a(f"s_add_u32 s{sTK}, s{sP}, {7*skip}")

    def masks():
        a(f"v_and_b32 v{vT0}, 1, v{vL}\nv_lshlrev_b32 v{vT0}, 4, v{vT0}\nv_mov_b32 v{vT1}, 0xffff\nv_lshlrev_b32 v{vT0}, v{vT0}, v{vT1}")
        a(f"v_bfe_u32 v{vT1}, v{vL}, 1, 2")
        for r in range(4):
            a(f"v_cmp_eq_u32 vcc, {r}, v{vT1}\nv_cndmask_b32 v{vMASK+r}, 0, v{vT0}, vcc")

    def kv_late():
        a(f"v_mov_b32 v{vMC}, 0xff7f0000\nv_mov_b32 v{vLS}, 0\nv_mov_b32 v{vONE}, 1")
        for r in range(4): a(f"v_mov_b32 v{vO+r}, 0")
        a(f"s_lshl_b32 s{sT2}, s{sH}, 2\ns_add_u32 s{sT2}, s{sT2}, s{sW}\ns_lshl_b32 s{sT2}, s{sT2}, 8\ns_add_u32 s{sT2}, s{sT2}, {WS_CT}\nv_mov_b32 v{vCA}, s{sT2}")
        a(f"v_and_b32 v{vT1}, 3, v{vJ}\nv_lshlrev_b32 v{vOQ}, 7, v{vG}\nv_lshl_add_u32 v{vOQ}, v{vT1}, 5, v{vOQ}")
        if NQ == 2: a(f"v_bfe_u32 v{vT0}, v{vJ}, 2, 1\nv_lshl_add_u32 v{vOQ}, v{vT0}, 11, v{vOQ}")
        a(f"s_lshl_b32 s{sQO}, s{sH}, 12\ns_lshl_b32 s{sT2}, s{sW}, 9\ns_add_u32 s{sQO}, s{sQO}, s{sT2}\ns_add_u32 s{sQO}, s{sQO}, {WS_QP}")
        a(f"v_lshlrev_b32 v{vT0}, 7, v{vG}\nv_lshl_add_u32 v{vT0}, v{vJ}, 4, v{vT0}\nv_mov_b32 v{vT1}, 512")
        a(f"v_cmp_gt_u32 vcc, 8, v{vJ}\nv_cndmask_b32 v{vOP}, v{vT1}, v{vT0}, vcc")

    def unit_addr(dst):
        a(f"s_add_u32 s{sT3}, s{sTK}, s{sROT}")
        for n, (i, b, w) in enumerate(runs):
            if XOR and n == 0:
                a(f"s_bfe_u32 s{sT1}, s{sT3}, {i | (w << 16):#x}\ns_lshl_b32 s{dst}, s{sT1}, {b}")
            else:
                a(f"s_bfe_u32 s{sT1}, s{sT3}, {i | (w << 16):#x}\ns_lshl_b32 s{sT1}, s{sT1}, {b}\ns_add_u32 s{dst}, s{sT1}, s{dst if n else sBASE}")

    def slot(i): return V(RING + 4*i, 4) if i < 32 else A(4*(i - 32), 4)

    def kv_load(sl, r, base, tg):
        isv = r >= 4
        if XOR:
            if tval[r%4]: a(f"s_xor_b32 s{sXT}, s{base}, {tval[r%4]}")
            a(f"v_xor_b32 v{vAX}, s{sXT if tval[r%4] else base}, v{vOV if isv else vOK}")
            a.vm(f"buffer_load_dwordx4 {slot(sl)}, v{vAX}, {R(rV if isv else rK)}, s{sBASE} offen nt", tg)
            return
        a.vm(f"buffer_load_dwordx4 {slot(sl)}, v{(vOV if isv else vOK) + tidx[r%4]}, {R(rV if isv else rK)}, s{base} offen offset:{timm[r%4]} nt", tg)

    def softmax_part():
        quadsum(vSC, vS, vU0)
        skip = a.label("nomax")
        a(f"v_fma_f32 v{vP}, v{vSC}, s{sC}, -v{vMC}\nv_cmp_lt_f32 vcc, 0, v{vP}\ns_cbranch_vccz {skip}")
        a(f"v_mul_f32 v{vSC}, s{sC}, v{vSC}")
        a(f"v_max_f32_dpp v{vU0}, v{vSC}, v{vSC} row_ror:4 {DPP}")
        a(f"v_max_f32_dpp v{vU0}, v{vU0}, v{vU0} row_ror:8 {DPP}")
        a(f"v_mov_b32 v{vU1}, v{vU0}\nv_permlane16_swap_b32 v{vU0}, v{vU1}\nv_max_f32 v{vU0}, v{vU0}, v{vU1}")
        a(f"v_mov_b32 v{vU1}, v{vU0}\nv_permlane32_swap_b32 v{vU0}, v{vU1}\nv_max_f32 v{vU0}, v{vU0}, v{vU1}")
        a(f"v_and_b32 v{vU0}, s{sHI24}, v{vU0}\nv_max_f32 v{vU0}, v{vU0}, v{vMC}")
        a(f"v_sub_f32 v{vU1}, v{vMC}, v{vU0}\nv_exp_f32 v{vU1}, v{vU1}\nv_mov_b32 v{vMC}, v{vU0}\nv_sub_f32 v{vP}, v{vSC}, v{vU0}")
        a(f"v_mul_f32 v{vLS}, v{vLS}, v{vU1}")
        for r in range(4):
            a(f"v_mul_f32 v{vO+r}, v{vO+r}, v{vU1}")
        a(f"{skip}:")
        a(f"v_exp_f32 v{vP}, v{vP}")
        a(f"v_cvt_pk_bf16_f32 v{vU0}, v{vP}, v{vP}\nv_add_f32 v{vLS}, v{vLS}, v{vP}")
        for t in range(4):
            for r in range(4):
                a(f"v_and_b32_dpp v{vPB+4*t+r}, v{vU0}, v{vMASK+r} row_newbcast:{4*t} {DPP}")

    def consume(sl, r, filler=None):
        if r < 4:
            c = V(vS, 4) if r else "0"
            a(f"v_mfma_f32_16x16x32_bf16 {V(vS,4)}, {slot(sl)}, {V(vBQ+4*r,4)}, {c}")
            if r == 3:
                if filler: filler()
                softmax_part()
        else:
            a(f"v_mfma_f32_16x16x32_bf16 {V(vO,4)}, {slot(sl)}, {V(vPB+4*(r-4),4)}, {V(vO,4)}")

    def q_poll():
        for i in range(2):
            a.vm(f"buffer_load_dwordx4 {V(vQ+4*i,4)}, v{vOQ}, {R(rWS)}, s{sQO} offen offset:{16*i} sc1", "Q")

    class Start:
        def __init__(self, pu): self.pu, self.n = pu, 0
        def load(self):
            n = self.n; self.n += 1
            if n % 8 == 0:
                if n: a(f"s_add_u32 s{sTK}, s{sTK}, 7")
                unit_addr(sU0)
            kv_load(n % (8*self.pu), n % 8, sU0, f"P{n}")
        def paced(self, depth):
            if f"P{self.n - depth}" in a.q: a.wait(f"P{self.n - depth}")
            self.load()
        def until_q(self, pollat):
            while self.n < pollat: self.paced(DP)
            q_poll()
            while self.n < min(pollat + DP - 1, 8*self.pu): self.paced(DP)
        def finish(self):
            if "Q" in a.q: a.wait("Q")
            chk, ok = a.label("qcheck"), a.label("qok")
            a(f"{chk}:")
            untag(list(range(vQ, vQ+8)), vT0)
            a(f"s_cbranch_vccz {ok}" if not ({"QPst", "Q"} & set(ABL)) else f"s_branch {ok}")
            saved = list(a.q)
            q_poll()
            a("s_waitcnt vmcnt(0)")
            spin_guard(chk)
            a.q = saved
            a(f"{ok}:")
            stamp(2)
            if NQ == 2:
                for i in range(8):
                    a(f"v_add_f32_dpp v{vQ+i}, v{vQ+i}, v{vQ+i} row_ror:4 {DPP}")
            for r in range(4):
                a(f"v_cvt_pk_bf16_f32 v{vQ+r}, v{vQ+2*r}, v{vQ+2*r+1}")
            for t in range(4):
                m = 0x000f000f << (4*t)
                a(f"s_mov_b32 vcc_lo, {m:#x}\ns_mov_b32 vcc_hi, {m:#x}")
                for r in range(4):
                    a(f"v_cndmask_b32 v{vBQ+4*t+r}, 0, v{vQ+r}, vcc")
            N = 8 * self.pu
            first, todo = self.n, N + D - self.n
            for c in range(N):
                want = first + (todo * (c + 1) + N - 1) // N
                while self.n < want and self.n - N < c:
                    self.paced(DP if self.n < N else max(D, DP - 1))
                if f"P{c}" in a.q: a.wait(f"P{c}")
                consume(c, c % 8)
            while self.n < N + D: self.paced(DP)
            a(f"s_add_u32 s{sTK}, s{sTK}, 7")
            unit_addr(sU1)
            stamp(3)

    def xw_setup(nt, pw, px, first_row_sh):
        lg = nt.bit_length() - 1
        a(f"v_lshlrev_b32 v{vT0}, {13+lg}, v{vG}\nv_lshl_add_u32 v{vOW}, v{vJ}, 4, v{vT0}")
        a(f"v_lshrrev_b32 v{vT1}, 3, v{vJ}\nv_lshlrev_b32 v{vT1}, 10, v{vT1}\nv_lshl_add_u32 v{vOX}, v{vG}, {1+lg}, v{vT1}")
        if first_row_sh: a(f"s_lshl_b32 s{sT0}, s{sP}, 2\ns_add_u32 s{sT0}, s{sT0}, s{sW}")
        else: a(f"s_mov_b32 s{sT0}, s{sW}")
        a(f"s_lshl_b32 s{sT1}, s{sT0}, {3+lg}\ns_lshl_b32 s{sWO}, s{sT0}, {15+lg}\ns_lshl_b32 s{sT2}, s{sH}, 8\ns_add_u32 s{sWO}, s{sWO}, s{sT2}")
        a(f"s_mov_b32 s{rW+2}, {4*MB}\ns_mov_b32 s{rW+3}, 0x20000\ns_mov_b32 s{rX+2}, 4096\ns_mov_b32 s{rX+3}, 0x20000")
        a("s_waitcnt lgkmcnt(0)")
        a(f"s_mov_b64 s[{rW}:{rW+1}], s[{pw}:{pw+1}]\ns_mov_b64 s[{rX}:{rX+1}], s[{px}:{px+1}]")

    def w_load(t):
        a.vm(f"buffer_load_dwordx4 {A(A1+4*t,4)}, v{vOW}, {R(rW)}, s{sWO} offen nt", f"W{t}")
        a(f"s_add_u32 s{sWO}, s{sWO}, 8192")

    def x_loads(nt):
        for u in range(2):
            for i in range(nt // 8):
                a.vm(f"buffer_load_dwordx4 {V(vX+nt//2*u+4*i,4)}, v{vOX}, {R(rX)}, s{sT1} offen offset:{2048*u+16*i}", "X")

    def xw_compute(nt, next_load):
        a(f"s_mov_b32 s{sSELLO}, 0x01000100\ns_mov_b32 s{sSELHI}, 0x03020302")
        for t in range(nt):
            if t == 0: a.wait("X")
            if f"W{t}" in a.q: a.wait(f"W{t}")
            next_load()
            for u in range(2):
                x = vX + nt//2*u + (t >> 1)
                a(f"v_perm_b32 v{vT0+u}, v{x}, v{x}, s{sSELHI if t & 1 else sSELLO}")
            for u in range(2):
                for r in range(4):
                    a(f"v_and_b32 v{vB+4*u+r}, v{vT0+u}, v{vMASK+r}")
            for u in range(2):
                c = V(vACC+4*u, 4) if t else "0"
                a(f"v_mfma_f32_16x16x32_bf16 {V(vACC+4*u,4)}, {A(A1+4*t,4)}, {V(vB+4*u,4)}, {c}")
        a(f"s_lshl_b32 s{sT2}, s{sW}, 11")
        a(f"v_lshrrev_b32 v{vT0}, 3, v{vJ}\nv_lshlrev_b32 v{vT0}, 9, v{vT0}\nv_lshl_add_u32 v{vT0}, v{vG}, 7, v{vT0}")
        a(f"v_and_b32 v{vT1}, 7, v{vJ}\nv_lshl_add_u32 v{vT0}, v{vT1}, 2, v{vT0}\nv_add_u32 v{vT0}, s{sT2}, v{vT0}")
        for u in range(2):
            for r in range(4):
                a(f"ds_write_b32 v{vT0}, v{vACC+4*u+r} offset:{u*1024+r*32}")

    kv_setup(0)
    a(f"s_mov_b32 s{rK+2}, {128*MB}\ns_mov_b32 s{rK+3}, 0x20000\ns_mov_b32 s{rV+2}, {128*MB}\ns_mov_b32 s{rV+3}, 0x20000")
    a(f"s_waitcnt lgkmcnt(0)\ns_mov_b64 s[{rK}:{rK+1}], s[{pK}:{pK+1}]\ns_mov_b64 s[{rV}:{rV+1}], s[{pV}:{pV+1}]")
    st = Start(PU)
    for _ in range(DP): st.load()
    consts(); masks(); kv_late()
    stamp(1)
    st.until_q(POLLP)
    take_tag()
    st.finish()

    plan = {r: [r + D] for r in range(8)}
    if PRE:
        plan[3] = [3 + D, 4 + D]; plan[4] = []
    a("L_bloop:")
    for half in range(2):
        cur, nxt = (sU0, sU1) if half == 0 else (sU1, sU0)
        issued = D
        for r in range(8):
            a(f"s_waitcnt vmcnt({issued - r - 1})")
            for n in plan[r]:
                kv_load((half*8 + n) % 16, n % 8, cur if n < 8 else nxt, "loop")
                issued += 1
            def filler():
                a(f"s_add_u32 s{sTK}, s{sTK}, 7")
                unit_addr(cur)
            consume(half*8 + r, r, filler)
    a(f"s_cmp_lt_u32 s{sTK}, {7*(NS-1)}\ns_cbranch_scc1 L_bloop")
    for n in range(D, D2): kv_load(n, n, sU0, "loop")
    a(f"s_sub_u32 s{sT1}, s{sTK}, {7*NS}\nv_mov_b32 v{vTK}, s{sT1}")
    a("L_dloop:")
    for half in range(2):
        cur, nxt = (sU0, sU1) if half == 0 else (sU1, sU0)
        for r in range(8):
            n = r + D2
            a(f"s_waitcnt vmcnt({D2-1})")
            if n == 8:
                a(f"v_readfirstlane_b32 s{sIT}, v{vTK}")
                a(f"s_sub_u32 s{sT0}, s{sIT}, {NTAIL + SKL}")
                if NQ == 2:
                    a(f"s_lshr_b32 s{sT2}, s{sT0}, 1\ns_mul_i32 s{sT2}, s{sT2}, 5\ns_add_u32 s{sT2}, s{sT2}, s{sT0}")
                else:
                    a(f"s_mul_i32 s{sT2}, s{sT0}, 7")
                a(f"s_mul_i32 s{sTK}, s{sT0}, 7\ns_add_u32 s{sTK}, s{sTK}, {7*SKL + 2}\ns_cmp_lt_i32 s{sT0}, 0\ns_cselect_b32 s{sTK}, s{sTK}, s{sT2}")
                a(f"s_add_u32 s{sT2}, s{sIT}, {7*NS}\ns_cmp_lt_i32 s{sIT}, {NTAIL}\ns_cselect_b32 s{sTK}, s{sT2}, s{sTK}")
                a(f"s_add_u32 s{sIT}, s{sIT}, 8")
                unit_addr(nxt)
                a(f"s_cmp_ge_u32 s{sIT}, {NDYN + 8}\ns_cselect_b32 s{nxt}, {128*MB}, s{nxt}")
            if n == 16 - D2:
                skip = a.label("noclaim")
                a(f"v_mov_b32 v{vTK}, {NDYN}\ns_cmp_ge_u32 s{sIT}, {NDYN + 7}\ns_cbranch_scc1 {skip}")
                setexec(1)
                if "2x" in ABL: a(f"global_atomic_add v{vCA}, v{vONE}, s[{pWS}:{pWS+1}] offset:128 sc1")
                a(f"global_atomic_add v{vTK}, v{vCA}, v{vONE}, s[{pWS}:{pWS+1}] sc0 sc1")
                setexec(FULL)
                a(f"{skip}:")
            kv_load((half*8 + n) % 16, n % 8, cur if n < 8 else nxt, "loop")
            consume(half*8 + r, r)
        a(f"s_cmp_ge_u32 s{sIT}, {NDYN + 8}")
        a("s_cbranch_scc1 L_bdone" if half == 0 else "s_cbranch_scc0 L_dloop")
    a("L_bdone:")
    a(f"v_add_f32_dpp v{vLS}, v{vLS}, v{vLS} row_ror:8 {DPP}")
    a(f"s_lshl_b32 s{sT2}, s{sH}, 2\ns_add_u32 s{sT2}, s{sT2}, s{sW}")
    a(f"v_add_f32_dpp v{vLS}, v{vLS}, v{vLS} row_ror:4 {DPP}")
    a(f"v_mov_b32 v{vU1}, v{vLS}")
    a(f"s_lshl_b32 s{sT2}, s{sT2}, 3\ns_add_u32 s{sT2}, s{sT2}, s{sP}")
    a(f"v_permlane16_swap_b32 v{vLS}, v{vU1}\nv_add_f32 v{vLS}, v{vLS}, v{vU1}\nv_mov_b32 v{vU1}, v{vLS}")
    a(f"s_lshl_b32 s{sT2}, s{sT2}, 10\ns_add_u32 s{sT2}, s{sT2}, {WS_OP}")
    a(f"v_permlane32_swap_b32 v{vLS}, v{vU1}")
    setexec(1 << 8)
    a(f"v_add_f32 v{vO+1}, v{vLS}, v{vU1}\nv_mov_b32 v{vO}, v{vMC}")
    setexec(0x00ff00ff00ff01ff)
    tag(range(vO, vO+4))
    a.vm(f"buffer_store_dwordx4 {V(vO,4)}, v{vOP}, {R(rWS)}, s{sT2} offen sc1", "OPst")
    stamp(4)
    probe_end()
    a("s_endpgm")

    a("L_qb:")
    a.q = []
    NT = 32 // NQ
    xw_setup(NT, pBWQ, pBX, NQ == 2)
    w_load(0); w_load(1); x_loads(NT)
    for t in range(2, 8): w_load(t)
    consts(); masks(); kv_setup(SKQ); srd(rK, pK, 128*MB); srd(rV, pV, 128*MB); kv_late()
    a(f"v_mov_b32 v{vTK}, 0\ns_cmp_eq_u32 s{sP}, 0\ns_cselect_b32 s{sT2}, 0, {WS_SIZE}")
    setexec(1)
    a.vm(f"buffer_store_dword v{vTK}, v{vCA}, {R(rWS)}, s{sT2} offen sc1", "INIT")
    setexec(FULL)
    st = Start(4)
    todo = [lambda t=t: w_load(t) for t in range(8, NT)] + [lambda: None] * (8 - DP) + [st.load] * DP
    xw_compute(NT, lambda: todo.pop(0)())
    a(f"s_lshl_b32 s{sT2}, s{sW}, 9\nv_and_b32 v{vT1}, 31, v{vL}\nv_lshl_add_u32 v{vT1}, v{vT1}, 4, s{sT2}")
    take_tag()
    a("s_barrier")
    for p in range(4):
        a(f"ds_read_b128 {V(vX+4*p,4)}, v{vT1} offset:{p*2048}")
    a(f"s_lshl_b32 s{sT2}, s{sH}, 1\ns_add_u32 s{sT2}, s{sT2}, s{sP}\ns_lshl_b32 s{sT2}, s{sT2}, 11\ns_add_u32 s{sT2}, s{sT2}, {WS_QP}")
    a("s_waitcnt lgkmcnt(0)")
    for r in range(4):
        a(f"v_add_f32 v{vX+r}, v{vX+r}, v{vX+4+r}\nv_add_f32 v{vX+8+r}, v{vX+8+r}, v{vX+12+r}")
    for r in range(4):
        a(f"v_add_f32 v{vX+r}, v{vX+r}, v{vX+8+r}")
    tag(range(vX, vX+4))
    assert "INIT" not in a.q
    setexec(0xffffffff)
    a.vm(f"buffer_store_dwordx4 {V(vX,4)}, v{vT1}, {R(rWS)}, s{sT2} offen sc1", "QPst")
    setexec(FULL)
    stamp(1)
    st.until_q(POLLQ)
    st.finish()
    a("s_branch L_bloop")

    a("L_ql:")
    a.q = []
    vOU, sUK = vTK, sCKO
    xw_setup(32, pAWQ, pAX, False)
    a(f"s_mov_b32 s{sUK}, s{sWO}")
    w_load(0); w_load(1); x_loads(32)
    for t in range(2, 8): w_load(t)
    consts(); masks(); kv_setup(SKL); srd(rK, pK, 128*MB); srd(rV, pV, 128*MB); kv_late()
    srd(rUK, pUK, 4*MB)
    a(f"v_lshrrev_b32 v{vT0}, 2, v{vJ}\nv_and_b32 v{vT1}, 3, v{vJ}")
    a(f"v_lshlrev_b32 v{vOU}, 18, v{vT0}\nv_lshl_add_u32 v{vOU}, v{vG}, 6, v{vOU}\nv_lshl_add_u32 v{vOU}, v{vT1}, 4, v{vOU}")
    def uk_load(t):
        a.vm(f"buffer_load_dwordx4 {A(A0+4*t,4)}, v{vOU}, {R(rUK)}, s{sUK} offen nt", f"UK{t}")
        a(f"s_add_u32 s{sUK}, s{sUK}, 8192")
    st = Start(2)
    todo = [lambda t=t: w_load(t) for t in range(8, 32)] + [lambda t=t: uk_load(t) for t in range(32)] + [q_poll] + [st.load] * 16
    nxt_load = lambda: todo.pop(0)()
    xw_compute(32, nxt_load)
    a(f"v_lshrrev_b32 v{vT0}, 2, v{vJ}\nv_and_b32 v{vT1}, 3, v{vJ}")
    a(f"v_lshlrev_b32 v{vT2}, 9, v{vT0}\nv_lshl_add_u32 v{vT2}, v{vG}, 7, v{vT2}\nv_lshl_add_u32 v{vT2}, v{vT1}, 5, v{vT2}")
    nxt_load()
    take_tag(True)
    a("s_barrier")
    for p in range(4):
        for i in range(2):
            a(f"ds_read_b128 {V(vX+8*p+4*i,4)}, v{vT2} offset:{p*2048+16*i}")
    nxt_load()
    a(f"v_lshlrev_b32 v{vT2}, 15, v{vT0}\nv_lshl_add_u32 v{vT2}, v{vG}, 6, v{vT2}\nv_lshl_add_u32 v{vT2}, v{vT1}, 4, v{vT2}")
    a(f"s_lshl_b32 s{sT0}, s{sH}, 10\ns_lshl_b32 s{sT2}, s{sW}, 8\ns_add_u32 s{sT0}, s{sT0}, s{sT2}\ns_add_u32 s{sT0}, s{sT0}, {WS_QL}")
    a("s_waitcnt lgkmcnt(0)")
    for i in range(8):
        a(f"v_add_f32 v{vX+i}, v{vX+i}, v{vX+16+i}\nv_add_f32 v{vX+8+i}, v{vX+8+i}, v{vX+24+i}")
    for i in range(8):
        a(f"v_add_f32 v{vX+i}, v{vX+i}, v{vX+8+i}")
    for r in range(4):
        a(f"v_cvt_pk_bf16_f32 v{vB+r}, v{vX+2*r}, v{vX+2*r+1}")
    vD, vR, vPK = 192, 208, 240
    fold = lambda t: quadsum(vR+t, vD + 4*(t % 4), vT0)
    for t in range(32):
        if f"UK{t}" in a.q: a.wait(f"UK{t}")
        nxt_load()
        a(f"v_mfma_f32_16x16x32_bf16 {V(vD+4*(t%4),4)}, {A(A0+4*t,4)}, {V(vB,4)}, 0")
        if t >= 2: fold(t - 2)
    fold(30); fold(31)
    for i in range(16):
        a(f"v_cvt_pk_bf16_f32 v{vPK+i}, v{vR+2*i}, v{vR+2*i+1}")
    for q in range(1, 4):
        setexec(0x1111111111111111 << q)
        for r in range(4):
            a(f"v_mov_b32 v{vPK+r}, v{vPK+4*q+r}")
    setexec(FULL)
    a.vm(f"buffer_store_dwordx4 {V(vPK,4)}, v{vT2}, {R(rWS)}, s{sT0} offen sc1", "QLst")
    while st.n < 16: st.paced(DP)
    signal("QLst", WS_F1, vD)
    stamp(1)
    st.finish()
    a("s_branch L_bloop")

    a("L_aux:")
    role[0] = "A"
    a.q = []
    vOR8, vOR1 = 19, 9
    vOC, vOC8 = 76, 10
    vAQ, vAP = 80, 81
    vAD = 82
    vM, vLL, vAL, vEX = 90, 91, 92, 94
    vWR = 96
    vTRB, vZ, vL2 = 95, 100, 102
    vQL, vCT, vSS = 104, 136, 200
    vKA, vPP, vE1, vE2 = 20, 52, 60, 216
    vTA = 136
    a(f"v_lshlrev_b32 v{vT0}, 2, v{vG}\nv_xor_b32 v{vT0}, v{vT0}, v{vJ}")
    for i in range(4):
        a(f"v_xor_b32 v{vWR+i}, {i}, v{vT0}\nv_lshlrev_b32 v{vWR+i}, 4, v{vWR+i}\nv_lshl_add_u32 v{vOC8+i}, v{vG}, 13, v{vWR+i}")
        if i: a(f"v_add_u32 v{vOC8+i}, {i*(32768-1024)}, v{vOC8+i}")
    a(f"s_lshl_b32 s{sM0}, s{sW}, 15\ns_mov_b32 s{sFILL}, 0\ns_mov_b32 s{sSLOT}, 0")
    a(f"s_lshl_b32 s{sCKO}, s{sW}, 20\ns_lshl_b32 s{sT2}, s{sH}, 8\ns_add_u32 s{sCKO}, s{sCKO}, s{sT2}")
    a("s_waitcnt lgkmcnt(0)")
    srd(rCK, pUV, 4*MB)
    def ck_one(n, tg, offs=vOC, step=16384):
        if n % 4 == 0:
            a(f"s_add_u32 s{sT3}, s{sM0}, s{sFILL}\ns_mov_b32 m0, s{sT3}")
            a(f"s_add_u32 s{sFILL}, s{sFILL}, 4096\ns_and_b32 s{sFILL}, s{sFILL}, 0x7fff")
        a.vm(f"buffer_load_dwordx4 v{offs+n%4}, {R(rCK)}, s{sCKO} offen offset:{(n%4)*1024} nt lds", tg)
        if n % 4 == 3:
            a(f"s_add_u32 s{sCKO}, s{sCKO}, {step}")
    for n in range(8): ck_one(n, "UV0", vOC8, 16*8192)
    consts()
    srd(rOUT, pOUT, 8192)
    for i in range(4):
        a(f"v_lshl_add_u32 v{vOC+i}, v{vG}, 10, v{vWR+i}\nv_lshl_add_u32 v{vWR+i}, v{vG}, 8, v{vWR+i}")
        if i: a(f"v_add_u32 v{vOC+i}, {i*3072}, v{vOC+i}")
    a(f"v_mov_b32 v{vZ}, 0\nv_and_b32 v{vZ+1}, 31, v{vL}\ns_lshl_b32 s{sT2}, s{sW}, 13\nv_lshl_add_u32 v{vZ+1}, v{vZ+1}, 8, s{sT2}")
    a(f"v_lshlrev_b32 v{vT0}, 4, v{vJ}\nv_lshl_add_u32 v{vOR8}, v{vG}, 13, v{vT0}\nv_lshl_add_u32 v{vOR1}, v{vG}, 10, v{vT0}")
    a(f"s_lshl_b32 s{sWO}, s{sH}, 17\ns_lshl_b32 s{sT2}, s{sW}, 8\ns_add_u32 s{sWO}, s{sWO}, s{sT2}")
    vB1 = vAD
    a(f"v_and_b32 v{vT0}, 3, v{vL}\nv_bfe_u32 v{vT1}, v{vL}, 2, 2\nv_lshrrev_b32 v{vT2}, 5, v{vL}")
    a(f"v_lshl_add_u32 v{vT3}, v{vT0}, 2, v{vT1}\nv_xor_b32 v{vT3}, v{vT3}, v{vT2}\nv_lshlrev_b32 v{vT3}, 4, v{vT3}")
    a(f"v_and_b32 v{vAQ}, 31, v{vL}\nv_lshl_add_u32 v{vAQ}, v{vAQ}, 8, v{vT3}")
    a(f"v_lshl_add_u32 v{vAP}, v{vT2}, 2, v{vT1}\nv_lshlrev_b32 v{vAP}, 8, v{vAP}\nv_lshl_add_u32 v{vAP}, v{vT1}, 6, v{vAP}")
    a(f"v_bfe_u32 v{vT3}, v{vL}, 4, 1\nv_lshlrev_b32 v{vT3}, 1, v{vT3}\nv_bfe_u32 v{vB1}, v{vL}, 1, 1\nv_add_u32 v{vT3}, v{vT3}, v{vB1}")
    a(f"v_xor_b32 v{vT3}, v{vT3}, v{vT2}\nv_lshl_add_u32 v{vAP}, v{vT3}, 4, v{vAP}")
    a(f"v_and_b32 v{vT3}, 1, v{vL}\nv_lshl_add_u32 v{vAP}, v{vT3}, 3, v{vAP}")
    a(f"v_lshl_add_u32 v{vTRB}, v{vG}, 3, v{vT1}\nv_lshlrev_b32 v{vTRB}, 8, v{vTRB}\nv_lshl_add_u32 v{vTRB}, v{vT1}, 6, v{vTRB}")
    a(f"v_bfe_u32 v{vT0}, v{vL}, 4, 1\nv_lshl_add_u32 v{vT0}, v{vT0}, 1, v{vB1}\nv_lshl_add_u32 v{vTRB}, v{vT0}, 4, v{vTRB}")
    a(f"v_lshl_add_u32 v{vTRB}, v{vT3}, 3, v{vTRB}\nv_add_u32 v{vTRB}, s{sM0}, v{vTRB}")
    for i in range(16):
        a(f"v_xor_b32 v{vTA+i}, {16*i}, v{vTRB}")
    a(f"s_lshl_b32 s{sU0}, s{sW}, 13\ns_add_u32 s{sU0}, s{sU0}, {LDS_EX}\nv_lshl_add_u32 v{vEX}, v{vL}, 4, s{sU0}")
    for i in range(4):
        a(f"v_add_u32 v{vWR+i}, s{sU0}, v{vWR+i}")
    for k in range(1, 4):
        for n in range(8): ck_one(n, f"UV{k}", vOC8, 16*8192)
    take_tag(True)
    def slot_out(k, dst):
        for nt in range(8):
            for pi in range(2):
                a(f"ds_read_b64_tr_b16 {A(dst+16*nt+4*k+2*pi,2)}, v{vTA+2*nt+pi} offset:{8192*k+1024*pi}")
        a("s_waitcnt lgkmcnt(0)")
    srd(rCK, pAWO, 4*MB)
    a(f"s_mov_b32 s{sCKO}, s{sWO}")
    for k in range(4):
        a.wait(f"UV{k}")
        slot_out(k, A1)
        for n in range(8): ck_one(n, f"WA{k}")
    stamp(1)
    srd(rCK, pCK, 16*MB)
    a(f"s_lshl_b32 s{sCKO}, s{sH}, 19\ns_lshl_b32 s{sT2}, s{sW}, 8\ns_add_u32 s{sCKO}, s{sCKO}, s{sT2}")

    def flag_load(off):
        a(f"s_mov_b32 s{sU1}, {off}")
        a.vm(f"buffer_load_dword v{vT3}, v{vZ+1}, {R(rWS)}, s{sU1} offen sc1", "FL")

    def flag_wait(off):
        a.wait("FL")
        chk, ok = a.label("fcheck"), a.label("fok")
        a(f"{chk}:\nv_cmp_ne_u32 vcc, s{sFLAG}, v{vT3}\ns_cbranch_vccz {ok}")
        saved = list(a.q)
        a("s_sleep 2")
        flag_load(off)
        a("s_waitcnt vmcnt(0)")
        spin_guard(chk)
        a.q = saved
        a(f"{ok}:")

    for k in range(4):
        a.wait(f"WA{k}")
        slot_out(k, A0)
        if k == 3: flag_load(WS_F1)
        for n in range(8 if k < 3 else 5): ck_one(n, f"CK{k}")
    stamp(2)
    for i in range(64): a(f"v_mov_b32 v{vCT+i}, 0")
    a(f"v_mov_b32 v{vM}, 0xff7f0000\ns_mov_b32 s{sIT}, 0")
    a(f"v_mov_b32 v{vL2}, 0\nv_mov_b32 v{vL2+1}, 0\ns_mov_b32 s{sC2}, s{sC}\ns_mov_b32 s{sC2+1}, s{sC}")
    a(f"v_add_u32 v{vT0}, s{sU0}, v{vAQ}")
    for k in range(8):
        a(f"v_xor_b32 v{vAD+k}, {32*k}, v{vT0}")
    a(f"v_add_u32 v{vAQ}, s{sM0}, v{vAQ}\nv_add_u32 v{vAP}, s{sM0}, v{vAP}")
    a(f"s_lshr_b32 s{sT0}, s{sH}, 3\ns_lshl_b32 s{sT0}, s{sT0}, 15\ns_lshl_b32 s{sT2}, s{sW}, 8\ns_add_u32 s{sT0}, s{sT0}, s{sT2}\ns_add_u32 s{sT0}, s{sT0}, {WS_QL}")
    flag_wait(WS_F1)
    stamp(4)
    for i in range(8):
        a.vm(f"buffer_load_dwordx4 {V(vKA+4*i,4)}, v{vOR1}, {R(rWS)}, s{sT0} offen sc1", f"QLg{i}")
        if i < 7: a(f"s_add_u32 s{sT0}, s{sT0}, 4096")
    for i in range(8):
        a.wait(f"QLg{i}")
        a(f"ds_write_b128 v{vWR+(i&3)}, {V(vKA+4*i,4)} offset:{i*1024}")
    a("s_waitcnt lgkmcnt(0)")
    for k in range(8):
        a(f"ds_read_b128 {V(vQL+4*k,4)}, v{vAD+k}")
    stamp(5)
    vKQ = vE2
    for k in range(8):
        a(f"v_xor_b32 v{vAD+k}, {32*k}, v{vAQ}\nds_read_b128 {V(vKQ+4*k,4)}, v{vAD+k}")
    a("L_att:")
    a(f"v_add_u32 v{vT0}, s{sSLOT}, v{vAP}")
    a("s_waitcnt lgkmcnt(0)")
    for k in range(8):
        c = V(vSS, 16) if k else "0"
        a(f"v_mfma_f32_32x32x16_bf16 {V(vSS,16)}, {V(vKQ+4*k,4)}, {V(vQL+4*k,4)}, {c}")
        nt, pi = k >> 1, k & 1
        a(f"v_xor_b32 v{vAD+k}, {32*k}, v{vT0}")
        for sg in range(2):
            a(f"ds_read_b64_tr_b16 {V(vKA+8*nt+4*sg+2*pi,2)}, v{vAD+k} offset:{4096*sg+2048*pi}")
        if k in (0, 4, 7): ck_one({0: 5, 4: 6, 7: 7}[k], "loop")
    a(f"v_xor_b32 v{vT1}, 0x2000, v{vEX}\nv_xor_b32 v{vT2}, 0x4000, v{vEX}\nv_xor_b32 v{vT3}, 0x6000, v{vEX}")
    sw = a.label("noswitch")
    a(f"s_cmp_lg_u32 s{sIT}, 12\ns_cbranch_scc1 {sw}")
    srd(rCK, pBWO, 4*MB)
    a(f"s_mov_b32 s{sCKO}, s{sWO}")
    a(f"{sw}:")
    for q in range(4):
        a(f"ds_write_b128 v{vEX}, {V(vSS+4*q,4)} offset:{1024*q}")
    a("s_waitcnt lgkmcnt(0)\ns_barrier")
    for q in range(4):
        a(f"ds_read_b128 {V(vE1+4*q,4)}, v{vT1} offset:{1024*q}")
        a(f"ds_read_b128 {V(vE2+4*q,4)}, v{vT2} offset:{1024*q}")
        a(f"ds_read_b128 {V(vE2+16+4*q,4)}, v{vT3} offset:{1024*q}")
    a(f"v_xor_b32 v{vEX}, 0x1000, v{vEX}")
    ck_one(0, "loop")
    a(f"s_add_u32 s{sSLOT}, s{sSLOT}, 8192\ns_and_b32 s{sSLOT}, s{sSLOT}, 0x7fff")
    for q in range(4):
        a(f"s_waitcnt lgkmcnt({9-3*q})")
        for r in range(4*q, 4*q+4, 2):
            a(f"v_pk_add_f32 {V(vSS+r,2)}, {V(vSS+r,2)}, {V(vE1+r,2)}\nv_pk_add_f32 {V(vE2+r,2)}, {V(vE2+r,2)}, {V(vE2+16+r,2)}")
        for r in range(4*q, 4*q+4, 2):
            a(f"v_pk_add_f32 {V(vSS+r,2)}, {V(vSS+r,2)}, {V(vE2+r,2)}")
    ck_one(1, "loop")
    a(f"v_max_f32 v{vT0}, v{vSS}, v{vSS+1}")
    for r in range(2, 16, 2):
        a(f"v_max3_f32 v{vT0}, v{vT0}, v{vSS+r}, v{vSS+r+1}")
    a(f"v_mov_b32 v{vT1}, v{vT0}\nv_permlane32_swap_b32 v{vT0}, v{vT1}\nv_max_f32 v{vT0}, v{vT0}, v{vT1}")
    a(f"v_mul_f32 v{vT0}, s{sC}, v{vT0}\nv_max_f32 v{vT0}, v{vT0}, v{vM}")
    a(f"v_sub_f32 v{vAL}, v{vM}, v{vT0}\nv_exp_f32 v{vAL}, v{vAL}\nv_mov_b32 v{vM}, v{vT0}")
    for r in range(0, 16, 2):
        a(f"v_pk_fma_f32 {V(vSS+r,2)}, {V(vSS+r,2)}, s[{sC2}:{sC2+1}], {V(vM,2)} op_sel_hi:[1,1,0] neg_lo:[0,0,1] neg_hi:[0,0,1]")
    for r in range(16):
        a(f"v_exp_f32 v{vSS+r}, v{vSS+r}")
        if r == 4: ck_one(2, "loop")
    a(f"v_add_u32 v{vT0}, s{sSLOT}, v{vAQ}")
    a(f"v_pk_mul_f32 {V(vL2,2)}, {V(vL2,2)}, {V(vAL,2)} op_sel_hi:[1,0]")
    for c in range(vCT, vCT+64, 2):
        a(f"v_pk_mul_f32 {V(c,2)}, {V(c,2)}, {V(vAL,2)} op_sel_hi:[1,0]")
        if c == vCT + 40: ck_one(3, "loop")
    for r in range(8):
        a(f"v_cvt_pk_bf16_f32 v{vPP+r}, v{vSS+2*r}, v{vSS+2*r+1}")
        a(f"v_pk_add_f32 {V(vL2,2)}, {V(vL2,2)}, {V(vSS+2*r,2)}")
    a("s_waitcnt vmcnt(20)")
    k = 0
    for sg in range(2):
        for nt in range(4):
            a(f"v_mfma_f32_32x32x16_bf16 {V(vCT+16*nt,16)}, {V(vKA+8*nt+4*sg,4)}, {V(vPP+4*sg,4)}, {V(vCT+16*nt,16)}")
            if k < 8:
                for kk in (k, k+1):
                    a(f"v_xor_b32 v{vAD+kk}, {32*kk}, v{vT0}\nds_read_b128 {V(vKQ+4*kk,4)}, v{vAD+kk}")
            if k == 8: ck_one(4, "loop")
            k += 2
    a(f"s_add_u32 s{sIT}, s{sIT}, 1\ns_cmp_lt_u32 s{sIT}, 16\ns_cbranch_scc1 L_att")
    a.q = []
    stamp(6)
    a(f"v_add_f32 v{vLL}, v{vL2}, v{vL2+1}")
    a(f"v_mov_b32 v{vT1}, v{vLL}\nv_permlane32_swap_b32 v{vLL}, v{vT1}\nv_add_f32 v{vLL}, v{vLL}, v{vT1}")
    a(f"v_and_b32 v{vT0}, 31, v{vL}\nv_lshlrev_b32 v{vT1}, 8, v{vT0}\nv_lshl_add_u32 v{vT1}, v{vJ}, 4, v{vT1}")
    a(f"v_lshrrev_b32 v{vT2}, 5, v{vL}\nv_lshl_add_u32 v{vT1}, v{vT2}, 3, v{vT1}\nv_add_u32 v{vT1}, s{sU0}, v{vT1}")
    a("s_waitcnt lgkmcnt(0)\ns_barrier")
    for i in range(16):
        a(f"v_cvt_pk_bf16_f32 v{vKA+2*i}, v{vCT+4*i}, v{vCT+4*i+1}\nv_cvt_pk_bf16_f32 v{vKA+2*i+1}, v{vCT+4*i+2}, v{vCT+4*i+3}")
        a(f"v_xor_b32 v{vAD+(i&7)}, {16*i}, v{vT1}\nds_write_b64 v{vAD+(i&7)}, {V(vKA+2*i,2)}")
    a(f"v_xor_b32 v{vT2}, v{vJ}, v{vG}\nv_lshlrev_b32 v{vT2}, 4, v{vT2}\nv_lshl_add_u32 v{vT2}, v{vG}, 8, v{vT2}\nv_add_u32 v{vT2}, s{sU0}, v{vT2}")
    for i in range(4):
        a(f"v_xor_b32 v{vAD+i}, {64*i}, v{vT2}")
    a(f"v_lshlrev_b32 v{vT3}, 4, v{vJ}\nv_lshl_add_u32 v{vT3}, v{vG}, 15, v{vT3}")
    a(f"s_lshl_b32 s{sT0}, s{sH}, 10\ns_lshl_b32 s{sT2}, s{sW}, 8\ns_add_u32 s{sT0}, s{sT0}, s{sT2}\ns_add_u32 s{sT0}, s{sT0}, {WS_CP}")
    a("s_waitcnt lgkmcnt(0)")
    vPUB = 200
    for i in range(8):
        a(f"ds_read_b128 {V(vPUB+4*i,4)}, v{vAD+(i&3)} offset:{1024*i}")
    a(f"v_lshlrev_b32 v{vT0}, 3, v{vT0}\ns_lshl_b32 s{sT1}, s{sH}, 8\ns_lshl_b32 s{sT2}, s{sW}, 13\ns_add_u32 s{sT1}, s{sT1}, s{sT2}\ns_add_u32 s{sT1}, s{sT1}, {WS_CS}")
    setexec(0xffffffff)
    a.vm(f"buffer_store_dwordx2 {V(vM,2)}, v{vT0}, {R(rWS)}, s{sT1} offen sc1", "CPst")
    setexec(FULL)
    for i in range(8):
        a(f"s_waitcnt lgkmcnt({7-i})")
        a.vm(f"buffer_store_dwordx4 {V(vPUB+4*i,4)}, v{vT3}, {R(rWS)}, s{sT0} offen sc1", "CPst")
        if i < 7: a(f"s_add_u32 s{sT0}, s{sT0}, {4*32*KB}")
    for n in range(5, 8): ck_one(n, "WB")
    vBU, vY, vG2 = 136, 84, 104
    vAO, vAY, vAG, vAF, vAM, vAW = 76, 77, 78, 79, 92, 93
    vCB, vSTAT, vDD, vRES = 20, 52, 60, 104
    vGC, vGS, vRW, vRR, vRO = 80, 81, 94, 96, 97
    for i in range(64): a(f"v_mov_b32 v{vBU+i}, 0")
    a(f"v_and_b32 v{vT0}, 3, v{vJ}\nv_mul_u32_u24 v{vAO}, 320, v{vT0}\nv_lshl_add_u32 v{vAO}, v{vG}, 4, v{vAO}\nv_add_u32 v{vAO}, {LDS_O}, v{vAO}")
    a(f"s_lshl_b32 s{sT0}, s{sW}, 16\ns_lshl_b32 s{sT2}, s{sH}, 8\ns_add_u32 s{sT0}, s{sT0}, s{sT2}\nv_add_u32 v{vAY}, s{sT0}, v{vOR8}")
    a(f"s_lshl_b32 s{sT0}, s{sH}, 13\ns_lshl_b32 s{sT2}, s{sW}, 6\ns_add_u32 s{sT0}, s{sT0}, s{sT2}")
    a(f"v_lshrrev_b32 v{vT1}, 2, v{vL}\nv_lshlrev_b32 v{vT1}, 8, v{vT1}\nv_lshl_add_u32 v{vT1}, v{vT0}, 4, v{vT1}\nv_add_u32 v{vAG}, s{sT0}, v{vT1}")
    a(f"s_lshr_b32 s{sT0}, s{sH}, 2\ns_lshl_b32 s{sT0}, s{sT0}, 7\ns_lshl_b32 s{sT2}, s{sW}, 5\ns_add_u32 s{sT0}, s{sT0}, s{sT2}")
    a(f"s_and_b32 s{sT2}, s{sH}, 3\ns_lshl_b32 s{sT2}, s{sT2}, 3\ns_add_u32 s{sT0}, s{sT0}, s{sT2}")
    a(f"v_lshlrev_b32 v{vT1}, 11, v{vT0}\nv_lshl_add_u32 v{vT1}, v{vG}, 1, v{vT1}\nv_add_u32 v{vAF}, s{sT0}, v{vT1}")
    a(f"v_lshrrev_b32 v{vT1}, 2, v{vJ}\nv_lshl_add_u32 v{vT2}, v{vT0}, 3, v{vT1}")
    a(f"v_lshlrev_b32 v{vGS}, 8, v{vT2}\nv_lshlrev_b32 v{vT2}, 10, v{vT2}\nv_lshl_add_u32 v{vGC}, v{vG}, 4, v{vT2}")
    a(f"s_lshl_b32 s{sT2}, s{sW}, 11\ns_add_u32 s{sT2}, s{sT2}, {LDS_EX}")
    a(f"v_lshlrev_b32 v{vT0}, 9, v{vT0}\nv_lshl_add_u32 v{vT0}, v{vG}, 4, v{vT0}\nv_add_u32 v{vRW}, s{sT2}, v{vT0}")
    a(f"s_lshl_b32 s{sT2}, s{sW}, 9\ns_add_u32 s{sT2}, s{sT2}, {LDS_EX}\nv_and_b32 v{vT1}, 31, v{vL}\nv_lshl_add_u32 v{vRR}, v{vT1}, 4, s{sT2}")
    a(f"s_mul_i32 s{sT2}, s{sW}, 320\ns_add_u32 s{sT2}, s{sT2}, {LDS_O}\nv_lshl_add_u32 v{vRO}, v{vT1}, 3, s{sT2}")
    a(f"v_lshlrev_b32 v{vT0}, 6, v{vG}\nv_lshl_add_u32 v{vT0}, v{vJ}, 1, v{vT0}\nv_add_u32 v{vAW}, s{sT2}, v{vT0}")
    a(f"v_lshlrev_b32 v{vT0}, 7, v{vG}\nv_lshl_add_u32 v{vT0}, v{vJ}, 4, v{vT0}\nv_mov_b32 v{vT1}, 512")
    a(f"v_cmp_gt_u32 vcc, 8, v{vJ}\nv_cndmask_b32 v{vAM}, v{vT1}, v{vT0}, vcc")
    a(f"s_mov_b32 s{sMODE}, 0\ns_mov_b32 s{sYO}, {WS_YA}\ns_mov_b32 s{sOUTO}, 0")
    a(f"s_lshl_b32 s{sT0}, s{sH}, 15\ns_lshl_b32 s{sT2}, s{sW}, 8\ns_add_u32 s{sT0}, s{sT0}, s{sT2}\ns_add_u32 s{sT0}, s{sT0}, {WS_CP}")
    a(f"s_lshl_b32 s{sT1}, s{sH}, 3\ns_lshl_b32 s{sT2}, s{sW}, 13\ns_add_u32 s{sT1}, s{sT1}, s{sT2}\ns_add_u32 s{sT1}, s{sT1}, {WS_CS}")
    a("s_barrier")
    signal("CPst", WS_F2, vT0)
    stamp(7)
    flag_load(WS_F2)
    flag_wait(WS_F2)
    stamp(8)
    for hf in range(2):
        a.vm(f"buffer_load_dwordx2 {V(vSTAT+2*hf,2)}, v{vGS}, {R(rWS)}, s{sT1} offen offset:{1024*hf} sc1", "CSg")
    for hf in range(2):
        for k in range(4):
            a.vm(f"buffer_load_dwordx4 {V(vCB+16*hf+4*k,4)}, v{vGC}, {R(rWS)}, s{sT0} offen offset:{64*k} sc1", "CPg")
        a(f"s_add_u32 s{sT0}, s{sT0}, 4096")
    a.wait("CSg")
    a(f"v_max_f32 v{vT0}, v{vSTAT}, v{vSTAT+2}")
    a(f"v_max_f32_dpp v{vT0}, v{vT0}, v{vT0} row_ror:8 {DPP}\nv_max_f32_dpp v{vT0}, v{vT0}, v{vT0} row_ror:4 {DPP}")
    a(f"v_sub_f32 v{vSTAT}, v{vSTAT}, v{vT0}\nv_sub_f32 v{vSTAT+2}, v{vSTAT+2}, v{vT0}")
    a(f"v_exp_f32 v{vSTAT}, v{vSTAT}\nv_exp_f32 v{vSTAT+2}, v{vSTAT+2}")
    a(f"v_mul_f32 v{vT1}, v{vSTAT}, v{vSTAT+1}\nv_fmac_f32 v{vT1}, v{vSTAT+2}, v{vSTAT+3}")
    a(f"v_add_f32_dpp v{vT1}, v{vT1}, v{vT1} row_ror:8 {DPP}\nv_add_f32_dpp v{vT1}, v{vT1}, v{vT1} row_ror:4 {DPP}")
    a(f"v_rcp_f32 v{vT1}, v{vT1}")
    a(f"v_mul_f32 v{vSTAT}, v{vSTAT}, v{vT1}\nv_mul_f32 v{vSTAT+2}, v{vSTAT+2}, v{vT1}")
    a.wait("CPg")
    def ctx_fold(nt):
        d = vDD + 8*(nt % 2)
        res = vRES + 4*(nt % 2)
        for r in range(4):
            a(f"v_mul_f32 v{res+r}, v{d+r}, v{vSTAT}")
        for r in range(4):
            a(f"v_fmac_f32 v{res+r}, v{d+4+r}, v{vSTAT+2}")
        for ror in (8, 4):
            for r in range(4):
                a(f"v_add_f32_dpp v{res+r}, v{res+r}, v{res+r} row_ror:{ror} {DPP}")
        a(f"ds_write_b128 v{vRW}, {V(res,4)} offset:{64*nt}")
    for nt in range(8):
        d = vDD + 8*(nt % 2)
        for k in range(4):
            for hf in range(2):
                c = V(d+4*hf, 4) if k else "0"
                a(f"v_mfma_f32_16x16x32_bf16 {V(d+4*hf,4)}, {A(A1+16*nt+4*k,4)}, {V(vCB+16*hf+4*k,4)}, {c}")
        if nt: ctx_fold(nt - 1)
    ctx_fold(7)
    a("s_waitcnt lgkmcnt(0)\ns_barrier")
    for p in range(4):
        a(f"ds_read_b128 {V(vCB+4*p,4)}, v{vRR} offset:{p*2048}")
    a("s_waitcnt lgkmcnt(0)")
    for r in range(4):
        a(f"v_add_f32 v{vCB+r}, v{vCB+r}, v{vCB+4+r}\nv_add_f32 v{vCB+8+r}, v{vCB+8+r}, v{vCB+12+r}")
    for r in range(4):
        a(f"v_add_f32 v{vCB+r}, v{vCB+r}, v{vCB+8+r}")
    a(f"v_cvt_pk_bf16_f32 v{vCB}, v{vCB}, v{vCB+1}\nv_cvt_pk_bf16_f32 v{vCB+1}, v{vCB+2}, v{vCB+3}")
    a(f"ds_write_b64 v{vRO}, {V(vCB,2)}")
    stamp(9)

    a("L_final:")
    a("s_waitcnt lgkmcnt(0)\ns_barrier")
    for u in range(4):
        setexec(0x000f000f000f000f << (4*u))
        for k in range(4):
            a(f"ds_read_b128 {V(vBU+16*u+4*k,4)}, v{vAO} offset:{64*k}")
    setexec(FULL)
    a(f"s_add_u32 s{sT0}, s{sYO}, 32768")
    for u in range(4):
        a(f"s_waitcnt lgkmcnt({12-4*u})")
        for k in range(4):
            for v in range(2):
                c = V(vY+4*v, 4) if (u or k) else "0"
                a(f"v_mfma_f32_16x16x32_bf16 {V(vY+4*v,4)}, {A(A0+16*(4*v+u)+4*k,4)}, {V(vBU+16*u+4*k,4)}, {c}")
    for v in range(2):
        tag(range(vY+4*v, vY+4*v+4))
        a.vm(f"buffer_store_dwordx4 {V(vY+4*v,4)}, v{vAY}, {R(rWS)}, s{sT0 if v else sYO} offen sc1", "Yst")
    a(f"s_cmp_eq_u32 s{sMODE}, 0\ns_cbranch_scc1 L_prepb")
    a("L_hop2:")
    a(f"s_add_u32 s{sT0}, s{sYO}, 4096")
    for i in range(2):
        a(f"buffer_load_dwordx4 {V(vG2+4*i,4)}, v{vAG}, {R(rWS)}, s{sT0 if i else sYO} offen sc1")
    a("s_waitcnt vmcnt(0)")
    untag(list(range(vG2, vG2+8)), vT0)
    a("s_cbranch_vccz L_hop2ok" if "Yst" not in ABL else "s_branch L_hop2ok")
    spin_guard("L_hop2")
    a("L_hop2ok:")
    for r in range(4):
        a(f"v_add_f32 v{vG2+r}, v{vG2+r}, v{vG2+4+r}")
    a(f"v_permlane16_swap_b32 v{vG2}, v{vG2+1}\nv_permlane16_swap_b32 v{vG2+2}, v{vG2+3}")
    a(f"v_add_f32 v{vG2}, v{vG2}, v{vG2+1}\nv_add_f32 v{vG2+2}, v{vG2+2}, v{vG2+3}")
    a(f"v_permlane32_swap_b32 v{vG2}, v{vG2+2}\nv_add_f32 v{vG2}, v{vG2}, v{vG2+2}")
    a(f"v_add_f32_dpp v{vG2}, v{vG2}, v{vG2} row_ror:8 {DPP}\nv_add_f32_dpp v{vG2}, v{vG2}, v{vG2} row_ror:4 {DPP}")
    a(f"v_cvt_pk_bf16_f32 v{vG2}, v{vG2}, v{vG2}")
    setexec(0x000f000f000f000f)
    a(f"buffer_store_short v{vG2}, v{vAF}, {R(rOUT)}, s{sOUTO} offen")
    setexec(FULL)
    a(f"s_cmp_lg_u32 s{sMODE}, 0\ns_cbranch_scc1 L_fin")
    stamp(11)
    a(f"s_mov_b32 s{sMODE}, 1\ns_mov_b32 s{sYO}, {WS_YB}\ns_mov_b32 s{sOUTO}, 1024")
    a(f"s_lshl_b32 s{sU0}, s{sH}, 2\ns_add_u32 s{sU0}, s{sU0}, s{sW}\ns_lshl_b32 s{sU0}, s{sU0}, 13\ns_add_u32 s{sU0}, s{sU0}, {WS_OP}\ns_add_u32 s{sU1}, s{sU0}, 4096")
    a(f"v_min_u32 v{vT1}, 6, v{vL}\nv_lshlrev_b32 v{vT1}, 10, v{vT1}")
    if "OPst" in ABL: a("s_branch L_fin")
    a("L_light:")
    a(f"buffer_load_dword v{vT2}, v{vT1}, {R(rWS)}, s{sU0} offen offset:512 sc1\ns_waitcnt vmcnt(0)")
    a(f"v_xor_b32 v{vT2}, s{sTAG}, v{vT2}\nv_and_b32 v{vT2}, 0xff, v{vT2}\nv_cmp_ne_u32 vcc, 0, v{vT2}")
    a(f"s_and_b32 s{sT0}, vcc_lo, 0x7f\ns_bcnt1_i32_b32 s{sT0}, s{sT0}\ns_cmp_le_u32 s{sT0}, {LIGHT}\ns_cbranch_scc1 L_hop1")
    a("s_sleep 2")
    spin_guard("L_light")
    vMS = [20 + 4*s for s in range(7)]
    vWS7 = [48 + s for s in range(7)]
    a("L_hop1:")
    for s in range(7):
        a(f"buffer_load_dwordx4 {V(vMS[s],4)}, v{vAM}, {R(rWS)}, s{sU0 if s < 4 else sU1} offen offset:{1024*(s&3)} sc1")
    a("s_waitcnt vmcnt(0)")
    untag([m + r for m in vMS for r in range(4)], vT0)
    a("s_cbranch_vccz L_hop1ok")
    spin_guard("L_hop1")
    a("L_hop1ok:")
    stamp(12)
    vMX, vOO = 55, 56
    a(f"v_max3_f32 v{vMX}, v{vMS[0]}, v{vMS[1]}, v{vMS[2]}")
    a(f"v_max3_f32 v{vMX}, v{vMX}, v{vMS[3]}, v{vMS[4]}\nv_max3_f32 v{vMX}, v{vMX}, v{vMS[5]}, v{vMS[6]}")
    for s in range(7):
        a(f"v_sub_f32 v{vWS7[s]}, v{vMS[s]}, v{vMX}")
    for s in range(7):
        a(f"v_exp_f32 v{vWS7[s]}, v{vWS7[s]}")
    for s in range(7):
        for r in (1, 0, 2, 3):
            op = "v_fmac_f32_dpp" if s else "v_mul_f32_dpp"
            a(f"{op} v{vOO+r}, v{vWS7[s]}, v{vMS[s]+r} row_newbcast:8 {DPP}")
    a(f"v_rcp_f32 v{vMX}, v{vOO+1}")
    for r in range(4):
        a(f"v_mul_f32_dpp v{vOO+r}, v{vMX}, v{vOO+r} row_newbcast:8 {DPP}")
    a(f"v_cvt_pk_bf16_f32 v{vOO}, v{vOO}, v{vOO+1}\nv_cvt_pk_bf16_f32 v{vOO+2}, v{vOO+2}, v{vOO+3}")
    setexec(0x00ff00ff00ff00ff)
    a(f"ds_write_b16 v{vAW}, v{vOO}\nds_write_b16_d16_hi v{vAW}, v{vOO} offset:16")
    a(f"ds_write_b16 v{vAW}, v{vOO+2} offset:32\nds_write_b16_d16_hi v{vAW}, v{vOO+2} offset:48")
    setexec(FULL)
    a("s_branch L_final")
    a("L_prepb:")
    stamp(10)
    for nt in range(8):
        for pi in range(2):
            a(f"v_xor_b32 v{vT0+pi}, {16*(2*nt+pi)}, v{vTRB}")
            for k in range(4):
                a(f"ds_read_b64_tr_b16 {A(A0+16*nt+4*k+2*pi,2)}, v{vT0+pi} offset:{8192*k+1024*pi}")
    a("s_waitcnt lgkmcnt(0)\ns_barrier")
    a("s_branch L_hop2")
    a("L_fin:")
    stamp(13)
    probe_end()
    a(f"s_or_b32 s{sT0}, s{sH}, s{sW}\ns_cmp_lg_u32 s{sT0}, 0\ns_cbranch_scc1 L_end")
    setexec(1)
    a(f"buffer_store_dword v{vTAG}, v{vZ}, {R(rWS)}, 0 offen")
    a("L_end:\ns_endpgm")
    if WARM: a(".fill (32768 - (. - L_pc)) / 4 + 1, 4, 0xbf810000")
    body = a.finish()
    ref = open(os.path.join(os.path.dirname(os.path.abspath(__file__)), "..", NAME + ".s.ref")).read().split("\n")
    layout = [l for l in ref if l.startswith(";") and "@launch" not in l and "Override" not in l and "grid=ceil" not in l]
    tail = f""".section .rodata,"a"
.p2align 6
.amdhsa_kernel {NAME}_kernel
  .amdhsa_next_free_vgpr 512
  .amdhsa_next_free_sgpr 102
  .amdhsa_accum_offset 256
  .amdhsa_group_segment_fixed_size 0
  .amdhsa_kernarg_size 112
  .amdhsa_user_sgpr_count 2
  .amdhsa_user_sgpr_kernarg_segment_ptr 1
  .amdhsa_system_sgpr_workgroup_id_x 1
.end_amdhsa_kernel
"""
    return "\n".join(layout + hdr + ["; generated by tools/gen.py"]) + "\n" + body + tail

if __name__ == "__main__":
    kw = eval("dict(" + (sys.argv[2] if len(sys.argv) > 2 else "") + ")")
    out = sys.argv[1] if len(sys.argv) > 1 else os.path.join(os.path.dirname(os.path.abspath(__file__)), "..", NAME + ".s")
    open(out, "w").write(generate(**kw))
    print("wrote", out)
```

```python
import sys, os, struct
sys.path.insert(0, os.path.dirname(os.path.abspath(__file__)))
from asmlib import Asm

NAME = "concat_heads__compressed_kv_cla__mha_block_cached__decode"
KB, MB = 1024, 1 << 20
WS_CT, WS_F1, WS_F2 = 64 * KB, 128 * KB, 192 * KB
WS_QP, WS_QL, WS_CS, WS_YA, WS_YB, WS_CP, WS_OP, WS_ST, WS_SIZE = 1*MB, 2*MB, 2*MB + 512*KB, 3*MB, 3*MB + 512*KB, 4*MB, 5*MB, 6*MB, 8*MB
SCALE = 128 ** -0.5 * 1.4426950408889634
LDS_EX = 128 * KB
LDS_O = LDS_EX + 16 * KB
SPIN = 1 << 21

def f32(x): return struct.unpack("<I", struct.pack("<f", x))[0]
def V(a, n=1): return f"v{a}" if n == 1 else f"v[{a}:{a+n-1}]"
def A(a, n=1): return f"a{a}" if n == 1 else f"a[{a}:{a+n-1}]"
def R(r): return f"s[{r}:{r+3}]"
DPP = "row_mask:0xf bank_mask:0xf"
FULL = (1 << 64) - 1

pAX, pCK, pAWQ, pUK, pUV, pAWO, pBX, pK, pV, pBWQ, pBWO, pOUT, pDBG, pWS = range(4, 32, 2)
sH, sP, sW, sTAG, sT0, sT1, sT2, sT3 = 32, 33, 34, 35, 36, 37, 38, 39
rW, rX, rWS, rK, rV, rUK, rOUT, rDBG = 40, 44, 48, 52, 56, 72, 72, 76
rCK = rK
sC2, sFILL, sWO = 60, 62, 63
sSELLO, sSELHI, sHI24, sC, sSPIN = 80, 81, 82, 83, 84
sU0, sU1, sTK, sROT, sBASE = 85, 86, 87, 88, 89
sM0, sQO, sMODE, sIT, sSLOT, sCKO, sYO, sOUTO = 90, 91, 92, 93, 94, 95, 96, 97
sTS = 98
sFLAG, sXT, sB, sHJ = 68, 69, 3, 61

MAPS = {
    'L': ([[8], [9]], [[10], [11]], [12, 13, 14, 15, 16, 17, 18, 19]),
    'A': ([[12], [13]], [[15, 8], [8]], [14, 9, 10, 11, 16, 17, 18, 19]),
    'C': ([[8], [9]], [[15], [10]], [12, 13, 14, 11, 16, 17, 18, 19]),
}

def generate(D=5, DV=6, DP=7, NS=35, D2=8, MAP='C', ROTH=8, ROTW=1, PU=8, POLLP=52, POLLQ=20, POLLU=16, LIGHT=7, WARM=1, XQ=(3, 2), K1=4, K2=1,
             STAMP=False, PROBE=None, AMP=0, ABL=()):
    a = Asm()
    role = ["B"]
    if ABL:
        real_vm = a.vm
        a.vm = lambda text, tg: real_vm(text.replace(R(rWS), R(rDBG)) if tg.rstrip("0123456789") in ABL else text, tg)

    vL, vG, vJ, vT0, vT1, vT2, vT3, vTAG = 1, 2, 3, 4, 5, 6, 7, 8
    vMASK = 10
    vST0, vST1 = 16, 17

    def srd(r, p, size):
        a(f"s_mov_b32 s{r}, s{p}\ns_and_b32 s{r+1}, s{p+1}, 0xffff\ns_mov_b32 s{r+2}, {size}\ns_mov_b32 s{r+3}, 0x20000")

    def stamp(i):
        if PROBE is not None:
            if PROBE == (role[0], i): a("s_memrealtime s[100:101]\ns_waitcnt lgkmcnt(0)")
            return
        if not STAMP or (STAMP == 3 and (role[0], i) not in (("A", 0), ("B", 0), ("B", 4), ("A", 11), ("A", 13))): return
        if i: a(f"s_memrealtime s[{sTS}:{sTS+1}]\ns_waitcnt lgkmcnt(0)")
        else: a(f"s_lshl_b32 s100, s2, 2\ns_add_u32 s100, s100, s{sW}\ns_lshl_b32 s100, s100, 6\ns_add_u32 s100, s100, {WS_ST}\nv_mov_b32 v{vST0}, s100")
        a(f"v_mov_b32 v{vST1}, s{sTS}\ns_mov_b64 s[100:101], exec\ns_mov_b64 exec, 1")
        a(f"buffer_store_dword v{vST1}, v{vST0}, {R(rWS)}, 0 offen offset:{4*i}")
        if i == 0:
            a(f"s_getreg_b32 s{sTS}, hwreg(HW_REG_XCC_ID)\nv_mov_b32 v{vST1}, s{sTS}\nbuffer_store_dword v{vST1}, v{vST0}, {R(rWS)}, 0 offen offset:60")
        a("s_mov_b64 exec, s[100:101]")

    def soft(i):
        if STAMP == 2: a(f"s_memrealtime s[{70 if i == 0 else 78}:{71 if i == 0 else 79}]")

    def soft_flush():
        if STAMP == 2:
            a(f"s_waitcnt lgkmcnt(0)\ns_mov_b64 s[100:101], exec\ns_mov_b64 exec, 1")
            for i, r in ((14, 70), (7 if role[0] == "B" else 3, 78)):
                a(f"v_mov_b32 v{vST1}, s{r}\nbuffer_store_dword v{vST1}, v{vST0}, {R(rWS)}, 0 offen offset:{4*i}")
            a("s_mov_b64 exec, s[100:101]")

    TAILS = [40, 42, 44, 46, 56, 58, 64]
    def tsoft(i):
        if STAMP == 3: a(f"s_memrealtime s[{TAILS[i]}:{TAILS[i]+1}]")

    def tflush():
        if STAMP == 3:
            a(f"s_waitcnt lgkmcnt(0)\ns_mov_b64 s[100:101], exec\ns_mov_b64 exec, 1")
            for i, r in enumerate(TAILS):
                a(f"v_mov_b32 v{vST1}, s{r}\nbuffer_store_dword v{vST1}, v{vST0}, {R(rWS)}, 0 offen offset:{4*(i+1)}")
            a("s_mov_b64 exec, s[100:101]")

    def probe_end():
        if PROBE is None or PROBE[0] != role[0]: return
        lbl = a.label("probe")
        a(f"s_sub_u32 s100, s100, s{sTS}\ns_lshl_b32 s100, s100, {AMP}\ns_add_u32 s100, s100, s{sTS}")
        a(f"s_add_u32 s100, s100, 10000\n{lbl}:\ns_memrealtime s[{sTS}:{sTS+1}]\ns_waitcnt lgkmcnt(0)")
        a(f"s_sub_u32 s{sTS}, s{sTS}, s100\ns_cmp_lt_i32 s{sTS}, 0\ns_cbranch_scc0 {lbl}_x\ns_cmp_gt_i32 s{sTS}, -100000\ns_cbranch_scc1 {lbl}\n{lbl}_x:")

    def spin_guard(lbl_retry):
        a(f"s_sub_u32 s{sSPIN}, s{sSPIN}, 1\ns_cmp_lg_u32 s{sSPIN}, 0\ns_cbranch_scc1 {lbl_retry}\ns_branch L_end")

    def untag(regs, acc):
        for r in regs:
            a(f"v_xor_b32 v{r}, s{sTAG}, v{r}")
        a(f"v_or_b32 v{acc}, v{regs[0]}, v{regs[1]}")
        for i in range(2, len(regs), 2):
            a(f"v_or3_b32 v{acc}, v{acc}, v{regs[i]}, v{regs[i+1]}")
        a(f"v_and_b32 v{acc}, 0xff, v{acc}\nv_cmp_ne_u32 vcc, 0, v{acc}")

    def tag(regs):
        for r in regs:
            a(f"v_and_or_b32 v{r}, v{r}, s{sHI24}, v{vTAG}")

    def quadsum(dst, src, tmp):
        a(f"v_mov_b32_dpp v{dst}, v{src} quad_perm:[0,0,0,0] {DPP}")
        a(f"v_mov_b32_dpp v{tmp}, v{src+2} quad_perm:[2,2,2,2] {DPP}")
        a(f"v_add_f32_dpp v{dst}, v{src+1}, v{dst} quad_perm:[1,1,1,1] {DPP}")
        a(f"v_add_f32_dpp v{tmp}, v{src+3}, v{tmp} quad_perm:[3,3,3,3] {DPP}")
        a(f"v_add_f32 v{dst}, v{dst}, v{tmp}")

    def setexec(mask):
        if mask == FULL: a("s_mov_b64 exec, -1")
        elif mask <= 64: a(f"s_mov_b64 exec, {mask}")
        else: a(f"s_mov_b32 exec_lo, {mask & 0xffffffff:#x}\ns_mov_b32 exec_hi, {mask >> 32:#x}")

    def consts():
        a(f"s_load_dword s{sTAG}, s[{pWS}:{pWS+1}], 0")
        srd(rWS, pWS, WS_SIZE)
        if ABL: srd(rDBG, pDBG, 256)
        a(f"s_mov_b32 s{sHI24}, 0xffffff00\ns_mov_b32 s{sC}, {f32(SCALE):#x}\ns_mov_b32 s{sSPIN}, {SPIN}")
        stamp(0)

    def take_tag(flag=False):
        a(f"s_waitcnt lgkmcnt(0)\ns_add_u32 s{sTAG}, s{sTAG}, 0x5b\ns_and_b32 s{sTAG}, s{sTAG}, 0xff\nv_mov_b32 v{vTAG}, s{sTAG}")
        if flag: a(f"s_or_b32 s{sFLAG}, s{sTAG}, 0x6b3ac500")

    def signal(tg, base, tmp):
        a(f"s_lshl_b32 s{sT2}, s{sW}, 5\ns_add_u32 s{sT2}, s{sT2}, s{sH}\ns_lshl_b32 s{sT2}, s{sT2}, 8\ns_add_u32 s{sT2}, s{sT2}, {base}")
        a(f"v_mov_b32 v{tmp}, s{sT2}\nv_mov_b32 v{tmp+1}, s{sFLAG}")
        if tg in a.q: a.wait(tg)
        setexec(1)
        a.vm(f"buffer_store_dword v{tmp+1}, v{tmp}, {R(rWS)}, 0 offen sc1", "SIG")
        setexec(FULL)

    hdr = [f"; @launch grid=(256,1,1) block=(256,1,1) lds={160*KB}"]
    a(f'.amdgcn_target "amdgcn-amd-amdhsa--gfx950"\n.text\n.globl {NAME}_kernel\n.p2align 8\n.type {NAME}_kernel,@function')
    a(f"{NAME}_kernel:")
    if STAMP or PROBE is not None: a(f"s_memrealtime s[{sTS}:{sTS+1}]")
    a("s_cmp_ge_u32 s2, 256\ns_cbranch_scc1 L_end")
    a("s_load_dwordx16 s[4:19], s[0:1], 0\ns_load_dwordx8 s[20:27], s[0:1], 64\ns_load_dwordx4 s[28:31], s[0:1], 96")
    a(f"v_lshrrev_b32 v{vT0}, 6, v0\nv_and_b32 v{vL}, 63, v0\nv_readfirstlane_b32 s{sW}, v{vT0}")
    a(f"s_lshr_b32 s{sH}, s2, 3\ns_sub_u32 s{sP}, s2, s{sH}\ns_sub_u32 s{sP}, s{sP}, 1\ns_and_b32 s{sP}, s{sP}, 7")
    a(f"v_lshrrev_b32 v{vG}, 4, v{vL}\nv_and_b32 v{vJ}, 15, v{vL}")
    a(f"s_cmp_lt_u32 s{sP}, 2\ns_cbranch_scc1 L_qp\ns_cmp_eq_u32 s{sP}, 2\ns_cbranch_scc1 L_ql\ns_cmp_eq_u32 s{sP}, 7\ns_cbranch_scc1 L_aux")

    def warm():
        if not WARM: return
        lbl = a.label("pc")
        a(f"s_getpc_b64 s[{sT0}:{sT0+1}]\n{lbl}:\ns_sub_u32 s{sT0}, s{sT0}, {lbl} - {NAME}_kernel\ns_subb_u32 s{sT0+1}, s{sT0+1}, 0")
        a(f"s_lshl_b32 s{sT2}, s{sH}, 10\nv_lshl_add_u32 v{vT2}, v0, 2, s{sT2}")
        a(f"v_mov_b32 v{vT3}, s{sT0+1}\nv_add_co_u32 v{vT2}, vcc, s{sT0}, v{vT2}\nv_addc_co_u32 v{vT3}, vcc, 0, v{vT3}, vcc")
        a.vm(f"global_load_dword v0, v[{vT2}:{vT3}], off", "WARM")

    vCA, vONE, vTK = 9, 18, 19
    sMSG = sYO
    vOW, vOX = 14, 15
    vX, vB, vACC, vQ = 20, 52, 60, 68
    vOK, vOQ, vOP, vOV = 76, 78, 79, 126
    vBQ, vPB = 80, 96
    vS, vO = 112, 116
    vMC, vLS, vSC, vP, vU0, vU1 = 120, 121, 122, 123, 124, 125
    RING = 128
    A0, A1 = 0, 128
    gv, tv, ub = MAPS[MAP] if isinstance(MAP, str) else MAP
    mk = lambda bits: sum(1 << b for b in bits)
    sup = set(sum(gv + tv, []))
    XOR = len(sup) > 4
    basis = []
    for r_ in [mk(v) for v in gv + tv] + [1 << b for b in ub]:
        for b_ in basis: r_ = min(r_, r_ ^ b_)
        assert r_, "key mapping is not a bijection"
        basis.append(r_)
    assert sup | set(ub) == set(range(8, 20))
    tval = [(mk(tv[0]) if t & 1 else 0) ^ (mk(tv[1]) if t & 2 else 0) for t in range(4)]
    gmask = mk(gv[0]) | mk(gv[1])
    timm = [v & 0xfff & ~gmask for v in tval]
    treg = sorted(set(v ^ i for v, i in zip(tval, timm)))
    tidx = [treg.index(v ^ i) for v, i in zip(tval, timm)]
    XOR = XOR or len(treg) > 2
    vAX = vOK + 1
    runs = []
    for i, b in enumerate(ub):
        if runs and runs[-1][1] + runs[-1][2] == b: runs[-1][2] += 1
        else: runs.append([i, b, 1])
    SKIP = 4
    NTAIL = 256 - 7 * NS
    NDYN = NTAIL + 3 * SKIP
    assert NS % 2 == 1 and NTAIL >= 0 and 5 <= D <= DV <= 7 and DV <= D2 <= 8 and not XOR
    rS, sEND, sCNT = 64, sMODE, sOUTO
    vOS, vSA, vMX, vS2, vSN, vPN = 62, 64, 65, 96, 66, 100
    LDS_S = 16 * KB

    cur_skip = [0]
    def kv_setup(skip):
        a(f"v_lshrrev_b32 v{vT0}, 2, v{vJ}\nv_and_b32 v{vT1}, 3, v{vJ}")
        for dst, sel in ((vOK, vT0), (vOV, vG)):
            if len(gv[0]) == 1 and gv[1] == [gv[0][0] + 1]:
                a(f"v_lshlrev_b32 v{dst}, {gv[0][0]}, v{sel}")
            else:
                a(f"v_and_b32 v{vT2}, 1, v{sel}\nv_mul_u32_u24 v{vT2}, {mk(gv[0])}, v{vT2}\nv_lshrrev_b32 v{vT3}, 1, v{sel}\nv_mul_u32_u24 v{vT3}, {mk(gv[1])}, v{vT3}\nv_xor_b32 v{dst}, v{vT2}, v{vT3}")
        a(f"v_lshl_add_u32 v{vOK}, v{vG}, 6, v{vOK}\nv_lshl_add_u32 v{vOK}, v{vT1}, 4, v{vOK}\nv_lshl_add_u32 v{vOV}, v{vJ}, 4, v{vOV}")
        if len(treg) == 2 and not XOR:
            a(f"v_xor_b32 v{vOK+1}, {treg[1]}, v{vOK}\nv_xor_b32 v{vOV+1}, {treg[1]}, v{vOV}")
        a(f"s_add_u32 s{sB}, s{sW}, s{sP}\ns_and_b32 s{sB}, s{sB}, 3")
        a(f"s_lshl_b32 s{sBASE}, s{sB}, 5\ns_add_u32 s{sBASE}, s{sBASE}, s{sH}\ns_lshl_b32 s{sBASE}, s{sBASE}, 20")
        a(f"s_mul_i32 s{sROT}, s{sH}, {ROTH}")
        if ROTW == 1: a(f"s_add_u32 s{sROT}, s{sROT}, s{sB}")
        else: a(f"s_mul_i32 s{sT2}, s{sB}, {ROTW}\ns_add_u32 s{sROT}, s{sROT}, s{sT2}")
        a(f"s_add_u32 s{sTK}, s{sP}, {7*skip}")
        cur_skip[0] = skip

    def masks():
        a(f"v_and_b32 v{vT0}, 1, v{vL}\nv_lshlrev_b32 v{vT0}, 4, v{vT0}\nv_mov_b32 v{vT1}, 0xffff\nv_lshlrev_b32 v{vT0}, v{vT0}, v{vT1}")
        a(f"v_bfe_u32 v{vT1}, v{vL}, 1, 2")
        for r in range(4):
            a(f"v_cmp_eq_u32 vcc, {r}, v{vT1}\nv_cndmask_b32 v{vMASK+r}, 0, v{vT0}, vcc")

    def kv_late():
        a(f"v_mov_b32 v{vMC}, 0xff7f0000\nv_mov_b32 v{vLS}, 0\nv_mov_b32 v{vONE}, 1")
        for r in range(4): a(f"v_mov_b32 v{vO+r}, 0")
        a(f"s_lshl_b32 s{sT2}, s{sH}, 2\ns_add_u32 s{sT2}, s{sT2}, s{sB}\ns_lshl_b32 s{sMSG}, s{sT2}, 3\ns_lshl_b32 s{sT2}, s{sT2}, 8\ns_add_u32 s{sT2}, s{sT2}, {WS_CT}\nv_mov_b32 v{vCA}, s{sT2}")
        a(f"s_add_u32 s{sMSG}, s{sMSG}, s{sP}\ns_lshl_b32 s{sMSG}, s{sMSG}, 10\ns_add_u32 s{sMSG}, s{sMSG}, {WS_OP}")
        a(f"v_and_b32 v{vT1}, 3, v{vJ}\nv_lshlrev_b32 v{vOQ}, 7, v{vG}\nv_lshl_add_u32 v{vOQ}, v{vT1}, 5, v{vOQ}")
        a(f"s_lshl_b32 s{sQO}, s{sH}, 12\ns_lshl_b32 s{sT2}, s{sB}, 9\ns_add_u32 s{sQO}, s{sQO}, s{sT2}\ns_add_u32 s{sQO}, s{sQO}, {WS_QP}")
        a(f"v_lshlrev_b32 v{vT0}, 7, v{vG}\nv_lshl_add_u32 v{vT0}, v{vJ}, 4, v{vT0}\nv_mov_b32 v{vT1}, 512")
        a(f"v_cmp_gt_u32 vcc, 8, v{vJ}\nv_cndmask_b32 v{vOP}, v{vT1}, v{vT0}, vcc")

    def unit_addr(dst):
        a(f"s_add_u32 s{sT3}, s{sTK}, s{sROT}")
        for n, (i, b, w) in enumerate(runs):
            if XOR and n == 0:
                a(f"s_bfe_u32 s{sT1}, s{sT3}, {i | (w << 16):#x}\ns_lshl_b32 s{dst}, s{sT1}, {b}")
            else:
                a(f"s_bfe_u32 s{sT1}, s{sT3}, {i | (w << 16):#x}\ns_lshl_b32 s{sT1}, s{sT1}, {b}\ns_add_u32 s{dst}, s{sT1}, s{dst if n else sBASE}")

    def slot(i): return V(RING + 4*i, 4) if i < 32 else A(4*(i - 32), 4)

    def kv_load(sl, r, base, tg):
        isv = r >= 4
        if XOR:
            if tval[r%4]: a(f"s_xor_b32 s{sXT}, s{base}, {tval[r%4]}")
            a(f"v_xor_b32 v{vAX}, s{sXT if tval[r%4] else base}, v{vOV if isv else vOK}")
            a.vm(f"buffer_load_dwordx4 {slot(sl)}, v{vAX}, {R(rV if isv else rK)}, s{sBASE} offen nt", tg)
            return
        a.vm(f"buffer_load_dwordx4 {slot(sl)}, v{(vOV if isv else vOK) + tidx[r%4]}, {R(rV if isv else rK)}, s{base} offen offset:{timm[r%4]} nt", tg)

    def s_load_(sl, t, tg):
        a.vm(f"buffer_load_dwordx4 {slot(sl)}, v{vOS + tidx[t]}, {R(rS)}, s{sU0} offen offset:{timm[t]} nt", tg)

    def use(isv):
        r, v = (rV, vOV) if isv else (rK, vOK)
        a(f"s_mov_b64 s[{rS}:{rS+1}], s[{r}:{r+1}]\nv_mov_b32 v{vOS}, v{v}\nv_mov_b32 v{vOS+1}, v{v+1}")

    def k_mfma(sl, c):
        d = vS2 if (c >> 2) & 1 else vS
        a(f"v_mfma_f32_16x16x32_bf16 {V(d,4)}, {slot(sl)}, {V(vBQ+4*(c&3),4)}, {V(d,4) if c & 3 else '0'}")

    def k_post(u, off):
        quadsum(vSC, vS2 if u & 1 else vS, vU0)
        a(f"v_max_f32 v{vMX}, v{vMX}, v{vSC}\nds_write_b32 v{vSA}, v{vSC} offset:{off}")

    def allmax(x):
        a(f"v_max_f32_dpp v{vU0}, v{x}, v{x} row_ror:4 {DPP}")
        a(f"v_max_f32_dpp v{vU0}, v{vU0}, v{vU0} row_ror:8 {DPP}")
        a(f"v_mov_b32 v{vU1}, v{vU0}\nv_permlane16_swap_b32 v{vU0}, v{vU1}\nv_max_f32 v{vU0}, v{vU0}, v{vU1}")
        a(f"v_mov_b32 v{vU1}, v{vU0}\nv_permlane32_swap_b32 v{vU0}, v{vU1}\nv_max_f32 v{vU0}, v{vU0}, v{vU1}")

    def claim():
        setexec(1)
        if "2x" in ABL: a(f"global_atomic_add v{vCA}, v{vONE}, s[{pWS}:{pWS+1}] offset:128 sc1")
        a(f"global_atomic_add v{vTK}, v{vCA}, v{vONE}, s[{pWS}:{pWS+1}] sc0 sc1")
        setexec(FULL)

    def softmax_part():
        quadsum(vSC, vS, vU0)
        skip = a.label("nomax")
        a(f"v_fma_f32 v{vP}, v{vSC}, s{sC}, -v{vMC}\nv_cmp_lt_f32 vcc, 0, v{vP}\ns_cbranch_vccz {skip}")
        a(f"v_mul_f32 v{vSC}, s{sC}, v{vSC}")
        allmax(vSC)
        a(f"v_and_b32 v{vU0}, s{sHI24}, v{vU0}\nv_max_f32 v{vU0}, v{vU0}, v{vMC}")
        a(f"v_sub_f32 v{vU1}, v{vMC}, v{vU0}\nv_exp_f32 v{vU1}, v{vU1}\nv_mov_b32 v{vMC}, v{vU0}\nv_sub_f32 v{vP}, v{vSC}, v{vU0}")
        a(f"v_mul_f32 v{vLS}, v{vLS}, v{vU1}")
        for r in range(4):
            a(f"v_mul_f32 v{vO+r}, v{vO+r}, v{vU1}")
        a(f"{skip}:")
        a(f"v_exp_f32 v{vP}, v{vP}")
        a(f"v_cvt_pk_bf16_f32 v{vU0}, v{vP}, v{vP}\nv_add_f32 v{vLS}, v{vLS}, v{vP}")
        for t in range(4):
            for r in range(4):
                a(f"v_and_b32_dpp v{vPB+4*t+r}, v{vU0}, v{vMASK+r} row_newbcast:{4*t} {DPP}")

    def consume(sl, r, filler=None):
        if r < 4:
            c = V(vS, 4) if r else "0"
            a(f"v_mfma_f32_16x16x32_bf16 {V(vS,4)}, {slot(sl)}, {V(vBQ+4*r,4)}, {c}")
            if r == 3:
                if filler: filler()
                softmax_part()
        else:
            a(f"v_mfma_f32_16x16x32_bf16 {V(vO,4)}, {slot(sl)}, {V(vPB+4*(r-4),4)}, {V(vO,4)}")

    def q_poll():
        for i in range(2):
            a.vm(f"buffer_load_dwordx4 {V(vQ+4*i,4)}, v{vOQ}, {R(rWS)}, s{sQO} offen offset:{16*i} sc1", "Q")

    class Start:
        def __init__(self, pu, ready=False): self.pu, self.n, self.ready = pu, 0, ready
        def load(self):
            n = self.n; self.n += 1
            if n == 0 and not self.ready: unit_addr(sU0)
            kv_load(n % (8*self.pu), n % 4, sU0, f"P{n}")
            if n % 4 == 3:
                a(f"s_add_u32 s{sTK}, s{sTK}, 7")
                unit_addr(sU0)
        def paced(self, depth):
            if f"P{self.n - depth}" in a.q: a.wait(f"P{self.n - depth}")
            self.load()
        def until_q(self, pollat):
            while self.n < pollat: self.paced(DP)
            q_poll()
            while self.n < min(pollat + DP - 1, 8*self.pu): self.paced(DP)
        def finish(self, hook=None):
            if "Q" in a.q: a.wait("Q")
            chk, ok = a.label("qcheck"), a.label("qok")
            a(f"{chk}:")
            untag(list(range(vQ, vQ+8)), vT0)
            a(f"s_cbranch_vccz {ok}" if not ({"QPst", "Q"} & set(ABL)) else f"s_branch {ok}")
            saved = list(a.q)
            q_poll()
            a("s_waitcnt vmcnt(0)")
            spin_guard(chk)
            a.q = saved
            a(f"{ok}:")
            stamp(2)
            for r in range(4):
                a(f"v_cvt_pk_bf16_f32 v{vQ+r}, v{vQ+2*r}, v{vQ+2*r+1}")
            for t in range(4):
                m = 0x000f000f << (4*t)
                a(f"s_mov_b32 vcc_lo, {m:#x}\ns_mov_b32 vcc_hi, {m:#x}")
                for r in range(4):
                    a(f"v_cndmask_b32 v{vBQ+4*t+r}, 0, v{vQ+r}, vcc")
            N = 8 * self.pu
            a(f"v_mov_b32 v{vMX}, 0xff7f0000\ns_lshl_b32 s{sT2}, s{sW}, 14\ns_add_u32 s{sT2}, s{sT2}, {LDS_S}\nv_lshl_add_u32 v{vSA}, v{vL}, 2, s{sT2}")
            first, todo = self.n, N + D - self.n
            for c in range(N):
                want = first + (todo * (c + 1) + N - 1) // N
                while self.n < want and self.n - N < c:
                    self.paced(DP if self.n < N else max(D, DP - 1))
                if f"P{c}" in a.q: a.wait(f"P{c}")
                k_mfma(c, c)
                if c % 4 == 2 and c > 4: k_post(c // 4 - 1, 256 * (c // 4 - 1))
                if hook: hook(c)
            while self.n < N + D: self.paced(DP)
            nu = NS - 1 - cur_skip[0]
            assert (nu - N // 4) % 2 == 0 and nu - N // 4 >= 4
            a(f"v_add_u32 v{vSA}, {256 * (N // 4 - 1)}, v{vSA}")
            a(f"s_mov_b32 s{sCNT}, {(nu - N // 4) // 2}\ns_mov_b32 s{sU1}, {nu}\ns_add_u32 s{sEND}, s{sP}, {7*(NS-1)}")
            a(f"s_mov_b32 s{rS+2}, {128*MB}\ns_mov_b32 s{rS+3}, 0x20000")
            use(False)
            stamp(3)

    kv_setup(0)
    a(f"s_mov_b32 s{rK+2}, {128*MB}\ns_mov_b32 s{rK+3}, 0x20000\ns_mov_b32 s{rV+2}, {128*MB}\ns_mov_b32 s{rV+3}, 0x20000")
    unit_addr(sU0)
    a(f"s_waitcnt lgkmcnt(0)\ns_mov_b64 s[{rK}:{rK+1}], s[{pK}:{pK+1}]\ns_mov_b64 s[{rV}:{rV+1}], s[{pV}:{pV+1}]")
    st = Start(PU, True)
    soft(0)
    for _ in range(DP): st.load()
    warm(); consts()
    if STAMP == 2: a.wait("P0"); soft(1); soft_flush()
    for part in (masks, kv_late):
        for _ in range(4): st.paced(DP)
        part()
    stamp(1)
    st.until_q(POLLP)
    take_tag()
    st.finish()

    a("L_bloop:")
    for r in range(8):
        n = r + D
        a(f"s_waitcnt vmcnt({D-1})")
        s_load_(n % 8, n % 4, "loop")
        k_mfma(r, r)
        if n % 4 == 3:
            skip = a.label("stayk")
            a(f"s_add_u32 s{sTK}, s{sTK}, 7\ns_cmp_lg_u32 s{sTK}, s{sEND}\ns_cbranch_scc1 {skip}")
            use(True)
            a(f"s_mul_i32 s{sT1}, s{sU1}, 7\ns_sub_u32 s{sTK}, s{sTK}, s{sT1}")
            a(f"{skip}:")
            unit_addr(sU0)
        if r % 4 == 1: k_post(r // 4 + 1, 256 * (r // 4))
    a(f"v_add_u32 v{vSA}, 512, v{vSA}")
    a(f"s_sub_u32 s{sCNT}, s{sCNT}, 1\ns_cmp_lg_u32 s{sCNT}, 0\ns_cbranch_scc1 L_bloop")
    def v_addr():
        skip, second = a.label("stayv"), a.label("second")
        a(f"s_add_u32 s{sTK}, s{sTK}, 7\ns_cmp_lt_u32 s{sTK}, s{sEND}\ns_cbranch_scc1 {skip}")
        a(f"s_cmp_lg_u32 s{sTK}, s{sEND}\ns_cbranch_scc1 {second}")
        use(False)
        claim()
        a(f"s_branch {skip}\n{second}:")
        use(True)
        a(f"s_mov_b32 s{sTK}, s{sEND}")
        a(f"{skip}:")
        unit_addr(sU0)
    for n in range(D, DV):
        s_load_(n, n % 4, "loop")
        assert n % 4 != 3
    k_post(1, 0)
    a(f"v_mov_b32 v{vP}, 0xff7f0000\nds_write_b32 v{vSA}, v{vP} offset:256")
    a(f"s_lshl_b32 s{sT2}, s{sW}, 14\ns_add_u32 s{sT2}, s{sT2}, {LDS_S}\nv_lshl_add_u32 v{vSA}, v{vL}, 2, s{sT2}")
    a(f"ds_read_b32 v{vSN}, v{vSA}\nds_read_b32 v{vSN+1}, v{vSA} offset:256")
    a(f"v_mul_f32 v{vMX}, s{sC}, v{vMX}")
    allmax(vMX)
    a(f"v_and_b32 v{vMC}, s{sHI24}, v{vU0}\ns_lshr_b32 s{sCNT}, s{sU1}, 1")
    stamp(5)
    def p_next(i):
        a(f"s_waitcnt lgkmcnt(1)\nv_fma_f32 v{vP}, v{vSN+i}, s{sC}, -v{vMC}\nv_exp_f32 v{vP}, v{vP}")
        a(f"ds_read_b32 v{vSN+i}, v{vSA} offset:{512 + 256*i}")
        a(f"v_cvt_pk_bf16_f32 v{vPN+i}, v{vP}, v{vP}\nv_add_f32 v{vLS}, v{vLS}, v{vP}")
    p_next(0)
    a("L_vloop:")
    for r in range(8):
        n = r + DV
        pb = vPB + 8 + 4*(r & 1)
        for q in range(4):
            a(f"v_and_b32_dpp v{pb+q}, v{vPN + (r >> 2)}, v{vMASK+q} row_newbcast:{4*(r&3)} {DPP}")
        a(f"s_waitcnt vmcnt({DV-1})")
        s_load_(n % 8, n % 4, "loop")
        a(f"v_mfma_f32_16x16x32_bf16 {V(vO,4)}, {slot(r)}, {V(pb,4)}, {V(vO,4)}")
        if n % 4 == 3: v_addr()
        if r == 1: p_next(1)
        if r == 5:
            a(f"v_add_u32 v{vSA}, 512, v{vSA}")
            p_next(0)
    a(f"s_sub_u32 s{sCNT}, s{sCNT}, 1\ns_cmp_lg_u32 s{sCNT}, 0\ns_cbranch_scc1 L_vloop")
    stamp(6)
    for n in range(DV, D2): kv_load(n, n, sU0, "loop")
    a("L_dloop:")
    for half in range(2):
        cur, nxt = (sU0, sU1) if half == 0 else (sU1, sU0)
        for r in range(8):
            n = r + D2
            a(f"s_waitcnt vmcnt({D2-1})")
            if n == 8:
                a(f"v_readfirstlane_b32 s{sIT}, v{vTK}")
                a(f"s_sub_u32 s{sT0}, s{sIT}, {NTAIL}\ns_and_b32 s{sT2}, s{sT0}, 3\ns_mul_i32 s{sT2}, s{sT2}, 7\ns_lshr_b32 s{sT0}, s{sT0}, 2\ns_add_u32 s{sTK}, s{sT2}, s{sT0}")
                a(f"s_add_u32 s{sT2}, s{sIT}, {7*NS}\ns_cmp_lt_i32 s{sIT}, {NTAIL}\ns_cselect_b32 s{sTK}, s{sT2}, s{sTK}")
                a(f"s_add_u32 s{sIT}, s{sIT}, 8")
                unit_addr(nxt)
                a(f"s_cmp_ge_u32 s{sIT}, {NDYN + 8}\ns_cselect_b32 s{nxt}, {128*MB}, s{nxt}")
            if n == 16 - D2:
                skip = a.label("noclaim")
                a(f"v_mov_b32 v{vTK}, {NDYN}\ns_cmp_ge_u32 s{sIT}, {NDYN + 7}\ns_cbranch_scc1 {skip}")
                claim()
                a(f"{skip}:")
            kv_load((half*8 + n) % 16, n % 8, cur if n < 8 else nxt, "loop")
            consume(half*8 + r, r)
        a(f"s_cmp_ge_u32 s{sIT}, {NDYN + 8}")
        a("s_cbranch_scc1 L_bdone" if half == 0 else "s_cbranch_scc0 L_dloop")
    a("L_bdone:")
    a(f"v_add_f32_dpp v{vLS}, v{vLS}, v{vLS} row_ror:8 {DPP}")
    a(f"v_add_f32_dpp v{vLS}, v{vLS}, v{vLS} row_ror:4 {DPP}")
    a(f"v_mov_b32 v{vU1}, v{vLS}")
    a(f"v_permlane16_swap_b32 v{vLS}, v{vU1}\nv_add_f32 v{vLS}, v{vLS}, v{vU1}\nv_mov_b32 v{vU1}, v{vLS}")
    tag([vO+2, vO+3])
    a(f"v_permlane32_swap_b32 v{vLS}, v{vU1}")
    setexec(1 << 8)
    a(f"v_add_f32 v{vO+1}, v{vLS}, v{vU1}\nv_mov_b32 v{vO}, v{vMC}")
    setexec(0x00ff00ff00ff01ff)
    tag([vO, vO+1])
    a.vm(f"buffer_store_dwordx4 {V(vO,4)}, v{vOP}, {R(rWS)}, s{sMSG} offen sc1", "OPst")
    stamp(4)
    probe_end()
    a("s_endpgm")

    a("L_qp:")
    a.q = []
    a(f"v_lshlrev_b32 v{vT0}, 18, v{vG}\nv_lshl_add_u32 v{vOW}, v{vJ}, 4, v{vT0}")
    a(f"v_lshrrev_b32 v{vT1}, 3, v{vJ}\nv_lshlrev_b32 v{vT1}, 10, v{vT1}\nv_lshl_add_u32 v{vOX}, v{vG}, 6, v{vT1}")
    a(f"s_cmp_eq_u32 s{sP}, 0\ns_cselect_b32 s{sHJ}, {XQ[0]}, {XQ[1]}\ns_xor_b32 s{sHJ}, s{sHJ}, s{sH}")
    a(f"s_lshl_b32 s{sU1}, s{sW}, 8\ns_lshl_b32 s{sWO}, s{sW}, 20\ns_lshl_b32 s{sT2}, s{sHJ}, 8\ns_add_u32 s{sWO}, s{sWO}, s{sT2}")
    a(f"s_mov_b32 s{rW+2}, {4*MB}\ns_mov_b32 s{rW+3}, 0x20000\ns_mov_b32 s{rX+2}, 4096\ns_mov_b32 s{rX+3}, 0x20000")
    a(f"s_cmp_eq_u32 s{sP}, 0\ns_waitcnt lgkmcnt(0)")
    a(f"s_cselect_b64 s[{rW}:{rW+1}], s[{pBWQ}:{pBWQ+1}], s[{pAWQ}:{pAWQ+1}]\ns_cselect_b64 s[{rX}:{rX+1}], s[{pBX}:{pBX+1}], s[{pAX}:{pAX+1}]")
    def w_load(t):
        a.vm(f"buffer_load_dwordx4 {A(A1+4*t,4)}, v{vOW}, {R(rW)}, s{sWO} offen nt", f"W{t}")
        a(f"s_add_u32 s{sWO}, s{sWO}, 8192")
    def x_load(i):
        for u in range(2):
            a.vm(f"buffer_load_dwordx4 {V(vX+16*u+4*i,4)}, v{vOX}, {R(rX)}, s{sU1} offen offset:{2048*u+16*i}", f"X{i}")
    soft(0)
    w_load(0); w_load(1); x_load(0)
    for t in range(2, 8): w_load(t)
    warm(); consts(); masks()
    for i in range(1, 4): x_load(i)
    a(f"s_lshl_b32 s{sT2}, s{sHJ}, 2\ns_add_u32 s{sT2}, s{sT2}, s{sW}\ns_lshl_b32 s{sT2}, s{sT2}, 8\ns_add_u32 s{sT2}, s{sT2}, {WS_CT}")
    a(f"v_mov_b32 v{vTK}, 0\ns_cmp_eq_u32 s{sP}, 0\ns_cselect_b32 s{sT2}, s{sT2}, {WS_SIZE}")
    setexec(1)
    a.vm(f"buffer_store_dword v{vTK}, v{vTK}, {R(rWS)}, s{sT2} offen sc1", "INIT")
    setexec(FULL)
    st = Start(4)
    todo = [lambda t=t: w_load(t) for t in range(8, 32)] + [lambda: None] * (8 - DP) + [st.load] * DP
    late = {4: lambda: kv_setup(SKIP), 8: lambda: (srd(rK, pK, 128*MB), srd(rV, pV, 128*MB)), 12: kv_late}
    a(f"s_mov_b32 s{sSELLO}, 0x01000100\ns_mov_b32 s{sSELHI}, 0x03020302")
    for t in range(32):
        if f"X{t//8}" in a.q: a.wait(f"X{t//8}")
        if t == 0: soft(1); soft_flush()
        if f"W{t}" in a.q: a.wait(f"W{t}")
        todo.pop(0)()
        if t in late: late[t]()
        for u in range(2):
            x = vX + 16*u + (t >> 1)
            a(f"v_perm_b32 v{vT0+u}, v{x}, v{x}, s{sSELHI if t & 1 else sSELLO}")
        for u in range(2):
            for r in range(4):
                a(f"v_and_b32 v{vB+4*u+r}, v{vT0+u}, v{vMASK+r}")
        for u in range(2):
            c = V(vACC+4*u, 4) if t else "0"
            a(f"v_mfma_f32_16x16x32_bf16 {V(vACC+4*u,4)}, {A(A1+4*t,4)}, {V(vB+4*u,4)}, {c}")
    a(f"s_lshl_b32 s{sT2}, s{sW}, 11")
    a(f"v_lshrrev_b32 v{vT0}, 3, v{vJ}\nv_lshlrev_b32 v{vT0}, 9, v{vT0}\nv_lshl_add_u32 v{vT0}, v{vG}, 7, v{vT0}")
    a(f"v_and_b32 v{vT1}, 7, v{vJ}\nv_lshl_add_u32 v{vT0}, v{vT1}, 2, v{vT0}\nv_add_u32 v{vT0}, s{sT2}, v{vT0}")
    for u in range(2):
        for r in range(4):
            a(f"ds_write_b32 v{vT0}, v{vACC+4*u+r} offset:{u*1024+r*32}")
    a(f"s_lshl_b32 s{sT2}, s{sW}, 9\nv_and_b32 v{vT1}, 31, v{vL}\nv_lshl_add_u32 v{vT1}, v{vT1}, 4, s{sT2}")
    take_tag()
    a("s_barrier")
    for p in range(4):
        a(f"ds_read_b128 {V(vX+4*p,4)}, v{vT1} offset:{p*2048}")
    a(f"s_lshl_b32 s{sT2}, s{sHJ}, 1\ns_add_u32 s{sT2}, s{sT2}, s{sP}\ns_lshl_b32 s{sT2}, s{sT2}, 11\ns_add_u32 s{sT2}, s{sT2}, {WS_QP}")
    a("s_waitcnt lgkmcnt(0)")
    for r in range(4):
        a(f"v_add_f32 v{vX+r}, v{vX+r}, v{vX+4+r}\nv_add_f32 v{vX+8+r}, v{vX+8+r}, v{vX+12+r}")
    for r in range(4):
        a(f"v_add_f32 v{vX+r}, v{vX+r}, v{vX+8+r}")
    tag(range(vX, vX+4))
    assert "INIT" not in a.q
    setexec(0xffffffff)
    a.vm(f"buffer_store_dwordx4 {V(vX,4)}, v{vT1}, {R(rWS)}, s{sT2} offen sc1", "QPst")
    setexec(FULL)
    stamp(1)
    st.until_q(POLLQ)
    st.finish()
    a("s_branch L_bloop")

    a("L_ql:")
    a.q = []
    vOU, vOA, vOL, sUK, sQA, sQL = vOW, vOX, vTK, sWO, sCKO, sSLOT
    vQA, vD, vPK, vR = 20, 28, 44, 60
    a(f"v_lshrrev_b32 v{vT0}, 2, v{vJ}\nv_and_b32 v{vT1}, 3, v{vJ}")
    a(f"v_lshlrev_b32 v{vOL}, 6, v{vG}\nv_lshl_add_u32 v{vOL}, v{vT1}, 4, v{vOL}\nv_lshl_add_u32 v{vOU}, v{vT0}, 18, v{vOL}")
    a(f"s_lshl_b32 s{sUK}, s{sW}, 20\ns_lshl_b32 s{sT2}, s{sH}, 8\ns_add_u32 s{sUK}, s{sUK}, s{sT2}")
    a(f"s_mov_b32 s{rUK+2}, {4*MB}\ns_mov_b32 s{rUK+3}, 0x20000\ns_waitcnt lgkmcnt(0)\ns_mov_b64 s[{rUK}:{rUK+1}], s[{pUK}:{pUK+1}]")
    def uk_load(t):
        if f"UK{t-8}" in a.q: a.wait(f"UK{t-8}")
        a.vm(f"buffer_load_dwordx4 {A(A0+4*t,4)}, v{vOU}, {R(rUK)}, s{sUK} offen nt", f"UK{t}")
        a(f"s_add_u32 s{sUK}, s{sUK}, 8192")
    soft(0)
    for t in range(8): uk_load(t)
    a(f"v_lshlrev_b32 v{vOA}, 1, v{vOL}\nv_lshl_add_u32 v{vOA}, v{vT0}, 9, v{vOA}\nv_lshl_add_u32 v{vOL}, v{vT0}, 15, v{vOL}")
    warm(); consts()
    soft(1); soft_flush()
    a(f"s_lshl_b32 s{sQA}, s{sH}, 12\ns_add_u32 s{sQA}, s{sQA}, {WS_QP + 2048}")
    a(f"s_lshl_b32 s{sQL}, s{sH}, 10\ns_lshl_b32 s{sT2}, s{sW}, 8\ns_add_u32 s{sQL}, s{sQL}, s{sT2}\ns_add_u32 s{sQL}, s{sQL}, {WS_QL}")
    late = {12: masks, 16: lambda: kv_setup(SKIP), 20: lambda: (srd(rK, pK, 128*MB), srd(rV, pV, 128*MB)), 24: kv_late}
    for t in range(8, 32):
        uk_load(t)
        if t in late: late[t]()
    take_tag(True)
    st = Start(4)
    for t in range(32 - DP, 32):
        a.wait(f"UK{t}"); st.load()
    def qa_poll():
        for i in range(2):
            a.vm(f"buffer_load_dwordx4 {V(vQA+4*i,4)}, v{vOA}, {R(rWS)}, s{sQA} offen offset:{16*i} sc1", "QA")
    while st.n < POLLU: st.paced(DP)
    qa_poll()
    while st.n < POLLU + DP - 1: st.paced(DP)
    a.wait("QA")
    chk, ok = a.label("qacheck"), a.label("qaok")
    a(f"{chk}:")
    untag(list(range(vQA, vQA+8)), vT0)
    a(f"s_cbranch_vccz {ok}" if not ({"QPst", "Q"} & set(ABL)) else f"s_branch {ok}")
    saved = list(a.q)
    qa_poll()
    a("s_waitcnt vmcnt(0)")
    spin_guard(chk)
    a.q = saved
    a(f"{ok}:")
    q_poll()
    for r in range(4):
        a(f"v_cvt_pk_bf16_f32 v{vQA+r}, v{vQA+2*r}, v{vQA+2*r+1}")
    def fold(t):
        quadsum(vR + (t & 1), vD + 4*(t % 4), vT0)
        if t & 1: a(f"v_cvt_pk_bf16_f32 v{vPK+t//2}, v{vR}, v{vR+1}")
    for t in range(32):
        a(f"v_mfma_f32_16x16x32_bf16 {V(vD+4*(t%4),4)}, {A(A0+4*t,4)}, {V(vQA,4)}, 0")
        if t >= 2: fold(t - 2)
        if t % 8 == 4 and st.n < 32: st.load()
    fold(30); fold(31)
    for q in range(1, 4):
        setexec(0x1111111111111111 << q)
        for r in range(4):
            a(f"v_mov_b32 v{vPK+r}, v{vPK+4*q+r}")
    setexec(FULL)
    a.vm(f"buffer_store_dwordx4 {V(vPK,4)}, v{vOL}, {R(rWS)}, s{sQL} offen sc1", "QLst")
    stamp(1)
    done = []
    def sig(c):
        if not done and ("QLst" not in a.q or c == 15):
            done.append(c); signal("QLst", WS_F1, vD)
    st.finish(sig)
    a("s_branch L_bloop")

    a("L_aux:")
    role[0] = "A"
    a.q = []
    vOR8, vOR1 = 19, 9
    vOC, vOC8 = 76, 10
    vAQ, vAP = 80, 81
    vAD = 82
    vM, vLL, vAL, vEX = 90, 91, 92, 94
    vWR = 96
    vTRB, vZ, vL2 = 95, 100, 102
    vQL, vCT, vSS = 104, 136, 200
    vKA, vPP, vE1, vE2 = 20, 52, 60, 216
    vTA = 136
    a(f"v_lshlrev_b32 v{vT0}, 2, v{vG}\nv_xor_b32 v{vT0}, v{vT0}, v{vJ}")
    for i in range(4):
        a(f"v_xor_b32 v{vWR+i}, {i}, v{vT0}\nv_lshlrev_b32 v{vWR+i}, 4, v{vWR+i}\nv_lshl_add_u32 v{vOC8+i}, v{vG}, 13, v{vWR+i}")
        if i: a(f"v_add_u32 v{vOC8+i}, {i*(32768-1024)}, v{vOC8+i}")
    a(f"s_lshl_b32 s{sM0}, s{sW}, 15\ns_mov_b32 s{sFILL}, 0\ns_mov_b32 s{sSLOT}, 0")
    a(f"s_lshl_b32 s{sCKO}, s{sW}, 20\ns_lshl_b32 s{sT2}, s{sH}, 8\ns_add_u32 s{sCKO}, s{sCKO}, s{sT2}")
    a("s_waitcnt lgkmcnt(0)")
    srd(rCK, pUV, 4*MB)
    def ck_one(n, tg, offs=vOC, step=16384):
        if n % 4 == 0:
            a(f"s_add_u32 s{sT3}, s{sM0}, s{sFILL}\ns_mov_b32 m0, s{sT3}")
            a(f"s_add_u32 s{sFILL}, s{sFILL}, 4096\ns_and_b32 s{sFILL}, s{sFILL}, 0x7fff")
        a.vm(f"buffer_load_dwordx4 v{offs+n%4}, {R(rCK)}, s{sCKO} offen offset:{(n%4)*1024} nt lds", tg)
        if n % 4 == 3:
            a(f"s_add_u32 s{sCKO}, s{sCKO}, {step}")
    soft(0)
    for n in range(8): ck_one(n, "UV0", vOC8, 16*8192)
    warm(); consts()
    srd(rOUT, pOUT, 8192)
    for i in range(4):
        a(f"v_lshl_add_u32 v{vOC+i}, v{vG}, 10, v{vWR+i}\nv_lshl_add_u32 v{vWR+i}, v{vG}, 8, v{vWR+i}")
        if i: a(f"v_add_u32 v{vOC+i}, {i*3072}, v{vOC+i}")
    a(f"v_mov_b32 v{vZ}, 0\nv_and_b32 v{vZ+1}, 31, v{vL}\ns_lshl_b32 s{sT2}, s{sW}, 13\nv_lshl_add_u32 v{vZ+1}, v{vZ+1}, 8, s{sT2}")
    a(f"v_lshlrev_b32 v{vT0}, 4, v{vJ}\nv_lshl_add_u32 v{vOR8}, v{vG}, 13, v{vT0}\nv_lshl_add_u32 v{vOR1}, v{vG}, 10, v{vT0}")
    a(f"s_lshl_b32 s{sWO}, s{sH}, 17\ns_lshl_b32 s{sT2}, s{sW}, 8\ns_add_u32 s{sWO}, s{sWO}, s{sT2}")
    vB1 = vAD
    a(f"v_and_b32 v{vT0}, 3, v{vL}\nv_bfe_u32 v{vT1}, v{vL}, 2, 2\nv_lshrrev_b32 v{vT2}, 5, v{vL}")
    a(f"v_lshl_add_u32 v{vT3}, v{vT0}, 2, v{vT1}\nv_xor_b32 v{vT3}, v{vT3}, v{vT2}\nv_lshlrev_b32 v{vT3}, 4, v{vT3}")
    a(f"v_and_b32 v{vAQ}, 31, v{vL}\nv_lshl_add_u32 v{vAQ}, v{vAQ}, 8, v{vT3}")
    a(f"v_lshl_add_u32 v{vAP}, v{vT2}, 2, v{vT1}\nv_lshlrev_b32 v{vAP}, 8, v{vAP}\nv_lshl_add_u32 v{vAP}, v{vT1}, 6, v{vAP}")
    a(f"v_bfe_u32 v{vT3}, v{vL}, 4, 1\nv_lshlrev_b32 v{vT3}, 1, v{vT3}\nv_bfe_u32 v{vB1}, v{vL}, 1, 1\nv_add_u32 v{vT3}, v{vT3}, v{vB1}")
    a(f"v_xor_b32 v{vT3}, v{vT3}, v{vT2}\nv_lshl_add_u32 v{vAP}, v{vT3}, 4, v{vAP}")
    a(f"v_and_b32 v{vT3}, 1, v{vL}\nv_lshl_add_u32 v{vAP}, v{vT3}, 3, v{vAP}")
    a(f"v_lshl_add_u32 v{vTRB}, v{vG}, 3, v{vT1}\nv_lshlrev_b32 v{vTRB}, 8, v{vTRB}\nv_lshl_add_u32 v{vTRB}, v{vT1}, 6, v{vTRB}")
    a(f"v_bfe_u32 v{vT0}, v{vL}, 4, 1\nv_lshl_add_u32 v{vT0}, v{vT0}, 1, v{vB1}\nv_lshl_add_u32 v{vTRB}, v{vT0}, 4, v{vTRB}")
    a(f"v_lshl_add_u32 v{vTRB}, v{vT3}, 3, v{vTRB}\nv_add_u32 v{vTRB}, s{sM0}, v{vTRB}")
    for i in range(16):
        a(f"v_xor_b32 v{vTA+i}, {16*i}, v{vTRB}")
    a(f"s_lshl_b32 s{sU0}, s{sW}, 13\ns_add_u32 s{sU0}, s{sU0}, {LDS_EX}\nv_lshl_add_u32 v{vEX}, v{vL}, 4, s{sU0}")
    for i in range(4):
        a(f"v_add_u32 v{vWR+i}, s{sU0}, v{vWR+i}")
    soft(1); soft_flush()
    for k in range(1, 4):
        for n in range(8): ck_one(n, f"UV{k}", vOC8, 16*8192)
    take_tag(True)
    def slot_out(k, dst):
        for nt in range(8):
            for pi in range(2):
                a(f"ds_read_b64_tr_b16 {A(dst+16*nt+4*k+2*pi,2)}, v{vTA+2*nt+pi} offset:{8192*k+1024*pi}")
        a("s_waitcnt lgkmcnt(0)")
    srd(rCK, pAWO, 4*MB)
    a(f"s_mov_b32 s{sCKO}, s{sWO}")
    for k in range(4):
        a.wait(f"UV{k}")
        slot_out(k, A1)
        for n in range(8): ck_one(n, f"WA{k}")
    stamp(1)
    srd(rCK, pCK, 16*MB)
    a(f"s_lshl_b32 s{sCKO}, s{sH}, 19\ns_lshl_b32 s{sT2}, s{sW}, 8\ns_add_u32 s{sCKO}, s{sCKO}, s{sT2}")

    def flag_load(off):
        a(f"s_mov_b32 s{sU1}, {off}")
        a.vm(f"buffer_load_dword v{vT3}, v{vZ+1}, {R(rWS)}, s{sU1} offen sc1", "FL")

    def flag_wait(off):
        a.wait("FL")
        chk, ok = a.label("fcheck"), a.label("fok")
        a(f"{chk}:\nv_cmp_ne_u32 vcc, s{sFLAG}, v{vT3}\ns_cbranch_vccz {ok}")
        saved = list(a.q)
        a("s_sleep 2")
        flag_load(off)
        a("s_waitcnt vmcnt(0)")
        spin_guard(chk)
        a.q = saved
        a(f"{ok}:")

    for k in range(4):
        a.wait(f"WA{k}")
        slot_out(k, A0)
        if k == 3: flag_load(WS_F1)
        for n in range(8 if k < 3 else 5): ck_one(n, f"CK{k}")
    stamp(2)
    for i in range(64): a(f"v_mov_b32 v{vCT+i}, 0")
    a(f"v_mov_b32 v{vM}, 0xff7f0000\ns_mov_b32 s{sIT}, 0")
    a(f"v_mov_b32 v{vL2}, 0\nv_mov_b32 v{vL2+1}, 0\ns_mov_b32 s{sC2}, s{sC}\ns_mov_b32 s{sC2+1}, s{sC}")
    a(f"v_add_u32 v{vT0}, s{sU0}, v{vAQ}")
    for k in range(8):
        a(f"v_xor_b32 v{vAD+k}, {32*k}, v{vT0}")
    a(f"v_add_u32 v{vAQ}, s{sM0}, v{vAQ}\nv_add_u32 v{vAP}, s{sM0}, v{vAP}")
    a(f"s_lshr_b32 s{sT0}, s{sH}, 3\ns_lshl_b32 s{sT0}, s{sT0}, 15\ns_lshl_b32 s{sT2}, s{sW}, 8\ns_add_u32 s{sT0}, s{sT0}, s{sT2}\ns_add_u32 s{sT0}, s{sT0}, {WS_QL}")
    flag_wait(WS_F1)
    stamp(4)
    for i in range(8):
        a.vm(f"buffer_load_dwordx4 {V(vKA+4*i,4)}, v{vOR1}, {R(rWS)}, s{sT0} offen sc1", f"QLg{i}")
        if i < 7: a(f"s_add_u32 s{sT0}, s{sT0}, 4096")
    for i in range(8):
        a.wait(f"QLg{i}")
        a(f"ds_write_b128 v{vWR+(i&3)}, {V(vKA+4*i,4)} offset:{i*1024}")
    a("s_waitcnt lgkmcnt(0)")
    for k in range(8):
        a(f"ds_read_b128 {V(vQL+4*k,4)}, v{vAD+k}")
    stamp(5)
    vKQ = vE2
    for k in range(8):
        a(f"v_xor_b32 v{vAD+k}, {32*k}, v{vAQ}\nds_read_b128 {V(vKQ+4*k,4)}, v{vAD+k}")
    a("L_att:")
    a(f"v_add_u32 v{vT0}, s{sSLOT}, v{vAP}")
    a("s_waitcnt lgkmcnt(0)")
    for k in range(8):
        c = V(vSS, 16) if k else "0"
        a(f"v_mfma_f32_32x32x16_bf16 {V(vSS,16)}, {V(vKQ+4*k,4)}, {V(vQL+4*k,4)}, {c}")
        nt, pi = k >> 1, k & 1
        a(f"v_xor_b32 v{vAD+k}, {32*k}, v{vT0}")
        for sg in range(2):
            a(f"ds_read_b64_tr_b16 {V(vKA+8*nt+4*sg+2*pi,2)}, v{vAD+k} offset:{4096*sg+2048*pi}")
        if k in (0, 4, 7): ck_one({0: 5, 4: 6, 7: 7}[k], "loop")
    a(f"v_xor_b32 v{vT1}, 0x2000, v{vEX}\nv_xor_b32 v{vT2}, 0x4000, v{vEX}\nv_xor_b32 v{vT3}, 0x6000, v{vEX}")
    sw = a.label("noswitch")
    a(f"s_cmp_lg_u32 s{sIT}, 12\ns_cbranch_scc1 {sw}")
    srd(rCK, pBWO, 4*MB)
    a(f"s_mov_b32 s{sCKO}, s{sWO}")
    a(f"{sw}:")
    for q in range(4):
        a(f"ds_write_b128 v{vEX}, {V(vSS+4*q,4)} offset:{1024*q}")
    a("s_waitcnt lgkmcnt(0)\ns_barrier")
    for q in range(4):
        a(f"ds_read_b128 {V(vE1+4*q,4)}, v{vT1} offset:{1024*q}")
        a(f"ds_read_b128 {V(vE2+4*q,4)}, v{vT2} offset:{1024*q}")
        a(f"ds_read_b128 {V(vE2+16+4*q,4)}, v{vT3} offset:{1024*q}")
    a(f"v_xor_b32 v{vEX}, 0x1000, v{vEX}")
    ck_one(0, "loop")
    a(f"s_add_u32 s{sSLOT}, s{sSLOT}, 8192\ns_and_b32 s{sSLOT}, s{sSLOT}, 0x7fff")
    for q in range(4):
        a(f"s_waitcnt lgkmcnt({9-3*q})")
        for r in range(4*q, 4*q+4, 2):
            a(f"v_pk_add_f32 {V(vSS+r,2)}, {V(vSS+r,2)}, {V(vE1+r,2)}\nv_pk_add_f32 {V(vE2+r,2)}, {V(vE2+r,2)}, {V(vE2+16+r,2)}")
        for r in range(4*q, 4*q+4, 2):
            a(f"v_pk_add_f32 {V(vSS+r,2)}, {V(vSS+r,2)}, {V(vE2+r,2)}")
    ck_one(1, "loop")
    a(f"v_max_f32 v{vT0}, v{vSS}, v{vSS+1}")
    for r in range(2, 16, 2):
        a(f"v_max3_f32 v{vT0}, v{vT0}, v{vSS+r}, v{vSS+r+1}")
    a(f"v_mov_b32 v{vT1}, v{vT0}\nv_permlane32_swap_b32 v{vT0}, v{vT1}\nv_max_f32 v{vT0}, v{vT0}, v{vT1}")
    a(f"v_mul_f32 v{vT0}, s{sC}, v{vT0}\nv_max_f32 v{vT0}, v{vT0}, v{vM}")
    a(f"v_sub_f32 v{vAL}, v{vM}, v{vT0}\nv_exp_f32 v{vAL}, v{vAL}\nv_mov_b32 v{vM}, v{vT0}")
    for r in range(0, 16, 2):
        a(f"v_pk_fma_f32 {V(vSS+r,2)}, {V(vSS+r,2)}, s[{sC2}:{sC2+1}], {V(vM,2)} op_sel_hi:[1,1,0] neg_lo:[0,0,1] neg_hi:[0,0,1]")
    for r in range(16):
        a(f"v_exp_f32 v{vSS+r}, v{vSS+r}")
        if r == 4: ck_one(2, "loop")
    a(f"v_add_u32 v{vT0}, s{sSLOT}, v{vAQ}")
    a(f"v_pk_mul_f32 {V(vL2,2)}, {V(vL2,2)}, {V(vAL,2)} op_sel_hi:[1,0]")
    for c in range(vCT, vCT+64, 2):
        a(f"v_pk_mul_f32 {V(c,2)}, {V(c,2)}, {V(vAL,2)} op_sel_hi:[1,0]")
        if c == vCT + 40: ck_one(3, "loop")
    for r in range(8):
        a(f"v_cvt_pk_bf16_f32 v{vPP+r}, v{vSS+2*r}, v{vSS+2*r+1}")
        a(f"v_pk_add_f32 {V(vL2,2)}, {V(vL2,2)}, {V(vSS+2*r,2)}")
    a("s_waitcnt vmcnt(20)")
    k = 0
    for sg in range(2):
        for nt in range(4):
            a(f"v_mfma_f32_32x32x16_bf16 {V(vCT+16*nt,16)}, {V(vKA+8*nt+4*sg,4)}, {V(vPP+4*sg,4)}, {V(vCT+16*nt,16)}")
            if k < 8:
                for kk in (k, k+1):
                    a(f"v_xor_b32 v{vAD+kk}, {32*kk}, v{vT0}\nds_read_b128 {V(vKQ+4*kk,4)}, v{vAD+kk}")
            if k == 8: ck_one(4, "loop")
            k += 2
    a(f"s_add_u32 s{sIT}, s{sIT}, 1\ns_cmp_lt_u32 s{sIT}, 16\ns_cbranch_scc1 L_att")
    a.q = []
    stamp(6)
    a(f"v_add_f32 v{vLL}, v{vL2}, v{vL2+1}")
    a(f"v_mov_b32 v{vT1}, v{vLL}\nv_permlane32_swap_b32 v{vLL}, v{vT1}\nv_add_f32 v{vLL}, v{vLL}, v{vT1}")
    a(f"v_and_b32 v{vT0}, 31, v{vL}\nv_lshlrev_b32 v{vT1}, 8, v{vT0}\nv_lshl_add_u32 v{vT1}, v{vJ}, 4, v{vT1}")
    a(f"v_lshrrev_b32 v{vT2}, 5, v{vL}\nv_lshl_add_u32 v{vT1}, v{vT2}, 3, v{vT1}\nv_add_u32 v{vT1}, s{sU0}, v{vT1}")
    a("s_waitcnt lgkmcnt(0)\ns_barrier")
    for i in range(16):
        a(f"v_cvt_pk_bf16_f32 v{vKA+2*i}, v{vCT+4*i}, v{vCT+4*i+1}\nv_cvt_pk_bf16_f32 v{vKA+2*i+1}, v{vCT+4*i+2}, v{vCT+4*i+3}")
        a(f"v_xor_b32 v{vAD+(i&7)}, {16*i}, v{vT1}\nds_write_b64 v{vAD+(i&7)}, {V(vKA+2*i,2)}")
    a(f"v_xor_b32 v{vT2}, v{vJ}, v{vG}\nv_lshlrev_b32 v{vT2}, 4, v{vT2}\nv_lshl_add_u32 v{vT2}, v{vG}, 8, v{vT2}\nv_add_u32 v{vT2}, s{sU0}, v{vT2}")
    for i in range(4):
        a(f"v_xor_b32 v{vAD+i}, {64*i}, v{vT2}")
    a(f"v_lshlrev_b32 v{vT3}, 4, v{vJ}\nv_lshl_add_u32 v{vT3}, v{vG}, 15, v{vT3}")
    a(f"s_lshl_b32 s{sT0}, s{sH}, 10\ns_lshl_b32 s{sT2}, s{sW}, 8\ns_add_u32 s{sT0}, s{sT0}, s{sT2}\ns_add_u32 s{sT0}, s{sT0}, {WS_CP}")
    a("s_waitcnt lgkmcnt(0)")
    vPUB = 200
    for i in range(8):
        a(f"ds_read_b128 {V(vPUB+4*i,4)}, v{vAD+(i&3)} offset:{1024*i}")
    a(f"v_lshlrev_b32 v{vT0}, 3, v{vT0}\ns_lshl_b32 s{sT1}, s{sH}, 8\ns_lshl_b32 s{sT2}, s{sW}, 13\ns_add_u32 s{sT1}, s{sT1}, s{sT2}\ns_add_u32 s{sT1}, s{sT1}, {WS_CS}")
    setexec(0xffffffff)
    a.vm(f"buffer_store_dwordx2 {V(vM,2)}, v{vT0}, {R(rWS)}, s{sT1} offen sc1", "CPst")
    setexec(FULL)
    for i in range(8):
        a(f"s_waitcnt lgkmcnt({7-i})")
        a.vm(f"buffer_store_dwordx4 {V(vPUB+4*i,4)}, v{vT3}, {R(rWS)}, s{sT0} offen sc1", "CPst")
        if i < 7: a(f"s_add_u32 s{sT0}, s{sT0}, {4*32*KB}")
    for n in range(5, 8): ck_one(n, "WB")
    vBU, vY, vG2 = 136, 84, 104
    vAO, vAY, vAG, vAF, vAM, vAW = 112, 77, 78, 79, 92, 93
    vCB, vSTAT, vDD, vRES = 20, 52, 60, 104
    vGC, vGS, vRW, vRR, vRO = 80, 81, 94, 96, 97
    a(f"v_and_b32 v{vT0}, 3, v{vJ}\nv_lshrrev_b32 v{vT1}, 2, v{vJ}\nv_lshlrev_b32 v{vT2}, 4, v{vG}\nv_add_u32 v{vT2}, {LDS_O}, v{vT2}\ns_movk_i32 s{sT0}, 320")
    for u in range(4):
        a(f"v_cmp_eq_u32 vcc, {u}, v{vT1}\nv_cndmask_b32 v{vAO+u}, 4, v{vT0}, vcc\nv_mad_u32_u24 v{vAO+u}, v{vAO+u}, s{sT0}, v{vT2}")
    a(f"s_lshl_b32 s{sT0}, s{sW}, 16\ns_lshl_b32 s{sT2}, s{sH}, 8\ns_add_u32 s{sT0}, s{sT0}, s{sT2}\nv_add_u32 v{vAY}, s{sT0}, v{vOR8}")
    a(f"s_lshl_b32 s{sT0}, s{sH}, 13\ns_lshl_b32 s{sT2}, s{sW}, 6\ns_add_u32 s{sT0}, s{sT0}, s{sT2}")
    a(f"v_lshrrev_b32 v{vT1}, 2, v{vL}\nv_lshlrev_b32 v{vT1}, 8, v{vT1}\nv_lshl_add_u32 v{vT1}, v{vT0}, 4, v{vT1}\nv_add_u32 v{vAG}, s{sT0}, v{vT1}")
    a(f"s_lshr_b32 s{sT0}, s{sH}, 2\ns_lshl_b32 s{sT0}, s{sT0}, 7\ns_lshl_b32 s{sT2}, s{sW}, 5\ns_add_u32 s{sT0}, s{sT0}, s{sT2}")
    a(f"s_and_b32 s{sT2}, s{sH}, 3\ns_lshl_b32 s{sT2}, s{sT2}, 3\ns_add_u32 s{sT0}, s{sT0}, s{sT2}")
    a(f"v_lshlrev_b32 v{vT1}, 11, v{vT0}\nv_lshl_add_u32 v{vT1}, v{vG}, 1, v{vT1}\nv_add_u32 v{vAF}, s{sT0}, v{vT1}")
    a(f"v_lshrrev_b32 v{vT1}, 2, v{vJ}\nv_lshl_add_u32 v{vT2}, v{vT0}, 3, v{vT1}")
    a(f"v_lshlrev_b32 v{vGS}, 8, v{vT2}\nv_lshlrev_b32 v{vT2}, 10, v{vT2}\nv_lshl_add_u32 v{vGC}, v{vG}, 4, v{vT2}")
    a(f"s_lshl_b32 s{sT2}, s{sW}, 11\ns_add_u32 s{sT2}, s{sT2}, {LDS_EX}")
    a(f"v_lshlrev_b32 v{vT0}, 9, v{vT0}\nv_lshl_add_u32 v{vT0}, v{vG}, 4, v{vT0}\nv_add_u32 v{vRW}, s{sT2}, v{vT0}")
    a(f"s_lshl_b32 s{sT2}, s{sW}, 9\ns_add_u32 s{sT2}, s{sT2}, {LDS_EX}\nv_and_b32 v{vT1}, 31, v{vL}\nv_lshl_add_u32 v{vRR}, v{vT1}, 4, s{sT2}")
    a(f"s_mul_i32 s{sT2}, s{sW}, 320\ns_add_u32 s{sT2}, s{sT2}, {LDS_O}\nv_lshl_add_u32 v{vRO}, v{vT1}, 3, s{sT2}")
    a(f"v_lshlrev_b32 v{vT0}, 6, v{vG}\nv_lshl_add_u32 v{vT0}, v{vJ}, 1, v{vT0}\nv_add_u32 v{vAW}, s{sT2}, v{vT0}")
    a(f"v_lshlrev_b32 v{vT0}, 7, v{vG}\nv_lshl_add_u32 v{vT0}, v{vJ}, 4, v{vT0}\nv_mov_b32 v{vT1}, 512")
    a(f"v_cmp_gt_u32 vcc, 8, v{vJ}\nv_cndmask_b32 v{vAM}, v{vT1}, v{vT0}, vcc")
    a(f"s_mov_b32 s{sMODE}, 0\ns_mov_b32 s{sYO}, {WS_YA}\ns_mov_b32 s{sOUTO}, 0")
    a(f"s_lshl_b32 s{sT0}, s{sH}, 15\ns_lshl_b32 s{sT2}, s{sW}, 8\ns_add_u32 s{sT0}, s{sT0}, s{sT2}\ns_add_u32 s{sT0}, s{sT0}, {WS_CP}")
    a(f"s_lshl_b32 s{sT1}, s{sH}, 3\ns_lshl_b32 s{sT2}, s{sW}, 13\ns_add_u32 s{sT1}, s{sT1}, s{sT2}\ns_add_u32 s{sT1}, s{sT1}, {WS_CS}")
    a("s_barrier")
    signal("CPst", WS_F2, vT0)
    stamp(7)
    flag_load(WS_F2)
    flag_wait(WS_F2)
    stamp(8)
    for hf in range(2):
        a.vm(f"buffer_load_dwordx2 {V(vSTAT+2*hf,2)}, v{vGS}, {R(rWS)}, s{sT1} offen offset:{1024*hf} sc1", "CSg")
    for hf in range(2):
        for k in range(4):
            a.vm(f"buffer_load_dwordx4 {V(vCB+16*hf+4*k,4)}, v{vGC}, {R(rWS)}, s{sT0} offen offset:{64*k} sc1", "CPg")
        a(f"s_add_u32 s{sT0}, s{sT0}, 4096")
    a.wait("CSg")
    a(f"v_max_f32 v{vT0}, v{vSTAT}, v{vSTAT+2}")
    a(f"v_max_f32_dpp v{vT0}, v{vT0}, v{vT0} row_ror:8 {DPP}\nv_max_f32_dpp v{vT0}, v{vT0}, v{vT0} row_ror:4 {DPP}")
    a(f"v_sub_f32 v{vSTAT}, v{vSTAT}, v{vT0}\nv_sub_f32 v{vSTAT+2}, v{vSTAT+2}, v{vT0}")
    a(f"v_exp_f32 v{vSTAT}, v{vSTAT}\nv_exp_f32 v{vSTAT+2}, v{vSTAT+2}")
    a(f"v_mul_f32 v{vT1}, v{vSTAT}, v{vSTAT+1}\nv_fmac_f32 v{vT1}, v{vSTAT+2}, v{vSTAT+3}")
    a(f"v_add_f32_dpp v{vT1}, v{vT1}, v{vT1} row_ror:8 {DPP}\nv_add_f32_dpp v{vT1}, v{vT1}, v{vT1} row_ror:4 {DPP}")
    a(f"v_rcp_f32 v{vT1}, v{vT1}")
    a(f"v_mul_f32 v{vSTAT}, v{vSTAT}, v{vT1}\nv_mul_f32 v{vSTAT+2}, v{vSTAT+2}, v{vT1}")
    a.wait("CPg")
    def ctx_fold(nt):
        d = vDD + 8*(nt % 2)
        res = vRES + 4*(nt % 2)
        for r in range(4):
            a(f"v_mul_f32 v{res+r}, v{d+r}, v{vSTAT}")
        for r in range(4):
            a(f"v_fmac_f32 v{res+r}, v{d+4+r}, v{vSTAT+2}")
        for ror in (8, 4):
            for r in range(4):
                a(f"v_add_f32_dpp v{res+r}, v{res+r}, v{res+r} row_ror:{ror} {DPP}")
        a(f"ds_write_b128 v{vRW}, {V(res,4)} offset:{64*nt}")
    for nt in range(8):
        d = vDD + 8*(nt % 2)
        for k in range(4):
            for hf in range(2):
                c = V(d+4*hf, 4) if k else "0"
                a(f"v_mfma_f32_16x16x32_bf16 {V(d+4*hf,4)}, {A(A1+16*nt+4*k,4)}, {V(vCB+16*hf+4*k,4)}, {c}")
        if nt: ctx_fold(nt - 1)
    ctx_fold(7)
    a("s_waitcnt lgkmcnt(0)\ns_barrier")
    for p in range(4):
        a(f"ds_read_b128 {V(vCB+4*p,4)}, v{vRR} offset:{p*2048}")
    a("s_waitcnt lgkmcnt(0)")
    for r in range(4):
        a(f"v_add_f32 v{vCB+r}, v{vCB+r}, v{vCB+4+r}\nv_add_f32 v{vCB+8+r}, v{vCB+8+r}, v{vCB+12+r}")
    for r in range(4):
        a(f"v_add_f32 v{vCB+r}, v{vCB+r}, v{vCB+8+r}")
    a(f"v_cvt_pk_bf16_f32 v{vCB}, v{vCB}, v{vCB+1}\nv_cvt_pk_bf16_f32 v{vCB+1}, v{vCB+2}, v{vCB+3}")
    a(f"ds_write_b64 v{vRO}, {V(vCB,2)}")
    a(f"v_lshlrev_b32 v{vT0}, 2, v{vL}\nv_add_u32 v{vT0}, {LDS_O + 4*320}, v{vT0}\nds_write_b32 v{vT0}, v{vZ}")
    stamp(9)

    a("L_final:")
    a("s_waitcnt lgkmcnt(0)\ns_barrier")
    tsoft(2)
    rd = lambda i: a(f"ds_read_b128 {V(vBU+4*i,4)}, v{vAO+(i>>2)} offset:{64*(i&3)}")
    for i in range(6): rd(i)
    a(f"s_add_u32 s{sT0}, s{sYO}, 32768\ns_add_u32 s{sT1}, s{sYO}, 4096")
    for i in range(16):
        u, k = i >> 2, i & 3
        a(f"s_waitcnt lgkmcnt({min(5, 15 - i)})")
        for v in range(2):
            c = V(vY+4*v, 4) if i else "0"
            a(f"v_mfma_f32_16x16x32_bf16 {V(vY+4*v,4)}, {A(A0+16*(4*v+u)+4*k,4)}, {V(vBU+4*i,4)}, {c}")
            if v == 0 and i + 6 < 16: rd(i + 6)
    for v in range(2):
        tag(range(vY+4*v, vY+4*v+4))
        a.vm(f"buffer_store_dwordx4 {V(vY+4*v,4)}, v{vAY}, {R(rWS)}, s{sT0 if v else sYO} offen sc1", "Yst")
    tsoft(3)
    a(f"s_cmp_eq_u32 s{sMODE}, 0\ns_cbranch_scc1 L_prepb")
    vGS2 = 200
    def y_round(d):
        for i in range(2):
            a(f"buffer_load_dwordx4 {V(vGS2+8*d+4*i,4)}, v{vAG}, {R(rWS)}, s{sT1 if i else sYO} offen sc1")
    if K2 == 0:
        sPA, sPB = 52, 54
        a("L_hop2:")
        a(f"s_mov_b64 s[{sPA}:{sPA+1}], -1\ns_mov_b64 s[{sPB}:{sPB+1}], -1")
        a("L_hop2poll:")
        for i, p in enumerate((sPA, sPB)):
            a(f"s_mov_b64 exec, s[{p}:{p+1}]")
            a(f"buffer_load_dwordx4 {V(vGS2+4*i,4)}, v{vAG}, {R(rWS)}, s{sT1 if i else sYO} offen sc1")
        a("s_waitcnt vmcnt(0)")
        for i, p in ((1, sPB), (0, sPA)):
            if i == 0: a(f"s_mov_b64 exec, s[{p}:{p+1}]")
            untag(list(range(vGS2+4*i, vGS2+4*i+4)), vT0)
            a(f"s_and_b64 s[{p}:{p+1}], vcc, exec")
        a(f"s_or_b64 vcc, s[{sPB}:{sPB+1}], s[{sPA}:{sPA+1}]\ns_mov_b64 exec, -1")
        a("s_cbranch_scc0 L_hop2got" if "Yst" not in ABL else "s_branch L_hop2got")
        spin_guard("L_hop2poll")
        a("L_hop2got:")
        for r in range(4):
            a(f"v_add_f32 v{vG2+r}, v{vGS2+r}, v{vGS2+4+r}")
    else:
        a("L_hop2:")
        for d in range(K2 - 1): y_round(d)
        a("L_hop2poll:")
        for d in range(K2):
            y_round((d + K2 - 1) % K2)
            a(f"s_waitcnt vmcnt({2*(K2-1)})")
            g0 = vGS2 + 8*d
            untag(list(range(g0, g0+8)), vT0)
            for r in range(4):
                a(f"v_add_f32 v{vG2+r}, v{g0+r}, v{g0+4+r}")
            a("s_cbranch_vccz L_hop2ok" if "Yst" not in ABL else "s_branch L_hop2ok")
        spin_guard("L_hop2poll")
    a("L_hop2ok:")
    tsoft(4)
    a(f"v_permlane16_swap_b32 v{vG2}, v{vG2+1}\nv_permlane16_swap_b32 v{vG2+2}, v{vG2+3}")
    a(f"v_add_f32 v{vG2}, v{vG2}, v{vG2+1}\nv_add_f32 v{vG2+2}, v{vG2+2}, v{vG2+3}")
    a(f"v_permlane32_swap_b32 v{vG2}, v{vG2+2}\nv_add_f32 v{vG2}, v{vG2}, v{vG2+2}")
    a(f"v_add_f32_dpp v{vG2}, v{vG2}, v{vG2} row_ror:8 {DPP}\nv_add_f32_dpp v{vG2}, v{vG2}, v{vG2} row_ror:4 {DPP}")
    a(f"v_cvt_pk_bf16_f32 v{vG2}, v{vG2}, v{vG2}")
    setexec(0x000f000f000f000f)
    a(f"buffer_store_short v{vG2}, v{vAF}, {R(rOUT)}, s{sOUTO} offen")
    setexec(FULL)
    a(f"s_cmp_lg_u32 s{sMODE}, 0\ns_cbranch_scc1 L_fin")
    stamp(11)
    a(f"s_mov_b32 s{sMODE}, 1\ns_mov_b32 s{sYO}, {WS_YB}\ns_mov_b32 s{sOUTO}, 1024")
    a(f"s_lshl_b32 s{sU0}, s{sH}, 2\ns_add_u32 s{sU0}, s{sU0}, s{sW}\ns_lshl_b32 s{sU0}, s{sU0}, 13\ns_add_u32 s{sU0}, s{sU0}, {WS_OP}")
    if LIGHT == 7: a("s_branch L_hop1" if "OPst" not in ABL else "s_branch L_fin")
    a(f"v_min_u32 v{vT1}, 6, v{vL}\nv_lshlrev_b32 v{vT1}, 10, v{vT1}")
    if "OPst" in ABL: a("s_branch L_fin")
    a("L_light:")
    a(f"buffer_load_dword v{vT2}, v{vT1}, {R(rWS)}, s{sU0} offen offset:512 sc1\ns_waitcnt vmcnt(0)")
    a(f"v_xor_b32 v{vT2}, s{sTAG}, v{vT2}\nv_and_b32 v{vT2}, 0xff, v{vT2}\nv_cmp_ne_u32 vcc, 0, v{vT2}")
    a(f"s_and_b32 s{sT0}, vcc_lo, 0x7f\ns_bcnt1_i32_b32 s{sT0}, s{sT0}\ns_cmp_le_u32 s{sT0}, {LIGHT}\ns_cbranch_scc1 L_hop1")
    a("s_sleep 2")
    spin_guard("L_light")
    vMS, vMX, vOO, vFA, vFB = 20, 55, 56, 52, 53
    sPEND, sTODO, sID = sIT, sSLOT, 4
    def m_poll(d):
        a(f"s_and_b32 s{sTODO}, s{sTODO}, s{sPEND}\ns_cselect_b32 s{sTODO}, s{sTODO}, s{sPEND}\ns_ff1_i32_b32 s{sID+d}, s{sTODO}\ns_bitset0_b32 s{sTODO}, s{sID+d}")
        a(f"s_lshl_b32 s{sT0}, s{sID+d}, 10\ns_add_u32 s{sT0}, s{sT0}, s{sU0}")
        a(f"buffer_load_dwordx4 {V(vMS+4*d,4)}, v{vAM}, {R(rWS)}, s{sT0} offen sc1")
    a("L_hop1:")
    a(f"s_mov_b32 s{sPEND}, 0x7f\ns_mov_b32 s{sTODO}, 0\nv_mov_b32 v{vMX}, 0xff7f0000")
    for r in range(4): a(f"v_mov_b32 v{vOO+r}, 0")
    for d in range(K1 - 1): m_poll(d)
    a("L_hop1poll:")
    for d in range(K1):
        nxt = a.label("mnext")
        m_poll((d + K1 - 1) % K1)
        a(f"s_waitcnt vmcnt({K1-1})")
        x = vMS + 4*d
        untag(list(range(x, x+4)), vT0)
        a(f"v_max_f32 v{vT1}, v{vMX}, v{x}\ns_cbranch_vccnz {nxt}\ns_bitcmp1_b32 s{sPEND}, s{sID+d}\ns_cbranch_scc0 {nxt}")
        a(f"v_sub_f32 v{vFA}, v{vMX}, v{vT1}\nv_sub_f32 v{vFB}, v{x}, v{vT1}\nv_exp_f32 v{vFA}, v{vFA}\nv_exp_f32 v{vFB}, v{vFB}")
        a(f"v_mov_b32 v{vMX}, v{vT1}\ns_bitset0_b32 s{sPEND}, s{sID+d}")
        for r in (1, 0, 2, 3):
            a(f"v_mul_f32_dpp v{vOO+r}, v{vFA}, v{vOO+r} row_newbcast:8 {DPP}")
        for r in (1, 0, 2, 3):
            a(f"v_fmac_f32_dpp v{vOO+r}, v{vFB}, v{x+r} row_newbcast:8 {DPP}")
        a(f"s_cmp_eq_u32 s{sPEND}, 0\ns_cbranch_scc1 L_hop1ok")
        a(f"{nxt}:")
    spin_guard("L_hop1poll")
    a("L_hop1ok:")
    tsoft(0)
    stamp(12)
    a(f"v_rcp_f32 v{vMX}, v{vOO+1}")
    for r in range(4):
        a(f"v_mul_f32_dpp v{vOO+r}, v{vMX}, v{vOO+r} row_newbcast:8 {DPP}")
    a(f"v_cvt_pk_bf16_f32 v{vOO}, v{vOO}, v{vOO+1}\nv_cvt_pk_bf16_f32 v{vOO+2}, v{vOO+2}, v{vOO+3}")
    setexec(0x00ff00ff00ff00ff)
    a(f"ds_write_b16 v{vAW}, v{vOO}\nds_write_b16_d16_hi v{vAW}, v{vOO} offset:16")
    a(f"ds_write_b16 v{vAW}, v{vOO+2} offset:32\nds_write_b16_d16_hi v{vAW}, v{vOO+2} offset:48")
    setexec(FULL)
    tsoft(1)
    a("s_branch L_final")
    a("L_prepb:")
    stamp(10)
    for nt in range(8):
        for pi in range(2):
            a(f"v_xor_b32 v{vT0+pi}, {16*(2*nt+pi)}, v{vTRB}")
            for k in range(4):
                a(f"ds_read_b64_tr_b16 {A(A0+16*nt+4*k+2*pi,2)}, v{vT0+pi} offset:{8192*k+1024*pi}")
    a("s_waitcnt lgkmcnt(0)\ns_barrier")
    a("s_branch L_hop2")
    a("L_fin:")
    tsoft(5)
    if STAMP == 3: a("s_waitcnt vmcnt(0)")
    tsoft(6)
    tflush()
    stamp(13)
    probe_end()
    a(f"s_or_b32 s{sT0}, s{sH}, s{sW}\ns_cmp_lg_u32 s{sT0}, 0\ns_cbranch_scc1 L_end")
    setexec(1)
    a(f"buffer_store_dword v{vTAG}, v{vZ}, {R(rWS)}, 0 offen")
    a("L_end:\ns_endpgm")
    if WARM: a(".fill (32768 - (. - " + NAME + "_kernel)) / 4 + 1, 4, 0xbf810000")
    body = a.finish()
    ref = open(os.path.join(os.path.dirname(os.path.abspath(__file__)), "..", NAME + ".s.ref")).read().split("\n")
    layout = [l for l in ref if l.startswith(";") and "@launch" not in l and "Override" not in l and "grid=ceil" not in l]
    tail = f""".section .rodata,"a"
.p2align 6
.amdhsa_kernel {NAME}_kernel
  .amdhsa_next_free_vgpr 512
  .amdhsa_next_free_sgpr 102
  .amdhsa_accum_offset 256
  .amdhsa_group_segment_fixed_size 0
  .amdhsa_kernarg_size 112
  .amdhsa_user_sgpr_count 2
  .amdhsa_user_sgpr_kernarg_segment_ptr 1
  .amdhsa_system_sgpr_workgroup_id_x 1
.end_amdhsa_kernel
"""
    return "\n".join(layout + hdr + ["; generated by tools/gen.py"]) + "\n" + body + tail

if __name__ == "__main__":
    kw = eval("dict(" + (sys.argv[2] if len(sys.argv) > 2 else "") + ")")
    out = sys.argv[1] if len(sys.argv) > 1 else os.path.join(os.path.dirname(os.path.abspath(__file__)), "..", NAME + ".s")
    open(out, "w").write(generate(**kw))
    print("wrote", out)
```

```python
import sys, os, struct
sys.path.insert(0, os.path.dirname(os.path.abspath(__file__)))
from asmlib import Asm

NAME = "concat_heads__compressed_kv_cla__mha_block_cached__decode"
KB, MB = 1024, 1 << 20
WS_CT, WS_F1, WS_F2, WS_CS, WS_QP, WS_QL, WS_YA, WS_YB = [o * KB for o in (64, 96, 128, 160, 256, 384, 512, 768)]
WS_OP, WS_CP, WS_ST, WS_SIZE = 1*MB, 2*MB, 6*MB, 8*MB
SCALE = 128 ** -0.5 * 1.4426950408889634
LDS_EX = 128 * KB
LDS_O = LDS_EX + 4 * KB
SPIN = 1 << 21

def f32(x): return struct.unpack("<I", struct.pack("<f", x))[0]
def V(a, n=1): return f"v{a}" if n == 1 else f"v[{a}:{a+n-1}]"
def A(a, n=1): return f"a{a}" if n == 1 else f"a[{a}:{a+n-1}]"
def R(r): return f"s[{r}:{r+3}]"
DPP = "row_mask:0xf bank_mask:0xf"
FULL = (1 << 64) - 1

pAX, pCK, pAWQ, pUK, pUV, pAWO, pBX, pK, pV, pBWQ, pBWO, pOUT, pDBG, pWS = range(4, 32, 2)
sH, sP, sW, sTAG, sT0, sT1, sT2, sT3 = 32, 33, 34, 35, 36, 37, 38, 39
rW, rX, rWS, rK, rV, rUK, rOUT, rDBG = 40, 44, 48, 52, 56, 72, 72, 76
rCK = rK
sC2, sFILL, sWO = 60, 62, 63
sSELLO, sSELHI, sHI24, sC, sSPIN = 80, 81, 82, 83, 84
sU0, sU1, sTK, sROT, sBASE = 85, 86, 87, 88, 89
sM0, sQO, sMODE, sIT, sSLOT, sCKO, sYO, sOUTO = 90, 91, 92, 93, 94, 95, 96, 97
sTS = 98
sFLAG, sXT, sB, sHJ = 68, 69, 3, 61
sIX = sB

MAPS = {
    'L': ([[8], [9]], [[10], [11]], [12, 13, 14, 15, 16, 17, 18, 19]),
    'A': ([[12], [13]], [[15, 8], [8]], [14, 9, 10, 11, 16, 17, 18, 19]),
    'C': ([[8], [9]], [[15], [10]], [12, 13, 14, 11, 16, 17, 18, 19]),
}

def generate(D=6, DV=6, DP=7, NS=33, D2=8, PAIR=0, MAP='C', ROTH=8, ROTW=1, PU=6, POLLP=34, PUJ=6, POLLQ=34, POLLU=24, XQ=(3, 2), K1=5, FSL=2,
             STAMP=False, PROBE=None, AMP=0, ABL=()):
    a = Asm()
    role = ["B"]
    if ABL:
        real_vm = a.vm
        a.vm = lambda text, tg: real_vm(text.replace(R(rWS), R(rDBG)) if tg.rstrip("0123456789") in ABL else text, tg)

    vL, vG, vJ, vT0, vT1, vT2, vT3, vTAG = 1, 2, 3, 4, 5, 6, 7, 8
    vMASK = 10
    vST0, vST1 = 16, 17

    def srd(r, p, size):
        a(f"s_mov_b32 s{r}, s{p}\ns_and_b32 s{r+1}, s{p+1}, 0xffff\ns_mov_b32 s{r+2}, {size}\ns_mov_b32 s{r+3}, 0x20000")

    def saddr(dst, base, *fields):
        for n, (r, lo, w, pos) in enumerate(fields):
            if w: a(f"s_bfe_u32 s{sT2}, s{r}, {lo | (w << 16):#x}")
            elif lo: a(f"s_lshr_b32 s{sT2}, s{r}, {lo}")
            a(f"s_lshl_b32 s{sT2}, s{sT2 if (w or lo) else r}, {pos}")
            a(f"s_add_u32 s{dst}, s{sT2}, {base if n == 0 else 's%d' % dst}")

    def vaddr(dst, tmp, *fields):
        for n, (r, lo, w, pos) in enumerate(fields):
            if w: a(f"v_bfe_u32 v{tmp}, v{r}, {lo}, {w}")
            elif lo: a(f"v_lshrrev_b32 v{tmp}, {lo}, v{r}")
            src = tmp if (w or lo) else r
            a(f"v_lshlrev_b32 v{dst}, {pos}, v{src}" if n == 0 else f"v_lshl_add_u32 v{dst}, v{src}, {pos}, v{dst}")

    def stamp(i):
        if PROBE is not None:
            if PROBE == (role[0], i): a("s_memrealtime s[100:101]\ns_waitcnt lgkmcnt(0)")
            return
        if not STAMP or (STAMP == 3 and (role[0], i) not in (("A", 0), ("B", 0), ("B", 4), ("A", 11), ("A", 13))): return
        if i: a(f"s_memrealtime s[{sTS}:{sTS+1}]\ns_waitcnt lgkmcnt(0)")
        else: a(f"s_lshl_b32 s100, s2, 2\ns_add_u32 s100, s100, s{sW}\ns_lshl_b32 s100, s100, 6\ns_add_u32 s100, s100, {WS_ST}\nv_mov_b32 v{vST0}, s100")
        a(f"v_mov_b32 v{vST1}, s{sTS}\ns_mov_b64 s[100:101], exec\ns_mov_b64 exec, 1")
        a(f"buffer_store_dword v{vST1}, v{vST0}, {R(rWS)}, 0 offen offset:{4*i}")
        if i == 0:
            a(f"s_getreg_b32 s{sTS}, hwreg(HW_REG_XCC_ID)\nv_mov_b32 v{vST1}, s{sTS}\nbuffer_store_dword v{vST1}, v{vST0}, {R(rWS)}, 0 offen offset:60")
        a("s_mov_b64 exec, s[100:101]")

    def soft(i):
        if STAMP == 2: a(f"s_memrealtime s[{70 if i == 0 else 78}:{71 if i == 0 else 79}]")

    def soft_flush():
        if STAMP == 2:
            a(f"s_waitcnt lgkmcnt(0)\ns_mov_b64 s[100:101], exec\ns_mov_b64 exec, 1")
            for i, r in ((14, 70), (7 if role[0] == "B" else 3, 78)):
                a(f"v_mov_b32 v{vST1}, s{r}\nbuffer_store_dword v{vST1}, v{vST0}, {R(rWS)}, 0 offen offset:{4*i}")
            a("s_mov_b64 exec, s[100:101]")

    TAILS = [40, 42, 44, 46, 56, 58, 64]
    def tsoft(i):
        if STAMP == 3: a(f"s_memrealtime s[{TAILS[i]}:{TAILS[i]+1}]")

    def tflush():
        if STAMP == 3:
            a(f"s_waitcnt lgkmcnt(0)\ns_mov_b64 s[100:101], exec\ns_mov_b64 exec, 1")
            for i, r in enumerate(TAILS):
                a(f"v_mov_b32 v{vST1}, s{r}\nbuffer_store_dword v{vST1}, v{vST0}, {R(rWS)}, 0 offen offset:{4*(i+1)}")
            a("s_mov_b64 exec, s[100:101]")

    def probe_end():
        if PROBE is None or PROBE[0] != role[0]: return
        lbl = a.label("probe")
        a(f"s_sub_u32 s100, s100, s{sTS}\ns_lshl_b32 s100, s100, {AMP}\ns_add_u32 s100, s100, s{sTS}")
        a(f"s_add_u32 s100, s100, 10000\n{lbl}:\ns_memrealtime s[{sTS}:{sTS+1}]\ns_waitcnt lgkmcnt(0)")
        a(f"s_sub_u32 s{sTS}, s{sTS}, s100\ns_cmp_lt_i32 s{sTS}, 0\ns_cbranch_scc0 {lbl}_x\ns_cmp_gt_i32 s{sTS}, -100000\ns_cbranch_scc1 {lbl}\n{lbl}_x:")

    def spin_guard(lbl_retry):
        a(f"s_sub_u32 s{sSPIN}, s{sSPIN}, 1\ns_cmp_lg_u32 s{sSPIN}, 0\ns_cbranch_scc1 {lbl_retry}\ns_branch L_end")

    def untag(regs, acc):
        for r in regs:
            a(f"v_xor_b32 v{r}, s{sTAG}, v{r}")
        a(f"v_or_b32 v{acc}, v{regs[0]}, v{regs[1]}")
        for i in range(2, len(regs), 2):
            a(f"v_or3_b32 v{acc}, v{acc}, v{regs[i]}, v{regs[i+1]}")
        a(f"v_and_b32 v{acc}, 0xff, v{acc}\nv_cmp_ne_u32 vcc, 0, v{acc}")

    def tag(regs):
        for r in regs:
            a(f"v_and_or_b32 v{r}, v{r}, s{sHI24}, v{vTAG}")

    def quadsum(dst, src, tmp):
        a(f"v_mov_b32_dpp v{dst}, v{src} quad_perm:[0,0,0,0] {DPP}")
        a(f"v_mov_b32_dpp v{tmp}, v{src+2} quad_perm:[2,2,2,2] {DPP}")
        a(f"v_add_f32_dpp v{dst}, v{src+1}, v{dst} quad_perm:[1,1,1,1] {DPP}")
        a(f"v_add_f32_dpp v{tmp}, v{src+3}, v{tmp} quad_perm:[3,3,3,3] {DPP}")
        a(f"v_add_f32 v{dst}, v{dst}, v{tmp}")

    def setexec(mask):
        if mask == FULL: a("s_mov_b64 exec, -1")
        elif mask <= 64: a(f"s_mov_b64 exec, {mask}")
        else: a(f"s_mov_b32 exec_lo, {mask & 0xffffffff:#x}\ns_mov_b32 exec_hi, {mask >> 32:#x}")

    def consts():
        a(f"s_load_dword s{sTAG}, s[{pWS}:{pWS+1}], 0")
        srd(rWS, pWS, WS_SIZE)
        if ABL: srd(rDBG, pDBG, 256)
        a(f"s_mov_b32 s{sHI24}, 0xffffff00\ns_mov_b32 s{sC}, {f32(SCALE):#x}\ns_mov_b32 s{sSPIN}, {SPIN}")
        stamp(0)

    def take_tag(flag=False):
        a(f"s_waitcnt lgkmcnt(0)\ns_add_u32 s{sTAG}, s{sTAG}, 0x5b\ns_and_b32 s{sTAG}, s{sTAG}, 0xff\nv_mov_b32 v{vTAG}, s{sTAG}")
        if flag: a(f"s_or_b32 s{sFLAG}, s{sTAG}, 0x6b3ac500")

    def signal(tg, base, tmp):
        saddr(sXT, base, (sH, 0, 0, 8), (sW, 0, 0, 13))
        a(f"v_mov_b32 v{tmp}, s{sXT}\nv_mov_b32 v{tmp+1}, s{sFLAG}")
        if tg in a.q: a.wait(tg)
        setexec(1)
        a.vm(f"buffer_store_dword v{tmp+1}, v{tmp}, {R(rWS)}, 0 offen sc1", "SIG")
        setexec(FULL)

    hdr = [f"; @launch grid=(256,1,1) block=(256,1,1) lds={160*KB}"]
    a(f'.amdgcn_target "amdgcn-amd-amdhsa--gfx950"\n.text\n.globl {NAME}_kernel\n.p2align 8\n.type {NAME}_kernel,@function')
    a(f"{NAME}_kernel:")
    if STAMP or PROBE is not None: a(f"s_memrealtime s[{sTS}:{sTS+1}]")
    a("s_cmp_ge_u32 s2, 256\ns_cbranch_scc1 L_end")
    a("s_load_dwordx16 s[4:19], s[0:1], 0\ns_load_dwordx8 s[20:27], s[0:1], 64\ns_load_dwordx4 s[28:31], s[0:1], 96")
    a(f"v_lshrrev_b32 v{vT0}, 6, v0\nv_and_b32 v{vL}, 63, v0\nv_readfirstlane_b32 s{sW}, v{vT0}")
    a(f"s_lshr_b32 s{sH}, s2, 3\ns_sub_u32 s{sP}, s2, s{sH}\ns_sub_u32 s{sP}, s{sP}, 1\ns_and_b32 s{sP}, s{sP}, 7")
    a(f"v_lshrrev_b32 v{vG}, 4, v{vL}\nv_and_b32 v{vJ}, 15, v{vL}")
    a(f"s_cmp_lt_u32 s{sP}, 2\ns_cbranch_scc1 L_qp\ns_cmp_eq_u32 s{sP}, 2\ns_cbranch_scc1 L_ql\ns_cmp_eq_u32 s{sP}, 7\ns_cbranch_scc1 L_aux")

    vCA, vONE, vTK = 9, 18, 19
    sMSG = sYO
    vOW, vOX = 14, 15
    vX, vB, vACC, vQ = 20, 52, 60, 68
    vOK, vOQ, vOP, vOV = 76, 78, 79, 126
    vBQ, vPB = 80, 96
    vS, vO = 112, 116
    vMC, vLS, vSC, vP, vU0, vU1 = 120, 121, 122, 123, 124, 125
    RING = 128
    A0, A1 = 0, 128
    gv, tv, ub = MAPS[MAP] if isinstance(MAP, str) else MAP
    mk = lambda bits: sum(1 << b for b in bits)
    sup = set(sum(gv + tv, []))
    XOR = len(sup) > 4
    basis = []
    for r_ in [mk(v) for v in gv + tv] + [1 << b for b in ub]:
        for b_ in basis: r_ = min(r_, r_ ^ b_)
        assert r_, "key mapping is not a bijection"
        basis.append(r_)
    assert sup | set(ub) == set(range(8, 20))
    tval = [(mk(tv[0]) if t & 1 else 0) ^ (mk(tv[1]) if t & 2 else 0) for t in range(4)]
    gmask = mk(gv[0]) | mk(gv[1])
    timm = [v & 0xfff & ~gmask for v in tval]
    treg = sorted(set(v ^ i for v, i in zip(tval, timm)))
    tidx = [treg.index(v ^ i) for v, i in zip(tval, timm)]
    XOR = XOR or len(treg) > 2
    vAX = vOK + 1
    runs = []
    for i, b in enumerate(ub):
        if runs and runs[-1][1] + runs[-1][2] == b: runs[-1][2] += 1
        else: runs.append([i, b, 1])
    NTAIL = 256 - 7 * NS
    NDYN = NTAIL
    assert NS % 2 == 1 and NTAIL >= 0 and 5 <= D <= DV <= 7 and DV <= D2 <= 8
    rS, sEND, sCNT = 64, sMODE, sOUTO
    vOS, vSA, vMX, vS2, vSN, vPN = 62, 64, 65, 96, 66, 100
    LDS_S = 16 * KB

    def advance(n): a(f"s_add_u32 s{sTK}, s{sTK}, {inc(n)}")
    inc = lambda n: 7 if not PAIR else (13 if n % 8 == 7 else 1)
    def kv_setup():
        a(f"v_lshrrev_b32 v{vT0}, 2, v{vJ}\nv_and_b32 v{vT1}, 3, v{vJ}")
        for dst, sel in ((vOK, vT0), (vOV, vG)):
            if len(gv[0]) == 1 and gv[1] == [gv[0][0] + 1]:
                a(f"v_lshlrev_b32 v{dst}, {gv[0][0]}, v{sel}")
            else:
                a(f"v_and_b32 v{vT2}, 1, v{sel}\nv_mul_u32_u24 v{vT2}, {mk(gv[0])}, v{vT2}\nv_lshrrev_b32 v{vT3}, 1, v{sel}\nv_mul_u32_u24 v{vT3}, {mk(gv[1])}, v{vT3}\nv_xor_b32 v{dst}, v{vT2}, v{vT3}")
        a(f"v_lshl_add_u32 v{vOK}, v{vG}, 6, v{vOK}\nv_lshl_add_u32 v{vOK}, v{vT1}, 4, v{vOK}\nv_lshl_add_u32 v{vOV}, v{vJ}, 4, v{vOV}")
        if len(treg) == 2 and not XOR:
            a(f"v_xor_b32 v{vOK+1}, {treg[1]}, v{vOK}\nv_xor_b32 v{vOV+1}, {treg[1]}, v{vOV}")
        a(f"s_add_u32 s{sB}, s{sW}, s{sP}\ns_and_b32 s{sB}, s{sB}, 3")
        a(f"s_lshl_b32 s{sBASE}, s{sB}, 5\ns_add_u32 s{sBASE}, s{sBASE}, s{sH}\ns_lshl_b32 s{sBASE}, s{sBASE}, 20")
        a(f"s_mul_i32 s{sROT}, s{sH}, {ROTH}")
        if ROTW == 1: a(f"s_add_u32 s{sROT}, s{sROT}, s{sB}")
        else: a(f"s_mul_i32 s{sT2}, s{sB}, {ROTW}\ns_add_u32 s{sROT}, s{sROT}, s{sT2}")
        a(f"s_lshl_b32 s{sTK}, s{sP}, {PAIR}")

    def masks():
        a(f"v_and_b32 v{vT0}, 1, v{vL}\nv_lshlrev_b32 v{vT0}, 4, v{vT0}\nv_mov_b32 v{vT1}, 0xffff\nv_lshlrev_b32 v{vT0}, v{vT0}, v{vT1}")
        a(f"v_bfe_u32 v{vT1}, v{vL}, 1, 2")
        for r in range(4):
            a(f"v_cmp_eq_u32 vcc, {r}, v{vT1}\nv_cndmask_b32 v{vMASK+r}, 0, v{vT0}, vcc")

    def kv_late():
        a(f"v_mov_b32 v{vMC}, 0xff7f0000\nv_mov_b32 v{vLS}, 0\nv_mov_b32 v{vONE}, 1")
        for r in range(4): a(f"v_mov_b32 v{vO+r}, 0")
        saddr(sMSG, WS_CT, (sH, 0, 0, 10), (sB, 0, 0, 8))
        a(f"v_mov_b32 v{vCA}, s{sMSG}")
        saddr(sMSG, WS_OP, (sH, 0, 0, 15), (sB, 0, 0, 13), (sP, 0, 0, 10))
        a(f"v_and_b32 v{vT1}, 3, v{vJ}\nv_lshlrev_b32 v{vOQ}, 7, v{vG}\nv_lshl_add_u32 v{vOQ}, v{vT1}, 5, v{vOQ}")
        saddr(sQO, WS_QP, (sH, 0, 0, 12), (sB, 0, 0, 9))
        a(f"v_lshlrev_b32 v{vT0}, 7, v{vG}\nv_lshl_add_u32 v{vT0}, v{vJ}, 4, v{vT0}\nv_mov_b32 v{vT1}, 512")
        a(f"v_cmp_gt_u32 vcc, 8, v{vJ}\nv_cndmask_b32 v{vOP}, v{vT1}, v{vT0}, vcc")

    def unit_addr(dst):
        a(f"s_add_u32 s{sT3}, s{sTK}, s{sROT}")
        for n, (i, b, w) in enumerate(runs):
            if XOR and n == 0:
                a(f"s_bfe_u32 s{sT1}, s{sT3}, {i | (w << 16):#x}\ns_lshl_b32 s{dst}, s{sT1}, {b}")
            else:
                a(f"s_bfe_u32 s{sT1}, s{sT3}, {i | (w << 16):#x}\ns_lshl_b32 s{sT1}, s{sT1}, {b}\ns_add_u32 s{dst}, s{sT1}, s{dst if n else sBASE}")

    def slot(i): return V(RING + 4*i, 4) if i < 32 else A(4*(i - 32), 4)

    def kv_load(sl, r, base, tg):
        isv = r >= 4
        if XOR:
            if tval[r%4]: a(f"s_xor_b32 s{sXT}, s{base}, {tval[r%4]}")
            a(f"v_xor_b32 v{vAX}, s{sXT if tval[r%4] else base}, v{vOV if isv else vOK}")
            a.vm(f"buffer_load_dwordx4 {slot(sl)}, v{vAX}, {R(rV if isv else rK)}, s{sBASE} offen nt", tg)
            return
        a.vm(f"buffer_load_dwordx4 {slot(sl)}, v{(vOV if isv else vOK) + tidx[r%4]}, {R(rV if isv else rK)}, s{base} offen offset:{timm[r%4]} nt", tg)

    def s_load_(sl, t, tg):
        if XOR:
            if tval[t]: a(f"s_xor_b32 s{sXT}, s{sU0}, {tval[t]}")
            a(f"v_xor_b32 v{vAX}, s{sXT if tval[t] else sU0}, v{vOS}")
            a.vm(f"buffer_load_dwordx4 {slot(sl)}, v{vAX}, {R(rS)}, s{sBASE} offen nt", tg)
            return
        a.vm(f"buffer_load_dwordx4 {slot(sl)}, v{vOS + tidx[t]}, {R(rS)}, s{sU0} offen offset:{timm[t]} nt", tg)

    def use(isv):
        r, v = (rV, vOV) if isv else (rK, vOK)
        a(f"s_mov_b64 s[{rS}:{rS+1}], s[{r}:{r+1}]\nv_mov_b32 v{vOS}, v{v}\nv_mov_b32 v{vOS+1}, v{v+1}")

    def k_mfma(sl, c):
        d = vS2 if (c >> 2) & 1 else vS
        a(f"v_mfma_f32_16x16x32_bf16 {V(d,4)}, {slot(sl)}, {V(vBQ+4*(c&3),4)}, {V(d,4) if c & 3 else '0'}")

    def k_post(u, off):
        quadsum(vSC, vS2 if u & 1 else vS, vU0)
        a(f"v_max_f32 v{vMX}, v{vMX}, v{vSC}\nds_write_b32 v{vSA}, v{vSC} offset:{off}")

    def allmax(x):
        a(f"v_max_f32_dpp v{vU0}, v{x}, v{x} row_ror:4 {DPP}")
        a(f"v_max_f32_dpp v{vU0}, v{vU0}, v{vU0} row_ror:8 {DPP}")
        a(f"v_mov_b32 v{vU1}, v{vU0}\nv_permlane16_swap_b32 v{vU0}, v{vU1}\nv_max_f32 v{vU0}, v{vU0}, v{vU1}")
        a(f"v_mov_b32 v{vU1}, v{vU0}\nv_permlane32_swap_b32 v{vU0}, v{vU1}\nv_max_f32 v{vU0}, v{vU0}, v{vU1}")

    def claim():
        setexec(1)
        if "2x" in ABL: a(f"global_atomic_add v{vCA}, v{vONE}, s[{pWS}:{pWS+1}] offset:128 sc1")
        a(f"global_atomic_add v{vTK}, v{vCA}, v{vONE}, s[{pWS}:{pWS+1}] sc0 sc1")
        setexec(FULL)

    def publish(vO, vMC, vLS, sMSG):
        a(f"v_add_f32_dpp v{vLS}, v{vLS}, v{vLS} row_ror:8 {DPP}")
        a(f"v_add_f32_dpp v{vLS}, v{vLS}, v{vLS} row_ror:4 {DPP}")
        a(f"v_mov_b32 v{vU1}, v{vLS}")
        a(f"v_permlane16_swap_b32 v{vLS}, v{vU1}\nv_add_f32 v{vLS}, v{vLS}, v{vU1}\nv_mov_b32 v{vU1}, v{vLS}")
        tag([vO+2, vO+3])
        a(f"v_permlane32_swap_b32 v{vLS}, v{vU1}")
        setexec(1 << 8)
        a(f"v_add_f32 v{vO+1}, v{vLS}, v{vU1}\nv_mov_b32 v{vO}, v{vMC}")
        setexec(0x00ff00ff00ff01ff)
        tag([vO, vO+1])
        a.vm(f"buffer_store_dwordx4 {V(vO,4)}, v{vOP}, {R(rWS)}, s{sMSG} offen sc1", "OPst")

    def softmax_part():
        quadsum(vSC, vS, vU0)
        skip = a.label("nomax")
        a(f"v_fma_f32 v{vP}, v{vSC}, s{sC}, -v{vMC}\nv_cmp_lt_f32 vcc, 0, v{vP}\ns_cbranch_vccz {skip}")
        a(f"v_mul_f32 v{vSC}, s{sC}, v{vSC}")
        allmax(vSC)
        a(f"v_and_b32 v{vU0}, s{sHI24}, v{vU0}\nv_max_f32 v{vU0}, v{vU0}, v{vMC}")
        a(f"v_sub_f32 v{vU1}, v{vMC}, v{vU0}\nv_exp_f32 v{vU1}, v{vU1}\nv_mov_b32 v{vMC}, v{vU0}\nv_sub_f32 v{vP}, v{vSC}, v{vU0}")
        a(f"v_mul_f32 v{vLS}, v{vLS}, v{vU1}")
        for r in range(4):
            a(f"v_mul_f32 v{vO+r}, v{vO+r}, v{vU1}")
        a(f"{skip}:")
        a(f"v_exp_f32 v{vP}, v{vP}")
        a(f"v_cvt_pk_bf16_f32 v{vU0}, v{vP}, v{vP}\nv_add_f32 v{vLS}, v{vLS}, v{vP}")
        for t in range(4):
            for r in range(4):
                a(f"v_and_b32_dpp v{vPB+4*t+r}, v{vU0}, v{vMASK+r} row_newbcast:{4*t} {DPP}")

    def consume(sl, r, filler=None):
        if r < 4:
            c = V(vS, 4) if r else "0"
            a(f"v_mfma_f32_16x16x32_bf16 {V(vS,4)}, {slot(sl)}, {V(vBQ+4*r,4)}, {c}")
            if r == 3:
                if filler: filler()
                softmax_part()
        else:
            a(f"v_mfma_f32_16x16x32_bf16 {V(vO,4)}, {slot(sl)}, {V(vPB+4*(r-4),4)}, {V(vO,4)}")

    def q_poll():
        for i in range(2):
            a.vm(f"buffer_load_dwordx4 {V(vQ+4*i,4)}, v{vOQ}, {R(rWS)}, s{sQO} offen offset:{16*i} sc1", "Q")

    class Start:
        def __init__(self, pu): self.pu, self.n = pu, 0
        def load(self):
            n = self.n; self.n += 1
            if n == 0: unit_addr(sU0)
            kv_load(n % (8*self.pu), n % 4, sU0, f"P{n}")
            if n % 4 == 3:
                advance(n)
                unit_addr(sU0)
        def paced(self, depth):
            if f"P{self.n - depth}" in a.q: a.wait(f"P{self.n - depth}")
            self.load()
        def until_q(self, pollat):
            while self.n < pollat: self.paced(DP)
            q_poll()
            while self.n < min(pollat + DP - 1, 8*self.pu): self.paced(DP)
        def finish(self, hook=None):
            if "Q" in a.q: a.wait("Q")
            chk, ok = a.label("qcheck"), a.label("qok")
            a(f"{chk}:")
            untag(list(range(vQ, vQ+8)), vT0)
            a(f"s_cbranch_vccz {ok}" if not ({"QPst", "Q"} & set(ABL)) else f"s_branch {ok}")
            saved = list(a.q)
            q_poll()
            a("s_waitcnt vmcnt(0)")
            spin_guard(chk)
            a.q = saved
            a(f"{ok}:")
            stamp(2)
            def operands(q, bq):
                for r in range(4):
                    a(f"v_cvt_pk_bf16_f32 v{q+r}, v{q+2*r}, v{q+2*r+1}")
                for t in range(4):
                    m = 0x000f000f << (4*t)
                    a(f"s_mov_b32 vcc_lo, {m:#x}\ns_mov_b32 vcc_hi, {m:#x}")
                    for r in range(4):
                        a(f"v_cndmask_b32 v{bq+4*t+r}, 0, v{q+r}, vcc")
            operands(vQ, vBQ)
            N = 8 * self.pu
            a(f"v_mov_b32 v{vMX}, 0xff7f0000\ns_lshl_b32 s{sT2}, s{sW}, 14\ns_add_u32 s{sT2}, s{sT2}, {LDS_S}\nv_lshl_add_u32 v{vSA}, v{vL}, 2, s{sT2}")
            first, todo = self.n, N + D - self.n
            for c in range(N):
                want = first + (todo * (c + 1) + N - 1) // N
                while self.n < want and self.n - N < c:
                    self.paced(DP if self.n < N else max(D, DP - 1))
                if f"P{c}" in a.q: a.wait(f"P{c}")
                k_mfma(c, c)
                if c % 4 == 2 and c > 4: k_post(c // 4 - 1, 256 * (c // 4 - 1))
                if hook: hook(c)
            while self.n < N + D: self.paced(DP)
            nu = NS - 1
            assert (nu - N // 4) % 2 == 0 and nu - N // 4 >= 4
            a(f"v_add_u32 v{vSA}, {256 * (N // 4 - 1)}, v{vSA}")
            a(f"s_mov_b32 s{sCNT}, {(nu - N // 4) // 2}\ns_mov_b32 s{sU1}, {nu}")
            a(f"s_mov_b32 s{rS+2}, {128*MB}\ns_mov_b32 s{rS+3}, 0x20000")
            use(False)
            stamp(3)

    saddr(sT0, -3 << 17, (2, 0, 3, 21), (sH, 3, 0, 19), (sP, 0, 0, 17), (sW, 0, 0, 12))
    vaddr(vT0, vT1, (vL, 0, 5, 7), (vL, 5, 0, 15))
    a(f"s_mov_b32 s{rW+2}, {16*MB}\ns_mov_b32 s{rW+3}, 0x20000\ns_waitcnt lgkmcnt(0)\ns_mov_b64 s[{rW}:{rW+1}], s[{pCK}:{pCK+1}]")
    soft(0)
    for i, step in enumerate((16384, 49152, 16384, 0)):
        a.vm(f"buffer_load_dword v{vX+i}, v{vT0}, {R(rW)}, s{sT0} offen", "T")
        if step: a(f"s_add_u32 s{sT0}, s{sT0}, {step}")
    consts(); kv_setup(); srd(rK, pK, 128*MB); srd(rV, pV, 128*MB); masks(); kv_late()
    soft(1); soft_flush()
    st = Start(PU)
    for _ in range(DP): st.load()
    stamp(1)
    st.until_q(POLLP)
    take_tag()
    st.finish()

    a("L_bloop:")
    for r in range(8):
        n = r + D
        a(f"s_waitcnt vmcnt({D-1})")
        s_load_(n % 8, n % 4, "loop")
        k_mfma(r, r)
        if n % 4 == 3:
            advance(n)
            if n % 8 == 7:
                skip = a.label("stayk")
                a(f"s_cmp_lg_u32 s{sCNT}, 1\ns_cbranch_scc1 {skip}")
                use(True)
                a(f"s_mul_i32 s{sT1}, s{sU1}, 7\ns_sub_u32 s{sTK}, s{sTK}, s{sT1}")
                a(f"{skip}:")
            unit_addr(sU0)
        if r % 4 == 1: k_post(r // 4 + 1, 256 * (r // 4))
    a(f"v_add_u32 v{vSA}, 512, v{vSA}")
    a(f"s_sub_u32 s{sCNT}, s{sCNT}, 1\ns_cmp_lg_u32 s{sCNT}, 0\ns_cbranch_scc1 L_bloop")
    def v_addr(n):
        skip = a.label("stayv")
        advance(n)
        a(f"s_cmp_lg_u32 s{sCNT}, 1\ns_cbranch_scc1 {skip}")
        use(n % 8 != 7)
        if n % 8 == 7: claim()
        a(f"s_add_u32 s{sTK}, s{sP}, {7*(NS-1)}")
        a(f"{skip}:")
        unit_addr(sU0)
    for n in range(D, DV):
        s_load_(n, n % 4, "loop")
        assert n % 4 != 3
    k_post(1, 0)
    a(f"v_mov_b32 v{vP}, 0xff7f0000\nds_write_b32 v{vSA}, v{vP} offset:256")
    a(f"s_lshl_b32 s{sT2}, s{sW}, 14\ns_add_u32 s{sT2}, s{sT2}, {LDS_S}\nv_lshl_add_u32 v{vSA}, v{vL}, 2, s{sT2}")
    a(f"ds_read_b32 v{vSN}, v{vSA}\nds_read_b32 v{vSN+1}, v{vSA} offset:256")
    a(f"v_mul_f32 v{vMX}, s{sC}, v{vMX}")
    allmax(vMX)
    a(f"v_and_b32 v{vMC}, s{sHI24}, v{vU0}\ns_lshr_b32 s{sCNT}, s{sU1}, 1")
    stamp(5)
    def p_next(i):
        a(f"s_waitcnt lgkmcnt(1)\nv_fma_f32 v{vP}, v{vSN+i}, s{sC}, -v{vMC}\nv_exp_f32 v{vP}, v{vP}")
        a(f"ds_read_b32 v{vSN+i}, v{vSA} offset:{512 + 256*i}")
        a(f"v_cvt_pk_bf16_f32 v{vPN+i}, v{vP}, v{vP}\nv_add_f32 v{vLS}, v{vLS}, v{vP}")
    p_next(0)
    a("L_vloop:")
    for r in range(8):
        n = r + DV
        pb = vPB + 8 + 4*(r & 1)
        for q in range(4):
            a(f"v_and_b32_dpp v{pb+q}, v{vPN + (r >> 2)}, v{vMASK+q} row_newbcast:{4*(r&3)} {DPP}")
        a(f"s_waitcnt vmcnt({DV-1})")
        s_load_(n % 8, n % 4, "loop")
        a(f"v_mfma_f32_16x16x32_bf16 {V(vO,4)}, {slot(r)}, {V(pb,4)}, {V(vO,4)}")
        if n % 4 == 3: v_addr(n)
        if r == 1: p_next(1)
        if r == 5:
            a(f"v_add_u32 v{vSA}, 512, v{vSA}")
            p_next(0)
    a(f"s_sub_u32 s{sCNT}, s{sCNT}, 1\ns_cmp_lg_u32 s{sCNT}, 0\ns_cbranch_scc1 L_vloop")
    stamp(6)
    for n in range(DV, D2): kv_load(n, n, sU0, "loop")
    a("L_dloop:")
    for half in range(2):
        cur, nxt = (sU0, sU1) if half == 0 else (sU1, sU0)
        for r in range(8):
            n = r + D2
            a(f"s_waitcnt vmcnt({D2-1})")
            if n == 8:
                a(f"v_readfirstlane_b32 s{sIT}, v{vTK}")
                a(f"s_add_u32 s{sTK}, s{sIT}, {7*NS}")
                unit_addr(nxt)
                a(f"s_cmp_ge_u32 s{sIT}, {NDYN}\ns_cselect_b32 s{nxt}, {128*MB}, s{nxt}")
            if n == 16 - D2:
                skip = a.label("noclaim")
                a(f"v_mov_b32 v{vTK}, {NDYN}\ns_cmp_ge_u32 s{sIT}, {NDYN - 1}\ns_cbranch_scc1 {skip}")
                claim()
                a(f"{skip}:")
            kv_load((half*8 + n) % 16, n % 8, cur if n < 8 else nxt, "loop")
            consume(half*8 + r, r)
        a(f"s_cmp_ge_u32 s{sIT}, {NDYN}")
        a("s_cbranch_scc1 L_bdone" if half == 0 else "s_cbranch_scc0 L_dloop")
    a("L_bdone:")
    publish(vO, vMC, vLS, sMSG)
    stamp(4)
    probe_end()
    a("s_endpgm")

    a("L_qp:")
    a.q = []
    a(f"v_lshlrev_b32 v{vT0}, 18, v{vG}\nv_lshl_add_u32 v{vOW}, v{vJ}, 4, v{vT0}")
    a(f"v_lshrrev_b32 v{vT1}, 3, v{vJ}\nv_lshlrev_b32 v{vT1}, 10, v{vT1}\nv_lshl_add_u32 v{vOX}, v{vG}, 6, v{vT1}")
    a(f"s_cmp_eq_u32 s{sP}, 0\ns_cselect_b32 s{sHJ}, {XQ[0]}, {XQ[1]}\ns_xor_b32 s{sHJ}, s{sHJ}, s{sH}")
    a(f"s_lshl_b32 s{sU1}, s{sW}, 8\ns_lshl_b32 s{sWO}, s{sW}, 20\ns_lshl_b32 s{sT2}, s{sHJ}, 8\ns_add_u32 s{sWO}, s{sWO}, s{sT2}")
    a(f"s_mov_b32 s{rW+2}, {4*MB}\ns_mov_b32 s{rW+3}, 0x20000\ns_mov_b32 s{rX+2}, 4096\ns_mov_b32 s{rX+3}, 0x20000")
    a(f"s_cmp_eq_u32 s{sP}, 0\ns_waitcnt lgkmcnt(0)")
    a(f"s_cselect_b64 s[{rW}:{rW+1}], s[{pBWQ}:{pBWQ+1}], s[{pAWQ}:{pAWQ+1}]\ns_cselect_b64 s[{rX}:{rX+1}], s[{pBX}:{pBX+1}], s[{pAX}:{pAX+1}]")
    def w_load(t):
        a.vm(f"buffer_load_dwordx4 {A(A1+4*t,4)}, v{vOW}, {R(rW)}, s{sWO} offen nt", f"W{t}")
        a(f"s_add_u32 s{sWO}, s{sWO}, 8192")
    def x_load(i):
        for u in range(2):
            a.vm(f"buffer_load_dwordx4 {V(vX+16*u+4*i,4)}, v{vOX}, {R(rX)}, s{sU1} offen offset:{2048*u+16*i}", f"X{i}")
    soft(0)
    w_load(0); w_load(1); x_load(0)
    for t in range(2, 8): w_load(t)
    consts(); masks()
    for i in range(1, 4): x_load(i)
    saddr(sT0, WS_CT, (sHJ, 0, 0, 10), (sW, 0, 0, 8))
    a(f"v_mov_b32 v{vTK}, 0\ns_cmp_eq_u32 s{sP}, 0\ns_cselect_b32 s{sT2}, s{sT0}, {WS_SIZE}")
    setexec(1)
    a.vm(f"buffer_store_dword v{vTK}, v{vTK}, {R(rWS)}, s{sT2} offen sc1", "INIT")
    setexec(FULL)
    st = Start(PUJ)
    todo = [lambda t=t: w_load(t) for t in range(8, 32)] + [lambda: None] * (8 - DP) + [st.load] * DP
    late = {4: kv_setup, 8: lambda: (srd(rK, pK, 128*MB), srd(rV, pV, 128*MB)), 12: kv_late}
    a(f"s_mov_b32 s{sSELLO}, 0x01000100\ns_mov_b32 s{sSELHI}, 0x03020302")
    for t in range(32):
        if f"X{t//8}" in a.q: a.wait(f"X{t//8}")
        if t == 0: soft(1); soft_flush()
        if f"W{t}" in a.q: a.wait(f"W{t}")
        todo.pop(0)()
        if t in late: late[t]()
        for u in range(2):
            x = vX + 16*u + (t >> 1)
            a(f"v_perm_b32 v{vT0+u}, v{x}, v{x}, s{sSELHI if t & 1 else sSELLO}")
        for u in range(2):
            for r in range(4):
                a(f"v_and_b32 v{vB+4*u+r}, v{vT0+u}, v{vMASK+r}")
        for u in range(2):
            c = V(vACC+4*u, 4) if t else "0"
            a(f"v_mfma_f32_16x16x32_bf16 {V(vACC+4*u,4)}, {A(A1+4*t,4)}, {V(vB+4*u,4)}, {c}")
    a(f"s_lshl_b32 s{sT2}, s{sW}, 11")
    a(f"v_lshrrev_b32 v{vT0}, 3, v{vJ}\nv_lshlrev_b32 v{vT0}, 9, v{vT0}\nv_lshl_add_u32 v{vT0}, v{vG}, 7, v{vT0}")
    a(f"v_and_b32 v{vT1}, 7, v{vJ}\nv_lshl_add_u32 v{vT0}, v{vT1}, 2, v{vT0}\nv_add_u32 v{vT0}, s{sT2}, v{vT0}")
    for u in range(2):
        for r in range(4):
            a(f"ds_write_b32 v{vT0}, v{vACC+4*u+r} offset:{u*1024+r*32}")
    a(f"s_lshl_b32 s{sT2}, s{sW}, 9\nv_and_b32 v{vT1}, 31, v{vL}\nv_lshl_add_u32 v{vT1}, v{vT1}, 4, s{sT2}")
    take_tag()
    a("s_barrier")
    for p in range(4):
        a(f"ds_read_b128 {V(vX+4*p,4)}, v{vT1} offset:{p*2048}")
    saddr(sT0, WS_QP, (sHJ, 0, 0, 12), (sP, 0, 0, 11))
    a("s_waitcnt lgkmcnt(0)")
    for r in range(4):
        a(f"v_add_f32 v{vX+r}, v{vX+r}, v{vX+4+r}\nv_add_f32 v{vX+8+r}, v{vX+8+r}, v{vX+12+r}")
    for r in range(4):
        a(f"v_add_f32 v{vX+r}, v{vX+r}, v{vX+8+r}")
    tag(range(vX, vX+4))
    assert "INIT" not in a.q
    setexec(0xffffffff)
    a.vm(f"buffer_store_dwordx4 {V(vX,4)}, v{vT1}, {R(rWS)}, s{sT0} offen sc1", "QPst")
    setexec(FULL)
    stamp(1)
    st.until_q(POLLQ)
    st.finish()
    a("s_branch L_bloop")

    a("L_ql:")
    a.q = []
    vOU, vOA, vOL, sUK, sQA, sQL = vOW, vOX, vTK, sWO, sCKO, sSLOT
    vQA, vD, vPK, vR = 20, 28, 44, 60
    a(f"v_lshrrev_b32 v{vT0}, 2, v{vJ}\nv_and_b32 v{vT1}, 3, v{vJ}")
    a(f"v_lshlrev_b32 v{vOL}, 6, v{vG}\nv_lshl_add_u32 v{vOL}, v{vT1}, 4, v{vOL}\nv_lshl_add_u32 v{vOU}, v{vT0}, 18, v{vOL}")
    a(f"s_lshl_b32 s{sUK}, s{sW}, 20\ns_lshl_b32 s{sT2}, s{sH}, 8\ns_add_u32 s{sUK}, s{sUK}, s{sT2}")
    a(f"s_mov_b32 s{rUK+2}, {4*MB}\ns_mov_b32 s{rUK+3}, 0x20000\ns_waitcnt lgkmcnt(0)\ns_mov_b64 s[{rUK}:{rUK+1}], s[{pUK}:{pUK+1}]")
    def uk_load(t):
        if f"UK{t-8}" in a.q: a.wait(f"UK{t-8}")
        a.vm(f"buffer_load_dwordx4 {A(A1+4*t,4)}, v{vOU}, {R(rUK)}, s{sUK} offen nt", f"UK{t}")
        a(f"s_add_u32 s{sUK}, s{sUK}, 8192")
    soft(0)
    for t in range(8): uk_load(t)
    a(f"v_lshlrev_b32 v{vOA}, 1, v{vOL}\nv_lshl_add_u32 v{vOA}, v{vT0}, 9, v{vOA}")
    a(f"v_lshl_add_u32 v{vOL}, v{vT0}, 15, v{vOL}")
    consts()
    soft(1); soft_flush()
    saddr(sQA, WS_QP + 2048, (sH, 0, 0, 12))
    saddr(sQL, WS_QL, (sH, 0, 0, 10), (sW, 0, 0, 8))
    late = {12: masks, 16: kv_setup, 20: lambda: (srd(rK, pK, 128*MB), srd(rV, pV, 128*MB)), 24: kv_late}
    for t in range(8, 32):
        uk_load(t)
        if t in late: late[t]()
    take_tag(True)
    st = Start(PUJ)
    for t in range(32 - DP, 32):
        a.wait(f"UK{t}"); st.load()
    def qa_poll():
        for i in range(2):
            a.vm(f"buffer_load_dwordx4 {V(vQA+4*i,4)}, v{vOA}, {R(rWS)}, s{sQA} offen offset:{16*i} sc1", "QA")
    while st.n < POLLU: st.paced(DP)
    qa_poll()
    while st.n < POLLU + DP - 1: st.paced(DP)
    a.wait("QA")
    chk, ok = a.label("qacheck"), a.label("qaok")
    a(f"{chk}:")
    untag(list(range(vQA, vQA+8)), vT0)
    a(f"s_cbranch_vccz {ok}" if not ({"QPst", "Q"} & set(ABL)) else f"s_branch {ok}")
    saved = list(a.q)
    qa_poll()
    a("s_waitcnt vmcnt(0)")
    spin_guard(chk)
    a.q = saved
    a(f"{ok}:")
    q_poll()
    for r in range(4):
        a(f"v_cvt_pk_bf16_f32 v{vQA+r}, v{vQA+2*r}, v{vQA+2*r+1}")
    def fold(t):
        quadsum(vR + (t & 1), vD + 4*(t % 4), vT0)
        if t & 1: a(f"v_cvt_pk_bf16_f32 v{vPK+t//2}, v{vR}, v{vR+1}")
    for t in range(32):
        a(f"v_mfma_f32_16x16x32_bf16 {V(vD+4*(t%4),4)}, {A(A1+4*t,4)}, {V(vQA,4)}, 0")
        if t >= 2: fold(t - 2)
        if t % 8 == 4 and st.n < 8*PUJ: st.load()
    fold(30); fold(31)
    for q in range(1, 4):
        setexec(0x1111111111111111 << q)
        for r in range(4):
            a(f"v_mov_b32 v{vPK+r}, v{vPK+4*q+r}")
    setexec(FULL)
    a.vm(f"buffer_store_dwordx4 {V(vPK,4)}, v{vOL}, {R(rWS)}, s{sQL} offen sc1", "QLst")
    stamp(1)
    done = []
    def sig(c):
        if not done and ("QLst" not in a.q or c == 15):
            done.append(c); signal("QLst", WS_F1, 48)
    st.finish(sig)
    a("s_branch L_bloop")

    a("L_aux:")
    role[0] = "A"
    a.q = []
    vOR8, vOR1 = 19, 9
    vOC, vOC8 = 76, 10
    vAQ, vAP = 80, 81
    vAD = 82
    vM, vLL, vAL, vEX = 90, 91, 92, 94
    vWR = 96
    vTRB, vZ, vL2 = 95, 100, 102
    vQL, vCT, vSS = 104, 136, 200
    vKA, vPP, vE1, vE2 = 20, 52, 60, 216
    vTA = 136
    a(f"v_lshlrev_b32 v{vT0}, 2, v{vG}\nv_xor_b32 v{vT0}, v{vT0}, v{vJ}")
    for i in range(4):
        a(f"v_xor_b32 v{vWR+i}, {i}, v{vT0}\nv_lshlrev_b32 v{vWR+i}, 4, v{vWR+i}\nv_lshl_add_u32 v{vOC8+i}, v{vG}, 13, v{vWR+i}")
        if i: a(f"v_add_u32 v{vOC8+i}, {i*(32768-1024)}, v{vOC8+i}")
    a(f"s_lshl_b32 s{sM0}, s{sW}, 15\ns_mov_b32 s{sFILL}, 0\ns_mov_b32 s{sSLOT}, 0")
    a(f"s_lshl_b32 s{sCKO}, s{sW}, 20\ns_lshl_b32 s{sT2}, s{sH}, 8\ns_add_u32 s{sCKO}, s{sCKO}, s{sT2}")
    a("s_waitcnt lgkmcnt(0)")
    srd(rCK, pUV, 4*MB)
    def ck_one(n, tg, offs=vOC, step=16384):
        if n % 4 == 0:
            a(f"s_add_u32 s{sT3}, s{sM0}, s{sFILL}\ns_mov_b32 m0, s{sT3}")
            a(f"s_add_u32 s{sFILL}, s{sFILL}, 4096\ns_and_b32 s{sFILL}, s{sFILL}, 0x7fff")
        a.vm(f"buffer_load_dwordx4 v{offs+n%4}, {R(rCK)}, s{sCKO} offen offset:{(n%4)*1024} nt lds", tg)
        if n % 4 == 3:
            a(f"s_add_u32 s{sCKO}, s{sCKO}, {step}")
    soft(0)
    for n in range(8): ck_one(n, "UV0", vOC8, 16*8192)
    consts()
    if "noaux" in ABL: a("s_endpgm")
    srd(rOUT, pOUT, 8192)
    for i in range(4):
        a(f"v_lshl_add_u32 v{vOC+i}, v{vG}, 10, v{vWR+i}\nv_lshl_add_u32 v{vWR+i}, v{vG}, 8, v{vWR+i}")
        if i: a(f"v_add_u32 v{vOC+i}, {i*3072}, v{vOC+i}")
    vaddr(vZ+1, vZ, (vL, 0, 5, 8))
    a(f"v_mov_b32 v{vZ}, 0\ns_lshl_b32 s{sT2}, s{sW}, 13\nv_add_u32 v{vZ+1}, s{sT2}, v{vZ+1}")
    a(f"v_lshlrev_b32 v{vT0}, 4, v{vJ}\nv_lshl_add_u32 v{vOR1}, v{vG}, 10, v{vT0}")
    a(f"s_lshl_b32 s{sWO}, s{sH}, 17\ns_lshl_b32 s{sT2}, s{sW}, 8\ns_add_u32 s{sWO}, s{sWO}, s{sT2}")
    vB1 = vAD
    a(f"v_and_b32 v{vT0}, 3, v{vL}\nv_bfe_u32 v{vT1}, v{vL}, 2, 2\nv_lshrrev_b32 v{vT2}, 5, v{vL}")
    a(f"v_lshl_add_u32 v{vT3}, v{vT0}, 2, v{vT1}\nv_xor_b32 v{vT3}, v{vT3}, v{vT2}\nv_lshlrev_b32 v{vT3}, 4, v{vT3}")
    a(f"v_and_b32 v{vAQ}, 31, v{vL}\nv_lshl_add_u32 v{vAQ}, v{vAQ}, 8, v{vT3}")
    a(f"v_lshl_add_u32 v{vAP}, v{vT2}, 2, v{vT1}\nv_lshlrev_b32 v{vAP}, 8, v{vAP}\nv_lshl_add_u32 v{vAP}, v{vT1}, 6, v{vAP}")
    a(f"v_bfe_u32 v{vT3}, v{vL}, 4, 1\nv_lshlrev_b32 v{vT3}, 1, v{vT3}\nv_bfe_u32 v{vB1}, v{vL}, 1, 1\nv_add_u32 v{vT3}, v{vT3}, v{vB1}")
    a(f"v_xor_b32 v{vT3}, v{vT3}, v{vT2}\nv_lshl_add_u32 v{vAP}, v{vT3}, 4, v{vAP}")
    a(f"v_and_b32 v{vT3}, 1, v{vL}\nv_lshl_add_u32 v{vAP}, v{vT3}, 3, v{vAP}")
    a(f"v_lshl_add_u32 v{vTRB}, v{vG}, 3, v{vT1}\nv_lshlrev_b32 v{vTRB}, 8, v{vTRB}\nv_lshl_add_u32 v{vTRB}, v{vT1}, 6, v{vTRB}")
    a(f"v_bfe_u32 v{vT0}, v{vL}, 4, 1\nv_lshl_add_u32 v{vT0}, v{vT0}, 1, v{vB1}\nv_lshl_add_u32 v{vTRB}, v{vT0}, 4, v{vTRB}")
    a(f"v_lshl_add_u32 v{vTRB}, v{vT3}, 3, v{vTRB}\nv_add_u32 v{vTRB}, s{sM0}, v{vTRB}")
    for i in range(16):
        a(f"v_xor_b32 v{vTA+i}, {16*i}, v{vTRB}")
    a(f"s_lshl_b32 s{sU0}, s{sW}, 13\ns_add_u32 s{sU0}, s{sU0}, {LDS_EX}\nv_lshl_add_u32 v{vEX}, v{vL}, 4, s{sU0}")
    for i in range(4):
        a(f"v_add_u32 v{vWR+i}, s{sU0}, v{vWR+i}")
    soft(1); soft_flush()
    for k in range(1, 4):
        for n in range(8): ck_one(n, f"UV{k}", vOC8, 16*8192)
    take_tag(True)
    def slot_out(k, dst):
        for nt in range(8):
            for pi in range(2):
                a(f"ds_read_b64_tr_b16 {A(dst+16*nt+4*k+2*pi,2)}, v{vTA+2*nt+pi} offset:{8192*k+1024*pi}")
        a("s_waitcnt lgkmcnt(0)")
    srd(rCK, pAWO, 4*MB)
    a(f"s_mov_b32 s{sCKO}, s{sWO}")
    for k in range(4):
        a.wait(f"UV{k}")
        slot_out(k, A1)
        for n in range(8): ck_one(n, f"WA{k}")
    stamp(1)
    srd(rCK, pCK, 16*MB)
    saddr(sIX, 0, (sH, 0, 3, 2), (sH, 3, 0, 0))
    saddr(sCKO, 0, (sIX, 0, 0, 19), (sW, 0, 0, 8))

    def flag_load(off):
        a(f"s_mov_b32 s{sU1}, {off}")
        a.vm(f"buffer_load_dword v{vT3}, v{vZ+1}, {R(rWS)}, s{sU1} offen sc1", "FL")

    def flag_wait(off):
        a.wait("FL")
        chk, ok = a.label("fcheck"), a.label("fok")
        a(f"{chk}:\nv_cmp_ne_u32 vcc, s{sFLAG}, v{vT3}\ns_cbranch_vccz {ok}")
        saved = list(a.q)
        a(f"s_sleep {FSL}")
        flag_load(off)
        a("s_waitcnt vmcnt(0)")
        spin_guard(chk)
        a.q = saved
        a(f"{ok}:")

    for k in range(4):
        a.wait(f"WA{k}")
        slot_out(k, A0)
        if k == 3: flag_load(WS_F1)
        for n in range(8 if k < 3 else 5): ck_one(n, f"CK{k}")
    stamp(2)
    if "noatt" in ABL: a("s_endpgm")
    for i in range(64): a(f"v_mov_b32 v{vCT+i}, 0")
    a(f"v_mov_b32 v{vM}, 0xff7f0000\ns_mov_b32 s{sIT}, 0")
    a(f"v_mov_b32 v{vL2}, 0\nv_mov_b32 v{vL2+1}, 0\ns_mov_b32 s{sC2}, s{sC}\ns_mov_b32 s{sC2+1}, s{sC}")
    a(f"v_add_u32 v{vT0}, s{sU0}, v{vAQ}")
    for k in range(8):
        a(f"v_xor_b32 v{vAD+k}, {32*k}, v{vT0}")
    a(f"v_add_u32 v{vAQ}, s{sM0}, v{vAQ}\nv_add_u32 v{vAP}, s{sM0}, v{vAP}")
    saddr(sT0, WS_QL, (sIX, 3, 0, 15), (sW, 0, 0, 8))
    flag_wait(WS_F1)
    stamp(4)
    for i in range(8):
        a.vm(f"buffer_load_dwordx4 {V(vKA+4*i,4)}, v{vOR1}, {R(rWS)}, s{sT0} offen sc1", f"QLg{i}")
        if i < 7: a(f"s_add_u32 s{sT0}, s{sT0}, 4096")
    for i in range(8):
        a.wait(f"QLg{i}")
        a(f"ds_write_b128 v{vWR+(i&3)}, {V(vKA+4*i,4)} offset:{i*1024}")
    a("s_waitcnt lgkmcnt(0)")
    for k in range(8):
        a(f"ds_read_b128 {V(vQL+4*k,4)}, v{vAD+k}")
    stamp(5)
    vKQ = vE2
    for k in range(8):
        a(f"v_xor_b32 v{vAD+k}, {32*k}, v{vAQ}\nds_read_b128 {V(vKQ+4*k,4)}, v{vAD+k}")
    a("L_att:")
    a(f"v_add_u32 v{vT0}, s{sSLOT}, v{vAP}")
    a("s_waitcnt lgkmcnt(0)")
    for k in range(8):
        c = V(vSS, 16) if k else "0"
        a(f"v_mfma_f32_32x32x16_bf16 {V(vSS,16)}, {V(vKQ+4*k,4)}, {V(vQL+4*k,4)}, {c}")
        nt, pi = k >> 1, k & 1
        a(f"v_xor_b32 v{vAD+k}, {32*k}, v{vT0}")
        for sg in range(2):
            a(f"ds_read_b64_tr_b16 {V(vKA+8*nt+4*sg+2*pi,2)}, v{vAD+k} offset:{4096*sg+2048*pi}")
        if k in (0, 4, 7): ck_one({0: 5, 4: 6, 7: 7}[k], "loop")
    a(f"v_xor_b32 v{vT1}, 0x2000, v{vEX}\nv_xor_b32 v{vT2}, 0x4000, v{vEX}\nv_xor_b32 v{vT3}, 0x6000, v{vEX}")
    sw = a.label("noswitch")
    a(f"s_cmp_lg_u32 s{sIT}, 12\ns_cbranch_scc1 {sw}")
    srd(rCK, pBWO, 4*MB)
    a(f"s_mov_b32 s{sCKO}, s{sWO}")
    a(f"{sw}:")
    for q in range(4):
        a(f"ds_write_b128 v{vEX}, {V(vSS+4*q,4)} offset:{1024*q}")
    a("s_waitcnt lgkmcnt(0)\ns_barrier")
    for q in range(4):
        a(f"ds_read_b128 {V(vE1+4*q,4)}, v{vT1} offset:{1024*q}")
        a(f"ds_read_b128 {V(vE2+4*q,4)}, v{vT2} offset:{1024*q}")
        a(f"ds_read_b128 {V(vE2+16+4*q,4)}, v{vT3} offset:{1024*q}")
    a(f"v_xor_b32 v{vEX}, 0x1000, v{vEX}")
    ck_one(0, "loop")
    a(f"s_add_u32 s{sSLOT}, s{sSLOT}, 8192\ns_and_b32 s{sSLOT}, s{sSLOT}, 0x7fff")
    for q in range(4):
        a(f"s_waitcnt lgkmcnt({9-3*q})")
        for r in range(4*q, 4*q+4, 2):
            a(f"v_pk_add_f32 {V(vSS+r,2)}, {V(vSS+r,2)}, {V(vE1+r,2)}\nv_pk_add_f32 {V(vE2+r,2)}, {V(vE2+r,2)}, {V(vE2+16+r,2)}")
        for r in range(4*q, 4*q+4, 2):
            a(f"v_pk_add_f32 {V(vSS+r,2)}, {V(vSS+r,2)}, {V(vE2+r,2)}")
    ck_one(1, "loop")
    a(f"v_max_f32 v{vT0}, v{vSS}, v{vSS+1}")
    for r in range(2, 16, 2):
        a(f"v_max3_f32 v{vT0}, v{vT0}, v{vSS+r}, v{vSS+r+1}")
    a(f"v_mov_b32 v{vT1}, v{vT0}\nv_permlane32_swap_b32 v{vT0}, v{vT1}\nv_max_f32 v{vT0}, v{vT0}, v{vT1}")
    a(f"v_mul_f32 v{vT0}, s{sC}, v{vT0}\nv_max_f32 v{vT0}, v{vT0}, v{vM}")
    a(f"v_sub_f32 v{vAL}, v{vM}, v{vT0}\nv_exp_f32 v{vAL}, v{vAL}\nv_mov_b32 v{vM}, v{vT0}")
    for r in range(0, 16, 2):
        a(f"v_pk_fma_f32 {V(vSS+r,2)}, {V(vSS+r,2)}, s[{sC2}:{sC2+1}], {V(vM,2)} op_sel_hi:[1,1,0] neg_lo:[0,0,1] neg_hi:[0,0,1]")
    for r in range(16):
        a(f"v_exp_f32 v{vSS+r}, v{vSS+r}")
        if r == 4: ck_one(2, "loop")
    a(f"v_add_u32 v{vT0}, s{sSLOT}, v{vAQ}")
    a(f"v_pk_mul_f32 {V(vL2,2)}, {V(vL2,2)}, {V(vAL,2)} op_sel_hi:[1,0]")
    for c in range(vCT, vCT+64, 2):
        a(f"v_pk_mul_f32 {V(c,2)}, {V(c,2)}, {V(vAL,2)} op_sel_hi:[1,0]")
        if c == vCT + 40: ck_one(3, "loop")
    for r in range(8):
        a(f"v_cvt_pk_bf16_f32 v{vPP+r}, v{vSS+2*r}, v{vSS+2*r+1}")
        a(f"v_pk_add_f32 {V(vL2,2)}, {V(vL2,2)}, {V(vSS+2*r,2)}")
    a("s_waitcnt vmcnt(20)")
    k = 0
    for sg in range(2):
        for nt in range(4):
            a(f"v_mfma_f32_32x32x16_bf16 {V(vCT+16*nt,16)}, {V(vKA+8*nt+4*sg,4)}, {V(vPP+4*sg,4)}, {V(vCT+16*nt,16)}")
            if k < 8:
                for kk in (k, k+1):
                    a(f"v_xor_b32 v{vAD+kk}, {32*kk}, v{vT0}\nds_read_b128 {V(vKQ+4*kk,4)}, v{vAD+kk}")
            if k == 8: ck_one(4, "loop")
            k += 2
    a(f"s_add_u32 s{sIT}, s{sIT}, 1\ns_cmp_lt_u32 s{sIT}, 16\ns_cbranch_scc1 L_att")
    a.q = []
    stamp(6)
    if "nopost" in ABL: a("s_endpgm")
    a(f"v_add_f32 v{vLL}, v{vL2}, v{vL2+1}")
    a(f"v_mov_b32 v{vT1}, v{vLL}\nv_permlane32_swap_b32 v{vLL}, v{vT1}\nv_add_f32 v{vLL}, v{vLL}, v{vT1}")
    a(f"v_and_b32 v{vT0}, 31, v{vL}\nv_lshlrev_b32 v{vT1}, 8, v{vT0}\nv_lshl_add_u32 v{vT1}, v{vJ}, 4, v{vT1}")
    a(f"v_lshrrev_b32 v{vT2}, 5, v{vL}\nv_lshl_add_u32 v{vT1}, v{vT2}, 3, v{vT1}\nv_add_u32 v{vT1}, s{sU0}, v{vT1}")
    a("s_waitcnt lgkmcnt(0)\ns_barrier")
    for i in range(16):
        a(f"v_cvt_pk_bf16_f32 v{vKA+2*i}, v{vCT+4*i}, v{vCT+4*i+1}\nv_cvt_pk_bf16_f32 v{vKA+2*i+1}, v{vCT+4*i+2}, v{vCT+4*i+3}")
        a(f"v_xor_b32 v{vAD+(i&7)}, {16*i}, v{vT1}\nds_write_b64 v{vAD+(i&7)}, {V(vKA+2*i,2)}")
    a(f"v_xor_b32 v{vT2}, v{vJ}, v{vG}\nv_lshlrev_b32 v{vT2}, 4, v{vT2}\nv_lshl_add_u32 v{vT2}, v{vG}, 8, v{vT2}\nv_add_u32 v{vT2}, s{sU0}, v{vT2}")
    for i in range(4):
        a(f"v_xor_b32 v{vAD+i}, {64*i}, v{vT2}")
    vaddr(vT3, vT2, (vJ, 0, 0, 4), (vG, 0, 0, 15))
    saddr(sT0, WS_CP, (sIX, 0, 0, 10), (sW, 0, 0, 8))
    a("s_waitcnt lgkmcnt(0)")
    vPUB = 200
    for i in range(8):
        a(f"ds_read_b128 {V(vPUB+4*i,4)}, v{vAD+(i&3)} offset:{1024*i}")
    a(f"v_lshlrev_b32 v{vT0}, 3, v{vT0}")
    saddr(sT1, WS_CS, (sIX, 0, 0, 8), (sW, 0, 0, 13))
    setexec(0xffffffff)
    a.vm(f"buffer_store_dwordx2 {V(vM,2)}, v{vT0}, {R(rWS)}, s{sT1} offen sc1", "CPst")
    setexec(FULL)
    for i in range(8):
        a(f"s_waitcnt lgkmcnt({7-i})")
        a.vm(f"buffer_store_dwordx4 {V(vPUB+4*i,4)}, v{vT3}, {R(rWS)}, s{sT0} offen sc1", "CPst")
        if i < 7: a(f"s_add_u32 s{sT0}, s{sT0}, {128*KB}")
    for n in range(5, 8): ck_one(n, "WB")
    vBU, vY, vG2 = 136, 84, 104
    vAO, vAY, vAG, vAF, vAM, vAW = 112, 77, 78, 79, 92, 93
    vCB, vSTAT, vDD, vRES = 20, 52, 60, 104
    vGC, vGS, vRW, vRR, vRO = 80, 81, 94, 102, 103
    a(f"v_and_b32 v{vT0}, 3, v{vJ}\nv_lshrrev_b32 v{vT1}, 2, v{vJ}\nv_lshlrev_b32 v{vT2}, 4, v{vG}\nv_add_u32 v{vT2}, {LDS_O}, v{vT2}\ns_movk_i32 s{sT0}, 320")
    for u in range(4):
        a(f"v_cmp_eq_u32 vcc, {u}, v{vT1}\nv_cndmask_b32 v{vAO+u}, 4, v{vT0}, vcc\nv_mad_u32_u24 v{vAO+u}, v{vAO+u}, s{sT0}, v{vT2}")
    saddr(sT0, 0, (sW, 0, 0, 16), (sH, 0, 0, 8))
    vaddr(vAY, vT1, (vJ, 0, 0, 4), (vG, 0, 0, 13))
    a(f"v_add_u32 v{vAY}, s{sT0}, v{vAY}")
    saddr(sT0, 0, (sH, 0, 0, 13), (sW, 0, 0, 6))
    a(f"v_lshrrev_b32 v{vT1}, 2, v{vL}\nv_lshlrev_b32 v{vT1}, 8, v{vT1}\nv_lshl_add_u32 v{vT1}, v{vT0}, 4, v{vT1}\nv_add_u32 v{vAG}, s{sT0}, v{vT1}")
    a(f"s_lshr_b32 s{sT0}, s{sH}, 2\ns_lshl_b32 s{sT0}, s{sT0}, 7\ns_lshl_b32 s{sT2}, s{sW}, 5\ns_add_u32 s{sT0}, s{sT0}, s{sT2}")
    a(f"s_and_b32 s{sT2}, s{sH}, 3\ns_lshl_b32 s{sT2}, s{sT2}, 3\ns_add_u32 s{sT0}, s{sT0}, s{sT2}")
    a(f"v_lshlrev_b32 v{vT1}, 11, v{vT0}\nv_lshl_add_u32 v{vT1}, v{vG}, 1, v{vT1}\nv_add_u32 v{vAF}, s{sT0}, v{vT1}")
    vaddr(vGS, vT1, (vJ, 0, 2, 11), (vJ, 2, 0, 8))
    a(f"v_and_b32 v{vT1}, 12, v{vJ}\nv_xor_b32 v{vT1}, v{vT1}, v{vG}\nv_and_b32 v{vT2}, 1, v{vJ}\nv_lshlrev_b32 v{vT2}, 1, v{vT2}\nv_xor_b32 v{vT1}, v{vT1}, v{vT2}")
    vaddr(vGC, vT2, (vT1, 0, 0, 4), (vJ, 0, 2, 11), (vJ, 2, 0, 8))
    a(f"v_add_u32 v{vGC}, s{sU0}, v{vGC}")
    a(f"v_lshlrev_b32 v{vT0}, 9, v{vT0}\nv_lshl_add_u32 v{vT0}, v{vG}, 4, v{vT0}\nv_add_u32 v{vRW}, s{sU0}, v{vT0}")
    a(f"s_lshl_b32 s{sT2}, s{sW}, 9\ns_add_u32 s{sT2}, s{sT2}, {LDS_EX}\nv_and_b32 v{vT1}, 31, v{vL}\nv_lshl_add_u32 v{vRR}, v{vT1}, 4, s{sT2}")
    a(f"s_mul_i32 s{sT2}, s{sW}, 320\ns_add_u32 s{sT2}, s{sT2}, {LDS_O}\nv_lshl_add_u32 v{vRO}, v{vT1}, 3, s{sT2}")
    a(f"v_lshlrev_b32 v{vT0}, 6, v{vG}\nv_lshl_add_u32 v{vT0}, v{vJ}, 1, v{vT0}\nv_add_u32 v{vAW}, s{sT2}, v{vT0}")
    a(f"v_lshlrev_b32 v{vT0}, 7, v{vG}\nv_lshl_add_u32 v{vT0}, v{vJ}, 4, v{vT0}\nv_mov_b32 v{vT1}, 512")
    a(f"v_cmp_gt_u32 vcc, 8, v{vJ}\nv_cndmask_b32 v{vAM}, v{vT1}, v{vT0}, vcc")
    a(f"s_mov_b32 s{sMODE}, 0\ns_mov_b32 s{sYO}, {WS_YA}\ns_mov_b32 s{sOUTO}, 0")
    saddr(sT0, WS_CP, (sH, 0, 0, 15), (sW, 0, 0, 8))
    saddr(sT1, WS_CS, (sH, 0, 0, 3), (sW, 0, 0, 13))
    signal("CPst", WS_F2, vT0)
    stamp(7)
    flag_load(WS_F2)
    flag_wait(WS_F2)
    stamp(8)
    for hf in range(2):
        a.vm(f"buffer_load_dwordx2 {V(vSTAT+2*hf,2)}, v{vGS}, {R(rWS)}, s{sT1} offen sc1", "CSg")
        if hf == 0: a(f"s_add_u32 s{sT1}, s{sT1}, 1024")
    for i in range(8):
        a.vm(f"buffer_load_dwordx4 {V(vPUB+4*i,4)}, v{vOR1}, {R(rWS)}, s{sT0} offen sc1", f"CPg{i}")
        if i < 7: a(f"s_add_u32 s{sT0}, s{sT0}, 4096")
    for i in range(8):
        a(f"v_xor_b32 v{vAD+i}, {64*(i&3) ^ 16*(i>>2)}, v{vGC}")
    a.wait("CSg")
    a(f"v_max_f32 v{vT0}, v{vSTAT}, v{vSTAT+2}")
    a(f"v_max_f32_dpp v{vT0}, v{vT0}, v{vT0} row_ror:8 {DPP}\nv_max_f32_dpp v{vT0}, v{vT0}, v{vT0} row_ror:4 {DPP}")
    a(f"v_sub_f32 v{vSTAT}, v{vSTAT}, v{vT0}\nv_sub_f32 v{vSTAT+2}, v{vSTAT+2}, v{vT0}")
    a(f"v_exp_f32 v{vSTAT}, v{vSTAT}\nv_exp_f32 v{vSTAT+2}, v{vSTAT+2}")
    a(f"v_mul_f32 v{vT1}, v{vSTAT}, v{vSTAT+1}\nv_fmac_f32 v{vT1}, v{vSTAT+2}, v{vSTAT+3}")
    a(f"v_add_f32_dpp v{vT1}, v{vT1}, v{vT1} row_ror:8 {DPP}\nv_add_f32_dpp v{vT1}, v{vT1}, v{vT1} row_ror:4 {DPP}")
    a(f"v_rcp_f32 v{vT1}, v{vT1}")
    a(f"v_mul_f32 v{vSTAT}, v{vSTAT}, v{vT1}\nv_mul_f32 v{vSTAT+2}, v{vSTAT+2}, v{vT1}")
    for i in range(8):
        a.wait(f"CPg{i}")
        a(f"ds_write_b128 v{vWR+(i&3)}, {V(vPUB+4*i,4)} offset:{i*1024}")
    a("s_waitcnt lgkmcnt(0)")
    for i in range(8):
        a(f"ds_read_b128 {V(vCB+4*i,4)}, v{vAD+i} offset:{1024*(i>>2)}")
    a("s_waitcnt lgkmcnt(0)")
    def ctx_fold(nt):
        d = vDD + 8*(nt % 2)
        res = vRES + 4*(nt % 2)
        for r in range(4):
            a(f"v_mul_f32 v{res+r}, v{d+r}, v{vSTAT}")
        for r in range(4):
            a(f"v_fmac_f32 v{res+r}, v{d+4+r}, v{vSTAT+2}")
        for ror in (8, 4):
            for r in range(4):
                a(f"v_add_f32_dpp v{res+r}, v{res+r}, v{res+r} row_ror:{ror} {DPP}")
        a(f"ds_write_b128 v{vRW}, {V(res,4)} offset:{64*nt}")
    for nt in range(8):
        d = vDD + 8*(nt % 2)
        for k in range(4):
            for hf in range(2):
                c = V(d+4*hf, 4) if k else "0"
                a(f"v_mfma_f32_16x16x32_bf16 {V(d+4*hf,4)}, {A(A1+16*nt+4*k,4)}, {V(vCB+16*hf+4*k,4)}, {c}")
        if nt: ctx_fold(nt - 1)
    ctx_fold(7)
    a("s_waitcnt lgkmcnt(0)\ns_barrier")
    for p in range(4):
        a(f"ds_read_b128 {V(vCB+4*p,4)}, v{vRR} offset:{p*8192}")
    a("s_waitcnt lgkmcnt(0)")
    for r in range(4):
        a(f"v_add_f32 v{vCB+r}, v{vCB+r}, v{vCB+4+r}\nv_add_f32 v{vCB+8+r}, v{vCB+8+r}, v{vCB+12+r}")
    for r in range(4):
        a(f"v_add_f32 v{vCB+r}, v{vCB+r}, v{vCB+8+r}")
    a(f"v_cvt_pk_bf16_f32 v{vCB}, v{vCB}, v{vCB+1}\nv_cvt_pk_bf16_f32 v{vCB+1}, v{vCB+2}, v{vCB+3}")
    a(f"ds_write_b64 v{vRO}, {V(vCB,2)}")
    a(f"v_lshlrev_b32 v{vT0}, 2, v{vL}\nv_add_u32 v{vT0}, {LDS_O + 4*320}, v{vT0}\nds_write_b32 v{vT0}, v{vZ}")
    stamp(9)

    a("L_final:")
    a("s_waitcnt lgkmcnt(0)\ns_barrier")
    tsoft(2)
    rd = lambda i: a(f"ds_read_b128 {V(vBU+4*i,4)}, v{vAO+(i>>2)} offset:{64*(i&3)}")
    for i in range(6): rd(i)
    a(f"s_add_u32 s{sT0}, s{sYO}, 32768\ns_add_u32 s{sT1}, s{sYO}, 4096")
    for i in range(16):
        u, k = i >> 2, i & 3
        a(f"s_waitcnt lgkmcnt({min(5, 15 - i)})")
        for v in range(2):
            c = V(vY+4*v, 4) if i else "0"
            a(f"v_mfma_f32_16x16x32_bf16 {V(vY+4*v,4)}, {A(A0+16*(4*v+u)+4*k,4)}, {V(vBU+4*i,4)}, {c}")
            if v == 0 and i + 6 < 16: rd(i + 6)
    for v in range(2):
        tag(range(vY+4*v, vY+4*v+4))
        a.vm(f"buffer_store_dwordx4 {V(vY+4*v,4)}, v{vAY}, {R(rWS)}, s{sT0 if v else sYO} offen sc1", "Yst")
    tsoft(3)
    a(f"s_cmp_eq_u32 s{sMODE}, 0\ns_cbranch_scc1 L_prepb")
    vGS2 = 200
    def y_round(d):
        for i in range(2):
            a(f"buffer_load_dwordx4 {V(vGS2+8*d+4*i,4)}, v{vAG}, {R(rWS)}, s{sT1 if i else sYO} offen sc1")
    a("L_hop2:")
    y_round(0)
    a("s_waitcnt vmcnt(0)")
    untag(list(range(vGS2, vGS2+8)), vT0)
    for r in range(4):
        a(f"v_add_f32 v{vG2+r}, v{vGS2+r}, v{vGS2+4+r}")
    a("s_cbranch_vccz L_hop2ok" if "Yst" not in ABL else "s_branch L_hop2ok")
    spin_guard("L_hop2")
    a("L_hop2ok:")
    tsoft(4)
    a(f"v_permlane16_swap_b32 v{vG2}, v{vG2+1}\nv_permlane16_swap_b32 v{vG2+2}, v{vG2+3}")
    a(f"v_add_f32 v{vG2}, v{vG2}, v{vG2+1}\nv_add_f32 v{vG2+2}, v{vG2+2}, v{vG2+3}")
    a(f"v_permlane32_swap_b32 v{vG2}, v{vG2+2}\nv_add_f32 v{vG2}, v{vG2}, v{vG2+2}")
    a(f"v_add_f32_dpp v{vG2}, v{vG2}, v{vG2} row_ror:8 {DPP}\nv_add_f32_dpp v{vG2}, v{vG2}, v{vG2} row_ror:4 {DPP}")
    a(f"v_cvt_pk_bf16_f32 v{vG2}, v{vG2}, v{vG2}")
    setexec(0x000f000f000f000f)
    a(f"buffer_store_short v{vG2}, v{vAF}, {R(rOUT)}, s{sOUTO} offen")
    setexec(FULL)
    a(f"s_cmp_lg_u32 s{sMODE}, 0\ns_cbranch_scc1 L_fin")
    stamp(11)
    a(f"s_mov_b32 s{sMODE}, 1\ns_mov_b32 s{sYO}, {WS_YB}\ns_mov_b32 s{sOUTO}, 1024")
    saddr(sU0, WS_OP, (sH, 0, 0, 15), (sW, 0, 0, 13))
    if "OPst" in ABL: a("s_branch L_fin")
    vMS, vMX, vOO, vFA, vFB = 20, 55, 56, 52, 53
    sPEND, sTODO, sID = sIT, sSLOT, 4
    def m_poll(d):
        a(f"s_and_b32 s{sTODO}, s{sTODO}, s{sPEND}\ns_cselect_b32 s{sTODO}, s{sTODO}, s{sPEND}\ns_ff1_i32_b32 s{sID+d}, s{sTODO}\ns_bitset0_b32 s{sTODO}, s{sID+d}")
        a(f"s_lshl_b32 s{sT0}, s{sID+d}, 10\ns_add_u32 s{sT0}, s{sT0}, s{sU0}")
        a(f"buffer_load_dwordx4 {V(vMS+4*d,4)}, v{vAM}, {R(rWS)}, s{sT0} offen sc1")
    a(f"s_mov_b32 s{sPEND}, 0x7f\ns_mov_b32 s{sTODO}, 0\nv_mov_b32 v{vMX}, 0xff7f0000")
    for r in range(4): a(f"v_mov_b32 v{vOO+r}, 0")
    for d in range(K1 - 1): m_poll(d)
    a("L_hop1poll:")
    for d in range(K1):
        nxt = a.label("mnext")
        m_poll((d + K1 - 1) % K1)
        a(f"s_waitcnt vmcnt({K1-1})")
        x = vMS + 4*d
        untag(list(range(x, x+4)), vT0)
        a(f"v_max_f32 v{vT1}, v{vMX}, v{x}\ns_cbranch_vccnz {nxt}\ns_bitcmp1_b32 s{sPEND}, s{sID+d}\ns_cbranch_scc0 {nxt}")
        a(f"v_sub_f32 v{vFA}, v{vMX}, v{vT1}\nv_sub_f32 v{vFB}, v{x}, v{vT1}\nv_exp_f32 v{vFA}, v{vFA}\nv_exp_f32 v{vFB}, v{vFB}")
        a(f"v_mov_b32 v{vMX}, v{vT1}\ns_bitset0_b32 s{sPEND}, s{sID+d}")
        for r in (1, 0, 2, 3):
            a(f"v_mul_f32_dpp v{vOO+r}, v{vFA}, v{vOO+r} row_newbcast:8 {DPP}")
        for r in (1, 0, 2, 3):
            a(f"v_fmac_f32_dpp v{vOO+r}, v{vFB}, v{x+r} row_newbcast:8 {DPP}")
        a(f"s_cmp_eq_u32 s{sPEND}, 0\ns_cbranch_scc1 L_hop1ok")
        a(f"{nxt}:")
    spin_guard("L_hop1poll")
    a("L_hop1ok:")
    tsoft(0)
    stamp(12)
    a(f"v_rcp_f32 v{vMX}, v{vOO+1}")
    for r in range(4):
        a(f"v_mul_f32_dpp v{vOO+r}, v{vMX}, v{vOO+r} row_newbcast:8 {DPP}")
    a(f"v_cvt_pk_bf16_f32 v{vOO}, v{vOO}, v{vOO+1}\nv_cvt_pk_bf16_f32 v{vOO+2}, v{vOO+2}, v{vOO+3}")
    setexec(0x00ff00ff00ff00ff)
    a(f"ds_write_b16 v{vAW}, v{vOO}\nds_write_b16_d16_hi v{vAW}, v{vOO} offset:16")
    a(f"ds_write_b16 v{vAW}, v{vOO+2} offset:32\nds_write_b16_d16_hi v{vAW}, v{vOO+2} offset:48")
    setexec(FULL)
    tsoft(1)
    a("s_branch L_final")
    a("L_prepb:")
    stamp(10)
    for nt in range(8):
        for pi in range(2):
            a(f"v_xor_b32 v{vT0+pi}, {16*(2*nt+pi)}, v{vTRB}")
            for k in range(4):
                a(f"ds_read_b64_tr_b16 {A(A0+16*nt+4*k+2*pi,2)}, v{vT0+pi} offset:{8192*k+1024*pi}")
    a("s_waitcnt lgkmcnt(0)\ns_barrier")
    a("s_branch L_hop2")
    a("L_fin:")
    tsoft(5)
    if STAMP == 3: a("s_waitcnt vmcnt(0)")
    tsoft(6)
    tflush()
    stamp(13)
    probe_end()
    a(f"s_or_b32 s{sT0}, s{sH}, s{sW}\ns_cmp_lg_u32 s{sT0}, 0\ns_cbranch_scc1 L_end")
    setexec(1)
    a(f"buffer_store_dword v{vTAG}, v{vZ}, {R(rWS)}, 0 offen")
    a("L_end:\ns_endpgm")
    body = a.finish()
    ref = open(os.path.join(os.path.dirname(os.path.abspath(__file__)), "..", NAME + ".s.ref")).read().split("\n")
    layout = [l for l in ref if l.startswith(";") and "@launch" not in l and "Override" not in l and "grid=ceil" not in l]
    tail = f""".section .rodata,"a"
.p2align 6
.amdhsa_kernel {NAME}_kernel
  .amdhsa_next_free_vgpr 512
  .amdhsa_next_free_sgpr 102
  .amdhsa_accum_offset 256
  .amdhsa_group_segment_fixed_size 0
  .amdhsa_kernarg_size 112
  .amdhsa_user_sgpr_count 2
  .amdhsa_user_sgpr_kernarg_segment_ptr 1
  .amdhsa_system_sgpr_workgroup_id_x 1
.end_amdhsa_kernel
"""
    return "\n".join(layout + hdr + ["; generated by tools/gen.py"]) + "\n" + body + tail

if __name__ == "__main__":
    kw = eval("dict(" + (sys.argv[2] if len(sys.argv) > 2 else "") + ")")
    out = sys.argv[1] if len(sys.argv) > 1 else os.path.join(os.path.dirname(os.path.abspath(__file__)), "..", NAME + ".s")
    open(out, "w").write(generate(**kw))
    print("wrote", out)
```

```python
import sys, os, struct
sys.path.insert(0, os.path.dirname(os.path.abspath(__file__)))
from asmlib import Asm

NAME = "concat_heads__compressed_kv_cla__mha_block_cached__decode"
KB, MB = 1024, 1 << 20
WS_CT, WS_F1, WS_F2, WS_CS, WS_CX, WS_QP, WS_QL, WS_YA, WS_YB = [o * KB for o in (64, 96, 128, 160, 192, 256, 384, 512, 768)]
WS_OP, WS_CP, WS_ST, WS_SIZE = 1*MB, 2*MB, 6*MB, 8*MB
SCALE = 128 ** -0.5 * 1.4426950408889634
LDS_EX = 128 * KB
LDS_O = LDS_EX + 4 * KB
LDS_W = 96 * KB
SPIN = 1 << 21

def f32(x): return struct.unpack("<I", struct.pack("<f", x))[0]
def V(a, n=1): return f"v{a}" if n == 1 else f"v[{a}:{a+n-1}]"
def A(a, n=1): return f"a{a}" if n == 1 else f"a[{a}:{a+n-1}]"
def R(r): return f"s[{r}:{r+3}]"
DPP = "row_mask:0xf bank_mask:0xf"
FULL = (1 << 64) - 1

pAX, pCK, pAWQ, pUK, pUV, pAWO, pBX, pK, pV, pBWQ, pBWO, pOUT, pDBG, pWS = range(4, 32, 2)
sH, sP, sW, sTAG, sT0, sT1, sT2, sT3 = 32, 33, 34, 35, 36, 37, 38, 39
rW, rX, rWS, rK, rV, rUK, rOUT, rDBG = 40, 44, 48, 52, 56, 72, 72, 76
rCK = rK
sC2, sFILL, sWO = 60, 62, 63
sSELLO, sSELHI, sHI24, sC, sSPIN = 80, 81, 82, 83, 84
sU0, sU1, sTK, sROT, sBASE = 85, 86, 87, 88, 89
sM0, sQO, sMODE, sIT, sSLOT, sCKO, sYO, sOUTO = 90, 91, 92, 93, 94, 95, 96, 97
sTS = 98
sFLAG, sXT, sB, sHJ = 68, 69, 3, 61
sIX = sB

MAPS = {
    'L': ([[8], [9]], [[10], [11]], [12, 13, 14, 15, 16, 17, 18, 19]),
    'A': ([[12], [13]], [[15, 8], [8]], [14, 9, 10, 11, 16, 17, 18, 19]),
    'C': ([[8], [9]], [[15], [10]], [12, 13, 14, 11, 16, 17, 18, 19]),
}

def generate(D=6, DV=6, DP=7, NS=33, D2=8, PAIR=0, MAP='C', ROTH=8, ROTW=1, PU=6, POLLP=34, PUJ=6, POLLQ=34, POLLU=24, XQ=(3, 2), K1=5, XB=1, FSL=2,
             STAMP=False, PROBE=None, AMP=0, ABL=()):
    a = Asm()
    role = ["B"]
    if ABL:
        real_vm = a.vm
        a.vm = lambda text, tg: real_vm(text.replace(R(rWS), R(rDBG)) if tg.rstrip("0123456789") in ABL else text, tg)

    vL, vG, vJ, vT0, vT1, vT2, vT3, vTAG = 1, 2, 3, 4, 5, 6, 7, 8
    vMASK = 10
    vST0, vST1 = 16, 17

    def srd(r, p, size):
        a(f"s_mov_b32 s{r}, s{p}\ns_and_b32 s{r+1}, s{p+1}, 0xffff\ns_mov_b32 s{r+2}, {size}\ns_mov_b32 s{r+3}, 0x20000")

    def saddr(dst, base, *fields):
        for n, (r, lo, w, pos) in enumerate(fields):
            if w: a(f"s_bfe_u32 s{sT2}, s{r}, {lo | (w << 16):#x}")
            elif lo: a(f"s_lshr_b32 s{sT2}, s{r}, {lo}")
            a(f"s_lshl_b32 s{sT2}, s{sT2 if (w or lo) else r}, {pos}")
            a(f"s_add_u32 s{dst}, s{sT2}, {base if n == 0 else 's%d' % dst}")

    def vaddr(dst, tmp, *fields):
        for n, (r, lo, w, pos) in enumerate(fields):
            if w: a(f"v_bfe_u32 v{tmp}, v{r}, {lo}, {w}")
            elif lo: a(f"v_lshrrev_b32 v{tmp}, {lo}, v{r}")
            src = tmp if (w or lo) else r
            a(f"v_lshlrev_b32 v{dst}, {pos}, v{src}" if n == 0 else f"v_lshl_add_u32 v{dst}, v{src}, {pos}, v{dst}")

    def stamp(i):
        if PROBE is not None:
            if PROBE == (role[0], i): a("s_memrealtime s[100:101]\ns_waitcnt lgkmcnt(0)")
            return
        if not STAMP or (STAMP == 3 and (role[0], i) not in (("A", 0), ("B", 0))): return
        if i: a(f"s_memrealtime s[{sTS}:{sTS+1}]\ns_waitcnt lgkmcnt(0)")
        else: a(f"s_lshl_b32 s100, s2, 2\ns_add_u32 s100, s100, s{sW}\ns_lshl_b32 s100, s100, 6\ns_add_u32 s100, s100, {WS_ST}\nv_mov_b32 v{vST0}, s100")
        a(f"v_mov_b32 v{vST1}, s{sTS}\ns_mov_b64 s[100:101], exec\ns_mov_b64 exec, 1")
        a(f"buffer_store_dword v{vST1}, v{vST0}, {R(rWS)}, 0 offen offset:{4*i}")
        if i == 0:
            a(f"s_getreg_b32 s{sTS}, hwreg(HW_REG_XCC_ID)\nv_mov_b32 v{vST1}, s{sTS}\nbuffer_store_dword v{vST1}, v{vST0}, {R(rWS)}, 0 offen offset:60")
        a("s_mov_b64 exec, s[100:101]")

    def soft(i):
        if STAMP == 2: a(f"s_memrealtime s[{70 if i == 0 else 78}:{71 if i == 0 else 79}]")

    def soft_flush():
        if STAMP == 2:
            a(f"s_waitcnt lgkmcnt(0)\ns_mov_b64 s[100:101], exec\ns_mov_b64 exec, 1")
            for i, r in ((14, 70), (7 if role[0] == "B" else 3, 78)):
                a(f"v_mov_b32 v{vST1}, s{r}\nbuffer_store_dword v{vST1}, v{vST0}, {R(rWS)}, 0 offen offset:{4*i}")
            a("s_mov_b64 exec, s[100:101]")

    TAILS = [12, 14, 16, 18, 20, 22, 24]
    def tsoft(i):
        if STAMP == 3: a(f"s_memrealtime s[{TAILS[i]}:{TAILS[i]+1}]")

    def tflush():
        if STAMP == 3:
            a(f"s_waitcnt lgkmcnt(0)\ns_mov_b64 s[100:101], exec\ns_mov_b64 exec, 1")
            for i, r in enumerate(TAILS):
                a(f"v_mov_b32 v{vST1}, s{r}\nbuffer_store_dword v{vST1}, v{vST0}, {R(rWS)}, 0 offen offset:{4*(i+7)}")
            a("s_mov_b64 exec, s[100:101]")

    def probe_end():
        if PROBE is None or PROBE[0] != role[0]: return
        lbl = a.label("probe")
        a(f"s_sub_u32 s100, s100, s{sTS}\ns_lshl_b32 s100, s100, {AMP}\ns_add_u32 s100, s100, s{sTS}")
        a(f"s_add_u32 s100, s100, 10000\n{lbl}:\ns_memrealtime s[{sTS}:{sTS+1}]\ns_waitcnt lgkmcnt(0)")
        a(f"s_sub_u32 s{sTS}, s{sTS}, s100\ns_cmp_lt_i32 s{sTS}, 0\ns_cbranch_scc0 {lbl}_x\ns_cmp_gt_i32 s{sTS}, -100000\ns_cbranch_scc1 {lbl}\n{lbl}_x:")

    def spin_guard(lbl_retry):
        a(f"s_sub_u32 s{sSPIN}, s{sSPIN}, 1\ns_cmp_lg_u32 s{sSPIN}, 0\ns_cbranch_scc1 {lbl_retry}\ns_branch L_end")

    def untag(regs, acc):
        for r in regs:
            a(f"v_xor_b32 v{r}, s{sTAG}, v{r}")
        a(f"v_or_b32 v{acc}, v{regs[0]}, v{regs[1]}")
        for i in range(2, len(regs), 2):
            a(f"v_or3_b32 v{acc}, v{acc}, v{regs[i]}, v{regs[i+1]}")
        a(f"v_and_b32 v{acc}, 0xff, v{acc}\nv_cmp_ne_u32 vcc, 0, v{acc}")

    def tag(regs):
        for r in regs:
            a(f"v_and_or_b32 v{r}, v{r}, s{sHI24}, v{vTAG}")

    def tag_bf16(regs):
        a(f"s_mov_b32 s{sT2}, 0xffff0000")
        for r in regs: a(f"v_cvt_pk_bf16_f32 v{r}, v{r}, v{r}")
        for r in regs: a(f"v_and_or_b32 v{r}, v{r}, s{sT2}, v{vTAG}")

    def quadsum(dst, src, tmp):
        a(f"v_mov_b32_dpp v{dst}, v{src} quad_perm:[0,0,0,0] {DPP}")
        a(f"v_mov_b32_dpp v{tmp}, v{src+2} quad_perm:[2,2,2,2] {DPP}")
        a(f"v_add_f32_dpp v{dst}, v{src+1}, v{dst} quad_perm:[1,1,1,1] {DPP}")
        a(f"v_add_f32_dpp v{tmp}, v{src+3}, v{tmp} quad_perm:[3,3,3,3] {DPP}")
        a(f"v_add_f32 v{dst}, v{dst}, v{tmp}")

    def setexec(mask):
        if mask == FULL: a("s_mov_b64 exec, -1")
        elif mask <= 64: a(f"s_mov_b64 exec, {mask}")
        else: a(f"s_mov_b32 exec_lo, {mask & 0xffffffff:#x}\ns_mov_b32 exec_hi, {mask >> 32:#x}")

    def consts():
        a(f"s_load_dword s{sTAG}, s[{pWS}:{pWS+1}], 0")
        srd(rWS, pWS, WS_SIZE)
        if ABL: srd(rDBG, pDBG, 256)
        a(f"s_mov_b32 s{sHI24}, 0xffffff00\ns_mov_b32 s{sC}, {f32(SCALE):#x}\ns_mov_b32 s{sSPIN}, {SPIN}")
        stamp(0)

    def take_tag(flag=False):
        a(f"s_waitcnt lgkmcnt(0)\ns_add_u32 s{sTAG}, s{sTAG}, 0x5b\ns_and_b32 s{sTAG}, s{sTAG}, 0xff\nv_mov_b32 v{vTAG}, s{sTAG}")
        if flag: a(f"s_or_b32 s{sFLAG}, s{sTAG}, 0x6b3ac500")

    def signal(tg, base, tmp):
        saddr(sXT, base, (sH, 0, 0, 8), (sW, 0, 0, 13))
        a(f"v_mov_b32 v{tmp}, s{sXT}\nv_mov_b32 v{tmp+1}, s{sFLAG}")
        if tg in a.q: a.wait(tg)
        setexec(1)
        a.vm(f"buffer_store_dword v{tmp+1}, v{tmp}, {R(rWS)}, 0 offen sc1", "SIG")
        setexec(FULL)

    hdr = [f"; @launch grid=(256,1,1) block=(256,1,1) lds={160*KB}"]
    a(f'.amdgcn_target "amdgcn-amd-amdhsa--gfx950"\n.text\n.globl {NAME}_kernel\n.p2align 8\n.type {NAME}_kernel,@function')
    a(f"{NAME}_kernel:")
    if STAMP or PROBE is not None: a(f"s_memrealtime s[{sTS}:{sTS+1}]")
    a("s_cmp_ge_u32 s2, 256\ns_cbranch_scc1 L_end")
    a("s_load_dwordx16 s[4:19], s[0:1], 0\ns_load_dwordx8 s[20:27], s[0:1], 64\ns_load_dwordx4 s[28:31], s[0:1], 96")
    a(f"v_lshrrev_b32 v{vT0}, 6, v0\nv_and_b32 v{vL}, 63, v0\nv_readfirstlane_b32 s{sW}, v{vT0}")
    a(f"s_lshr_b32 s{sH}, s2, 3\ns_sub_u32 s{sP}, s2, s{sH}\ns_sub_u32 s{sP}, s{sP}, 1\ns_and_b32 s{sP}, s{sP}, 7")
    a(f"v_lshrrev_b32 v{vG}, 4, v{vL}\nv_and_b32 v{vJ}, 15, v{vL}")
    a(f"s_cmp_lt_u32 s{sP}, 2\ns_cbranch_scc1 L_qp\ns_cmp_eq_u32 s{sP}, 2\ns_cbranch_scc1 L_ql\ns_cmp_eq_u32 s{sP}, 7\ns_cbranch_scc1 L_aux")

    vCA, vONE, vTK = 9, 18, 19
    sMSG = sYO
    vOW, vOX = 14, 15
    vX, vB, vACC, vQ = 20, 52, 60, 68
    vOK, vOQ, vOP, vOV = 76, 78, 79, 126
    vBQ, vPB = 80, 96
    vS, vO = 112, 116
    vMC, vLS, vSC, vP, vU0, vU1 = 120, 121, 122, 123, 124, 125
    RING = 128
    A0, A1 = 0, 128
    gv, tv, ub = MAPS[MAP] if isinstance(MAP, str) else MAP
    mk = lambda bits: sum(1 << b for b in bits)
    sup = set(sum(gv + tv, []))
    XOR = len(sup) > 4
    basis = []
    for r_ in [mk(v) for v in gv + tv] + [1 << b for b in ub]:
        for b_ in basis: r_ = min(r_, r_ ^ b_)
        assert r_, "key mapping is not a bijection"
        basis.append(r_)
    assert sup | set(ub) == set(range(8, 20))
    tval = [(mk(tv[0]) if t & 1 else 0) ^ (mk(tv[1]) if t & 2 else 0) for t in range(4)]
    gmask = mk(gv[0]) | mk(gv[1])
    timm = [v & 0xfff & ~gmask for v in tval]
    treg = sorted(set(v ^ i for v, i in zip(tval, timm)))
    tidx = [treg.index(v ^ i) for v, i in zip(tval, timm)]
    XOR = XOR or len(treg) > 2
    vAX = vOK + 1
    runs = []
    for i, b in enumerate(ub):
        if runs and runs[-1][1] + runs[-1][2] == b: runs[-1][2] += 1
        else: runs.append([i, b, 1])
    NTAIL = 256 - 7 * NS
    NDYN = NTAIL
    assert NS % 2 == 1 and NTAIL >= 0 and 5 <= D <= DV <= 7 and D2 == 8
    rS, sEND, sCNT = 64, sMODE, sOUTO
    vOS, vSA, vMX, vS2, vSN, vPN = 62, 64, 65, 96, 66, 100
    LDS_S = 16 * KB

    def advance(n): a(f"s_add_u32 s{sTK}, s{sTK}, {inc(n)}")
    inc = lambda n: 7 if not PAIR else (13 if n % 8 == 7 else 1)
    def kv_setup():
        a(f"v_lshrrev_b32 v{vT0}, 2, v{vJ}\nv_and_b32 v{vT1}, 3, v{vJ}")
        for dst, sel in ((vOK, vT0), (vOV, vG)):
            if len(gv[0]) == 1 and gv[1] == [gv[0][0] + 1]:
                a(f"v_lshlrev_b32 v{dst}, {gv[0][0]}, v{sel}")
            else:
                a(f"v_and_b32 v{vT2}, 1, v{sel}\nv_mul_u32_u24 v{vT2}, {mk(gv[0])}, v{vT2}\nv_lshrrev_b32 v{vT3}, 1, v{sel}\nv_mul_u32_u24 v{vT3}, {mk(gv[1])}, v{vT3}\nv_xor_b32 v{dst}, v{vT2}, v{vT3}")
        a(f"v_lshl_add_u32 v{vOK}, v{vG}, 6, v{vOK}\nv_lshl_add_u32 v{vOK}, v{vT1}, 4, v{vOK}\nv_lshl_add_u32 v{vOV}, v{vJ}, 4, v{vOV}")
        if len(treg) == 2 and not XOR:
            a(f"v_xor_b32 v{vOK+1}, {treg[1]}, v{vOK}\nv_xor_b32 v{vOV+1}, {treg[1]}, v{vOV}")
        a(f"s_add_u32 s{sB}, s{sW}, s{sP}\ns_and_b32 s{sB}, s{sB}, 3")
        a(f"s_lshl_b32 s{sBASE}, s{sB}, 5\ns_add_u32 s{sBASE}, s{sBASE}, s{sH}\ns_lshl_b32 s{sBASE}, s{sBASE}, 20")
        a(f"s_mul_i32 s{sROT}, s{sH}, {ROTH}")
        if ROTW == 1: a(f"s_add_u32 s{sROT}, s{sROT}, s{sB}")
        else: a(f"s_mul_i32 s{sT2}, s{sB}, {ROTW}\ns_add_u32 s{sROT}, s{sROT}, s{sT2}")
        a(f"s_lshl_b32 s{sTK}, s{sP}, {PAIR}")

    def masks():
        a(f"v_and_b32 v{vT0}, 1, v{vL}\nv_lshlrev_b32 v{vT0}, 4, v{vT0}\nv_mov_b32 v{vT1}, 0xffff\nv_lshlrev_b32 v{vT0}, v{vT0}, v{vT1}")
        a(f"v_bfe_u32 v{vT1}, v{vL}, 1, 2")
        for r in range(4):
            a(f"v_cmp_eq_u32 vcc, {r}, v{vT1}\nv_cndmask_b32 v{vMASK+r}, 0, v{vT0}, vcc")

    def kv_late():
        a(f"v_mov_b32 v{vMC}, 0xff7f0000\nv_mov_b32 v{vLS}, 0\nv_mov_b32 v{vONE}, 1")
        for r in range(4): a(f"v_mov_b32 v{vO+r}, 0")
        saddr(sMSG, WS_CT, (sH, 0, 0, 10), (sB, 0, 0, 8))
        a(f"v_mov_b32 v{vCA}, s{sMSG}")
        saddr(sMSG, WS_OP, (sH, 0, 0, 15), (sB, 0, 0, 13), (sP, 0, 0, 10))
        a(f"v_and_b32 v{vT1}, 3, v{vJ}\nv_lshlrev_b32 v{vOQ}, 7, v{vG}\nv_lshl_add_u32 v{vOQ}, v{vT1}, 5, v{vOQ}")
        saddr(sQO, WS_QP, (sH, 0, 0, 12), (sB, 0, 0, 9))
        a(f"v_lshlrev_b32 v{vT0}, 7, v{vG}\nv_lshl_add_u32 v{vT0}, v{vJ}, 4, v{vT0}\nv_mov_b32 v{vT1}, 512")
        a(f"v_cmp_gt_u32 vcc, 8, v{vJ}\nv_cndmask_b32 v{vOP}, v{vT1}, v{vT0}, vcc")

    def unit_addr(dst):
        a(f"s_add_u32 s{sT3}, s{sTK}, s{sROT}")
        for n, (i, b, w) in enumerate(runs):
            if XOR and n == 0:
                a(f"s_bfe_u32 s{sT1}, s{sT3}, {i | (w << 16):#x}\ns_lshl_b32 s{dst}, s{sT1}, {b}")
            else:
                a(f"s_bfe_u32 s{sT1}, s{sT3}, {i | (w << 16):#x}\ns_lshl_b32 s{sT1}, s{sT1}, {b}\ns_add_u32 s{dst}, s{sT1}, s{dst if n else sBASE}")

    def slot(i): return V(RING + 4*i, 4) if i < 32 else A(4*(i - 32), 4)

    def kv_load(sl, r, base, tg):
        isv = r >= 4
        if XOR:
            if tval[r%4]: a(f"s_xor_b32 s{sXT}, s{base}, {tval[r%4]}")
            a(f"v_xor_b32 v{vAX}, s{sXT if tval[r%4] else base}, v{vOV if isv else vOK}")
            a.vm(f"buffer_load_dwordx4 {slot(sl)}, v{vAX}, {R(rV if isv else rK)}, s{sBASE} offen nt", tg)
            return
        a.vm(f"buffer_load_dwordx4 {slot(sl)}, v{(vOV if isv else vOK) + tidx[r%4]}, {R(rV if isv else rK)}, s{base} offen offset:{timm[r%4]} nt", tg)

    def s_load_(sl, t, tg):
        if XOR:
            if tval[t]: a(f"s_xor_b32 s{sXT}, s{sU0}, {tval[t]}")
            a(f"v_xor_b32 v{vAX}, s{sXT if tval[t] else sU0}, v{vOS}")
            a.vm(f"buffer_load_dwordx4 {slot(sl)}, v{vAX}, {R(rS)}, s{sBASE} offen nt", tg)
            return
        a.vm(f"buffer_load_dwordx4 {slot(sl)}, v{vOS + tidx[t]}, {R(rS)}, s{sU0} offen offset:{timm[t]} nt", tg)

    def use(isv):
        r, v = (rV, vOV) if isv else (rK, vOK)
        a(f"s_mov_b64 s[{rS}:{rS+1}], s[{r}:{r+1}]\nv_mov_b32 v{vOS}, v{v}\nv_mov_b32 v{vOS+1}, v{v+1}")

    def k_mfma(sl, c):
        d = vS2 if (c >> 2) & 1 else vS
        a(f"v_mfma_f32_16x16x32_bf16 {V(d,4)}, {slot(sl)}, {V(vBQ+4*(c&3),4)}, {V(d,4) if c & 3 else '0'}")

    def k_post(u, off):
        quadsum(vSC, vS2 if u & 1 else vS, vU0)
        a(f"v_max_f32 v{vMX}, v{vMX}, v{vSC}\nds_write_b32 v{vSA}, v{vSC} offset:{off}")

    def allmax(x):
        a(f"v_max_f32_dpp v{vU0}, v{x}, v{x} row_ror:4 {DPP}")
        a(f"v_max_f32_dpp v{vU0}, v{vU0}, v{vU0} row_ror:8 {DPP}")
        a(f"v_mov_b32 v{vU1}, v{vU0}\nv_permlane16_swap_b32 v{vU0}, v{vU1}\nv_max_f32 v{vU0}, v{vU0}, v{vU1}")
        a(f"v_mov_b32 v{vU1}, v{vU0}\nv_permlane32_swap_b32 v{vU0}, v{vU1}\nv_max_f32 v{vU0}, v{vU0}, v{vU1}")

    def claim():
        setexec(1)
        if "2x" in ABL: a(f"global_atomic_add v{vCA}, v{vONE}, s[{pWS}:{pWS+1}] offset:128 sc1")
        a(f"global_atomic_add v{vTK}, v{vCA}, v{vONE}, s[{pWS}:{pWS+1}] sc0 sc1")
        setexec(FULL)

    rF, sFO, sYS, sCXO, sMB = rW, 44, 45, 46, 47
    vFD, vFT, vAO, vAY, vAW, vAG, vAF, vCX, vRO = 20, 24, 28, 30, 31, 32, 33, 34, 35
    vWT, vBU, vY, vMS, vGS2, vG2 = 128, 160, 112, 192, 224, 232
    def fin_scalar():
        a(f"s_sub_u32 s{sT0}, s{sP}, 3\ns_and_b32 s{sT1}, s{sP}, 3\ns_cmp_lt_u32 s{sT0}, 4")
        a(f"s_cselect_b64 s[{rF}:{rF+1}], s[{pBWO}:{pBWO+1}], s[{pAWO}:{pAWO+1}]\ns_cselect_b32 s{sT0}, s{sT0}, s{sT1}")
        a(f"s_cselect_b32 s{sEND}, {NDYN - XB}, {NDYN - 1}")
        a(f"s_cselect_b32 s{sYS}, {WS_YB - WS_YA}, 0\ns_cselect_b32 s{sCXO}, {WS_SIZE}, 0\ns_add_u32 s{sYS}, s{sYS}, {WS_YA}\ns_add_u32 s{sCXO}, s{sCXO}, {WS_CX}")
        a(f"s_mov_b32 s{rF+2}, {4*MB}\ns_mov_b32 s{rF+3}, 0x20000")
        saddr(sFO, 0, (sH, 0, 0, 17), (sW, 0, 0, 15), (sT0, 0, 0, 8))
        saddr(sYS, f"s{sYS}", (sT0, 0, 0, 16), (sW, 1, 0, 15), (sH, 0, 0, 8), (sW, 0, 1, 7))
        saddr(sCXO, f"s{sCXO}", (sH, 0, 0, 11), (sW, 0, 0, 9))
        srd(rOUT, pOUT, 8192)
    def fin_dma(n, offs):
        if n % 4 == 0:
            a(f"s_lshl_b32 s{sT3}, s{sW}, 13\ns_add_u32 s{sT3}, s{sT3}, {LDS_W + 1024*n}\ns_mov_b32 m0, s{sT3}")
            if n: a(f"s_add_u32 s{sFO}, s{sFO}, 16384")
        a.vm(f"buffer_load_dwordx4 v{offs+n%4}, {R(rF)}, s{sFO} offen offset:{(n%4)*1024} nt lds", "FW")
    def fin_vec1():
        a(f"v_lshlrev_b32 v{vT0}, 2, v{vG}\nv_xor_b32 v{vT0}, v{vT0}, v{vJ}")
        for i in range(4):
            a(f"v_xor_b32 v{vT1}, {i}, v{vT0}\nv_lshlrev_b32 v{vT1}, 4, v{vT1}\nv_lshl_add_u32 v{vFD+i}, v{vG}, 10, v{vT1}")
            if i: a(f"v_add_u32 v{vFD+i}, {i*3072}, v{vFD+i}")
        saddr(sMB, WS_OP, (sH, 0, 0, 15), (sB, 0, 0, 13))
        a(f"s_mul_i32 s{sT2}, s{sB}, 320\ns_add_u32 s{sT2}, s{sT2}, {LDS_O}")
        a(f"v_lshlrev_b32 v{vT0}, 6, v{vG}\nv_lshl_add_u32 v{vT0}, v{vJ}, 1, v{vT0}\nv_add_u32 v{vAW}, s{sT2}, v{vT0}")
    def fin_vec2():
        vaddr(vT0, vT1, (vG, 0, 0, 11), (vL, 2, 2, 8), (vL, 2, 2, 6), (vL, 4, 1, 5), (vL, 1, 1, 4), (vL, 0, 1, 3))
        a(f"s_lshl_b32 s{sT2}, s{sW}, 6\ns_add_u32 s{sT2}, s{sT2}, {LDS_W}\nv_xor_b32 v{vFT}, s{sT2}, v{vT0}")
        for i in range(1, 4): a(f"v_xor_b32 v{vFT+i}, {16*i}, v{vFT}")
        a(f"v_and_b32 v{vT0}, 3, v{vJ}\nv_lshrrev_b32 v{vT1}, 2, v{vJ}\nv_lshlrev_b32 v{vT2}, 4, v{vG}\nv_add_u32 v{vT2}, {LDS_O}, v{vT2}\ns_movk_i32 s{sT0}, 320")
        for u in range(2):
            a(f"v_cmp_eq_u32 vcc, {u}, v{vT1}\nv_cndmask_b32 v{vAO+u}, 4, v{vT0}, vcc\nv_mad_u32_u24 v{vAO+u}, v{vAO+u}, s{sT0}, v{vT2}")
        a(f"v_lshlrev_b32 v{vT1}, 2, v{vL}\nv_add_u32 v{vT1}, {LDS_O + 4*320}, v{vT1}\nv_mov_b32 v{vT2}, 0\nds_write_b32 v{vT1}, v{vT2}")
    def fin_vec3():
        vaddr(vAY, vT1, (vJ, 0, 0, 4), (vG, 0, 0, 13))
        saddr(sT0, 0, (sH, 0, 0, 13), (sW, 0, 0, 6))
        vaddr(vAG, vT1, (vL, 2, 0, 8), (vL, 0, 2, 4))
        a(f"v_add_u32 v{vAG}, s{sT0}, v{vAG}")
        saddr(sT0, 0, (sH, 2, 0, 7), (sW, 0, 0, 5), (sH, 0, 2, 3))
        vaddr(vAF, vT1, (vL, 0, 2, 11), (vG, 0, 0, 1))
        a(f"v_add_u32 v{vAF}, s{sT0}, v{vAF}")
        a(f"v_and_b32 v{vT1}, 31, v{vL}\nv_lshlrev_b32 v{vCX}, 4, v{vT1}\ns_mul_i32 s{sT2}, s{sW}, 320\ns_add_u32 s{sT2}, s{sT2}, {LDS_O}\nv_lshl_add_u32 v{vRO}, v{vT1}, 3, s{sT2}")

    def softmax_part():
        quadsum(vSC, vS, vU0)
        skip = a.label("nomax")
        a(f"v_fma_f32 v{vP}, v{vSC}, s{sC}, -v{vMC}\nv_cmp_lt_f32 vcc, 0, v{vP}\ns_cbranch_vccz {skip}")
        a(f"v_mul_f32 v{vSC}, s{sC}, v{vSC}")
        allmax(vSC)
        a(f"v_max_f32 v{vU0}, v{vU0}, v{vMC}")
        a(f"v_sub_f32 v{vU1}, v{vMC}, v{vU0}\nv_exp_f32 v{vU1}, v{vU1}\nv_mov_b32 v{vMC}, v{vU0}\nv_sub_f32 v{vP}, v{vSC}, v{vU0}")
        a(f"v_mul_f32 v{vLS}, v{vLS}, v{vU1}")
        for r in range(4):
            a(f"v_mul_f32 v{vO+r}, v{vO+r}, v{vU1}")
        a(f"{skip}:")
        a(f"v_exp_f32 v{vP}, v{vP}")
        a(f"v_cvt_pk_bf16_f32 v{vU0}, v{vP}, v{vP}\nv_add_f32 v{vLS}, v{vLS}, v{vP}")
        for t in range(4):
            for r in range(4):
                a(f"v_and_b32_dpp v{vPB+4*t+r}, v{vU0}, v{vMASK+r} row_newbcast:{4*t} {DPP}")

    def consume(sl, r, filler=None):
        if r < 4:
            c = V(vS, 4) if r else "0"
            a(f"v_mfma_f32_16x16x32_bf16 {V(vS,4)}, {slot(sl)}, {V(vBQ+4*r,4)}, {c}")
            if r == 3:
                if filler: filler()
                softmax_part()
        else:
            a(f"v_mfma_f32_16x16x32_bf16 {V(vO,4)}, {slot(sl)}, {V(vPB+4*(r-4),4)}, {V(vO,4)}")

    def q_poll():
        for i in range(2):
            a.vm(f"buffer_load_dwordx4 {V(vQ+4*i,4)}, v{vOQ}, {R(rWS)}, s{sQO} offen offset:{16*i} sc1", "Q")

    class Start:
        def __init__(self, pu): self.pu, self.n = pu, 0
        def load(self):
            n = self.n; self.n += 1
            if n == 0: unit_addr(sU0)
            kv_load(n % (8*self.pu), n % 4, sU0, f"P{n}")
            if n % 4 == 3:
                advance(n)
                unit_addr(sU0)
        def paced(self, depth):
            if f"P{self.n - depth}" in a.q: a.wait(f"P{self.n - depth}")
            self.load()
        def until_q(self, pollat):
            while self.n < pollat: self.paced(DP)
            q_poll()
            while self.n < min(pollat + DP - 1, 8*self.pu): self.paced(DP)
        def finish(self, hook=None):
            if "Q" in a.q: a.wait("Q")
            chk, ok = a.label("qcheck"), a.label("qok")
            a(f"{chk}:")
            untag(list(range(vQ, vQ+8)), vT0)
            a(f"s_cbranch_vccz {ok}" if not ({"QPst", "Q"} & set(ABL)) else f"s_branch {ok}")
            saved = list(a.q)
            q_poll()
            a("s_waitcnt vmcnt(0)")
            spin_guard(chk)
            a.q = saved
            a(f"{ok}:")
            stamp(2)
            def operands(q, bq):
                for r in range(4):
                    a(f"v_cvt_pk_bf16_f32 v{q+r}, v{q+2*r}, v{q+2*r+1}")
                for t in range(4):
                    m = 0x000f000f << (4*t)
                    a(f"s_mov_b32 vcc_lo, {m:#x}\ns_mov_b32 vcc_hi, {m:#x}")
                    for r in range(4):
                        a(f"v_cndmask_b32 v{bq+4*t+r}, 0, v{q+r}, vcc")
            operands(vQ, vBQ)
            N = 8 * self.pu
            a(f"v_mov_b32 v{vMX}, 0xff7f0000\ns_lshl_b32 s{sT2}, s{sW}, 14\ns_add_u32 s{sT2}, s{sT2}, {LDS_S}\nv_lshl_add_u32 v{vSA}, v{vL}, 2, s{sT2}")
            first, todo = self.n, N + D - self.n
            for c in range(N):
                want = first + (todo * (c + 1) + N - 1) // N
                while self.n < want and self.n - N < c:
                    self.paced(DP if self.n < N else max(D, DP - 1))
                if f"P{c}" in a.q: a.wait(f"P{c}")
                k_mfma(c, c)
                if c % 4 == 2 and c > 4: k_post(c // 4 - 1, 256 * (c // 4 - 1))
                if hook: hook(c)
                if N - c in (24, 18, 12, 6): {24: fin_scalar, 18: fin_vec1, 12: fin_vec2, 6: fin_vec3}[N - c]()
            while self.n < N + D: self.paced(DP)
            nu = NS - 1
            assert (nu - N // 4) % 2 == 0 and nu - N // 4 >= 4
            a(f"v_add_u32 v{vSA}, {256 * (N // 4 - 1)}, v{vSA}")
            a(f"s_mov_b32 s{sCNT}, {(nu - N // 4) // 2}\ns_mov_b32 s{sU1}, {nu}")
            a(f"s_mov_b32 s{rS+2}, {128*MB}\ns_mov_b32 s{rS+3}, 0x20000")
            use(False)
            stamp(3)

    saddr(sT0, -3 << 17, (2, 0, 3, 21), (sH, 3, 0, 19), (sP, 0, 0, 17), (sW, 0, 0, 12))
    vaddr(vT0, vT1, (vL, 0, 5, 7), (vL, 5, 0, 15))
    a(f"s_mov_b32 s{rW+2}, {16*MB}\ns_mov_b32 s{rW+3}, 0x20000\ns_waitcnt lgkmcnt(0)\ns_mov_b64 s[{rW}:{rW+1}], s[{pCK}:{pCK+1}]")
    soft(0)
    for i, step in enumerate((16384, 49152, 16384, 0)):
        a.vm(f"buffer_load_dword v{vX+i}, v{vT0}, {R(rW)}, s{sT0} offen", "T")
        if step: a(f"s_add_u32 s{sT0}, s{sT0}, {step}")
    consts(); kv_setup(); srd(rK, pK, 128*MB); srd(rV, pV, 128*MB); masks(); kv_late()
    soft(1); soft_flush()
    st = Start(PU)
    for _ in range(DP): st.load()
    stamp(1)
    st.until_q(POLLP)
    take_tag()
    st.finish()

    a("L_bloop:")
    for r in range(8):
        n = r + D
        a(f"s_waitcnt vmcnt({D-1})")
        s_load_(n % 8, n % 4, "loop")
        k_mfma(r, r)
        if n % 4 == 3:
            advance(n)
            if n % 8 == 7:
                skip = a.label("stayk")
                a(f"s_cmp_lg_u32 s{sCNT}, 1\ns_cbranch_scc1 {skip}")
                use(True)
                a(f"s_mul_i32 s{sT1}, s{sU1}, 7\ns_sub_u32 s{sTK}, s{sTK}, s{sT1}")
                a(f"{skip}:")
            unit_addr(sU0)
        if r % 4 == 1: k_post(r // 4 + 1, 256 * (r // 4))
    a(f"v_add_u32 v{vSA}, 512, v{vSA}")
    a(f"s_sub_u32 s{sCNT}, s{sCNT}, 1\ns_cmp_lg_u32 s{sCNT}, 0\ns_cbranch_scc1 L_bloop")
    def v_addr(n):
        skip = a.label("stayv")
        advance(n)
        a(f"s_cmp_lg_u32 s{sCNT}, 1\ns_cbranch_scc1 {skip}")
        use(n % 8 != 7)
        if n % 8 == 7: claim()
        a(f"s_add_u32 s{sTK}, s{sP}, {7*(NS-1)}")
        a(f"{skip}:")
        unit_addr(sU0)
    for n in range(D, DV):
        s_load_(n, n % 4, "loop")
        assert n % 4 != 3
    k_post(1, 0)
    a(f"v_mov_b32 v{vP}, 0xff7f0000\nds_write_b32 v{vSA}, v{vP} offset:256")
    a(f"s_lshl_b32 s{sT2}, s{sW}, 14\ns_add_u32 s{sT2}, s{sT2}, {LDS_S}\nv_lshl_add_u32 v{vSA}, v{vL}, 2, s{sT2}")
    a(f"ds_read_b32 v{vSN}, v{vSA}\nds_read_b32 v{vSN+1}, v{vSA} offset:256")
    a(f"v_mul_f32 v{vMX}, s{sC}, v{vMX}")
    allmax(vMX)
    a(f"v_mov_b32 v{vMC}, v{vU0}\ns_lshr_b32 s{sCNT}, s{sU1}, 1")
    stamp(5)
    def p_next(i):
        a(f"s_waitcnt lgkmcnt(1)\nv_fma_f32 v{vP}, v{vSN+i}, s{sC}, -v{vMC}\nv_exp_f32 v{vP}, v{vP}")
        a(f"ds_read_b32 v{vSN+i}, v{vSA} offset:{512 + 256*i}")
        a(f"v_cvt_pk_bf16_f32 v{vPN+i}, v{vP}, v{vP}\nv_add_f32 v{vLS}, v{vLS}, v{vP}")
    p_next(0)
    a("L_vloop:")
    for r in range(8):
        n = r + DV
        pb = vPB + 8 + 4*(r & 1)
        for q in range(4):
            a(f"v_and_b32_dpp v{pb+q}, v{vPN + (r >> 2)}, v{vMASK+q} row_newbcast:{4*(r&3)} {DPP}")
        a(f"s_waitcnt vmcnt({DV-1})")
        s_load_(n % 8, n % 4, "loop")
        a(f"v_mfma_f32_16x16x32_bf16 {V(vO,4)}, {slot(r)}, {V(pb,4)}, {V(vO,4)}")
        if n % 4 == 3: v_addr(n)
        if r == 1: p_next(1)
        if r == 5:
            a(f"v_add_u32 v{vSA}, 512, v{vSA}")
            p_next(0)
    a(f"s_sub_u32 s{sCNT}, s{sCNT}, 1\ns_cmp_lg_u32 s{sCNT}, 0\ns_cbranch_scc1 L_vloop")
    stamp(6)
    for n in range(DV, D2): kv_load(n, n, sU0, "loop")
    a("L_dloop:")
    for half in range(2):
        for r in range(8):
            a(f"s_waitcnt vmcnt(7)")
            if r == 0:
                skip = a.label("noclaim")
                a(f"v_readfirstlane_b32 s{sIT}, v{vTK}\nv_mov_b32 v{vTK}, {NDYN}")
                a(f"s_cmp_ge_u32 s{sIT}, {NDYN}\ns_cbranch_scc1 L_last{half}\ns_add_u32 s{sTK}, s{sIT}, {7*NS}")
                unit_addr(sU0)
                a(f"s_cmp_ge_u32 s{sIT}, s{sEND}\ns_cbranch_scc1 {skip}")
                claim()
                a(f"{skip}:")
            kv_load((half*8 + 8 + r) % 16, r, sU0, "loop")
            consume(half*8 + r, r)
    a("s_branch L_dloop")
    def cx_load():
        a.vm(f"buffer_load_dwordx4 {V(vGS2,4)}, v{vCX}, {R(rWS)}, s{sCXO} offen sc1", "CX")
    for half in (1, 0):
        a(f"L_last{half}:")
        a.q = [f"R{r}" for r in range(1, 8)]
        cx_load()
        for r in range(8):
            if r: a.wait(f"R{r}")
            fin_dma(r, vFD)
            consume(half*8 + r, r)
            if r == 4:
                a(f"v_add_f32_dpp v{vLS}, v{vLS}, v{vLS} row_ror:8 {DPP}")
                a(f"v_add_f32_dpp v{vLS}, v{vLS}, v{vLS} row_ror:4 {DPP}")
                a(f"v_mov_b32 v{vU1}, v{vLS}")
                a(f"v_permlane16_swap_b32 v{vLS}, v{vU1}\nv_add_f32 v{vLS}, v{vLS}, v{vU1}\nv_mov_b32 v{vU1}, v{vLS}")
                a(f"v_permlane32_swap_b32 v{vLS}, v{vU1}\nv_add_f32 v{vLS}, v{vLS}, v{vU1}")
                a(f"v_and_b32 v{vU1}, s{sHI24}, v{vMC}\nv_sub_f32 v{vU1}, v{vMC}, v{vU1}")
                a(f"s_mov_b32 vcc_lo, 0xff00ff00\ns_mov_b32 vcc_hi, 0xff00ff00")
        if half: a("s_branch L_bdone")
    a("L_bdone:")
    a(f"v_cndmask_b32 v{vO}, v{vO}, v{vMC}, vcc\nv_cndmask_b32 v{vO+1}, v{vO+1}, v{vLS}, vcc\nv_cndmask_b32 v{vO+2}, v{vO+2}, v{vU1}, vcc")
    tag([vO+3, vO, vO+1, vO+2])
    setexec(0x00ff00ff00ff01ff)
    a.vm(f"buffer_store_dwordx4 {V(vO,4)}, v{vOP}, {R(rWS)}, s{sMSG} offen sc1", "OPst")
    setexec(FULL)
    tsoft(0)
    stamp(4)
    a(f"s_cmp_lt_u32 s{sP}, 3\ns_cbranch_scc1 L_ctx")
    vFA, vFB, vOO = vSC, vP, 104
    sPEND, sTODO, sID = sIT, sU1, 4
    def m_poll(d):
        a(f"s_and_b32 s{sTODO}, s{sTODO}, s{sPEND}\ns_cselect_b32 s{sTODO}, s{sTODO}, s{sPEND}\ns_ff1_i32_b32 s{sID+d}, s{sTODO}\ns_bitset0_b32 s{sTODO}, s{sID+d}")
        a(f"s_lshl_b32 s{sT0}, s{sID+d}, 10\ns_add_u32 s{sT0}, s{sT0}, s{sMB}")
        a(f"buffer_load_dwordx4 {V(vMS+4*d,4)}, v{vOP}, {R(rWS)}, s{sT0} offen sc1")
    a(f"s_mov_b32 s{sPEND}, 0x7f\ns_bitset0_b32 s{sPEND}, s{sP}\ns_mov_b32 s{sTODO}, 0")
    for d in range(K1 - 1): m_poll(d)
    for r in range(4): a(f"v_xor_b32 v{vOO+r}, s{sTAG}, v{vO+r}")
    a("L_hop1poll:")
    for d in range(K1):
        nxt = a.label("mnext")
        m_poll((d + K1 - 1) % K1)
        a(f"s_waitcnt vmcnt({K1-1})")
        x = vMS + 4*d
        untag(list(range(x, x+4)), vT0)
        a(f"v_add_f32 v{vT2}, v{x}, v{x+2}\nv_max_f32 v{vT1}, v{vMC}, v{vT2}\ns_cbranch_vccnz {nxt}\ns_bitcmp1_b32 s{sPEND}, s{sID+d}\ns_cbranch_scc0 {nxt}")
        a(f"v_sub_f32 v{vFA}, v{vMC}, v{vT1}\nv_sub_f32 v{vFB}, v{vT2}, v{vT1}\nv_exp_f32 v{vFA}, v{vFA}\nv_exp_f32 v{vFB}, v{vFB}")
        a(f"v_mov_b32 v{vMC}, v{vT1}\ns_bitset0_b32 s{sPEND}, s{sID+d}")
        for r in (1, 0, 2, 3):
            a(f"v_mul_f32_dpp v{vOO+r}, v{vFA}, v{vOO+r} row_newbcast:8 {DPP}")
        for r in (1, 0, 2, 3):
            a(f"v_fmac_f32_dpp v{vOO+r}, v{vFB}, v{x+r} row_newbcast:8 {DPP}")
        a(f"s_cmp_eq_u32 s{sPEND}, 0\ns_cbranch_scc1 L_hop1ok")
        a(f"{nxt}:")
    spin_guard("L_hop1poll")
    a("L_ctx:")
    a("s_waitcnt vmcnt(1)")
    a("L_ctxcheck:")
    untag(list(range(vGS2, vGS2+4)), vT0)
    a("s_cbranch_vccz L_ctxok")
    cx_load()
    a("s_waitcnt vmcnt(0)")
    spin_guard("L_ctxcheck")
    a("L_ctxok:")
    a(f"v_cvt_pk_bf16_f32 v{vGS2}, v{vGS2}, v{vGS2+1}\nv_cvt_pk_bf16_f32 v{vGS2+1}, v{vGS2+2}, v{vGS2+3}")
    a(f"ds_write_b64 v{vRO}, {V(vGS2,2)}\ns_branch L_final")
    a("L_hop1ok:")
    tsoft(1)
    a(f"v_rcp_f32 v{vFA}, v{vOO+1}")
    for r in range(4):
        a(f"v_mul_f32_dpp v{vOO+r}, v{vFA}, v{vOO+r} row_newbcast:8 {DPP}")
    a(f"v_cvt_pk_bf16_f32 v{vOO}, v{vOO}, v{vOO+1}\nv_cvt_pk_bf16_f32 v{vOO+2}, v{vOO+2}, v{vOO+3}")
    setexec(0x00ff00ff00ff00ff)
    a(f"ds_write_b16 v{vAW}, v{vOO}\nds_write_b16_d16_hi v{vAW}, v{vOO} offset:16")
    a(f"ds_write_b16 v{vAW}, v{vOO+2} offset:32\nds_write_b16_d16_hi v{vAW}, v{vOO+2} offset:48")
    setexec(FULL)
    a("L_final:")
    a("s_waitcnt lgkmcnt(0)\ns_barrier")
    tsoft(2)
    def f_reads(i):
        u, k = i >> 2, i & 3
        for pi in range(2):
            a(f"ds_read_b64_tr_b16 {V(vWT+4*i+2*pi,2)}, v{vFT+2*u+pi} offset:{8192*k+1024*pi}")
        a(f"ds_read_b128 {V(vBU+4*i,4)}, v{vAO+u} offset:{64*k}")
    for i in range(4): f_reads(i)
    for i in range(8):
        if i + 4 < 8: f_reads(i + 4)
        a(f"s_waitcnt lgkmcnt({3 * min(4, 7 - i)})")
        a(f"v_mfma_f32_16x16x32_bf16 {V(vY,4)}, {V(vWT+4*i,4)}, {V(vBU+4*i,4)}, {V(vY,4) if i else '0'}")
    a(f"s_cmp_eq_u32 s{sP}, 0\ns_cselect_b32 s{sT0}, 0, {WS_YB - WS_YA}\ns_cselect_b32 s{sT3}, 0, 1024\ns_add_u32 s{sT0}, s{sT0}, {WS_YA}\ns_add_u32 s{sT1}, s{sT0}, 4096")
    setexec(0x00ff00ff00ff00ff)
    tag(range(vY, vY+4))
    a.vm(f"buffer_store_dwordx4 {V(vY,4)}, v{vAY}, {R(rWS)}, s{sYS} offen sc1", "Yst")
    setexec(FULL)
    tsoft(3)
    stamp(11)
    a(f"s_sub_u32 s{sT2}, s{sP}, 1\ns_cmp_lt_u32 s{sT2}, 6\ns_cbranch_scc1 L_done")
    a("L_hop2:")
    for i in range(2):
        a(f"buffer_load_dwordx4 {V(vGS2+4*i,4)}, v{vAG}, {R(rWS)}, s{sT1 if i else sT0} offen sc1")
    a("s_waitcnt vmcnt(0)")
    untag(list(range(vGS2, vGS2+8)), vT0)
    for r in range(4):
        a(f"v_add_f32 v{vG2+r}, v{vGS2+r}, v{vGS2+4+r}")
    a("s_cbranch_vccz L_hop2ok")
    spin_guard("L_hop2")
    a("L_hop2ok:")
    tsoft(4)
    a(f"v_permlane16_swap_b32 v{vG2}, v{vG2+1}\nv_permlane16_swap_b32 v{vG2+2}, v{vG2+3}")
    a(f"v_add_f32 v{vG2}, v{vG2}, v{vG2+1}\nv_add_f32 v{vG2+2}, v{vG2+2}, v{vG2+3}")
    a(f"v_permlane32_swap_b32 v{vG2}, v{vG2+2}\nv_add_f32 v{vG2}, v{vG2}, v{vG2+2}")
    a(f"v_add_f32_dpp v{vG2}, v{vG2}, v{vG2} row_ror:8 {DPP}\nv_add_f32_dpp v{vG2}, v{vG2}, v{vG2} row_ror:4 {DPP}")
    a(f"v_cvt_pk_bf16_f32 v{vG2}, v{vG2}, v{vG2}")
    setexec(0x000f000f000f000f)
    a(f"buffer_store_short v{vG2}, v{vAF}, {R(rOUT)}, s{sT3} offen")
    tsoft(5)
    stamp(13)
    a(f"s_or_b32 s{sT0}, s2, s{sW}\ns_cmp_lg_u32 s{sT0}, 0\ns_cbranch_scc1 L_done\nv_mov_b32 v{vT0}, 0")
    setexec(1)
    a(f"buffer_store_dword v{vTAG}, v{vT0}, {R(rWS)}, 0 offen")
    a("L_done:")
    tflush()
    a("L_end:\ns_endpgm")

    a("L_qp:")
    a.q = []
    a(f"v_lshlrev_b32 v{vT0}, 18, v{vG}\nv_lshl_add_u32 v{vOW}, v{vJ}, 4, v{vT0}")
    a(f"v_lshrrev_b32 v{vT1}, 3, v{vJ}\nv_lshlrev_b32 v{vT1}, 10, v{vT1}\nv_lshl_add_u32 v{vOX}, v{vG}, 6, v{vT1}")
    a(f"s_cmp_eq_u32 s{sP}, 0\ns_cselect_b32 s{sHJ}, {XQ[0]}, {XQ[1]}\ns_xor_b32 s{sHJ}, s{sHJ}, s{sH}")
    a(f"s_lshl_b32 s{sU1}, s{sW}, 8\ns_lshl_b32 s{sWO}, s{sW}, 20\ns_lshl_b32 s{sT2}, s{sHJ}, 8\ns_add_u32 s{sWO}, s{sWO}, s{sT2}")
    a(f"s_mov_b32 s{rW+2}, {4*MB}\ns_mov_b32 s{rW+3}, 0x20000\ns_mov_b32 s{rX+2}, 4096\ns_mov_b32 s{rX+3}, 0x20000")
    a(f"s_cmp_eq_u32 s{sP}, 0\ns_waitcnt lgkmcnt(0)")
    a(f"s_cselect_b64 s[{rW}:{rW+1}], s[{pBWQ}:{pBWQ+1}], s[{pAWQ}:{pAWQ+1}]\ns_cselect_b64 s[{rX}:{rX+1}], s[{pBX}:{pBX+1}], s[{pAX}:{pAX+1}]")
    def w_load(t):
        a.vm(f"buffer_load_dwordx4 {A(A1+4*t,4)}, v{vOW}, {R(rW)}, s{sWO} offen nt", f"W{t}")
        a(f"s_add_u32 s{sWO}, s{sWO}, 8192")
    def x_load(i):
        for u in range(2):
            a.vm(f"buffer_load_dwordx4 {V(vX+16*u+4*i,4)}, v{vOX}, {R(rX)}, s{sU1} offen offset:{2048*u+16*i}", f"X{i}")
    soft(0)
    w_load(0); w_load(1); x_load(0)
    for t in range(2, 8): w_load(t)
    consts(); masks()
    for i in range(1, 4): x_load(i)
    saddr(sT0, WS_CT, (sHJ, 0, 0, 10), (sW, 0, 0, 8))
    a(f"v_mov_b32 v{vTK}, 0\ns_cmp_eq_u32 s{sP}, 0\ns_cselect_b32 s{sT2}, s{sT0}, {WS_SIZE}")
    setexec(1)
    a.vm(f"buffer_store_dword v{vTK}, v{vTK}, {R(rWS)}, s{sT2} offen sc1", "INIT")
    setexec(FULL)
    st = Start(PUJ)
    todo = [lambda t=t: w_load(t) for t in range(8, 32)] + [lambda: None] * (8 - DP) + [st.load] * DP
    late = {4: kv_setup, 8: lambda: (srd(rK, pK, 128*MB), srd(rV, pV, 128*MB)), 12: kv_late}
    a(f"s_mov_b32 s{sSELLO}, 0x01000100\ns_mov_b32 s{sSELHI}, 0x03020302")
    for t in range(32):
        if f"X{t//8}" in a.q: a.wait(f"X{t//8}")
        if t == 0: soft(1); soft_flush()
        if f"W{t}" in a.q: a.wait(f"W{t}")
        todo.pop(0)()
        if t in late: late[t]()
        for u in range(2):
            x = vX + 16*u + (t >> 1)
            a(f"v_perm_b32 v{vT0+u}, v{x}, v{x}, s{sSELHI if t & 1 else sSELLO}")
        for u in range(2):
            for r in range(4):
                a(f"v_and_b32 v{vB+4*u+r}, v{vT0+u}, v{vMASK+r}")
        for u in range(2):
            c = V(vACC+4*u, 4) if t else "0"
            a(f"v_mfma_f32_16x16x32_bf16 {V(vACC+4*u,4)}, {A(A1+4*t,4)}, {V(vB+4*u,4)}, {c}")
    a(f"s_lshl_b32 s{sT2}, s{sW}, 11")
    a(f"v_lshrrev_b32 v{vT0}, 3, v{vJ}\nv_lshlrev_b32 v{vT0}, 9, v{vT0}\nv_lshl_add_u32 v{vT0}, v{vG}, 7, v{vT0}")
    a(f"v_and_b32 v{vT1}, 7, v{vJ}\nv_lshl_add_u32 v{vT0}, v{vT1}, 2, v{vT0}\nv_add_u32 v{vT0}, s{sT2}, v{vT0}")
    for u in range(2):
        for r in range(4):
            a(f"ds_write_b32 v{vT0}, v{vACC+4*u+r} offset:{u*1024+r*32}")
    a(f"s_lshl_b32 s{sT2}, s{sW}, 9\nv_and_b32 v{vT1}, 31, v{vL}\nv_lshl_add_u32 v{vT1}, v{vT1}, 4, s{sT2}")
    take_tag()
    a("s_barrier")
    for p in range(4):
        a(f"ds_read_b128 {V(vX+4*p,4)}, v{vT1} offset:{p*2048}")
    saddr(sT0, WS_QP, (sHJ, 0, 0, 12), (sP, 0, 0, 11))
    a("s_waitcnt lgkmcnt(0)")
    for r in range(4):
        a(f"v_add_f32 v{vX+r}, v{vX+r}, v{vX+4+r}\nv_add_f32 v{vX+8+r}, v{vX+8+r}, v{vX+12+r}")
    for r in range(4):
        a(f"v_add_f32 v{vX+r}, v{vX+r}, v{vX+8+r}")
    tag_bf16(range(vX, vX+4))
    assert "INIT" not in a.q
    setexec(0xffffffff)
    a.vm(f"buffer_store_dwordx4 {V(vX,4)}, v{vT1}, {R(rWS)}, s{sT0} offen sc1", "QPst")
    setexec(FULL)
    stamp(1)
    st.until_q(POLLQ)
    st.finish()
    a("s_branch L_bloop")

    a("L_ql:")
    a.q = []
    vOU, vOA, vOL, sUK, sQA, sQL = vOW, vOX, vTK, sWO, sCKO, sSLOT
    vQA, vD, vPK, vR = 20, 28, 44, 60
    a(f"v_lshrrev_b32 v{vT0}, 2, v{vJ}\nv_and_b32 v{vT1}, 3, v{vJ}")
    a(f"v_lshlrev_b32 v{vOL}, 6, v{vG}\nv_lshl_add_u32 v{vOL}, v{vT1}, 4, v{vOL}\nv_lshl_add_u32 v{vOU}, v{vT0}, 18, v{vOL}")
    a(f"s_lshl_b32 s{sUK}, s{sW}, 20\ns_lshl_b32 s{sT2}, s{sH}, 8\ns_add_u32 s{sUK}, s{sUK}, s{sT2}")
    a(f"s_mov_b32 s{rUK+2}, {4*MB}\ns_mov_b32 s{rUK+3}, 0x20000\ns_waitcnt lgkmcnt(0)\ns_mov_b64 s[{rUK}:{rUK+1}], s[{pUK}:{pUK+1}]")
    def uk_load(t):
        if f"UK{t-8}" in a.q: a.wait(f"UK{t-8}")
        a.vm(f"buffer_load_dwordx4 {A(A1+4*t,4)}, v{vOU}, {R(rUK)}, s{sUK} offen nt", f"UK{t}")
        a(f"s_add_u32 s{sUK}, s{sUK}, 8192")
    soft(0)
    for t in range(8): uk_load(t)
    a(f"v_lshlrev_b32 v{vOA}, 1, v{vOL}\nv_lshl_add_u32 v{vOA}, v{vT0}, 9, v{vOA}")
    a(f"v_lshl_add_u32 v{vOL}, v{vT0}, 15, v{vOL}")
    consts()
    soft(1); soft_flush()
    saddr(sQA, WS_QP + 2048, (sH, 0, 0, 12))
    saddr(sQL, WS_QL, (sH, 0, 0, 10), (sW, 0, 0, 8))
    late = {12: masks, 16: kv_setup, 20: lambda: (srd(rK, pK, 128*MB), srd(rV, pV, 128*MB)), 24: kv_late}
    for t in range(8, 32):
        uk_load(t)
        if t in late: late[t]()
    take_tag(True)
    st = Start(PUJ)
    for t in range(32 - DP, 32):
        a.wait(f"UK{t}"); st.load()
    def qa_poll():
        for i in range(2):
            a.vm(f"buffer_load_dwordx4 {V(vQA+4*i,4)}, v{vOA}, {R(rWS)}, s{sQA} offen offset:{16*i} sc1", "QA")
    while st.n < POLLU: st.paced(DP)
    qa_poll()
    while st.n < POLLU + DP - 1: st.paced(DP)
    a.wait("QA")
    chk, ok = a.label("qacheck"), a.label("qaok")
    a(f"{chk}:")
    untag(list(range(vQA, vQA+8)), vT0)
    a(f"s_cbranch_vccz {ok}" if not ({"QPst", "Q"} & set(ABL)) else f"s_branch {ok}")
    saved = list(a.q)
    qa_poll()
    a("s_waitcnt vmcnt(0)")
    spin_guard(chk)
    a.q = saved
    a(f"{ok}:")
    q_poll()
    for r in range(4):
        a(f"v_cvt_pk_bf16_f32 v{vQA+r}, v{vQA+2*r}, v{vQA+2*r+1}")
    def fold(t):
        quadsum(vR + (t & 1), vD + 4*(t % 4), vT0)
        if t & 1: a(f"v_cvt_pk_bf16_f32 v{vPK+t//2}, v{vR}, v{vR+1}")
    for t in range(32):
        a(f"v_mfma_f32_16x16x32_bf16 {V(vD+4*(t%4),4)}, {A(A1+4*t,4)}, {V(vQA,4)}, 0")
        if t >= 2: fold(t - 2)
        if t % 8 == 4 and st.n < 8*PUJ: st.load()
    fold(30); fold(31)
    for q in range(1, 4):
        setexec(0x1111111111111111 << q)
        for r in range(4):
            a(f"v_mov_b32 v{vPK+r}, v{vPK+4*q+r}")
    setexec(FULL)
    a.vm(f"buffer_store_dwordx4 {V(vPK,4)}, v{vOL}, {R(rWS)}, s{sQL} offen sc1", "QLst")
    stamp(1)
    done = []
    def sig(c):
        if not done and ("QLst" not in a.q or c == 15):
            done.append(c); signal("QLst", WS_F1, 48)
    st.finish(sig)
    a("s_branch L_bloop")

    a("L_aux:")
    role[0] = "A"
    a.q = []
    vOR8, vOR1 = 19, 9
    vOC, vOC8 = 76, 10
    vAQ, vAP = 80, 81
    vAD = 82
    vM, vLL, vAL, vEX = 90, 91, 92, 94
    vWR = 96
    vTRB, vZ, vL2 = 95, 100, 102
    vQL, vCT, vSS = 104, 136, 200
    vKA, vPP, vE1, vE2 = 20, 52, 60, 216
    vTA = 136
    a(f"v_lshlrev_b32 v{vT0}, 2, v{vG}\nv_xor_b32 v{vT0}, v{vT0}, v{vJ}")
    for i in range(4):
        a(f"v_xor_b32 v{vWR+i}, {i}, v{vT0}\nv_lshlrev_b32 v{vWR+i}, 4, v{vWR+i}\nv_lshl_add_u32 v{vOC8+i}, v{vG}, 13, v{vWR+i}")
        if i: a(f"v_add_u32 v{vOC8+i}, {i*(32768-1024)}, v{vOC8+i}")
    a(f"s_lshl_b32 s{sM0}, s{sW}, 15\ns_mov_b32 s{sFILL}, 0\ns_mov_b32 s{sSLOT}, 0")
    a(f"s_lshl_b32 s{sCKO}, s{sW}, 20\ns_lshl_b32 s{sT2}, s{sH}, 8\ns_add_u32 s{sCKO}, s{sCKO}, s{sT2}")
    a("s_waitcnt lgkmcnt(0)")
    srd(rCK, pUV, 4*MB)
    def ck_one(n, tg, offs=vOC, step=16384):
        if n % 4 == 0:
            a(f"s_add_u32 s{sT3}, s{sM0}, s{sFILL}\ns_mov_b32 m0, s{sT3}")
            a(f"s_add_u32 s{sFILL}, s{sFILL}, 4096\ns_and_b32 s{sFILL}, s{sFILL}, 0x7fff")
        a.vm(f"buffer_load_dwordx4 v{offs+n%4}, {R(rCK)}, s{sCKO} offen offset:{(n%4)*1024} nt lds", tg)
        if n % 4 == 3:
            a(f"s_add_u32 s{sCKO}, s{sCKO}, {step}")
    soft(0)
    for n in range(8): ck_one(n, "UV0", vOC8, 16*8192)
    consts()
    if "noaux" in ABL: a("s_endpgm")
    for i in range(4):
        a(f"v_lshl_add_u32 v{vOC+i}, v{vG}, 10, v{vWR+i}\nv_lshl_add_u32 v{vWR+i}, v{vG}, 8, v{vWR+i}")
        if i: a(f"v_add_u32 v{vOC+i}, {i*3072}, v{vOC+i}")
    vaddr(vZ+1, vZ, (vL, 0, 5, 8))
    a(f"v_mov_b32 v{vZ}, 0\ns_lshl_b32 s{sT2}, s{sW}, 13\nv_add_u32 v{vZ+1}, s{sT2}, v{vZ+1}")
    a(f"v_lshlrev_b32 v{vT0}, 4, v{vJ}\nv_lshl_add_u32 v{vOR1}, v{vG}, 10, v{vT0}")
    vB1 = vAD
    a(f"v_and_b32 v{vT0}, 3, v{vL}\nv_bfe_u32 v{vT1}, v{vL}, 2, 2\nv_lshrrev_b32 v{vT2}, 5, v{vL}")
    a(f"v_lshl_add_u32 v{vT3}, v{vT0}, 2, v{vT1}\nv_xor_b32 v{vT3}, v{vT3}, v{vT2}\nv_lshlrev_b32 v{vT3}, 4, v{vT3}")
    a(f"v_and_b32 v{vAQ}, 31, v{vL}\nv_lshl_add_u32 v{vAQ}, v{vAQ}, 8, v{vT3}")
    a(f"v_lshl_add_u32 v{vAP}, v{vT2}, 2, v{vT1}\nv_lshlrev_b32 v{vAP}, 8, v{vAP}\nv_lshl_add_u32 v{vAP}, v{vT1}, 6, v{vAP}")
    a(f"v_bfe_u32 v{vT3}, v{vL}, 4, 1\nv_lshlrev_b32 v{vT3}, 1, v{vT3}\nv_bfe_u32 v{vB1}, v{vL}, 1, 1\nv_add_u32 v{vT3}, v{vT3}, v{vB1}")
    a(f"v_xor_b32 v{vT3}, v{vT3}, v{vT2}\nv_lshl_add_u32 v{vAP}, v{vT3}, 4, v{vAP}")
    a(f"v_and_b32 v{vT3}, 1, v{vL}\nv_lshl_add_u32 v{vAP}, v{vT3}, 3, v{vAP}")
    a(f"v_lshl_add_u32 v{vTRB}, v{vG}, 3, v{vT1}\nv_lshlrev_b32 v{vTRB}, 8, v{vTRB}\nv_lshl_add_u32 v{vTRB}, v{vT1}, 6, v{vTRB}")
    a(f"v_bfe_u32 v{vT0}, v{vL}, 4, 1\nv_lshl_add_u32 v{vT0}, v{vT0}, 1, v{vB1}\nv_lshl_add_u32 v{vTRB}, v{vT0}, 4, v{vTRB}")
    a(f"v_lshl_add_u32 v{vTRB}, v{vT3}, 3, v{vTRB}\nv_add_u32 v{vTRB}, s{sM0}, v{vTRB}")
    for i in range(16):
        a(f"v_xor_b32 v{vTA+i}, {16*i}, v{vTRB}")
    a(f"s_lshl_b32 s{sU0}, s{sW}, 13\ns_add_u32 s{sU0}, s{sU0}, {LDS_EX}\nv_lshl_add_u32 v{vEX}, v{vL}, 4, s{sU0}")
    for i in range(4):
        a(f"v_add_u32 v{vWR+i}, s{sU0}, v{vWR+i}")
    soft(1); soft_flush()
    for k in range(1, 4):
        for n in range(8): ck_one(n, f"UV{k}", vOC8, 16*8192)
    take_tag(True)
    def slot_out(k, dst):
        for nt in range(8):
            for pi in range(2):
                a(f"ds_read_b64_tr_b16 {A(dst+16*nt+4*k+2*pi,2)}, v{vTA+2*nt+pi} offset:{8192*k+1024*pi}")
        a("s_waitcnt lgkmcnt(0)")
    srd(rCK, pCK, 16*MB)
    saddr(sIX, 0, (sH, 0, 3, 2), (sH, 3, 0, 0))
    saddr(sCKO, 0, (sIX, 0, 0, 19), (sW, 0, 0, 8))

    def flag_load(off):
        a(f"s_mov_b32 s{sU1}, {off}")
        a.vm(f"buffer_load_dword v{vT3}, v{vZ+1}, {R(rWS)}, s{sU1} offen sc1", "FL")

    def flag_wait(off):
        a.wait("FL")
        chk, ok = a.label("fcheck"), a.label("fok")
        a(f"{chk}:\nv_cmp_ne_u32 vcc, s{sFLAG}, v{vT3}\ns_cbranch_vccz {ok}")
        saved = list(a.q)
        a(f"s_sleep {FSL}")
        flag_load(off)
        a("s_waitcnt vmcnt(0)")
        spin_guard(chk)
        a.q = saved
        a(f"{ok}:")

    for k in range(4):
        a.wait(f"UV{k}")
        slot_out(k, A1)
        if k == 3: flag_load(WS_F1)
        for n in range(8 if k < 3 else 5): ck_one(n, f"CK{k}")
    stamp(2)
    if "noatt" in ABL: a("s_endpgm")
    for i in range(64): a(f"v_mov_b32 v{vCT+i}, 0")
    a(f"v_mov_b32 v{vM}, 0xff7f0000\ns_mov_b32 s{sIT}, 0")
    a(f"v_mov_b32 v{vL2}, 0\nv_mov_b32 v{vL2+1}, 0\ns_mov_b32 s{sC2}, s{sC}\ns_mov_b32 s{sC2+1}, s{sC}")
    a(f"v_add_u32 v{vT0}, s{sU0}, v{vAQ}")
    for k in range(8):
        a(f"v_xor_b32 v{vAD+k}, {32*k}, v{vT0}")
    a(f"v_add_u32 v{vAQ}, s{sM0}, v{vAQ}\nv_add_u32 v{vAP}, s{sM0}, v{vAP}")
    saddr(sT0, WS_QL, (sIX, 3, 0, 15), (sW, 0, 0, 8))
    flag_wait(WS_F1)
    stamp(4)
    for i in range(8):
        a.vm(f"buffer_load_dwordx4 {V(vKA+4*i,4)}, v{vOR1}, {R(rWS)}, s{sT0} offen sc1", f"QLg{i}")
        if i < 7: a(f"s_add_u32 s{sT0}, s{sT0}, 4096")
    for i in range(8):
        a.wait(f"QLg{i}")
        a(f"ds_write_b128 v{vWR+(i&3)}, {V(vKA+4*i,4)} offset:{i*1024}")
    a("s_waitcnt lgkmcnt(0)")
    for k in range(8):
        a(f"ds_read_b128 {V(vQL+4*k,4)}, v{vAD+k}")
    stamp(5)
    vKQ = vE2
    for k in range(8):
        a(f"v_xor_b32 v{vAD+k}, {32*k}, v{vAQ}\nds_read_b128 {V(vKQ+4*k,4)}, v{vAD+k}")
    a("L_att:")
    a(f"v_add_u32 v{vT0}, s{sSLOT}, v{vAP}")
    a("s_waitcnt lgkmcnt(0)")
    for k in range(8):
        c = V(vSS, 16) if k else "0"
        a(f"v_mfma_f32_32x32x16_bf16 {V(vSS,16)}, {V(vKQ+4*k,4)}, {V(vQL+4*k,4)}, {c}")
        nt, pi = k >> 1, k & 1
        a(f"v_xor_b32 v{vAD+k}, {32*k}, v{vT0}")
        for sg in range(2):
            a(f"ds_read_b64_tr_b16 {V(vKA+8*nt+4*sg+2*pi,2)}, v{vAD+k} offset:{4096*sg+2048*pi}")
        if k in (0, 4, 7): ck_one({0: 5, 4: 6, 7: 7}[k], "loop")
    a(f"v_xor_b32 v{vT1}, 0x2000, v{vEX}\nv_xor_b32 v{vT2}, 0x4000, v{vEX}\nv_xor_b32 v{vT3}, 0x6000, v{vEX}")
    a(f"s_cmp_eq_u32 s{sIT}, 12\ns_cselect_b32 s{sCKO}, {16*MB}, s{sCKO}")
    for q in range(4):
        a(f"ds_write_b128 v{vEX}, {V(vSS+4*q,4)} offset:{1024*q}")
    a("s_waitcnt lgkmcnt(0)\ns_barrier")
    for q in range(4):
        a(f"ds_read_b128 {V(vE1+4*q,4)}, v{vT1} offset:{1024*q}")
        a(f"ds_read_b128 {V(vE2+4*q,4)}, v{vT2} offset:{1024*q}")
        a(f"ds_read_b128 {V(vE2+16+4*q,4)}, v{vT3} offset:{1024*q}")
    a(f"v_xor_b32 v{vEX}, 0x1000, v{vEX}")
    ck_one(0, "loop")
    a(f"s_add_u32 s{sSLOT}, s{sSLOT}, 8192\ns_and_b32 s{sSLOT}, s{sSLOT}, 0x7fff")
    for q in range(4):
        a(f"s_waitcnt lgkmcnt({9-3*q})")
        for r in range(4*q, 4*q+4, 2):
            a(f"v_pk_add_f32 {V(vSS+r,2)}, {V(vSS+r,2)}, {V(vE1+r,2)}\nv_pk_add_f32 {V(vE2+r,2)}, {V(vE2+r,2)}, {V(vE2+16+r,2)}")
        for r in range(4*q, 4*q+4, 2):
            a(f"v_pk_add_f32 {V(vSS+r,2)}, {V(vSS+r,2)}, {V(vE2+r,2)}")
    ck_one(1, "loop")
    a(f"v_max_f32 v{vT0}, v{vSS}, v{vSS+1}")
    for r in range(2, 16, 2):
        a(f"v_max3_f32 v{vT0}, v{vT0}, v{vSS+r}, v{vSS+r+1}")
    a(f"v_mov_b32 v{vT1}, v{vT0}\nv_permlane32_swap_b32 v{vT0}, v{vT1}\nv_max_f32 v{vT0}, v{vT0}, v{vT1}")
    a(f"v_mul_f32 v{vT0}, s{sC}, v{vT0}\nv_max_f32 v{vT0}, v{vT0}, v{vM}")
    a(f"v_sub_f32 v{vAL}, v{vM}, v{vT0}\nv_exp_f32 v{vAL}, v{vAL}\nv_mov_b32 v{vM}, v{vT0}")
    for r in range(0, 16, 2):
        a(f"v_pk_fma_f32 {V(vSS+r,2)}, {V(vSS+r,2)}, s[{sC2}:{sC2+1}], {V(vM,2)} op_sel_hi:[1,1,0] neg_lo:[0,0,1] neg_hi:[0,0,1]")
    for r in range(16):
        a(f"v_exp_f32 v{vSS+r}, v{vSS+r}")
        if r == 4: ck_one(2, "loop")
    a(f"v_add_u32 v{vT0}, s{sSLOT}, v{vAQ}")
    a(f"v_pk_mul_f32 {V(vL2,2)}, {V(vL2,2)}, {V(vAL,2)} op_sel_hi:[1,0]")
    for c in range(vCT, vCT+64, 2):
        a(f"v_pk_mul_f32 {V(c,2)}, {V(c,2)}, {V(vAL,2)} op_sel_hi:[1,0]")
        if c == vCT + 40: ck_one(3, "loop")
    for r in range(8):
        a(f"v_cvt_pk_bf16_f32 v{vPP+r}, v{vSS+2*r}, v{vSS+2*r+1}")
        a(f"v_pk_add_f32 {V(vL2,2)}, {V(vL2,2)}, {V(vSS+2*r,2)}")
    a("s_waitcnt vmcnt(20)")
    k = 0
    for sg in range(2):
        for nt in range(4):
            a(f"v_mfma_f32_32x32x16_bf16 {V(vCT+16*nt,16)}, {V(vKA+8*nt+4*sg,4)}, {V(vPP+4*sg,4)}, {V(vCT+16*nt,16)}")
            if k < 8:
                for kk in (k, k+1):
                    a(f"v_xor_b32 v{vAD+kk}, {32*kk}, v{vT0}\nds_read_b128 {V(vKQ+4*kk,4)}, v{vAD+kk}")
            if k == 8: ck_one(4, "loop")
            k += 2
    a(f"s_add_u32 s{sIT}, s{sIT}, 1\ns_cmp_lt_u32 s{sIT}, 16\ns_cbranch_scc1 L_att")
    a.q = []
    stamp(6)
    if "nopost" in ABL: a("s_endpgm")
    a(f"v_add_f32 v{vLL}, v{vL2}, v{vL2+1}")
    a(f"v_mov_b32 v{vT1}, v{vLL}\nv_permlane32_swap_b32 v{vLL}, v{vT1}\nv_add_f32 v{vLL}, v{vLL}, v{vT1}")
    a(f"v_and_b32 v{vT0}, 31, v{vL}\nv_lshlrev_b32 v{vT1}, 8, v{vT0}\nv_lshl_add_u32 v{vT1}, v{vJ}, 4, v{vT1}")
    a(f"v_lshrrev_b32 v{vT2}, 5, v{vL}\nv_lshl_add_u32 v{vT1}, v{vT2}, 3, v{vT1}\nv_add_u32 v{vT1}, s{sU0}, v{vT1}")
    a("s_waitcnt vmcnt(0) lgkmcnt(0)\ns_barrier")
    for i in range(16):
        a(f"v_cvt_pk_bf16_f32 v{vKA+2*i}, v{vCT+4*i}, v{vCT+4*i+1}\nv_cvt_pk_bf16_f32 v{vKA+2*i+1}, v{vCT+4*i+2}, v{vCT+4*i+3}")
        a(f"v_xor_b32 v{vAD+(i&7)}, {16*i}, v{vT1}\nds_write_b64 v{vAD+(i&7)}, {V(vKA+2*i,2)}")
    a(f"v_xor_b32 v{vT2}, v{vJ}, v{vG}\nv_lshlrev_b32 v{vT2}, 4, v{vT2}\nv_lshl_add_u32 v{vT2}, v{vG}, 8, v{vT2}\nv_add_u32 v{vT2}, s{sU0}, v{vT2}")
    for i in range(4):
        a(f"v_xor_b32 v{vAD+i}, {64*i}, v{vT2}")
    vaddr(vT3, vT2, (vJ, 0, 0, 4), (vG, 0, 0, 15))
    saddr(sT0, WS_CP, (sIX, 0, 0, 10), (sW, 0, 0, 8))
    a("s_waitcnt lgkmcnt(0)")
    vPUB = 200
    for i in range(8):
        a(f"ds_read_b128 {V(vPUB+4*i,4)}, v{vAD+(i&3)} offset:{1024*i}")
    a(f"v_lshlrev_b32 v{vT0}, 3, v{vT0}")
    saddr(sT1, WS_CS, (sIX, 0, 0, 8), (sW, 0, 0, 13))
    setexec(0xffffffff)
    a.vm(f"buffer_store_dwordx2 {V(vM,2)}, v{vT0}, {R(rWS)}, s{sT1} offen sc1", "CPst")
    setexec(FULL)
    for i in range(8):
        a(f"s_waitcnt lgkmcnt({7-i})")
        a.vm(f"buffer_store_dwordx4 {V(vPUB+4*i,4)}, v{vT3}, {R(rWS)}, s{sT0} offen sc1", "CPst")
        if i < 7: a(f"s_add_u32 s{sT0}, s{sT0}, {128*KB}")
    vCB, vSTAT, vDD, vRES = 136, 52, 60, 104
    vGC, vGS, vRW, vRR = 80, 81, 94, 102
    fin_scalar()
    for n in range(8): fin_dma(n, vOC)
    fin_vec3()
    a(f"v_and_b32 v{vT0}, 3, v{vJ}")
    vaddr(vGS, vT1, (vJ, 0, 2, 11), (vJ, 2, 0, 8))
    a(f"v_and_b32 v{vT1}, 12, v{vJ}\nv_xor_b32 v{vT1}, v{vT1}, v{vG}\nv_and_b32 v{vT2}, 1, v{vJ}\nv_lshlrev_b32 v{vT2}, 1, v{vT2}\nv_xor_b32 v{vT1}, v{vT1}, v{vT2}")
    vaddr(vGC, vT2, (vT1, 0, 0, 4), (vJ, 0, 2, 11), (vJ, 2, 0, 8))
    a(f"v_add_u32 v{vGC}, s{sU0}, v{vGC}")
    a(f"v_lshlrev_b32 v{vT0}, 9, v{vT0}\nv_lshl_add_u32 v{vT0}, v{vG}, 4, v{vT0}\nv_add_u32 v{vRW}, s{sU0}, v{vT0}")
    a(f"s_lshl_b32 s{sT2}, s{sW}, 9\ns_add_u32 s{sT2}, s{sT2}, {LDS_EX}\nv_and_b32 v{vT1}, 31, v{vL}\nv_lshl_add_u32 v{vRR}, v{vT1}, 4, s{sT2}")
    saddr(sT0, WS_CP, (sH, 0, 0, 15), (sW, 0, 0, 8))
    saddr(sT1, WS_CS, (sH, 0, 0, 3), (sW, 0, 0, 13))
    signal("CPst", WS_F2, vT0)
    stamp(7)
    flag_load(WS_F2)
    flag_wait(WS_F2)
    stamp(8)
    for hf in range(2):
        a.vm(f"buffer_load_dwordx2 {V(vSTAT+2*hf,2)}, v{vGS}, {R(rWS)}, s{sT1} offen sc1", "CSg")
        if hf == 0: a(f"s_add_u32 s{sT1}, s{sT1}, 1024")
    for i in range(8):
        a.vm(f"buffer_load_dwordx4 {V(vPUB+4*i,4)}, v{vOR1}, {R(rWS)}, s{sT0} offen sc1", f"CPg{i}")
        if i < 7: a(f"s_add_u32 s{sT0}, s{sT0}, 4096")
    for i in range(8):
        a(f"v_xor_b32 v{vAD+i}, {64*(i&3) ^ 16*(i>>2)}, v{vGC}")
    a.wait("CSg")
    a(f"v_max_f32 v{vT0}, v{vSTAT}, v{vSTAT+2}")
    a(f"v_max_f32_dpp v{vT0}, v{vT0}, v{vT0} row_ror:8 {DPP}\nv_max_f32_dpp v{vT0}, v{vT0}, v{vT0} row_ror:4 {DPP}")
    a(f"v_sub_f32 v{vSTAT}, v{vSTAT}, v{vT0}\nv_sub_f32 v{vSTAT+2}, v{vSTAT+2}, v{vT0}")
    a(f"v_exp_f32 v{vSTAT}, v{vSTAT}\nv_exp_f32 v{vSTAT+2}, v{vSTAT+2}")
    a(f"v_mul_f32 v{vT1}, v{vSTAT}, v{vSTAT+1}\nv_fmac_f32 v{vT1}, v{vSTAT+2}, v{vSTAT+3}")
    a(f"v_add_f32_dpp v{vT1}, v{vT1}, v{vT1} row_ror:8 {DPP}\nv_add_f32_dpp v{vT1}, v{vT1}, v{vT1} row_ror:4 {DPP}")
    a(f"v_rcp_f32 v{vT1}, v{vT1}")
    a(f"v_mul_f32 v{vSTAT}, v{vSTAT}, v{vT1}\nv_mul_f32 v{vSTAT+2}, v{vSTAT+2}, v{vT1}")
    for i in range(8):
        a.wait(f"CPg{i}")
        a(f"ds_write_b128 v{vWR+(i&3)}, {V(vPUB+4*i,4)} offset:{i*1024}")
    a("s_waitcnt lgkmcnt(0)")
    for i in range(8):
        a(f"ds_read_b128 {V(vCB+4*i,4)}, v{vAD+i} offset:{1024*(i>>2)}")
    a("s_waitcnt lgkmcnt(0)")
    def ctx_fold(nt):
        d = vDD + 8*(nt % 2)
        res = vRES + 4*(nt % 2)
        for r in range(4):
            a(f"v_mul_f32 v{res+r}, v{d+r}, v{vSTAT}")
        for r in range(4):
            a(f"v_fmac_f32 v{res+r}, v{d+4+r}, v{vSTAT+2}")
        for ror in (8, 4):
            for r in range(4):
                a(f"v_add_f32_dpp v{res+r}, v{res+r}, v{res+r} row_ror:{ror} {DPP}")
        a(f"ds_write_b128 v{vRW}, {V(res,4)} offset:{64*nt}")
    for nt in range(8):
        d = vDD + 8*(nt % 2)
        for k in range(4):
            for hf in range(2):
                c = V(d+4*hf, 4) if k else "0"
                a(f"v_mfma_f32_16x16x32_bf16 {V(d+4*hf,4)}, {A(A1+16*nt+4*k,4)}, {V(vCB+16*hf+4*k,4)}, {c}")
        if nt: ctx_fold(nt - 1)
    ctx_fold(7)
    a("s_waitcnt lgkmcnt(0)\ns_barrier")
    for p in range(4):
        a(f"ds_read_b128 {V(vCB+4*p,4)}, v{vRR} offset:{p*8192}")
    a("s_waitcnt lgkmcnt(0)")
    for r in range(4):
        a(f"v_add_f32 v{vCB+r}, v{vCB+r}, v{vCB+4+r}\nv_add_f32 v{vCB+8+r}, v{vCB+8+r}, v{vCB+12+r}")
    for r in range(4):
        a(f"v_add_f32 v{vCB+r}, v{vCB+r}, v{vCB+8+r}")
    tag_bf16(range(vCB, vCB+4))
    setexec(0xffffffff)
    a(f"buffer_store_dwordx4 {V(vCB,4)}, v{vCX}, {R(rWS)}, s{sCXO} offen sc1")
    setexec(FULL)
    for r in range(4): a(f"v_xor_b32 v{vGS2+r}, s{sTAG}, v{vCB+r}")
    fin_vec2()
    stamp(9)
    a("s_branch L_ctxok")
    body = a.finish()
    ref = open(os.path.join(os.path.dirname(os.path.abspath(__file__)), "..", NAME + ".s.ref")).read().split("\n")
    layout = [l for l in ref if l.startswith(";") and "@launch" not in l and "Override" not in l and "grid=ceil" not in l]
    tail = f""".section .rodata,"a"
.p2align 6
.amdhsa_kernel {NAME}_kernel
  .amdhsa_next_free_vgpr 512
  .amdhsa_next_free_sgpr 102
  .amdhsa_accum_offset 256
  .amdhsa_group_segment_fixed_size 0
  .amdhsa_kernarg_size 112
  .amdhsa_user_sgpr_count 2
  .amdhsa_user_sgpr_kernarg_segment_ptr 1
  .amdhsa_system_sgpr_workgroup_id_x 1
.end_amdhsa_kernel
"""
    return "\n".join(layout + hdr + ["; generated by tools/gen.py"]) + "\n" + body + tail

if __name__ == "__main__":
    kw = eval("dict(" + (sys.argv[2] if len(sys.argv) > 2 else "") + ")")
    out = sys.argv[1] if len(sys.argv) > 1 else os.path.join(os.path.dirname(os.path.abspath(__file__)), "..", NAME + ".s")
    open(out, "w").write(generate(**kw))
    print("wrote", out)
```

```python
import sys, os, struct
sys.path.insert(0, os.path.dirname(os.path.abspath(__file__)))
from asmlib import Asm

NAME = "concat_heads__compressed_kv_cla__mha_block_cached__decode"
KB, MB = 1024, 1 << 20
WS_CT, WS_F1, WS_F2, WS_CS, WS_CX, WS_QP, WS_QL, WS_YA, WS_YB = [o * KB for o in (64, 96, 128, 160, 192, 256, 384, 512, 768)]
WS_OP, WS_CP, WS_ST, WS_SIZE = 1*MB, 2*MB, 6*MB, 8*MB
SCALE = 128 ** -0.5 * 1.4426950408889634
LDS_EX = 128 * KB
LDS_O = LDS_EX + 4 * KB
LDS_W = 96 * KB
SPIN = 1 << 21

def f32(x): return struct.unpack("<I", struct.pack("<f", x))[0]
def V(a, n=1): return f"v{a}" if n == 1 else f"v[{a}:{a+n-1}]"
def A(a, n=1): return f"a{a}" if n == 1 else f"a[{a}:{a+n-1}]"
def R(r): return f"s[{r}:{r+3}]"
DPP = "row_mask:0xf bank_mask:0xf"
FULL = (1 << 64) - 1

pAX, pCK, pAWQ, pUK, pUV, pAWO, pBX, pK, pV, pBWQ, pBWO, pOUT, pDBG, pWS = range(4, 32, 2)
sH, sP, sW, sTAG, sT0, sT1, sT2, sT3 = 32, 33, 34, 35, 36, 37, 38, 39
rW, rX, rWS, rK, rV, rUK, rOUT, rDBG = 40, 44, 48, 52, 56, 72, 72, 76
rCK = rK
sC2, sFILL, sWO = 60, 62, 63
sSELLO, sSELHI, sHI24, sC, sSPIN = 80, 81, 82, 83, 84
sU0, sU1, sTK, sROT, sBASE = 85, 86, 87, 88, 89
sM0, sQO, sMODE, sIT, sSLOT, sCKO, sYO, sOUTO = 90, 91, 92, 93, 94, 95, 96, 97
sTS = 98
sFLAG, sXT, sB, sHJ = 68, 69, 3, 61
sIX = sB

MAPS = {
    'L': ([[8], [9]], [[10], [11]], [12, 13, 14, 15, 16, 17, 18, 19]),
    'A': ([[12], [13]], [[15, 8], [8]], [14, 9, 10, 11, 16, 17, 18, 19]),
    'C': ([[8], [9]], [[15], [10]], [12, 13, 14, 11, 16, 17, 18, 19]),
}

def generate(D=6, DV=6, DP=7, NS=33, D2=8, PAIR=0, SLOW=2, MAP='C', ROTH=8, ROTW=1, PU=8, POLLP=46, PUJ=8, POLLQ=46, POLLU=30, NFA=0, NFB=4, PFIRST=1, XQ=(3, 2), FSL=2,
             STAMP=False, PROBE=None, AMP=0, ABL=()):
    a = Asm()
    role = ["B"]
    if ABL:
        real_vm = a.vm
        a.vm = lambda text, tg: real_vm(text.replace(R(rWS), R(rDBG)) if tg.rstrip("0123456789") in ABL else text, tg)

    vL, vG, vJ, vT0, vT1, vT2, vT3, vTAG = 1, 2, 3, 4, 5, 6, 7, 8
    vMASK = 10
    vST0, vST1 = 16, 17

    def srd(r, p, size):
        a(f"s_mov_b32 s{r}, s{p}\ns_and_b32 s{r+1}, s{p+1}, 0xffff\ns_mov_b32 s{r+2}, {size}\ns_mov_b32 s{r+3}, 0x20000")

    def saddr(dst, base, *fields):
        for n, (r, lo, w, pos) in enumerate(fields):
            if w: a(f"s_bfe_u32 s{sT2}, s{r}, {lo | (w << 16):#x}")
            elif lo: a(f"s_lshr_b32 s{sT2}, s{r}, {lo}")
            a(f"s_lshl_b32 s{sT2}, s{sT2 if (w or lo) else r}, {pos}")
            a(f"s_add_u32 s{dst}, s{sT2}, {base if n == 0 else 's%d' % dst}")

    def vaddr(dst, tmp, *fields):
        for n, (r, lo, w, pos) in enumerate(fields):
            if w: a(f"v_bfe_u32 v{tmp}, v{r}, {lo}, {w}")
            elif lo: a(f"v_lshrrev_b32 v{tmp}, {lo}, v{r}")
            src = tmp if (w or lo) else r
            a(f"v_lshlrev_b32 v{dst}, {pos}, v{src}" if n == 0 else f"v_lshl_add_u32 v{dst}, v{src}, {pos}, v{dst}")

    def stamp(i):
        if PROBE is not None:
            if PROBE == (role[0], i): a("s_memrealtime s[100:101]\ns_waitcnt lgkmcnt(0)")
            return
        if not STAMP or (STAMP == 3 and (role[0], i) not in (("A", 0), ("B", 0))): return
        if i: a(f"s_memrealtime s[{sTS}:{sTS+1}]\ns_waitcnt lgkmcnt(0)")
        else: a(f"s_lshl_b32 s100, s2, 2\ns_add_u32 s100, s100, s{sW}\ns_lshl_b32 s100, s100, 6\ns_add_u32 s100, s100, {WS_ST}\nv_mov_b32 v{vST0}, s100")
        a(f"v_mov_b32 v{vST1}, s{sTS}\ns_mov_b64 s[100:101], exec\ns_mov_b64 exec, 1")
        a(f"buffer_store_dword v{vST1}, v{vST0}, {R(rWS)}, 0 offen offset:{4*i}")
        if i == 0:
            a(f"s_getreg_b32 s{sTS}, hwreg(HW_REG_XCC_ID)\nv_mov_b32 v{vST1}, s{sTS}\nbuffer_store_dword v{vST1}, v{vST0}, {R(rWS)}, 0 offen offset:60")
        a("s_mov_b64 exec, s[100:101]")

    def soft(i):
        if STAMP == 2: a(f"s_memrealtime s[{70 if i == 0 else 78}:{71 if i == 0 else 79}]")

    def soft_flush():
        if STAMP == 2:
            a(f"s_waitcnt lgkmcnt(0)\ns_mov_b64 s[100:101], exec\ns_mov_b64 exec, 1")
            for i, r in ((14, 70), (7 if role[0] == "B" else 3, 78)):
                a(f"v_mov_b32 v{vST1}, s{r}\nbuffer_store_dword v{vST1}, v{vST0}, {R(rWS)}, 0 offen offset:{4*i}")
            a("s_mov_b64 exec, s[100:101]")

    TAILS = [12, 14, 16, 18, 20, 22, 24]
    def tsoft(i):
        if STAMP == 3: a(f"s_memrealtime s[{TAILS[i]}:{TAILS[i]+1}]")

    def tflush():
        if STAMP == 3:
            a(f"s_waitcnt lgkmcnt(0)\ns_mov_b64 s[100:101], exec\ns_mov_b64 exec, 1")
            for i, r in enumerate(TAILS):
                a(f"v_mov_b32 v{vST1}, s{r}\nbuffer_store_dword v{vST1}, v{vST0}, {R(rWS)}, 0 offen offset:{4*(i+7)}")
            a("s_mov_b64 exec, s[100:101]")

    def probe_end():
        if PROBE is None or PROBE[0] != role[0]: return
        lbl = a.label("probe")
        a(f"s_sub_u32 s100, s100, s{sTS}\ns_lshl_b32 s100, s100, {AMP}\ns_add_u32 s100, s100, s{sTS}")
        a(f"s_add_u32 s100, s100, 10000\n{lbl}:\ns_memrealtime s[{sTS}:{sTS+1}]\ns_waitcnt lgkmcnt(0)")
        a(f"s_sub_u32 s{sTS}, s{sTS}, s100\ns_cmp_lt_i32 s{sTS}, 0\ns_cbranch_scc0 {lbl}_x\ns_cmp_gt_i32 s{sTS}, -100000\ns_cbranch_scc1 {lbl}\n{lbl}_x:")

    def spin_guard(lbl_retry):
        a(f"s_sub_u32 s{sSPIN}, s{sSPIN}, 1\ns_cmp_lg_u32 s{sSPIN}, 0\ns_cbranch_scc1 {lbl_retry}\ns_branch L_end")

    def untag(regs, acc):
        for r in regs:
            a(f"v_xor_b32 v{r}, s{sTAG}, v{r}")
        a(f"v_or_b32 v{acc}, v{regs[0]}, v{regs[1]}")
        for i in range(2, len(regs), 2):
            a(f"v_or3_b32 v{acc}, v{acc}, v{regs[i]}, v{regs[i+1]}")
        a(f"v_and_b32 v{acc}, 0xff, v{acc}\nv_cmp_ne_u32 vcc, 0, v{acc}")

    def tag(regs):
        for r in regs:
            a(f"v_and_or_b32 v{r}, v{r}, s{sHI24}, v{vTAG}")

    def tag_bf16(regs):
        a(f"s_mov_b32 s{sT2}, 0xffff0000")
        for r in regs: a(f"v_cvt_pk_bf16_f32 v{r}, v{r}, v{r}")
        for r in regs: a(f"v_and_or_b32 v{r}, v{r}, s{sT2}, v{vTAG}")

    def quadsum(dst, src, tmp):
        a(f"v_mov_b32_dpp v{dst}, v{src} quad_perm:[0,0,0,0] {DPP}")
        a(f"v_mov_b32_dpp v{tmp}, v{src+2} quad_perm:[2,2,2,2] {DPP}")
        a(f"v_add_f32_dpp v{dst}, v{src+1}, v{dst} quad_perm:[1,1,1,1] {DPP}")
        a(f"v_add_f32_dpp v{tmp}, v{src+3}, v{tmp} quad_perm:[3,3,3,3] {DPP}")
        a(f"v_add_f32 v{dst}, v{dst}, v{tmp}")

    def setexec(mask):
        if mask == FULL: a("s_mov_b64 exec, -1")
        elif mask <= 64: a(f"s_mov_b64 exec, {mask}")
        else: a(f"s_mov_b32 exec_lo, {mask & 0xffffffff:#x}\ns_mov_b32 exec_hi, {mask >> 32:#x}")

    def consts():
        a(f"s_load_dword s{sTAG}, s[{pWS}:{pWS+1}], 0")
        srd(rWS, pWS, WS_SIZE)
        if ABL: srd(rDBG, pDBG, 256)
        a(f"s_mov_b32 s{sHI24}, 0xffffff00\ns_mov_b32 s{sC}, {f32(SCALE):#x}\ns_mov_b32 s{sSPIN}, {SPIN}")
        stamp(0)

    def take_tag(flag=False):
        a(f"s_waitcnt lgkmcnt(0)\ns_add_u32 s{sTAG}, s{sTAG}, 0x5b\ns_and_b32 s{sTAG}, s{sTAG}, 0xff\nv_mov_b32 v{vTAG}, s{sTAG}")
        if flag: a(f"s_or_b32 s{sFLAG}, s{sTAG}, 0x6b3ac500")

    def signal(tg, base, tmp):
        saddr(sXT, base, (sH, 0, 0, 8), (sW, 0, 0, 23))
        a(f"v_mov_b32 v{tmp}, s{sXT}\nv_mov_b32 v{tmp+1}, s{sFLAG}")
        if tg in a.q: a.wait(tg)
        a("s_barrier")
        setexec(1)
        a.vm(f"buffer_store_dword v{tmp+1}, v{tmp}, {R(rWS)}, 0 offen sc1", "SIG")
        setexec(FULL)

    hdr = [f"; @launch grid=(256,1,1) block=(256,1,1) lds={160*KB}"]
    a(f'.amdgcn_target "amdgcn-amd-amdhsa--gfx950"\n.text\n.globl {NAME}_kernel\n.p2align 8\n.type {NAME}_kernel,@function')
    a(f"{NAME}_kernel:")
    if STAMP or PROBE is not None: a(f"s_memrealtime s[{sTS}:{sTS+1}]")
    a("s_cmp_ge_u32 s2, 256\ns_cbranch_scc1 L_end")
    a("s_load_dwordx16 s[4:19], s[0:1], 0\ns_load_dwordx8 s[20:27], s[0:1], 64\ns_load_dwordx4 s[28:31], s[0:1], 96")
    a(f"v_lshrrev_b32 v{vT0}, 6, v0\nv_and_b32 v{vL}, 63, v0\nv_readfirstlane_b32 s{sW}, v{vT0}")
    a(f"s_lshr_b32 s{sH}, s2, 3\ns_sub_u32 s{sP}, s2, s{sH}\ns_sub_u32 s{sP}, s{sP}, 1\ns_and_b32 s{sP}, s{sP}, 7")
    a(f"v_lshrrev_b32 v{vG}, 4, v{vL}\nv_and_b32 v{vJ}, 15, v{vL}")
    a(f"s_cmp_lt_u32 s{sP}, 2\ns_cbranch_scc1 L_qp\ns_cmp_eq_u32 s{sP}, 2\ns_cbranch_scc1 L_ql\ns_cmp_eq_u32 s{sP}, 7\ns_cbranch_scc1 L_aux")

    vCA, vONE, vTK = 9, 18, 19
    sMSG = sYO
    vOW, vOX = 14, 15
    vX, vB, vACC, vQ = 20, 52, 60, 68
    vOK, vOQ, vOP, vOV = 76, 78, 79, 126
    vBQ, vPB = 80, 96
    vS, vO = 112, 116
    vMC, vLS, vSC, vP, vU0, vU1 = 120, 121, 122, 123, 124, 125
    RING = 128
    A0, A1 = 0, 128
    gv, tv, ub = MAPS[MAP] if isinstance(MAP, str) else MAP
    mk = lambda bits: sum(1 << b for b in bits)
    sup = set(sum(gv + tv, []))
    XOR = len(sup) > 4
    basis = []
    for r_ in [mk(v) for v in gv + tv] + [1 << b for b in ub]:
        for b_ in basis: r_ = min(r_, r_ ^ b_)
        assert r_, "key mapping is not a bijection"
        basis.append(r_)
    assert sup | set(ub) == set(range(8, 20))
    tval = [(mk(tv[0]) if t & 1 else 0) ^ (mk(tv[1]) if t & 2 else 0) for t in range(4)]
    gmask = mk(gv[0]) | mk(gv[1])
    timm = [v & 0xfff & ~gmask for v in tval]
    treg = sorted(set(v ^ i for v, i in zip(tval, timm)))
    tidx = [treg.index(v ^ i) for v, i in zip(tval, timm)]
    XOR = XOR or len(treg) > 2
    vAX = vOK + 1
    runs = []
    for i, b in enumerate(ub):
        if runs and runs[-1][1] + runs[-1][2] == b: runs[-1][2] += 1
        else: runs.append([i, b, 1])
    NTAIL = 256 - 7 * NS
    NDYN = NTAIL
    assert NS % 2 == 1 and 0 <= NTAIL <= 60 and 5 <= D <= DV <= 7 and D2 == 8
    rS, sEND, sCNT = 64, sMODE, sOUTO
    vOS, vSA, vMX, vS2, vSN, vPN = 62, 64, 65, 96, 66, 100
    LDS_S = 16 * KB
    sPS, sND = sSELLO, sSELHI

    def advance(n): a(f"s_add_u32 s{sTK}, s{sTK}, {inc(n)}")
    inc = lambda n: 7 if not PAIR else (13 if n % 8 == 7 else 1)
    def kv_setup():
        a(f"v_lshrrev_b32 v{vT0}, 2, v{vJ}\nv_and_b32 v{vT1}, 3, v{vJ}")
        for dst, sel in ((vOK, vT0), (vOV, vG)):
            if len(gv[0]) == 1 and gv[1] == [gv[0][0] + 1]:
                a(f"v_lshlrev_b32 v{dst}, {gv[0][0]}, v{sel}")
            else:
                a(f"v_and_b32 v{vT2}, 1, v{sel}\nv_mul_u32_u24 v{vT2}, {mk(gv[0])}, v{vT2}\nv_lshrrev_b32 v{vT3}, 1, v{sel}\nv_mul_u32_u24 v{vT3}, {mk(gv[1])}, v{vT3}\nv_xor_b32 v{dst}, v{vT2}, v{vT3}")
        a(f"v_lshl_add_u32 v{vOK}, v{vG}, 6, v{vOK}\nv_lshl_add_u32 v{vOK}, v{vT1}, 4, v{vOK}\nv_lshl_add_u32 v{vOV}, v{vJ}, 4, v{vOV}")
        if len(treg) == 2 and not XOR:
            a(f"v_xor_b32 v{vOK+1}, {treg[1]}, v{vOK}\nv_xor_b32 v{vOV+1}, {treg[1]}, v{vOV}")
        a(f"s_add_u32 s{sB}, s{sW}, s{sP}\ns_and_b32 s{sB}, s{sB}, 3")
        a(f"s_lshl_b32 s{sBASE}, s{sB}, 5\ns_add_u32 s{sBASE}, s{sBASE}, s{sH}\ns_lshl_b32 s{sBASE}, s{sBASE}, 20")
        a(f"s_mul_i32 s{sROT}, s{sH}, {ROTH}")
        if ROTW == 1: a(f"s_add_u32 s{sROT}, s{sROT}, s{sB}")
        else: a(f"s_mul_i32 s{sT2}, s{sB}, {ROTW}\ns_add_u32 s{sROT}, s{sROT}, s{sT2}")
        a(f"s_lshl_b32 s{sTK}, s{sP}, {PAIR}")

    def masks():
        a(f"v_and_b32 v{vT0}, 1, v{vL}\nv_lshlrev_b32 v{vT0}, 4, v{vT0}\nv_mov_b32 v{vT1}, 0xffff\nv_lshlrev_b32 v{vT0}, v{vT0}, v{vT1}")
        a(f"v_bfe_u32 v{vT1}, v{vL}, 1, 2")
        for r in range(4):
            a(f"v_cmp_eq_u32 vcc, {r}, v{vT1}\nv_cndmask_b32 v{vMASK+r}, 0, v{vT0}, vcc")

    def kv_late():
        a(f"v_mov_b32 v{vMC}, 0xff7f0000\nv_mov_b32 v{vLS}, 0\nv_mov_b32 v{vONE}, 1")
        for r in range(4): a(f"v_mov_b32 v{vO+r}, 0")
        saddr(sMSG, WS_CT, (sH, 0, 0, 10), (sB, 0, 0, 8))
        a(f"v_mov_b32 v{vCA}, s{sMSG}")
        saddr(sMSG, WS_OP, (sH, 0, 0, 15), (sB, 0, 0, 13), (sP, 0, 0, 10))
        a(f"v_and_b32 v{vT1}, 3, v{vJ}\nv_lshlrev_b32 v{vOQ}, 7, v{vG}\nv_lshl_add_u32 v{vOQ}, v{vT1}, 5, v{vOQ}")
        saddr(sQO, WS_QP, (sH, 0, 0, 12), (sB, 0, 0, 9))
        a(f"v_lshlrev_b32 v{vT0}, 7, v{vG}\nv_lshl_add_u32 v{vT0}, v{vJ}, 4, v{vT0}\nv_mov_b32 v{vT1}, 512")
        a(f"v_cmp_gt_u32 vcc, 8, v{vJ}\nv_cndmask_b32 v{vOP}, v{vT1}, v{vT0}, vcc")

    def unit_addr(dst):
        a(f"s_add_u32 s{sT3}, s{sTK}, s{sROT}")
        for n, (i, b, w) in enumerate(runs):
            if XOR and n == 0:
                a(f"s_bfe_u32 s{sT1}, s{sT3}, {i | (w << 16):#x}\ns_lshl_b32 s{dst}, s{sT1}, {b}")
            else:
                a(f"s_bfe_u32 s{sT1}, s{sT3}, {i | (w << 16):#x}\ns_lshl_b32 s{sT1}, s{sT1}, {b}\ns_add_u32 s{dst}, s{sT1}, s{dst if n else sBASE}")

    def slot(i): return V(RING + 4*i, 4) if i < 32 else A(4*(i - 32), 4)

    def kv_load(sl, r, base, tg):
        isv = r >= 4
        if XOR:
            if tval[r%4]: a(f"s_xor_b32 s{sXT}, s{base}, {tval[r%4]}")
            a(f"v_xor_b32 v{vAX}, s{sXT if tval[r%4] else base}, v{vOV if isv else vOK}")
            a.vm(f"buffer_load_dwordx4 {slot(sl)}, v{vAX}, {R(rV if isv else rK)}, s{sBASE} offen nt", tg)
            return
        a.vm(f"buffer_load_dwordx4 {slot(sl)}, v{(vOV if isv else vOK) + tidx[r%4]}, {R(rV if isv else rK)}, s{base} offen offset:{timm[r%4]} nt", tg)

    def s_load_(sl, t, tg):
        if XOR:
            if tval[t]: a(f"s_xor_b32 s{sXT}, s{sU0}, {tval[t]}")
            a(f"v_xor_b32 v{vAX}, s{sXT if tval[t] else sU0}, v{vOS}")
            a.vm(f"buffer_load_dwordx4 {slot(sl)}, v{vAX}, {R(rS)}, s{sBASE} offen nt", tg)
            return
        a.vm(f"buffer_load_dwordx4 {slot(sl)}, v{vOS + tidx[t]}, {R(rS)}, s{sU0} offen offset:{timm[t]} nt", tg)

    def use(isv):
        r, v = (rV, vOV) if isv else (rK, vOK)
        a(f"s_mov_b64 s[{rS}:{rS+1}], s[{r}:{r+1}]\nv_mov_b32 v{vOS}, v{v}\nv_mov_b32 v{vOS+1}, v{v+1}")

    def k_mfma(sl, c):
        d = vS2 if (c >> 2) & 1 else vS
        a(f"v_mfma_f32_16x16x32_bf16 {V(d,4)}, {slot(sl)}, {V(vBQ+4*(c&3),4)}, {V(d,4) if c & 3 else '0'}")

    def k_post(u, off):
        quadsum(vSC, vS2 if u & 1 else vS, vU0)
        a(f"v_max_f32 v{vMX}, v{vMX}, v{vSC}\nds_write_b32 v{vSA}, v{vSC} offset:{off}")

    def allmax(x):
        a(f"v_max_f32_dpp v{vU0}, v{x}, v{x} row_ror:4 {DPP}")
        a(f"v_max_f32_dpp v{vU0}, v{vU0}, v{vU0} row_ror:8 {DPP}")
        a(f"v_mov_b32 v{vU1}, v{vU0}\nv_permlane16_swap_b32 v{vU0}, v{vU1}\nv_max_f32 v{vU0}, v{vU0}, v{vU1}")
        a(f"v_mov_b32 v{vU1}, v{vU0}\nv_permlane32_swap_b32 v{vU0}, v{vU1}\nv_max_f32 v{vU0}, v{vU0}, v{vU1}")

    def claim():
        setexec(1)
        if "2x" in ABL: a(f"global_atomic_add v{vCA}, v{vONE}, s[{pWS}:{pWS+1}] offset:128 sc1")
        a(f"global_atomic_add v{vTK}, v{vCA}, v{vONE}, s[{pWS}:{pWS+1}] sc0 sc1")
        setexec(FULL)

    rF, sFO, sYS, sCXO, sMB = rW, 44, 45, 46, 47
    vFD, vFT, vAO, vAY, vAW, vAG, vAF, vCX, vRO = 20, 24, 28, 30, 31, 32, 33, 34, 35
    vPA = 50
    vWT, vBU, vY, vMS, vGS2, vG2 = 128, 160, 112, 192, 224, 232
    def fin_scalar():
        a(f"s_sub_u32 s{sT0}, s{sP}, 3\ns_and_b32 s{sT1}, s{sP}, 3\ns_cmp_lt_u32 s{sT0}, 4")
        a(f"s_cselect_b64 s[{rF}:{rF+1}], s[{pBWO}:{pBWO+1}], s[{pAWO}:{pAWO+1}]\ns_cselect_b32 s{sT0}, s{sT0}, s{sT1}")
        a(f"s_cselect_b32 s{sYS}, {WS_YB - WS_YA}, 0\ns_cselect_b32 s{sCXO}, {WS_SIZE}, 0\ns_add_u32 s{sYS}, s{sYS}, {WS_YA}\ns_add_u32 s{sCXO}, s{sCXO}, {WS_CX}")
        a(f"s_mov_b32 s{rF+2}, {4*MB}\ns_mov_b32 s{rF+3}, 0x20000")
        saddr(sFO, 0, (sH, 0, 0, 17), (sW, 0, 0, 15), (sT0, 0, 0, 8))
        saddr(sYS, f"s{sYS}", (sT0, 0, 0, 16), (sW, 1, 0, 15), (sH, 0, 0, 8), (sW, 0, 1, 7))
        saddr(sCXO, f"s{sCXO}", (sH, 0, 0, 11), (sW, 0, 0, 9))
        srd(rOUT, pOUT, 8192)
    def fin_dma(n, offs):
        if n % 4 == 0:
            a(f"s_lshl_b32 s{sT3}, s{sW}, 13\ns_add_u32 s{sT3}, s{sT3}, {LDS_W + 1024*n}\ns_mov_b32 m0, s{sT3}")
            if n: a(f"s_add_u32 s{sFO}, s{sFO}, 16384")
        a.vm(f"buffer_load_dwordx4 v{offs+n%4}, {R(rF)}, s{sFO} offen offset:{(n%4)*1024} nt lds", "FW")
    def fin_vec1():
        a(f"v_lshlrev_b32 v{vT0}, 2, v{vG}\nv_xor_b32 v{vT0}, v{vT0}, v{vJ}")
        for i in range(4):
            a(f"v_xor_b32 v{vT1}, {i}, v{vT0}\nv_lshlrev_b32 v{vT1}, 4, v{vT1}\nv_lshl_add_u32 v{vFD+i}, v{vG}, 10, v{vT1}")
            if i: a(f"v_add_u32 v{vFD+i}, {i*3072}, v{vFD+i}")
        saddr(sMB, WS_OP, (sH, 0, 0, 15), (sB, 0, 0, 13))
        vaddr(vT2, vT1, (vG, 0, 0, 7), (vJ, 0, 3, 4))
        a(f"v_lshrrev_b32 v{vT0}, 3, v{vJ}\nv_and_b32 v{vT3}, 3, v{vJ}\nv_min_u32 v{vT3}, 2, v{vT3}\nv_lshl_add_u32 v{vT3}, v{vT3}, 1, v{vT0}")
        for i in range(4):
            if i < 3: a(f"v_add_u32 v{vT1}, {2*i}, v{vT0}")
            else: a(f"v_mov_b32 v{vT1}, v{vT3}\nv_mov_b32 v{vT2}, 512")
            a(f"v_cmp_le_u32 vcc, s{sP}, v{vT1}\nv_addc_co_u32 v{vT1}, vcc, 0, v{vT1}, vcc\nv_lshl_add_u32 v{vPA+i}, v{vT1}, 10, v{vT2}")
        a(f"s_mul_i32 s{sT2}, s{sB}, 320\ns_add_u32 s{sT2}, s{sT2}, {LDS_O}")
        a(f"v_lshlrev_b32 v{vT0}, 6, v{vG}\nv_lshl_add_u32 v{vT0}, v{vJ}, 1, v{vT0}\nv_add_u32 v{vAW}, s{sT2}, v{vT0}")
    def fin_vec2():
        vaddr(vT0, vT1, (vG, 0, 0, 11), (vL, 2, 2, 8), (vL, 2, 2, 6), (vL, 4, 1, 5), (vL, 1, 1, 4), (vL, 0, 1, 3))
        a(f"s_lshl_b32 s{sT2}, s{sW}, 6\ns_add_u32 s{sT2}, s{sT2}, {LDS_W}\nv_xor_b32 v{vFT}, s{sT2}, v{vT0}")
        for i in range(1, 4): a(f"v_xor_b32 v{vFT+i}, {16*i}, v{vFT}")
        a(f"v_and_b32 v{vT0}, 3, v{vJ}\nv_lshrrev_b32 v{vT1}, 2, v{vJ}\nv_lshlrev_b32 v{vT2}, 4, v{vG}\nv_add_u32 v{vT2}, {LDS_O}, v{vT2}\ns_movk_i32 s{sT0}, 320")
        for u in range(2):
            a(f"v_cmp_eq_u32 vcc, {u}, v{vT1}\nv_cndmask_b32 v{vAO+u}, 4, v{vT0}, vcc\nv_mad_u32_u24 v{vAO+u}, v{vAO+u}, s{sT0}, v{vT2}")
        a(f"v_lshlrev_b32 v{vT1}, 2, v{vL}\nv_add_u32 v{vT1}, {LDS_O + 4*320}, v{vT1}\nv_mov_b32 v{vT2}, 0\nds_write_b32 v{vT1}, v{vT2}")
    def fin_vec3():
        vaddr(vAY, vT1, (vJ, 0, 0, 4), (vG, 0, 0, 13))
        saddr(sT0, 0, (sH, 0, 0, 13), (sW, 0, 0, 6))
        vaddr(vAG, vT1, (vL, 2, 0, 8), (vL, 0, 2, 4))
        a(f"v_add_u32 v{vAG}, s{sT0}, v{vAG}")
        saddr(sT0, 0, (sH, 2, 0, 7), (sW, 0, 0, 5), (sH, 0, 2, 3))
        vaddr(vAF, vT1, (vL, 0, 2, 11), (vG, 0, 0, 1))
        a(f"v_add_u32 v{vAF}, s{sT0}, v{vAF}")
        a(f"v_and_b32 v{vT1}, 31, v{vL}\nv_lshlrev_b32 v{vCX}, 4, v{vT1}\ns_mul_i32 s{sT2}, s{sW}, 320\ns_add_u32 s{sT2}, s{sT2}, {LDS_O}\nv_lshl_add_u32 v{vRO}, v{vT1}, 3, s{sT2}")

    def softmax_part():
        quadsum(vSC, vS, vU0)
        skip = a.label("nomax")
        a(f"v_fma_f32 v{vP}, v{vSC}, s{sC}, -v{vMC}\nv_cmp_lt_f32 vcc, 0, v{vP}\ns_cbranch_vccz {skip}")
        a(f"v_mul_f32 v{vSC}, s{sC}, v{vSC}")
        allmax(vSC)
        a(f"v_max_f32 v{vU0}, v{vU0}, v{vMC}")
        a(f"v_sub_f32 v{vU1}, v{vMC}, v{vU0}\nv_exp_f32 v{vU1}, v{vU1}\nv_mov_b32 v{vMC}, v{vU0}\nv_sub_f32 v{vP}, v{vSC}, v{vU0}")
        a(f"v_mul_f32 v{vLS}, v{vLS}, v{vU1}")
        for r in range(4):
            a(f"v_mul_f32 v{vO+r}, v{vO+r}, v{vU1}")
        a(f"{skip}:")
        a(f"v_exp_f32 v{vP}, v{vP}")
        a(f"v_cvt_pk_bf16_f32 v{vU0}, v{vP}, v{vP}\nv_add_f32 v{vLS}, v{vLS}, v{vP}")
        for t in range(4):
            for r in range(4):
                a(f"v_and_b32_dpp v{vPB+4*t+r}, v{vU0}, v{vMASK+r} row_newbcast:{4*t} {DPP}")

    def consume(sl, r, filler=None):
        if r < 4:
            c = V(vS, 4) if r else "0"
            a(f"v_mfma_f32_16x16x32_bf16 {V(vS,4)}, {slot(sl)}, {V(vBQ+4*r,4)}, {c}")
            if r == 3:
                if filler: filler()
                softmax_part()
        else:
            a(f"v_mfma_f32_16x16x32_bf16 {V(vO,4)}, {slot(sl)}, {V(vPB+4*(r-4),4)}, {V(vO,4)}")

    def q_poll():
        for i in range(2):
            a.vm(f"buffer_load_dwordx4 {V(vQ+4*i,4)}, v{vOQ}, {R(rWS)}, s{sQO} offen offset:{16*i} sc1", "Q")

    class Start:
        def __init__(self, pu): self.pu, self.n = pu, 0
        def load(self):
            n = self.n; self.n += 1
            if n == 0: unit_addr(sU0)
            kv_load(n % (8*self.pu), n % 4, sU0, f"P{n}")
            if n % 4 == 3:
                advance(n)
                unit_addr(sU0)
        def paced(self, depth):
            if f"P{self.n - depth}" in a.q: a.wait(f"P{self.n - depth}")
            self.load()
        def until_q(self, pollat):
            while self.n < pollat: self.paced(DP)
            q_poll()
            while self.n < min(pollat + DP - 1, 8*self.pu): self.paced(DP)
        def finish(self, hook=None):
            if "Q" in a.q: a.wait("Q")
            chk, ok = a.label("qcheck"), a.label("qok")
            a(f"{chk}:")
            untag(list(range(vQ, vQ+8)), vT0)
            a(f"s_cbranch_vccz {ok}" if not ({"QPst", "Q"} & set(ABL)) else f"s_branch {ok}")
            saved = list(a.q)
            q_poll()
            a("s_waitcnt vmcnt(0)")
            spin_guard(chk)
            a.q = saved
            a(f"{ok}:")
            stamp(2)
            def operands(q, bq):
                for r in range(4):
                    a(f"v_cvt_pk_bf16_f32 v{q+r}, v{q+2*r}, v{q+2*r+1}")
                for t in range(4):
                    m = 0x000f000f << (4*t)
                    a(f"s_mov_b32 vcc_lo, {m:#x}\ns_mov_b32 vcc_hi, {m:#x}")
                    for r in range(4):
                        a(f"v_cndmask_b32 v{bq+4*t+r}, 0, v{q+r}, vcc")
            operands(vQ, vBQ)
            N = 8 * self.pu
            a(f"v_mov_b32 v{vMX}, 0xff7f0000\ns_lshl_b32 s{sT2}, s{sW}, 14\ns_add_u32 s{sT2}, s{sT2}, {LDS_S}\nv_lshl_add_u32 v{vSA}, v{vL}, 2, s{sT2}")
            first, todo = self.n, N + D - self.n
            for c in range(N):
                want = first + (todo * (c + 1) + N - 1) // N
                while self.n < want and self.n - N < c:
                    self.paced(DP if self.n < N else max(D, DP - 1))
                if f"P{c}" in a.q: a.wait(f"P{c}")
                k_mfma(c, c)
                if c % 4 == 2 and c > 4: k_post(c // 4 - 1, 256 * (c // 4 - 1))
                if hook: hook(c)
                if N - c in (24, 18, 12, 6): {24: fin_scalar, 18: fin_vec1, 12: fin_vec2, 6: fin_vec3}[N - c]()
            while self.n < N + D: self.paced(DP)
            nu = NS - 1
            assert (nu - N // 4) % 2 == 0 and nu - N // 4 >= 4
            a(f"v_add_u32 v{vSA}, {256 * (N // 4 - 1)}, v{vSA}")
            a(f"s_mov_b32 s{sCNT}, {(nu - N // 4) // 2}\ns_mov_b32 s{sU1}, {nu}")
            if SLOW:
                assert XQ == (3, 2) and not PAIR
                a(f"s_and_b32 s{sT0}, s{sH}, 3\ns_sub_u32 s{sPS}, s{sT0}, 2\ns_cmp_ge_u32 s{sT0}, 2\ns_cselect_b32 s{sPS}, s{sPS}, 8\ns_cselect_b32 s{sND}, {NDYN + SLOW}, {NDYN}")
                a(f"s_cmp_eq_u32 s{sPS}, s{sP}\ns_cselect_b32 s{sT0}, {SLOW}, 0\ns_sub_u32 s{sU1}, s{sU1}, s{sT0}\ns_lshr_b32 s{sT0}, s{sT0}, 1\ns_sub_u32 s{sCNT}, s{sCNT}, s{sT0}")
                a(f"s_add_u32 s{sPS}, s{sPS}, {7*(nu - SLOW - NTAIL)}")
            else: a(f"s_mov_b32 s{sND}, {NDYN}")
            a(f"s_sub_u32 s{sEND}, s{sND}, 1")
            a(f"s_mov_b32 s{rS+2}, {128*MB}\ns_mov_b32 s{rS+3}, 0x20000")
            use(False)
            stamp(3)

    saddr(sT0, -3 << 17, (2, 0, 3, 21), (sH, 3, 0, 19), (sP, 0, 0, 17), (sW, 0, 0, 12))
    vaddr(vT0, vT1, (vL, 0, 5, 7), (vL, 5, 0, 15))
    a(f"s_mov_b32 s{rW+2}, {16*MB}\ns_mov_b32 s{rW+3}, 0x20000\ns_waitcnt lgkmcnt(0)\ns_mov_b64 s[{rW}:{rW+1}], s[{pCK}:{pCK+1}]")
    soft(0)
    for i, step in enumerate((16384, 49152, 16384, 0)):
        a.vm(f"buffer_load_dword v{vX+i}, v{vT0}, {R(rW)}, s{sT0} offen", "T")
        if step: a(f"s_add_u32 s{sT0}, s{sT0}, {step}")
    consts(); kv_setup(); srd(rK, pK, 128*MB); srd(rV, pV, 128*MB); masks(); kv_late()
    soft(1); soft_flush()
    st = Start(PU)
    for _ in range(DP): st.load()
    stamp(1)
    st.until_q(POLLP)
    take_tag()
    st.finish()

    a("L_bloop:")
    for r in range(8):
        n = r + D
        a(f"s_waitcnt vmcnt({D-1})")
        s_load_(n % 8, n % 4, "loop")
        k_mfma(r, r)
        if n % 4 == 3:
            advance(n)
            if n % 8 == 7:
                skip = a.label("stayk")
                a(f"s_cmp_lg_u32 s{sCNT}, 1\ns_cbranch_scc1 {skip}")
                use(True)
                a(f"s_mul_i32 s{sT1}, s{sU1}, 7\ns_sub_u32 s{sTK}, s{sTK}, s{sT1}")
                a(f"{skip}:")
            unit_addr(sU0)
        if r % 4 == 1: k_post(r // 4 + 1, 256 * (r // 4))
    a(f"v_add_u32 v{vSA}, 512, v{vSA}")
    a(f"s_sub_u32 s{sCNT}, s{sCNT}, 1\ns_cmp_lg_u32 s{sCNT}, 0\ns_cbranch_scc1 L_bloop")
    def v_addr(n):
        skip = a.label("stayv")
        advance(n)
        a(f"s_cmp_lg_u32 s{sCNT}, 1\ns_cbranch_scc1 {skip}")
        use(n % 8 != 7)
        if n % 8 == 7: claim()
        a(f"s_add_u32 s{sTK}, s{sP}, {7*(NS-1)}")
        a(f"{skip}:")
        unit_addr(sU0)
    for n in range(D, DV):
        s_load_(n, n % 4, "loop")
        assert n % 4 != 3
    k_post(1, 0)
    a(f"v_mov_b32 v{vP}, 0xff7f0000\nds_write_b32 v{vSA}, v{vP} offset:256")
    a(f"s_lshl_b32 s{sT2}, s{sW}, 14\ns_add_u32 s{sT2}, s{sT2}, {LDS_S}\nv_lshl_add_u32 v{vSA}, v{vL}, 2, s{sT2}")
    a(f"ds_read_b32 v{vSN}, v{vSA}\nds_read_b32 v{vSN+1}, v{vSA} offset:256")
    a(f"v_mul_f32 v{vMX}, s{sC}, v{vMX}")
    allmax(vMX)
    a(f"v_mov_b32 v{vMC}, v{vU0}\ns_lshr_b32 s{sCNT}, s{sU1}, 1")
    stamp(5)
    def p_next(i):
        a(f"s_waitcnt lgkmcnt(1)\nv_fma_f32 v{vP}, v{vSN+i}, s{sC}, -v{vMC}\nv_exp_f32 v{vP}, v{vP}")
        a(f"ds_read_b32 v{vSN+i}, v{vSA} offset:{512 + 256*i}")
        a(f"v_cvt_pk_bf16_f32 v{vPN+i}, v{vP}, v{vP}\nv_add_f32 v{vLS}, v{vLS}, v{vP}")
    p_next(0)
    a("L_vloop:")
    for r in range(8):
        n = r + DV
        pb = vPB + 8 + 4*(r & 1)
        for q in range(4):
            a(f"v_and_b32_dpp v{pb+q}, v{vPN + (r >> 2)}, v{vMASK+q} row_newbcast:{4*(r&3)} {DPP}")
        a(f"s_waitcnt vmcnt({DV-1})")
        s_load_(n % 8, n % 4, "loop")
        a(f"v_mfma_f32_16x16x32_bf16 {V(vO,4)}, {slot(r)}, {V(pb,4)}, {V(vO,4)}")
        if n % 4 == 3: v_addr(n)
        if r == 1: p_next(1)
        if r == 5:
            a(f"v_add_u32 v{vSA}, 512, v{vSA}")
            p_next(0)
    a(f"s_sub_u32 s{sCNT}, s{sCNT}, 1\ns_cmp_lg_u32 s{sCNT}, 0\ns_cbranch_scc1 L_vloop")
    stamp(6)
    for n in range(DV, D2): kv_load(n, n, sU0, "loop")
    a("L_dloop:")
    for half in range(2):
        for r in range(8):
            a(f"s_waitcnt vmcnt(7)")
            if r == 0:
                skip = a.label("noclaim")
                a(f"v_readfirstlane_b32 s{sIT}, v{vTK}\nv_mov_b32 v{vTK}, 64")
                a(f"s_cmp_ge_u32 s{sIT}, s{sND}\ns_cbranch_scc1 L_last{half}\ns_add_u32 s{sTK}, s{sIT}, {7*NS}")
                if SLOW: a(f"s_mul_i32 s{sT0}, s{sIT}, 7\ns_add_u32 s{sT0}, s{sT0}, s{sPS}\ns_cmp_ge_u32 s{sIT}, {NTAIL}\ns_cselect_b32 s{sTK}, s{sT0}, s{sTK}")
                unit_addr(sU0)
                a(f"s_cmp_ge_u32 s{sIT}, s{sEND}\ns_cbranch_scc1 {skip}")
                claim()
                a(f"{skip}:")
            kv_load((half*8 + 8 + r) % 16, r, sU0, "loop")
            consume(half*8 + r, r)
    a("s_branch L_dloop")
    def cx_load():
        a.vm(f"buffer_load_dwordx4 {V(vGS2,4)}, v{vCX}, {R(rWS)}, s{sCXO} offen sc1", "CX")
    for half in (1, 0):
        a(f"L_last{half}:")
        a.q = [f"R{r}" for r in range(1, 8)]
        cx_load()
        if NFA != NFB: a(f"s_mov_b32 s{sU1}, s{sFO}\ns_cmp_lt_u32 s{sP}, 3\ns_cselect_b32 s{sFO}, {4*MB}, s{sFO}")
        for r in range(8):
            if r: a.wait(f"R{r}")
            if r >= 8 - NFB: fin_dma(r - 8 + NFB, vFD)
            consume(half*8 + r, r)
            if r == 4:
                a(f"v_add_f32_dpp v{vLS}, v{vLS}, v{vLS} row_ror:8 {DPP}")
                a(f"v_add_f32_dpp v{vLS}, v{vLS}, v{vLS} row_ror:4 {DPP}")
                a(f"v_mov_b32 v{vU1}, v{vLS}")
                a(f"v_permlane16_swap_b32 v{vLS}, v{vU1}\nv_add_f32 v{vLS}, v{vLS}, v{vU1}\nv_mov_b32 v{vU1}, v{vLS}")
                a(f"v_permlane32_swap_b32 v{vLS}, v{vU1}\nv_add_f32 v{vLS}, v{vLS}, v{vU1}")
                a(f"v_and_b32 v{vU1}, s{sHI24}, v{vMC}\nv_sub_f32 v{vU1}, v{vMC}, v{vU1}")
                a(f"s_mov_b32 vcc_lo, 0xff00ff00\ns_mov_b32 vcc_hi, 0xff00ff00")
        if half: a("s_branch L_bdone")
    a("L_bdone:")
    a(f"v_cndmask_b32 v{vO}, v{vO}, v{vMC}, vcc\nv_cndmask_b32 v{vO+1}, v{vO+1}, v{vLS}, vcc\nv_cndmask_b32 v{vO+2}, v{vO+2}, v{vU1}, vcc")
    tag([vO+3, vO, vO+1, vO+2])
    setexec(0x00ff00ff00ff01ff)
    a.vm(f"buffer_store_dwordx4 {V(vO,4)}, v{vOP}, {R(rWS)}, s{sMSG} offen sc1", "OPst")
    setexec(FULL)
    tsoft(0)
    stamp(4)
    a(f"s_cmp_lt_u32 s{sP}, 3\ns_cbranch_scc1 L_ctx")
    vFA, vFB, vOO = vSC, vP, 104
    assert NFA in (0, NFB)
    def m_round():
        for i in (3, 0, 1, 2):
            a(f"buffer_load_dwordx4 {V(vMS+4*i,4)}, v{vPA+i}, {R(rWS)}, s{sMB} offen sc1")
    if PFIRST: m_round()
    for n in range(NFB, 8): fin_dma(n, vFD)
    if not PFIRST: m_round()
    for r in range(4): a(f"v_xor_b32 v{vOO+r}, s{sTAG}, v{vO+r}")
    a(f"v_mov_b32 v{vT1}, 0xff7f0000\nv_cndmask_b32 v{vMC}, v{vMC}, v{vT1}, vcc\nv_and_b32 v{vLS}, s{sHI24}, v{vLS}")
    a(f"s_mov_b32 s{sU0+1}, 0x88888888\ns_mov_b32 s{sU0+2}, 0x88888888")
    a(f"s_waitcnt vmcnt({8 - NFB if PFIRST else 0})\nL_hop1poll:")
    untag(list(range(vMS, vMS+16)), vT0)
    a(f"v_add_f32 v{vFA}, v{vMS+12}, v{vMS+14}")
    a("s_cbranch_vccz L_hop1ok")
    m_round()
    a("s_waitcnt vmcnt(0)")
    spin_guard("L_hop1poll")
    a("L_ctx:")
    if NFA != NFB: a(f"s_mov_b32 s{sFO}, s{sU1}")
    for n in range(NFA, 8): fin_dma(n, vFD)
    a(f"s_waitcnt vmcnt({1 + 8 - NFA})")
    a("L_ctxcheck:")
    untag(list(range(vGS2, vGS2+4)), vT0)
    a("s_cbranch_vccz L_ctxok")
    cx_load()
    a("s_waitcnt vmcnt(0)")
    spin_guard("L_ctxcheck")
    a("L_ctxok:")
    a(f"v_cvt_pk_bf16_f32 v{vGS2}, v{vGS2}, v{vGS2+1}\nv_cvt_pk_bf16_f32 v{vGS2+1}, v{vGS2+2}, v{vGS2+3}")
    a(f"ds_write_b64 v{vRO}, {V(vGS2,2)}\ns_branch L_final")
    a("L_hop1ok:")
    tsoft(1)
    mk3 = f"s[{sU0+1}:{sU0+2}]"
    a(f"v_cndmask_b32 v{vFA}, v{vFA}, v{vMC}, {mk3}\nv_cndmask_b32 v{vFB}, v{vMS+13}, v{vLS}, {mk3}")
    steps = ("quad_perm:[1,0,3,2]", "quad_perm:[2,3,0,1]", "row_ror:8")
    for n, st_ in enumerate(steps):
        x = vT1 if n else vFA
        a(f"v_max_f32_dpp v{vT1}, v{x}, v{x} {st_} {DPP}")
    a(f"v_sub_f32 v{vFA}, v{vFA}, v{vT1}\nv_exp_f32 v{vFA}, v{vFA}\nv_mul_f32 v{vFB}, v{vFB}, v{vFA}")
    for i in (3, 0, 1, 2):
        if i < 3: a(f"v_add_f32_dpp v{vFB}, v{vFB}, v{vFB} {steps[i]} {DPP}")
        for r in range(4):
            if i == 3: a(f"v_mul_f32_dpp v{vOO+r}, v{vFA}, v{vOO+r} quad_perm:[3,3,3,3] {DPP}")
            else: a(f"v_fmac_f32_dpp v{vOO+r}, v{vFA}, v{vMS+4*i+r} quad_perm:[{i},{i},{i},{i}] {DPP}")
    a(f"v_rcp_f32 v{vFB}, v{vFB}")
    for r in range(4):
        a(f"v_add_f32_dpp v{vOO+r}, v{vOO+r}, v{vOO+r} row_ror:8 {DPP}")
    for r in range(4):
        a(f"v_mul_f32 v{vOO+r}, v{vOO+r}, v{vFB}")
    a(f"v_cvt_pk_bf16_f32 v{vOO}, v{vOO}, v{vOO+1}\nv_cvt_pk_bf16_f32 v{vOO+2}, v{vOO+2}, v{vOO+3}")
    setexec(0x00ff00ff00ff00ff)
    a(f"ds_write_b16 v{vAW}, v{vOO}\nds_write_b16_d16_hi v{vAW}, v{vOO} offset:16")
    a(f"ds_write_b16 v{vAW}, v{vOO+2} offset:32\nds_write_b16_d16_hi v{vAW}, v{vOO+2} offset:48")
    setexec(FULL)
    a("L_final:")
    a("s_waitcnt vmcnt(0) lgkmcnt(0)\ns_barrier")
    tsoft(2)
    def f_reads(i):
        u, k = i >> 2, i & 3
        for pi in range(2):
            a(f"ds_read_b64_tr_b16 {V(vWT+4*i+2*pi,2)}, v{vFT+2*u+pi} offset:{8192*k+1024*pi}")
        a(f"ds_read_b128 {V(vBU+4*i,4)}, v{vAO+u} offset:{64*k}")
    for i in range(4): f_reads(i)
    for i in range(8):
        if i + 4 < 8: f_reads(i + 4)
        a(f"s_waitcnt lgkmcnt({3 * min(4, 7 - i)})")
        a(f"v_mfma_f32_16x16x32_bf16 {V(vY,4)}, {V(vWT+4*i,4)}, {V(vBU+4*i,4)}, {V(vY,4) if i else '0'}")
    a(f"s_cmp_eq_u32 s{sP}, 0\ns_cselect_b32 s{sT0}, 0, {WS_YB - WS_YA}\ns_cselect_b32 s{sT3}, 0, 1024\ns_add_u32 s{sT0}, s{sT0}, {WS_YA}\ns_add_u32 s{sT1}, s{sT0}, 4096")
    setexec(0x00ff00ff00ff00ff)
    tag(range(vY, vY+4))
    a.vm(f"buffer_store_dwordx4 {V(vY,4)}, v{vAY}, {R(rWS)}, s{sYS} offen sc1", "Yst")
    setexec(FULL)
    tsoft(3)
    stamp(11)
    a(f"s_sub_u32 s{sT2}, s{sP}, 1\ns_cmp_lt_u32 s{sT2}, 6\ns_cbranch_scc1 L_done")
    a("L_hop2:")
    for i in range(2):
        a(f"buffer_load_dwordx4 {V(vGS2+4*i,4)}, v{vAG}, {R(rWS)}, s{sT1 if i else sT0} offen sc1")
    a("s_waitcnt vmcnt(0)")
    untag(list(range(vGS2, vGS2+8)), vT0)
    for r in range(4):
        a(f"v_add_f32 v{vG2+r}, v{vGS2+r}, v{vGS2+4+r}")
    a("s_cbranch_vccz L_hop2ok")
    spin_guard("L_hop2")
    a("L_hop2ok:")
    tsoft(4)
    a(f"v_permlane16_swap_b32 v{vG2}, v{vG2+1}\nv_permlane16_swap_b32 v{vG2+2}, v{vG2+3}")
    a(f"v_add_f32 v{vG2}, v{vG2}, v{vG2+1}\nv_add_f32 v{vG2+2}, v{vG2+2}, v{vG2+3}")
    a(f"v_permlane32_swap_b32 v{vG2}, v{vG2+2}\nv_add_f32 v{vG2}, v{vG2}, v{vG2+2}")
    a(f"v_add_f32_dpp v{vG2}, v{vG2}, v{vG2} row_ror:8 {DPP}\nv_add_f32_dpp v{vG2}, v{vG2}, v{vG2} row_ror:4 {DPP}")
    a(f"v_cvt_pk_bf16_f32 v{vG2}, v{vG2}, v{vG2}")
    setexec(0x000f000f000f000f)
    a(f"buffer_store_short v{vG2}, v{vAF}, {R(rOUT)}, s{sT3} offen")
    tsoft(5)
    stamp(13)
    a(f"s_or_b32 s{sT0}, s2, s{sW}\ns_cmp_lg_u32 s{sT0}, 0\ns_cbranch_scc1 L_done\nv_mov_b32 v{vT0}, 0")
    setexec(1)
    a(f"buffer_store_dword v{vTAG}, v{vT0}, {R(rWS)}, 0 offen")
    a("L_done:")
    tflush()
    a("L_end:\ns_endpgm")

    a("L_qp:")
    a.q = []
    a(f"v_lshlrev_b32 v{vT0}, 18, v{vG}\nv_lshl_add_u32 v{vOW}, v{vJ}, 4, v{vT0}")
    a(f"v_lshrrev_b32 v{vT1}, 3, v{vJ}\nv_lshlrev_b32 v{vT1}, 10, v{vT1}\nv_lshl_add_u32 v{vOX}, v{vG}, 6, v{vT1}")
    a(f"s_cmp_eq_u32 s{sP}, 0\ns_cselect_b32 s{sHJ}, {XQ[0]}, {XQ[1]}\ns_xor_b32 s{sHJ}, s{sHJ}, s{sH}")
    a(f"s_lshl_b32 s{sU1}, s{sW}, 8\ns_lshl_b32 s{sWO}, s{sW}, 20\ns_lshl_b32 s{sT2}, s{sHJ}, 8\ns_add_u32 s{sWO}, s{sWO}, s{sT2}")
    a(f"s_mov_b32 s{rW+2}, {4*MB}\ns_mov_b32 s{rW+3}, 0x20000\ns_mov_b32 s{rX+2}, 4096\ns_mov_b32 s{rX+3}, 0x20000")
    a(f"s_cmp_eq_u32 s{sP}, 0\ns_waitcnt lgkmcnt(0)")
    a(f"s_cselect_b64 s[{rW}:{rW+1}], s[{pBWQ}:{pBWQ+1}], s[{pAWQ}:{pAWQ+1}]\ns_cselect_b64 s[{rX}:{rX+1}], s[{pBX}:{pBX+1}], s[{pAX}:{pAX+1}]")
    def w_load(t):
        a.vm(f"buffer_load_dwordx4 {A(A1+4*t,4)}, v{vOW}, {R(rW)}, s{sWO} offen nt", f"W{t}")
        a(f"s_add_u32 s{sWO}, s{sWO}, 8192")
    def x_load(i):
        for u in range(2):
            a.vm(f"buffer_load_dwordx4 {V(vX+16*u+4*i,4)}, v{vOX}, {R(rX)}, s{sU1} offen offset:{2048*u+16*i}", f"X{i}")
    soft(0)
    w_load(0); w_load(1); x_load(0)
    for t in range(2, 8): w_load(t)
    consts(); masks()
    for i in range(1, 4): x_load(i)
    saddr(sT0, WS_CT, (sHJ, 0, 0, 10), (sW, 0, 0, 8))
    a(f"v_mov_b32 v{vTK}, 0\ns_cmp_eq_u32 s{sP}, 0\ns_cselect_b32 s{sT2}, s{sT0}, {WS_SIZE}")
    setexec(1)
    a.vm(f"buffer_store_dword v{vTK}, v{vTK}, {R(rWS)}, s{sT2} offen sc1", "INIT")
    setexec(FULL)
    st = Start(PUJ)
    todo = [lambda t=t: w_load(t) for t in range(8, 32)] + [lambda: None] * (8 - DP) + [st.load] * DP
    late = {4: kv_setup, 8: lambda: (srd(rK, pK, 128*MB), srd(rV, pV, 128*MB)), 12: kv_late}
    a(f"s_mov_b32 s{sSELLO}, 0x01000100\ns_mov_b32 s{sSELHI}, 0x03020302")
    for t in range(32):
        if f"X{t//8}" in a.q: a.wait(f"X{t//8}")
        if t == 0: soft(1); soft_flush()
        if f"W{t}" in a.q: a.wait(f"W{t}")
        todo.pop(0)()
        if t in late: late[t]()
        for u in range(2):
            x = vX + 16*u + (t >> 1)
            a(f"v_perm_b32 v{vT0+u}, v{x}, v{x}, s{sSELHI if t & 1 else sSELLO}")
        for u in range(2):
            for r in range(4):
                a(f"v_and_b32 v{vB+4*u+r}, v{vT0+u}, v{vMASK+r}")
        for u in range(2):
            c = V(vACC+4*u, 4) if t else "0"
            a(f"v_mfma_f32_16x16x32_bf16 {V(vACC+4*u,4)}, {A(A1+4*t,4)}, {V(vB+4*u,4)}, {c}")
    a(f"s_lshl_b32 s{sT2}, s{sW}, 11")
    a(f"v_lshrrev_b32 v{vT0}, 3, v{vJ}\nv_lshlrev_b32 v{vT0}, 9, v{vT0}\nv_lshl_add_u32 v{vT0}, v{vG}, 7, v{vT0}")
    a(f"v_and_b32 v{vT1}, 7, v{vJ}\nv_lshl_add_u32 v{vT0}, v{vT1}, 2, v{vT0}\nv_add_u32 v{vT0}, s{sT2}, v{vT0}")
    for u in range(2):
        for r in range(4):
            a(f"ds_write_b32 v{vT0}, v{vACC+4*u+r} offset:{u*1024+r*32}")
    a(f"s_lshl_b32 s{sT2}, s{sW}, 9\nv_and_b32 v{vT1}, 31, v{vL}\nv_lshl_add_u32 v{vT1}, v{vT1}, 4, s{sT2}")
    take_tag()
    a("s_barrier")
    for p in range(4):
        a(f"ds_read_b128 {V(vX+4*p,4)}, v{vT1} offset:{p*2048}")
    saddr(sT0, WS_QP, (sHJ, 0, 0, 12), (sP, 0, 0, 11))
    a("s_waitcnt lgkmcnt(0)")
    for r in range(4):
        a(f"v_add_f32 v{vX+r}, v{vX+r}, v{vX+4+r}\nv_add_f32 v{vX+8+r}, v{vX+8+r}, v{vX+12+r}")
    for r in range(4):
        a(f"v_add_f32 v{vX+r}, v{vX+r}, v{vX+8+r}")
    tag_bf16(range(vX, vX+4))
    assert "INIT" not in a.q
    setexec(0xffffffff)
    a.vm(f"buffer_store_dwordx4 {V(vX,4)}, v{vT1}, {R(rWS)}, s{sT0} offen sc1", "QPst")
    setexec(FULL)
    stamp(1)
    st.until_q(POLLQ)
    st.finish()
    a("s_branch L_bloop")

    a("L_ql:")
    a.q = []
    vOU, vOA, vOL, sUK, sQA, sQL = vOW, vOX, vTK, sWO, sCKO, sSLOT
    vQA, vD, vPK, vR = 20, 28, 44, 60
    a(f"v_lshrrev_b32 v{vT0}, 2, v{vJ}\nv_and_b32 v{vT1}, 3, v{vJ}")
    a(f"v_lshlrev_b32 v{vOL}, 6, v{vG}\nv_lshl_add_u32 v{vOL}, v{vT1}, 4, v{vOL}\nv_lshl_add_u32 v{vOU}, v{vT0}, 18, v{vOL}")
    sHU, sWU = sHJ, sC2
    a(f"s_and_b32 s{sHU}, s{sH}, 28\ns_add_u32 s{sHU}, s{sHU}, s{sW}\ns_and_b32 s{sWU}, s{sH}, 3")
    saddr(sUK, 0, (sWU, 0, 0, 20), (sHU, 0, 0, 8))
    a(f"s_mov_b32 s{rUK+2}, {4*MB}\ns_mov_b32 s{rUK+3}, 0x20000\ns_waitcnt lgkmcnt(0)\ns_mov_b64 s[{rUK}:{rUK+1}], s[{pUK}:{pUK+1}]")
    def uk_load(t):
        if f"UK{t-8}" in a.q: a.wait(f"UK{t-8}")
        a.vm(f"buffer_load_dwordx4 {A(A1+4*t,4)}, v{vOU}, {R(rUK)}, s{sUK} offen nt", f"UK{t}")
        a(f"s_add_u32 s{sUK}, s{sUK}, 8192")
    soft(0)
    for t in range(8): uk_load(t)
    a(f"v_lshlrev_b32 v{vOA}, 1, v{vOL}\nv_lshl_add_u32 v{vOA}, v{vT0}, 9, v{vOA}")
    a(f"v_lshl_add_u32 v{vOL}, v{vT0}, 15, v{vOL}")
    consts()
    soft(1); soft_flush()
    saddr(sQA, WS_QP + 2048, (sHU, 0, 0, 12))
    saddr(sQL, WS_QL, (sHU, 0, 0, 10), (sWU, 0, 0, 8))
    late = {12: masks, 16: kv_setup, 20: lambda: (srd(rK, pK, 128*MB), srd(rV, pV, 128*MB)), 24: kv_late}
    for t in range(8, 32):
        uk_load(t)
        if t in late: late[t]()
    take_tag(True)
    st = Start(PUJ)
    for t in range(32 - DP, 32):
        a.wait(f"UK{t}"); st.load()
    def qa_poll():
        for i in range(2):
            a.vm(f"buffer_load_dwordx4 {V(vQA+4*i,4)}, v{vOA}, {R(rWS)}, s{sQA} offen offset:{16*i} sc1", "QA")
    while st.n < POLLU: st.paced(DP)
    qa_poll()
    while st.n < POLLU + DP - 1: st.paced(DP)
    a.wait("QA")
    chk, ok = a.label("qacheck"), a.label("qaok")
    a(f"{chk}:")
    untag(list(range(vQA, vQA+8)), vT0)
    a(f"s_cbranch_vccz {ok}" if not ({"QPst", "Q"} & set(ABL)) else f"s_branch {ok}")
    saved = list(a.q)
    qa_poll()
    a("s_waitcnt vmcnt(0)")
    spin_guard(chk)
    a.q = saved
    a(f"{ok}:")
    q_poll()
    for r in range(4):
        a(f"v_cvt_pk_bf16_f32 v{vQA+r}, v{vQA+2*r}, v{vQA+2*r+1}")
    def fold(t):
        quadsum(vR + (t & 1), vD + 4*(t % 4), vT0)
        if t & 1: a(f"v_cvt_pk_bf16_f32 v{vPK+t//2}, v{vR}, v{vR+1}")
    for t in range(32):
        a(f"v_mfma_f32_16x16x32_bf16 {V(vD+4*(t%4),4)}, {A(A1+4*t,4)}, {V(vQA,4)}, 0")
        if t >= 2: fold(t - 2)
        if t % 8 == 4 and st.n < 8*PUJ: st.load()
    fold(30); fold(31)
    for q in range(1, 4):
        setexec(0x1111111111111111 << q)
        for r in range(4):
            a(f"v_mov_b32 v{vPK+r}, v{vPK+4*q+r}")
    setexec(FULL)
    a.vm(f"buffer_store_dwordx4 {V(vPK,4)}, v{vOL}, {R(rWS)}, s{sQL} offen sc1", "QLst")
    stamp(1)
    done = []
    def sig(c):
        if not done and ("QLst" not in a.q or c == 15):
            done.append(c); signal("QLst", WS_F1, 48)
    st.finish(sig)
    a("s_branch L_bloop")

    a("L_aux:")
    role[0] = "A"
    a.q = []
    vOR1 = 9
    vOC, vOC8 = 76, 10
    vAQ, vAD = 60, 82
    vM, vLL, vAL, vEX = 90, 91, 92, 94
    vWR, vZ, vL2 = 96, 100, 102
    vQL, vPP, vCT, vKQ, vSS = 36, 52, 104, 136, 200
    vE1, vE2 = vKQ, vKQ + 16
    aKA = A0
    vTA = 136
    sHH = sSLOT
    a(f"v_lshlrev_b32 v{vT0}, 2, v{vG}\nv_xor_b32 v{vT0}, v{vT0}, v{vJ}")
    for i in range(4):
        a(f"v_xor_b32 v{vWR+i}, {i}, v{vT0}\nv_lshlrev_b32 v{vWR+i}, 4, v{vWR+i}\nv_lshl_add_u32 v{vOC8+i}, v{vG}, 13, v{vWR+i}")
        if i: a(f"v_add_u32 v{vOC8+i}, {i*(32768-1024)}, v{vOC8+i}")
    a(f"s_lshl_b32 s{sM0}, s{sW}, 15\ns_mov_b32 s{sFILL}, 0")
    saddr(sCKO, 0, (sW, 0, 0, 20), (sH, 0, 0, 8))
    a("s_waitcnt lgkmcnt(0)")
    srd(rCK, pUV, 4*MB)
    def ck_one(n, tg, offs=vOC, step=16384):
        if n % 4 == 0:
            a(f"s_add_u32 s{sT3}, s{sM0}, s{sFILL}\ns_mov_b32 m0, s{sT3}")
            a(f"s_add_u32 s{sFILL}, s{sFILL}, 4096\ns_and_b32 s{sFILL}, s{sFILL}, 0x7fff")
        a.vm(f"buffer_load_dwordx4 v{offs+n%4}, {R(rCK)}, s{sCKO} offen offset:{(n%4)*1024} nt lds", tg)
        if n % 4 == 3:
            a(f"s_add_u32 s{sCKO}, s{sCKO}, {step}")
    soft(0)
    for n in range(8): ck_one(n, "UV0", vOC8, 16*8192)
    consts()
    if "noaux" in ABL: a("s_endpgm")
    for i in range(4):
        a(f"v_lshl_add_u32 v{vOC+i}, v{vG}, 10, v{vWR+i}\nv_lshl_add_u32 v{vWR+i}, v{vG}, 8, v{vWR+i}")
        if i: a(f"v_add_u32 v{vOC+i}, {i*3072}, v{vOC+i}")
    vaddr(vZ+1, vZ, (vL, 0, 5, 8))
    vaddr(vOR1, vT0, (vJ, 0, 0, 4), (vG, 0, 0, 10))
    a(f"v_xor_b32 v{vT1}, v{vJ}, v{vG}")
    vaddr(vT2, vT0, (vJ, 2, 1, 11), (vJ, 3, 1, 10), (vJ, 0, 2, 8), (vT1, 0, 2, 6), (vJ, 2, 1, 5), (vJ, 3, 1, 4))
    a(f"v_add_u32 v{vAQ}, s{sM0}, v{vT2}")
    for k in range(1, 4): a(f"v_xor_b32 v{vAQ+k}, {16*k}, v{vAQ}")
    a(f"v_lshrrev_b32 v{vT1}, 4, v{vL}\nv_xor_b32 v{vT1}, v{vT1}, v{vL}")
    vaddr(vT2, vT0, (vL, 4, 1, 11), (vL, 5, 1, 10), (vL, 2, 2, 8), (vL, 2, 2, 6), (vL, 4, 1, 5), (vT1, 1, 1, 4), (vL, 0, 1, 3))
    a(f"v_add_u32 v{vAD}, s{sM0}, v{vT2}")
    for k in range(1, 8): a(f"v_xor_b32 v{vAD+k}, {32*k}, v{vAD}")
    vaddr(vT2, vT0, (vG, 0, 0, 11), (vL, 2, 2, 8), (vL, 2, 2, 6), (vL, 4, 1, 5), (vL, 1, 1, 4), (vL, 0, 1, 3))
    a(f"v_add_u32 v{vTA}, s{sM0}, v{vT2}")
    for i in range(1, 16): a(f"v_xor_b32 v{vTA+i}, {16*i}, v{vTA}")
    a(f"s_lshl_b32 s{sU0}, s{sW}, 13\ns_add_u32 s{sU0}, s{sU0}, {LDS_EX}\nv_lshl_add_u32 v{vEX}, v{vL}, 4, s{sU0}")
    for i in range(4):
        a(f"v_add_u32 v{vWR+i}, s{sU0}, v{vWR+i}")
    soft(1); soft_flush()
    for k in range(1, 4):
        for n in range(8): ck_one(n, f"UV{k}", vOC8, 16*8192)
    take_tag(True)
    srd(rCK, pCK, 16*MB)
    saddr(sIX, 0, (sH, 0, 3, 1), (sH, 4, 0, 0))
    a(f"s_bfe_u32 s{sHH}, s{sH}, 0x10003")
    saddr(sCKO, 0, (sIX, 0, 0, 20), (sW, 0, 0, 8))

    def flag_load(off):
        a(f"s_mov_b32 s{sU1}, {off}")
        a.vm(f"buffer_load_dword v{vT3}, v{vZ+1}, {R(rWS)}, s{sU1} offen sc1", "FL")

    def flag_wait(off):
        a.wait("FL")
        chk, ok = a.label("fcheck"), a.label("fok")
        a(f"{chk}:\nv_cmp_ne_u32 vcc, s{sFLAG}, v{vT3}\ns_cbranch_vccz {ok}")
        saved = list(a.q)
        a(f"s_sleep {FSL}")
        flag_load(off)
        a("s_waitcnt vmcnt(0)")
        spin_guard(chk)
        a.q = saved
        a(f"{ok}:")

    N1 = 10
    for k in range(4):
        a.wait(f"UV{k}")
        for nt in range(8):
            for pi in range(2):
                a(f"ds_read_b64_tr_b16 {A(A1+16*nt+4*k+2*pi,2)}, v{vTA+2*nt+pi} offset:{8192*k+1024*pi}")
        a("s_waitcnt lgkmcnt(0)")
        for n in range(8 if k < 3 else N1 - 8): ck_one(n, f"CK{k}")
    flag_load(WS_F1)
    stamp(2)
    if "noatt" in ABL: a("s_endpgm")
    for i in range(32): a(f"v_mov_b32 v{vCT+i}, 0")
    a(f"v_mov_b32 v{vM}, 0xff7f0000\ns_mov_b32 s{sIT}, 0")
    a(f"v_mov_b32 v{vL2}, 0\nv_mov_b32 v{vL2+1}, 0\ns_mov_b32 s{sC2}, s{sC}\ns_mov_b32 s{sC2+1}, s{sC}")
    a(f"v_xor_b32 v{vT1}, v{vJ}, v{vG}")
    vaddr(vT2, vT0, (vJ, 0, 0, 8), (vT1, 0, 2, 6), (vJ, 2, 0, 4))
    a(f"v_add_u32 v{vPP}, s{sU0}, v{vT2}")
    for k in range(1, 4): a(f"v_xor_b32 v{vPP+k}, {16*k}, v{vPP}")
    saddr(sT0, WS_QL, (sIX, 2, 0, 15), (sHH, 0, 0, 14), (sW, 0, 0, 8))
    flag_wait(WS_F1)
    stamp(4)
    for i in range(4):
        a.vm(f"buffer_load_dwordx4 {V(vSS+4*i,4)}, v{vOR1}, {R(rWS)}, s{sT0} offen sc1", f"QLg{i}")
        if i < 3: a(f"s_add_u32 s{sT0}, s{sT0}, 4096")
    kq_read = lambda i: a(f"ds_read_b128 {V(vKQ+4*i,4)}, v{vAQ+(i&3)} offset:{4096*(i>>2)}")
    for i in range(16): kq_read(i)
    for i in range(4):
        a.wait(f"QLg{i}")
        a(f"ds_write_b128 v{vWR+i}, {V(vSS+4*i,4)} offset:{i*1024}")
    a("s_waitcnt lgkmcnt(0)")
    for k in range(4):
        a(f"ds_read_b128 {V(vQL+4*k,4)}, v{vPP+k}")
    stamp(5)
    a("L_att:")
    a("s_waitcnt lgkmcnt(0)")
    for i in range(16):
        T, k = i >> 2, i & 3
        a(f"v_mfma_f32_16x16x32_bf16 {V(vSS+4*T,4)}, {V(vKQ+4*i,4)}, {V(vQL+4*k,4)}, {V(vSS+4*T,4) if k else '0'}")
        sg, ct = i >> 3, i & 7
        for pi in range(2):
            a(f"ds_read_b64_tr_b16 {A(aKA+4*i+2*pi,2)}, v{vAD+ct} offset:{8192*sg+4096*pi}")
        if i in (0, 3, 6, 9, 12, 15): ck_one(N1 + i // 3, "loop")
        if i >= 7 and (i - 7) % 4 == 0: a(f"ds_write_b128 v{vEX}, {V(vSS+(i-7),4)} offset:{256*(i-7)}")
    a(f"v_xor_b32 v{vT1}, 0x2000, v{vEX}\nv_xor_b32 v{vT2}, 0x4000, v{vEX}\nv_xor_b32 v{vT3}, 0x6000, v{vEX}")
    a(f"s_cmp_eq_u32 s{sIT}, 14\ns_cselect_b32 s{sCKO}, {16*MB}, s{sCKO}")
    a(f"ds_write_b128 v{vEX}, {V(vSS+12,4)} offset:3072")
    for k in range(8): a(f"v_xor_b32 v{vAD+k}, 0x4000, v{vAD+k}")
    for k in range(4): a(f"v_xor_b32 v{vAQ+k}, 0x4000, v{vAQ+k}")
    a("s_waitcnt lgkmcnt(0)\ns_barrier")
    for q in range(4):
        a(f"ds_read_b128 {V(vE1+4*q,4)}, v{vT1} offset:{1024*q}")
        a(f"ds_read_b128 {V(vE2+4*q,4)}, v{vT2} offset:{1024*q}")
        a(f"ds_read_b128 {V(vE2+16+4*q,4)}, v{vT3} offset:{1024*q}")
    a(f"v_xor_b32 v{vEX}, 0x1000, v{vEX}")
    nf = [0]
    def fill(cnt=1):
        for _ in range(cnt):
            ck_one(nf[0], "loop"); nf[0] += 1
    fill(3)
    for q in range(4):
        a(f"s_waitcnt lgkmcnt({9-3*q})")
        for r in range(4*q, 4*q+4, 2):
            a(f"v_pk_add_f32 {V(vSS+r,2)}, {V(vSS+r,2)}, {V(vE1+r,2)}\nv_pk_add_f32 {V(vE2+r,2)}, {V(vE2+r,2)}, {V(vE2+16+r,2)}")
        for r in range(4*q, 4*q+4, 2):
            a(f"v_pk_add_f32 {V(vSS+r,2)}, {V(vSS+r,2)}, {V(vE2+r,2)}")
    fill()
    a(f"s_waitcnt vmcnt({nf[0]})")
    a(f"v_max_f32 v{vT0}, v{vSS}, v{vSS+1}")
    for r in range(2, 16, 2):
        a(f"v_max3_f32 v{vT0}, v{vT0}, v{vSS+r}, v{vSS+r+1}")
    a(f"v_mov_b32 v{vT1}, v{vT0}")
    kq_read(0); kq_read(1)
    a(f"v_permlane16_swap_b32 v{vT0}, v{vT1}\nv_max_f32 v{vT0}, v{vT0}, v{vT1}\nv_mov_b32 v{vT1}, v{vT0}")
    kq_read(2); kq_read(3)
    a(f"v_permlane32_swap_b32 v{vT0}, v{vT1}\nv_max_f32 v{vT0}, v{vT0}, v{vT1}")
    a(f"v_mul_f32 v{vT0}, s{sC}, v{vT0}\nv_max_f32 v{vT0}, v{vT0}, v{vM}")
    a(f"v_sub_f32 v{vAL}, v{vM}, v{vT0}\nv_exp_f32 v{vAL}, v{vAL}\nv_mov_b32 v{vM}, v{vT0}")
    fill()
    for r in range(0, 16, 2):
        a(f"v_pk_fma_f32 {V(vSS+r,2)}, {V(vSS+r,2)}, s[{sC2}:{sC2+1}], {V(vM,2)} op_sel_hi:[1,1,0] neg_lo:[0,0,1] neg_hi:[0,0,1]")
    for r in range(16):
        a(f"v_exp_f32 v{vSS+r}, v{vSS+r}")
        if r % 4 == 1: kq_read(4 + r // 4)
        if r == 7: fill()
    fill()
    a(f"v_pk_mul_f32 {V(vL2,2)}, {V(vL2,2)}, {V(vAL,2)} op_sel_hi:[1,0]")
    for c in range(vCT, vCT+32, 2):
        a(f"v_pk_mul_f32 {V(c,2)}, {V(c,2)}, {V(vAL,2)} op_sel_hi:[1,0]")
    fill()
    for r in range(8):
        a(f"v_cvt_pk_bf16_f32 v{vPP+r}, v{vSS+2*r}, v{vSS+2*r+1}")
        a(f"v_pk_add_f32 {V(vL2,2)}, {V(vL2,2)}, {V(vSS+2*r,2)}")
    for i in range(16):
        sg, ct = i >> 3, i & 7
        a(f"v_mfma_f32_16x16x32_bf16 {V(vCT+4*ct,4)}, {A(aKA+4*i,4)}, {V(vPP+4*sg,4)}, {V(vCT+4*ct,4)}")
        if i < 8: kq_read(8 + i)
        if i in (9, 13): fill()
    assert nf[0] == N1
    a(f"s_add_u32 s{sIT}, s{sIT}, 1\ns_cmp_lt_u32 s{sIT}, 16\ns_cbranch_scc1 L_att")
    a.q = []
    stamp(6)
    if "nopost" in ABL: a("s_endpgm")
    vPUB, vPK2 = 200, 216
    a(f"v_add_f32 v{vLL}, v{vL2}, v{vL2+1}")
    a(f"v_mov_b32 v{vT1}, v{vLL}\nv_permlane16_swap_b32 v{vLL}, v{vT1}\nv_add_f32 v{vLL}, v{vLL}, v{vT1}")
    a(f"v_mov_b32 v{vT1}, v{vLL}\nv_permlane32_swap_b32 v{vLL}, v{vT1}\nv_add_f32 v{vLL}, v{vLL}, v{vT1}")
    a(f"v_lshrrev_b32 v{vT2}, 1, v{vG}\nv_xor_b32 v{vT2}, v{vT2}, v{vJ}")
    vaddr(vT1, vT0, (vJ, 0, 0, 8), (vT2, 0, 0, 4), (vG, 0, 1, 3))
    a(f"v_add_u32 v{vT1}, s{sU0}, v{vT1}")
    a("s_waitcnt vmcnt(0) lgkmcnt(0)\ns_barrier")
    for i in range(8):
        a(f"v_cvt_pk_bf16_f32 v{vPK2+2*i}, v{vCT+4*i}, v{vCT+4*i+1}\nv_cvt_pk_bf16_f32 v{vPK2+2*i+1}, v{vCT+4*i+2}, v{vCT+4*i+3}")
        a(f"v_xor_b32 v{vAD+i}, {32*i}, v{vT1}\nds_write_b64 v{vAD+i}, {V(vPK2+2*i,2)}")
    a(f"v_xor_b32 v{vT2}, v{vJ}, v{vG}\nv_lshlrev_b32 v{vT2}, 4, v{vT2}\nv_lshl_add_u32 v{vT0}, v{vG}, 8, v{vT2}\nv_add_u32 v{vT0}, s{sU0}, v{vT0}")
    for i in range(4):
        a(f"v_xor_b32 v{vAQ+i}, {64*i}, v{vT0}")
    vaddr(vT3, vT0, (vJ, 0, 0, 4), (vG, 0, 0, 14))
    saddr(sT0, WS_CP, (sHH, 0, 0, 18), (sIX, 0, 0, 10), (sW, 0, 0, 8))
    a("s_waitcnt lgkmcnt(0)")
    for i in range(4):
        a(f"ds_read_b128 {V(vPUB+4*i,4)}, v{vAQ+i} offset:{1024*i}")
    a(f"v_lshlrev_b32 v{vT0}, 3, v{vJ}")
    saddr(sT1, WS_CS, (sIX, 0, 0, 8), (sHH, 0, 0, 7), (sW, 0, 0, 23))
    setexec(0xffff)
    a.vm(f"buffer_store_dwordx2 {V(vM,2)}, v{vT0}, {R(rWS)}, s{sT1} offen sc1", "CPst")
    setexec(FULL)
    for i in range(4):
        a(f"s_waitcnt lgkmcnt({3-i})")
        a.vm(f"buffer_store_dwordx4 {V(vPUB+4*i,4)}, v{vT3}, {R(rWS)}, s{sT0} offen sc1", "CPst")
        if i < 3: a(f"s_add_u32 s{sT0}, s{sT0}, {64*KB}")
    vCB, vSTAT, vDD = 136, 52, 104
    vGS, vRW, vRR = 81, 94, 102
    fin_scalar()
    for n in range(8): fin_dma(n, vOC)
    fin_vec3()
    vaddr(vGS, vT1, (vJ, 0, 2, 10), (vJ, 2, 0, 8))
    a(f"v_add3_u32 v{vAD}, v{vGS}, v{vT2}, s{sU0}")
    for k in range(1, 4): a(f"v_xor_b32 v{vAD+k}, {64*k}, v{vAD}")
    vaddr(vRW, vT1, (vJ, 0, 2, 9), (vG, 0, 0, 4))
    a(f"v_add_u32 v{vRW}, s{sU0}, v{vRW}")
    a(f"s_lshl_b32 s{sT2}, s{sW}, 9\ns_add_u32 s{sT2}, s{sT2}, {LDS_EX}\nv_add_u32 v{vRR}, s{sT2}, v{vCX}")
    saddr(sT0, WS_CP, (sH, 0, 0, 14), (sW, 0, 0, 8))
    saddr(sT1, WS_CS, (sH, 0, 0, 3))
    signal("CPst", WS_F2, vT0)
    stamp(7)
    flag_load(WS_F2)
    flag_wait(WS_F2)
    stamp(8)
    a.vm(f"buffer_load_dwordx2 {V(vSTAT,2)}, v{vGS}, {R(rWS)}, s{sT1} offen sc1", "CSg")
    for i in range(4):
        a.vm(f"buffer_load_dwordx4 {V(vPUB+4*i,4)}, v{vOR1}, {R(rWS)}, s{sT0} offen sc1", f"CPg{i}")
        if i < 3: a(f"s_add_u32 s{sT0}, s{sT0}, 4096")
    a.wait("CSg")
    a(f"v_max_f32_dpp v{vT0}, v{vSTAT}, v{vSTAT} row_ror:8 {DPP}\nv_max_f32_dpp v{vT0}, v{vT0}, v{vT0} row_ror:4 {DPP}")
    a(f"v_sub_f32 v{vSTAT}, v{vSTAT}, v{vT0}\nv_exp_f32 v{vSTAT}, v{vSTAT}\nv_mul_f32 v{vT1}, v{vSTAT}, v{vSTAT+1}")
    a(f"v_add_f32_dpp v{vT1}, v{vT1}, v{vT1} row_ror:8 {DPP}\nv_add_f32_dpp v{vT1}, v{vT1}, v{vT1} row_ror:4 {DPP}")
    a(f"v_rcp_f32 v{vT1}, v{vT1}\nv_mul_f32 v{vSTAT}, v{vSTAT}, v{vT1}")
    for i in range(4):
        a.wait(f"CPg{i}")
        a(f"ds_write_b128 v{vWR+i}, {V(vPUB+4*i,4)} offset:{i*1024}")
    a("s_waitcnt lgkmcnt(0)")
    for k in range(4):
        a(f"ds_read_b128 {V(vCB+4*k,4)}, v{vAD+k}")
    a("s_waitcnt lgkmcnt(0)")
    def ctx_fold(nt):
        d = vDD + 4*nt
        for r in range(4):
            a(f"v_mul_f32 v{d+r}, v{d+r}, v{vSTAT}")
        for ror in (8, 4):
            for r in range(4):
                a(f"v_add_f32_dpp v{d+r}, v{d+r}, v{d+r} row_ror:{ror} {DPP}")
        a(f"ds_write_b128 v{vRW}, {V(d,4)} offset:{64*nt}")
    for nt in range(8):
        d = vDD + 4*nt
        for k in range(4):
            a(f"v_mfma_f32_16x16x32_bf16 {V(d,4)}, {A(A1+16*nt+4*k,4)}, {V(vCB+4*k,4)}, {V(d,4) if k else '0'}")
        if nt >= 2: ctx_fold(nt - 2)
    ctx_fold(6); ctx_fold(7)
    a("s_waitcnt lgkmcnt(0)\ns_barrier")
    for p in range(4):
        a(f"ds_read_b128 {V(vCB+4*p,4)}, v{vRR} offset:{p*8192}")
    a("s_waitcnt lgkmcnt(0)")
    for r in range(4):
        a(f"v_add_f32 v{vCB+r}, v{vCB+r}, v{vCB+4+r}\nv_add_f32 v{vCB+8+r}, v{vCB+8+r}, v{vCB+12+r}")
    for r in range(4):
        a(f"v_add_f32 v{vCB+r}, v{vCB+r}, v{vCB+8+r}")
    tag_bf16(range(vCB, vCB+4))
    setexec(0xffffffff)
    a(f"buffer_store_dwordx4 {V(vCB,4)}, v{vCX}, {R(rWS)}, s{sCXO} offen sc1")
    setexec(FULL)
    for r in range(4): a(f"v_xor_b32 v{vGS2+r}, s{sTAG}, v{vCB+r}")
    fin_vec2()
    stamp(9)
    a("s_branch L_ctxok")
    body = a.finish()
    ref = open(os.path.join(os.path.dirname(os.path.abspath(__file__)), "..", NAME + ".s.ref")).read().split("\n")
    layout = [l for l in ref if l.startswith(";") and "@launch" not in l and "Override" not in l and "grid=ceil" not in l]
    tail = f""".section .rodata,"a"
.p2align 6
.amdhsa_kernel {NAME}_kernel
  .amdhsa_next_free_vgpr 512
  .amdhsa_next_free_sgpr 102
  .amdhsa_accum_offset 256
  .amdhsa_group_segment_fixed_size 0
  .amdhsa_kernarg_size 112
  .amdhsa_user_sgpr_count 2
  .amdhsa_user_sgpr_kernarg_segment_ptr 1
  .amdhsa_system_sgpr_workgroup_id_x 1
.end_amdhsa_kernel
"""
    return "\n".join(layout + hdr + ["; generated by tools/gen.py"]) + "\n" + body + tail

if __name__ == "__main__":
    kw = eval("dict(" + (sys.argv[2] if len(sys.argv) > 2 else "") + ")")
    out = sys.argv[1] if len(sys.argv) > 1 else os.path.join(os.path.dirname(os.path.abspath(__file__)), "..", NAME + ".s")
    open(out, "w").write(generate(**kw))
    print("wrote", out)
```

```python
import sys, os, struct
sys.path.insert(0, os.path.dirname(os.path.abspath(__file__)))
from asmlib import Asm

NAME = "concat_heads__compressed_kv_cla__mha_block_cached__decode"
KB, MB = 1024, 1 << 20
WS_XC = 32 * KB
WS_CT, WS_F1, WS_F2, WS_CS, WS_CX, WS_QP, WS_QL, WS_YA, WS_YB = [o * KB for o in (64, 96, 128, 160, 192, 256, 384, 512, 768)]
WS_OP, WS_CP, WS_ST, WS_SIZE = 1*MB, 2*MB, 6*MB, 8*MB
SCALE = 128 ** -0.5 * 1.4426950408889634
LDS_EX = 128 * KB
LDS_O = LDS_EX + 4 * KB
LDS_W = 96 * KB
SPIN = 1 << 21

def f32(x): return struct.unpack("<I", struct.pack("<f", x))[0]
def V(a, n=1): return f"v{a}" if n == 1 else f"v[{a}:{a+n-1}]"
def A(a, n=1): return f"a{a}" if n == 1 else f"a[{a}:{a+n-1}]"
def R(r): return f"s[{r}:{r+3}]"
DPP = "row_mask:0xf bank_mask:0xf"
FULL = (1 << 64) - 1

pAX, pCK, pAWQ, pUK, pUV, pAWO, pBX, pK, pV, pBWQ, pBWO, pOUT, pDBG, pWS = range(4, 32, 2)
sH, sP, sW, sTAG, sT0, sT1, sT2, sT3 = 32, 33, 34, 35, 36, 37, 38, 39
rW, rX, rWS, rK, rV, rUK, rOUT, rDBG = 40, 44, 48, 52, 56, 72, 72, 76
rCK = rK
sC2, sFILL, sWO = 60, 62, 63
sSELLO, sSELHI, sHI24, sC, sSPIN = 80, 81, 82, 83, 84
sU0, sU1, sTK, sROT, sBASE = 85, 86, 87, 88, 89
_, sQO, sMODE, sIT, sSLOT, sCKO, sYO, sOUTO = 90, 91, 92, 93, 94, 95, 96, 97
sTS = 98
sFLAG, sXT, sB, sHJ, sM0 = 68, 69, 3, 61, 56
sIX = sB
sS = 90

MAPS = {
    'L': ([[8], [9]], [[10], [11]], [12, 13, 14, 15, 16, 17, 18, 19]),
    'A': ([[12], [13]], [[15, 8], [8]], [14, 9, 10, 11, 16, 17, 18, 19]),
    'C': ([[8], [9]], [[15], [10]], [12, 13, 14, 11, 16, 17, 18, 19]),
}

def generate(D=6, DV=6, DP=7, NS=33, D2=8, PAIR=0, SLOW=2, MAP='C', ROTH=8, ROTW=1, PU=8, POLLP=46, PUJ=8, POLLQ=46, POLLU=30, LOCAL=1, PRET=1, CLS=1, NFA=0, NFB=8, PFIRST=1, XQ=(3, 2), FSL=2,
             STAMP=False, PROBE=None, AMP=0, ABL=()):
    a = Asm()
    role = ["B"]
    if ABL:
        real_vm = a.vm
        a.vm = lambda text, tg: real_vm(text.replace(R(rWS), R(rDBG)) if tg.rstrip("0123456789") in ABL else text, tg)

    vL, vG, vJ, vT0, vT1, vT2, vT3, vTAG = 1, 2, 3, 4, 5, 6, 7, 8
    vMASK = 10
    vST0, vST1 = 16, 17

    def srd(r, p, size):
        a(f"s_mov_b32 s{r}, s{p}\ns_and_b32 s{r+1}, s{p+1}, 0xffff\ns_mov_b32 s{r+2}, {size}\ns_mov_b32 s{r+3}, 0x20000")

    def saddr(dst, base, *fields):
        for n, (r, lo, w, pos) in enumerate(fields):
            if w: a(f"s_bfe_u32 s{sT2}, s{r}, {lo | (w << 16):#x}")
            elif lo: a(f"s_lshr_b32 s{sT2}, s{r}, {lo}")
            a(f"s_lshl_b32 s{sT2}, s{sT2 if (w or lo) else r}, {pos}")
            a(f"s_add_u32 s{dst}, s{sT2}, {base if n == 0 else 's%d' % dst}")

    def vaddr(dst, tmp, *fields):
        for n, (r, lo, w, pos) in enumerate(fields):
            if w: a(f"v_bfe_u32 v{tmp}, v{r}, {lo}, {w}")
            elif lo: a(f"v_lshrrev_b32 v{tmp}, {lo}, v{r}")
            src = tmp if (w or lo) else r
            a(f"v_lshlrev_b32 v{dst}, {pos}, v{src}" if n == 0 else f"v_lshl_add_u32 v{dst}, v{src}, {pos}, v{dst}")

    def stamp(i):
        if PROBE is not None:
            if PROBE == (role[0], i): a("s_memrealtime s[100:101]\ns_waitcnt lgkmcnt(0)")
            return
        if not STAMP or i == 14 or (STAMP == 3 and (role[0], i) not in (("A", 0), ("B", 0))): return
        if i: a(f"s_memrealtime s[{sTS}:{sTS+1}]\ns_waitcnt lgkmcnt(0)")
        else: a(f"s_lshl_b32 s100, s2, 2\ns_add_u32 s100, s100, s{sW}\ns_lshl_b32 s100, s100, 6\ns_add_u32 s100, s100, {WS_ST}\nv_mov_b32 v{vST0}, s100")
        a(f"v_mov_b32 v{vST1}, s{sTS}\ns_mov_b64 s[100:101], exec\ns_mov_b64 exec, 1")
        a(f"buffer_store_dword v{vST1}, v{vST0}, {R(rWS)}, 0 offen offset:{4*i}")
        if i == 0:
            a(f"s_getreg_b32 s{sTS}, hwreg(HW_REG_XCC_ID)\nv_mov_b32 v{vST1}, s{sTS}\nbuffer_store_dword v{vST1}, v{vST0}, {R(rWS)}, 0 offen offset:60")
        a("s_mov_b64 exec, s[100:101]")

    def soft(i):
        if STAMP == 2: a(f"s_memrealtime s[{76 if i == 0 else 78}:{77 if i == 0 else 79}]")

    def soft_flush():
        if STAMP == 2:
            a(f"s_waitcnt lgkmcnt(0)\ns_mov_b64 s[100:101], exec\ns_mov_b64 exec, 1")
            for i, r in ((14, 76), (7 if role[0] == "B" else 3, 78)):
                a(f"v_mov_b32 v{vST1}, s{r}\nbuffer_store_dword v{vST1}, v{vST0}, {R(rWS)}, 0 offen offset:{4*i}")
            a("s_mov_b64 exec, s[100:101]")

    TAILS = [12, 14, 16, 18, 20, 22, 24]
    def tsoft(i):
        if STAMP == 3: a(f"s_memrealtime s[{TAILS[i]}:{TAILS[i]+1}]")

    def tflush():
        if STAMP == 3:
            a(f"s_waitcnt lgkmcnt(0)\ns_mov_b64 s[100:101], exec\ns_mov_b64 exec, 1")
            for i, r in enumerate(TAILS):
                a(f"v_mov_b32 v{vST1}, s{r}\nbuffer_store_dword v{vST1}, v{vST0}, {R(rWS)}, 0 offen offset:{4*(i+7)}")
            a("s_mov_b64 exec, s[100:101]")

    def probe_end():
        if PROBE is None or PROBE[0] != role[0]: return
        lbl = a.label("probe")
        a(f"s_sub_u32 s100, s100, s{sTS}\ns_lshl_b32 s100, s100, {AMP}\ns_add_u32 s100, s100, s{sTS}")
        a(f"s_add_u32 s100, s100, 10000\n{lbl}:\ns_memrealtime s[{sTS}:{sTS+1}]\ns_waitcnt lgkmcnt(0)")
        a(f"s_sub_u32 s{sTS}, s{sTS}, s100\ns_cmp_lt_i32 s{sTS}, 0\ns_cbranch_scc0 {lbl}_x\ns_cmp_gt_i32 s{sTS}, -100000\ns_cbranch_scc1 {lbl}\n{lbl}_x:")

    def spin_guard(lbl_retry):
        a(f"s_sub_u32 s{sSPIN}, s{sSPIN}, 1\ns_cmp_lg_u32 s{sSPIN}, 0\ns_cbranch_scc1 {lbl_retry}\ns_branch L_end")

    def untag(regs, acc):
        for r in regs:
            a(f"v_xor_b32 v{r}, s{sTAG}, v{r}")
        a(f"v_or_b32 v{acc}, v{regs[0]}, v{regs[1]}")
        for i in range(2, len(regs), 2):
            a(f"v_or3_b32 v{acc}, v{acc}, v{regs[i]}, v{regs[i+1]}")
        a(f"v_and_b32 v{acc}, 0xff, v{acc}\nv_cmp_ne_u32 vcc, 0, v{acc}")

    def tag(regs):
        for r in regs:
            a(f"v_and_or_b32 v{r}, v{r}, s{sHI24}, v{vTAG}")

    def tag_bf16(regs):
        a(f"s_mov_b32 s{sT2}, 0xffff0000")
        for r in regs: a(f"v_cvt_pk_bf16_f32 v{r}, v{r}, v{r}")
        for r in regs: a(f"v_and_or_b32 v{r}, v{r}, s{sT2}, v{vTAG}")

    def quadsum(dst, src, tmp):
        a(f"v_mov_b32_dpp v{dst}, v{src} quad_perm:[0,0,0,0] {DPP}")
        a(f"v_mov_b32_dpp v{tmp}, v{src+2} quad_perm:[2,2,2,2] {DPP}")
        a(f"v_add_f32_dpp v{dst}, v{src+1}, v{dst} quad_perm:[1,1,1,1] {DPP}")
        a(f"v_add_f32_dpp v{tmp}, v{src+3}, v{tmp} quad_perm:[3,3,3,3] {DPP}")
        a(f"v_add_f32 v{dst}, v{dst}, v{tmp}")

    def setexec(mask):
        if mask == FULL: a("s_mov_b64 exec, -1")
        elif mask <= 64: a(f"s_mov_b64 exec, {mask}")
        else: a(f"s_mov_b32 exec_lo, {mask & 0xffffffff:#x}\ns_mov_b32 exec_hi, {mask >> 32:#x}")

    def consts():
        a(f"s_load_dword s{sTAG}, s[{pWS}:{pWS+1}], 0")
        srd(rWS, pWS, WS_SIZE)
        if ABL: srd(rDBG, pDBG, 256)
        a(f"s_mov_b32 s{sHI24}, 0xffffff00\ns_mov_b32 s{sC}, {f32(SCALE):#x}\ns_mov_b32 s{sSPIN}, {SPIN}")
        stamp(0)

    def take_tag(flag=False):
        a(f"s_waitcnt lgkmcnt(0)\ns_add_u32 s{sTAG}, s{sTAG}, 0x5b\ns_and_b32 s{sTAG}, s{sTAG}, 0xff\nv_mov_b32 v{vTAG}, s{sTAG}")
        if flag: a(f"s_or_b32 s{sFLAG}, s{sTAG}, 0x6b3ac500")

    def signal(tg, base, tmp):
        saddr(sXT, base, (sH, 0, 0, 8), (sW, 0, 0, 23))
        a(f"v_mov_b32 v{tmp}, s{sXT}\nv_mov_b32 v{tmp+1}, s{sFLAG}")
        if tg in a.q: a.wait(tg)
        a("s_barrier")
        setexec(1)
        a.vm(f"buffer_store_dword v{tmp+1}, v{tmp}, {R(rWS)}, 0 offen sc1", "SIG")
        setexec(FULL)

    hdr = [f"; @launch grid=(256,1,1) block=(256,1,1) lds={160*KB}"]
    a(f'.amdgcn_target "amdgcn-amd-amdhsa--gfx950"\n.text\n.globl {NAME}_kernel\n.p2align 8\n.type {NAME}_kernel,@function')
    a(f"{NAME}_kernel:")
    if STAMP or PROBE is not None: a(f"s_memrealtime s[{sTS}:{sTS+1}]")
    a("s_cmp_ge_u32 s2, 256\ns_cbranch_scc1 L_end")
    a("s_load_dwordx16 s[4:19], s[0:1], 0\ns_load_dwordx8 s[20:27], s[0:1], 64\ns_load_dwordx4 s[28:31], s[0:1], 96")
    a(f"v_lshrrev_b32 v{vT0}, 6, v0\nv_and_b32 v{vL}, 63, v0\nv_readfirstlane_b32 s{sW}, v{vT0}")
    a(f"s_lshr_b32 s{sH}, s2, 3\ns_sub_u32 s{sP}, s2, s{sH}\ns_sub_u32 s{sP}, s{sP}, 1\ns_and_b32 s{sP}, s{sP}, 7")
    a(f"v_lshrrev_b32 v{vG}, 4, v{vL}\nv_and_b32 v{vJ}, 15, v{vL}")
    a(f"s_cmp_lt_u32 s{sP}, 2\ns_cbranch_scc1 L_qp\ns_cmp_eq_u32 s{sP}, 2\ns_cbranch_scc1 L_ql\ns_cmp_eq_u32 s{sP}, 7\ns_cbranch_scc1 L_aux")

    vCA, vONE, vTK = 9, 18, 19
    sMSG = sYO
    vOW, vOX = 14, 15
    vX, vB, vACC, vQ = 20, 52, 60, 68
    vOK, vOQ, vOP, vOV = 76, 78, 79, 126
    vBQ, vPB = 80, 96
    vS, vO = 112, 116
    vMC, vLS, vSC, vP, vU0, vU1 = 120, 121, 122, 123, 124, 125
    RING = 128
    A0, A1 = 0, 128
    gv, tv, ub = MAPS[MAP] if isinstance(MAP, str) else MAP
    mk = lambda bits: sum(1 << b for b in bits)
    sup = set(sum(gv + tv, []))
    XOR = len(sup) > 4
    basis = []
    for r_ in [mk(v) for v in gv + tv] + [1 << b for b in ub]:
        for b_ in basis: r_ = min(r_, r_ ^ b_)
        assert r_, "key mapping is not a bijection"
        basis.append(r_)
    assert sup | set(ub) == set(range(8, 20))
    tval = [(mk(tv[0]) if t & 1 else 0) ^ (mk(tv[1]) if t & 2 else 0) for t in range(4)]
    gmask = mk(gv[0]) | mk(gv[1])
    timm = [v & 0xfff & ~gmask for v in tval]
    treg = sorted(set(v ^ i for v, i in zip(tval, timm)))
    tidx = [treg.index(v ^ i) for v, i in zip(tval, timm)]
    XOR = XOR or len(treg) > 2
    vAX = vOK + 1
    runs = []
    for i, b in enumerate(ub):
        if runs and runs[-1][1] + runs[-1][2] == b: runs[-1][2] += 1
        else: runs.append([i, b, 1])
    NTAIL = 256 - 7 * NS
    NDYN = NTAIL
    assert NS % 2 == 1 and 0 <= NTAIL <= 60 and 5 <= D <= DV <= 7 and D2 == 8
    rS, sEND, sCNT = 64, sMODE, sOUTO
    vOS, vSA, vMX, vS2, vSN, vPN = 62, 64, 65, 96, 66, 100
    LDS_S = 16 * KB
    sPS, sND = sSELLO, sSELHI

    def advance(n): a(f"s_add_u32 s{sTK}, s{sTK}, {inc(n)}")
    inc = lambda n: 7 if not PAIR else (13 if n % 8 == 7 else 1)
    def kv_setup():
        a(f"v_lshrrev_b32 v{vT0}, 2, v{vJ}\nv_and_b32 v{vT1}, 3, v{vJ}")
        for dst, sel in ((vOK, vT0), (vOV, vG)):
            if len(gv[0]) == 1 and gv[1] == [gv[0][0] + 1]:
                a(f"v_lshlrev_b32 v{dst}, {gv[0][0]}, v{sel}")
            else:
                a(f"v_and_b32 v{vT2}, 1, v{sel}\nv_mul_u32_u24 v{vT2}, {mk(gv[0])}, v{vT2}\nv_lshrrev_b32 v{vT3}, 1, v{sel}\nv_mul_u32_u24 v{vT3}, {mk(gv[1])}, v{vT3}\nv_xor_b32 v{dst}, v{vT2}, v{vT3}")
        a(f"v_lshl_add_u32 v{vOK}, v{vG}, 6, v{vOK}\nv_lshl_add_u32 v{vOK}, v{vT1}, 4, v{vOK}\nv_lshl_add_u32 v{vOV}, v{vJ}, 4, v{vOV}")
        if len(treg) == 2 and not XOR:
            a(f"v_xor_b32 v{vOK+1}, {treg[1]}, v{vOK}\nv_xor_b32 v{vOV+1}, {treg[1]}, v{vOV}")
        a(f"s_add_u32 s{sB}, s{sW}, s{sP}\ns_and_b32 s{sB}, s{sB}, 3")
        a(f"s_lshl_b32 s{sBASE}, s{sB}, 5\ns_add_u32 s{sBASE}, s{sBASE}, s{sH}\ns_lshl_b32 s{sBASE}, s{sBASE}, 20")
        a(f"s_mul_i32 s{sROT}, s{sH}, {ROTH}")
        if ROTW == 1: a(f"s_add_u32 s{sROT}, s{sROT}, s{sB}")
        else: a(f"s_mul_i32 s{sT2}, s{sB}, {ROTW}\ns_add_u32 s{sROT}, s{sROT}, s{sT2}")
        a(f"s_lshl_b32 s{sTK}, s{sP}, {PAIR}")

    def masks():
        a(f"v_and_b32 v{vT0}, 1, v{vL}\nv_lshlrev_b32 v{vT0}, 4, v{vT0}\nv_mov_b32 v{vT1}, 0xffff\nv_lshlrev_b32 v{vT0}, v{vT0}, v{vT1}")
        a(f"v_bfe_u32 v{vT1}, v{vL}, 1, 2")
        for r in range(4):
            a(f"v_cmp_eq_u32 vcc, {r}, v{vT1}\nv_cndmask_b32 v{vMASK+r}, 0, v{vT0}, vcc")

    def kv_late():
        a(f"v_mov_b32 v{vMC}, 0xff7f0000\nv_mov_b32 v{vLS}, 0\nv_mov_b32 v{vONE}, 1")
        for r in range(4): a(f"v_mov_b32 v{vO+r}, 0")
        saddr(sMSG, WS_CT, (sH, 0, 0, 10), (sB, 0, 0, 8))
        a(f"v_mov_b32 v{vCA}, s{sMSG}")
        saddr(sMSG, WS_OP, (sH, 0, 0, 15), (sB, 0, 0, 13), (sP, 0, 0, 10))
        a(f"v_and_b32 v{vT1}, 3, v{vJ}\nv_lshlrev_b32 v{vOQ}, 7, v{vG}\nv_lshl_add_u32 v{vOQ}, v{vT1}, 5, v{vOQ}")
        saddr(sQO, WS_QP, (sH, 0, 0, 12), (sB, 0, 0, 9))
        msg_addr()

    def msg_addr():
        a(f"v_lshlrev_b32 v{vT0}, 7, v{vG}\nv_lshl_add_u32 v{vT0}, v{vJ}, 4, v{vT0}\nv_mov_b32 v{vT1}, 512")
        a(f"v_cmp_gt_u32 vcc, 8, v{vJ}\nv_cndmask_b32 v{vOP}, v{vT1}, v{vT0}, vcc")

    def unit_addr(dst):
        a(f"s_add_u32 s{sT3}, s{sTK}, s{sROT}")
        for n, (i, b, w) in enumerate(runs):
            if XOR and n == 0:
                a(f"s_bfe_u32 s{sT1}, s{sT3}, {i | (w << 16):#x}\ns_lshl_b32 s{dst}, s{sT1}, {b}")
            else:
                a(f"s_bfe_u32 s{sT1}, s{sT3}, {i | (w << 16):#x}\ns_lshl_b32 s{sT1}, s{sT1}, {b}\ns_add_u32 s{dst}, s{sT1}, s{dst if n else sBASE}")

    def slot(i): return V(RING + 4*i, 4) if i < 32 else A(4*(i - 32), 4)

    def kv_load(sl, r, base, tg):
        isv = r >= 4
        if XOR:
            if tval[r%4]: a(f"s_xor_b32 s{sXT}, s{base}, {tval[r%4]}")
            a(f"v_xor_b32 v{vAX}, s{sXT if tval[r%4] else base}, v{vOV if isv else vOK}")
            a.vm(f"buffer_load_dwordx4 {slot(sl)}, v{vAX}, {R(rV if isv else rK)}, s{sBASE} offen nt", tg)
            return
        a.vm(f"buffer_load_dwordx4 {slot(sl)}, v{(vOV if isv else vOK) + tidx[r%4]}, {R(rV if isv else rK)}, s{base} offen offset:{timm[r%4]} nt", tg)

    def s_load_(sl, t, tg):
        if XOR:
            if tval[t]: a(f"s_xor_b32 s{sXT}, s{sU0}, {tval[t]}")
            a(f"v_xor_b32 v{vAX}, s{sXT if tval[t] else sU0}, v{vOS}")
            a.vm(f"buffer_load_dwordx4 {slot(sl)}, v{vAX}, {R(rS)}, s{sBASE} offen nt", tg)
            return
        a.vm(f"buffer_load_dwordx4 {slot(sl)}, v{vOS + tidx[t]}, {R(rS)}, s{sU0} offen offset:{timm[t]} nt", tg)

    def use(isv):
        r, v = (rV, vOV) if isv else (rK, vOK)
        a(f"s_mov_b64 s[{rS}:{rS+1}], s[{r}:{r+1}]\nv_mov_b32 v{vOS}, v{v}\nv_mov_b32 v{vOS+1}, v{v+1}")

    def k_mfma(sl, c):
        d = vS2 if (c >> 2) & 1 else vS
        a(f"v_mfma_f32_16x16x32_bf16 {V(d,4)}, {slot(sl)}, {V(vBQ+4*(c&3),4)}, {V(d,4) if c & 3 else '0'}")

    def k_post(u, off):
        quadsum(vSC, vS2 if u & 1 else vS, vU0)
        a(f"v_max_f32 v{vMX}, v{vMX}, v{vSC}\nds_write_b32 v{vSA}, v{vSC} offset:{off}")

    def allmax(x):
        a(f"v_max_f32_dpp v{vU0}, v{x}, v{x} row_ror:4 {DPP}")
        a(f"v_max_f32_dpp v{vU0}, v{vU0}, v{vU0} row_ror:8 {DPP}")
        a(f"v_mov_b32 v{vU1}, v{vU0}\nv_permlane16_swap_b32 v{vU0}, v{vU1}\nv_max_f32 v{vU0}, v{vU0}, v{vU1}")
        a(f"v_mov_b32 v{vU1}, v{vU0}\nv_permlane32_swap_b32 v{vU0}, v{vU1}\nv_max_f32 v{vU0}, v{vU0}, v{vU1}")

    def claim():
        setexec(1)
        if "2x" in ABL: a(f"global_atomic_add v{vCA}, v{vONE}, s[{pWS}:{pWS+1}] offset:128 sc1")
        a(f"global_atomic_add v{vTK}, v{vCA}, v{vONE}, s[{pWS}:{pWS+1}] sc0 sc1")
        setexec(FULL)

    rF, sFO, sYS, sCXO, sMB, sLOC, sYG = rW, 44, 45, 46, 47, 70, 71
    vFD, vFT, vAO, vAY, vAW, vAG, vAF, vCX, vRO = 20, 24, 28, 30, 31, 32, 33, 34, 35
    vPA, vCL = 50, 54
    vWT, vBU, vY, vMS, vGS2, vG2 = 128, 160, 112, 192, 224, 232
    def fin_scalar():
        if CLS == 0: a(f"s_and_b32 s{sS}, s2, 7")
        else:
            saddr(sS, 0, (2, 1, 2, 0), (2, 0, 1, 2))
            if CLS == 2: a(f"s_xor_b32 s{sS}, s{sS}, 4")
        a(f"s_and_b32 s{sT0}, s{sS}, 3\ns_bitcmp0_b32 s{sS}, 2")
        a(f"s_cselect_b64 s[{rF}:{rF+1}], s[{pBWO}:{pBWO+1}], s[{pAWO}:{pAWO+1}]")
        a(f"s_cselect_b32 s{sYS}, {WS_YB - WS_YA}, 0\ns_add_u32 s{sYS}, s{sYS}, {WS_YA}")
        saddr(sYG, f"s{sYS}", (sT0, 0, 0, 16), (sH, 2, 0, 13), (sH, 0, 2, 6))
        a(f"s_mov_b32 s{rF+2}, {4*MB}\ns_mov_b32 s{rF+3}, 0x20000")
        saddr(sFO, 0, (sH, 0, 0, 17), (sW, 0, 0, 15), (sT0, 0, 0, 8))
        saddr(sYS, f"s{sYS}", (sT0, 0, 0, 16), (sW, 1, 0, 15), (sH, 0, 0, 8), (sW, 0, 1, 7))
        saddr(sCXO, WS_CX, (sH, 0, 0, 11), (sW, 0, 0, 9))
        srd(rOUT, pOUT, 8192)
    def fin_dma(n, offs):
        if n % 4 == 0:
            a(f"s_lshl_b32 s{sT3}, s{sW}, 13\ns_add_u32 s{sT3}, s{sT3}, {LDS_W + 1024*n}\ns_mov_b32 m0, s{sT3}")
            if n: a(f"s_add_u32 s{sFO}, s{sFO}, 16384")
        a.vm(f"buffer_load_dwordx4 v{offs+n%4}, {R(rF)}, s{sFO} offen offset:{(n%4)*1024} nt lds", "FW")
    def fin_vec1():
        a(f"v_lshlrev_b32 v{vT0}, 2, v{vG}\nv_xor_b32 v{vT0}, v{vT0}, v{vJ}")
        for i in range(4):
            a(f"v_xor_b32 v{vT1}, {i}, v{vT0}\nv_lshlrev_b32 v{vT1}, 4, v{vT1}\nv_lshl_add_u32 v{vFD+i}, v{vG}, 10, v{vT1}")
            if i: a(f"v_add_u32 v{vFD+i}, {i*3072}, v{vFD+i}")
        saddr(sMB, WS_OP, (sH, 0, 0, 15), (sB, 0, 0, 13))
        vaddr(vT2, vT1, (vG, 0, 0, 7), (vJ, 0, 3, 4))
        a(f"v_lshrrev_b32 v{vT0}, 3, v{vJ}\nv_and_b32 v{vT3}, 3, v{vJ}\nv_min_u32 v{vT3}, 2, v{vT3}\nv_lshl_add_u32 v{vT3}, v{vT3}, 1, v{vT0}")
        for i in range(4):
            if i < 3: a(f"v_add_u32 v{vT1}, {2*i}, v{vT0}")
            else: a(f"v_mov_b32 v{vT1}, v{vT3}\nv_mov_b32 v{vT2}, 512")
            a(f"v_cmp_le_u32 vcc, s{sP}, v{vT1}\nv_addc_co_u32 v{vT1}, vcc, 0, v{vT1}, vcc\nv_lshl_add_u32 v{vPA+i}, v{vT1}, 10, v{vT2}")
        a(f"s_mul_i32 s{sT2}, s{sB}, 320\ns_add_u32 s{sT2}, s{sT2}, {LDS_O}")
        a(f"v_lshlrev_b32 v{vT0}, 6, v{vG}\nv_lshl_add_u32 v{vT0}, v{vJ}, 1, v{vT0}\nv_add_u32 v{vAW}, s{sT2}, v{vT0}")
    def fin_vec2():
        vaddr(vT0, vT1, (vG, 0, 0, 11), (vL, 2, 2, 8), (vL, 2, 2, 6), (vL, 4, 1, 5), (vL, 1, 1, 4), (vL, 0, 1, 3))
        a(f"s_lshl_b32 s{sT2}, s{sW}, 6\ns_add_u32 s{sT2}, s{sT2}, {LDS_W}\nv_xor_b32 v{vFT}, s{sT2}, v{vT0}")
        for i in range(1, 4): a(f"v_xor_b32 v{vFT+i}, {16*i}, v{vFT}")
        a(f"v_and_b32 v{vT0}, 3, v{vJ}\nv_lshrrev_b32 v{vT1}, 2, v{vJ}\nv_lshlrev_b32 v{vT2}, 4, v{vG}\nv_add_u32 v{vT2}, {LDS_O}, v{vT2}\ns_movk_i32 s{sT0}, 320")
        for u in range(2):
            a(f"v_cmp_eq_u32 vcc, {u}, v{vT1}\nv_cndmask_b32 v{vAO+u}, 4, v{vT0}, vcc\nv_mad_u32_u24 v{vAO+u}, v{vAO+u}, s{sT0}, v{vT2}")
        a(f"v_lshlrev_b32 v{vT1}, 2, v{vL}\nv_add_u32 v{vT1}, {LDS_O + 4*320}, v{vT1}\nv_mov_b32 v{vT2}, 0\nds_write_b32 v{vT1}, v{vT2}")
    def fin_vec3():
        vaddr(vAY, vT1, (vJ, 0, 0, 4), (vG, 0, 0, 13))
        vaddr(vAG, vT1, (vL, 2, 0, 8), (vL, 0, 2, 4))
        a(f"s_xor_b32 s{sT1}, s{sS}, 4")
        saddr(sT0, 0, (sT1, 0, 3, 8), (sH, 4, 0, 7), (sH, 0, 2, 5), (sH, 2, 2, 3))
        vaddr(vAF, vT1, (vL, 0, 2, 11), (vG, 0, 0, 1))
        a(f"v_add_u32 v{vAF}, s{sT0}, v{vAF}")
        a(f"v_and_b32 v{vT1}, 31, v{vL}\nv_lshlrev_b32 v{vCX}, 4, v{vT1}\ns_mul_i32 s{sT2}, s{sW}, 320\ns_add_u32 s{sT2}, s{sT2}, {LDS_O}\nv_lshl_add_u32 v{vRO}, v{vT1}, 3, s{sT2}")
        saddr(sT0, f"s{sYG}", (sW, 0, 1, 12), (sW, 1 if PRET else 0, 0, 24))
        a(f"s_bitcmp1_b32 s{sS}, 2\ns_cselect_b32 s{sCXO}, s{sCXO}, {'s%d' % sT0 if PRET else WS_SIZE}\ns_cselect_b64 vcc, -1, 0\nv_cndmask_b32 v{vCL}, v{vAG}, v{vCX}, vcc")

    def xc_word():
        a(f"s_getreg_b32 s{sLOC}, hwreg(HW_REG_XCC_ID, 0, 4)\ns_lshl_b32 s{sLOC}, s{sLOC}, 8\ns_or_b32 s{sLOC}, s{sLOC}, s{sTAG}\ns_or_b32 s{sLOC}, s{sLOC}, 0x5e9d0000")
    def xc_report(tmp):
        xc_word()
        saddr(sXT, WS_XC, (2, 0, 3, 8), (sH, 0, 0, 2), (sW, 0, 0, 24))
        a(f"v_mov_b32 v{tmp}, s{sXT}\nv_mov_b32 v{tmp+1}, s{sLOC}")
        setexec(1)
        a.vm(f"buffer_store_dword v{tmp+1}, v{tmp}, {R(rWS)}, 0 offen sc1", "XC")
        setexec(FULL)
    def xc_fetch(dst):
        saddr(sXT, WS_XC, (2, 0, 3, 8))
        a(f"v_lshrrev_b32 v{dst}, 2, v{vCX}")
        a.vm(f"buffer_load_dword v{dst}, v{dst}, {R(rWS)}, s{sXT} offen sc1", "XCg")
    def xc_check(src):
        a(f"v_cmp_ne_u32 vcc, s{sLOC}, v{src}\ns_cmp_eq_u64 vcc, 0\ns_cselect_b32 s{sLOC}, {LOCAL}, 0")

    def softmax_part():
        quadsum(vSC, vS, vU0)
        skip = a.label("nomax")
        a(f"v_fma_f32 v{vP}, v{vSC}, s{sC}, -v{vMC}\nv_cmp_lt_f32 vcc, 0, v{vP}\ns_cbranch_vccz {skip}")
        a(f"v_mul_f32 v{vSC}, s{sC}, v{vSC}")
        allmax(vSC)
        a(f"v_max_f32 v{vU0}, v{vU0}, v{vMC}")
        a(f"v_sub_f32 v{vU1}, v{vMC}, v{vU0}\nv_exp_f32 v{vU1}, v{vU1}\nv_mov_b32 v{vMC}, v{vU0}\nv_sub_f32 v{vP}, v{vSC}, v{vU0}")
        a(f"v_mul_f32 v{vLS}, v{vLS}, v{vU1}")
        for r in range(4):
            a(f"v_mul_f32 v{vO+r}, v{vO+r}, v{vU1}")
        a(f"{skip}:")
        a(f"v_exp_f32 v{vP}, v{vP}")
        a(f"v_cvt_pk_bf16_f32 v{vU0}, v{vP}, v{vP}\nv_add_f32 v{vLS}, v{vLS}, v{vP}")
        for t in range(4):
            for r in range(4):
                a(f"v_and_b32_dpp v{vPB+4*t+r}, v{vU0}, v{vMASK+r} row_newbcast:{4*t} {DPP}")

    def consume(sl, r, filler=None):
        if r < 4:
            c = V(vS, 4) if r else "0"
            a(f"v_mfma_f32_16x16x32_bf16 {V(vS,4)}, {slot(sl)}, {V(vBQ+4*r,4)}, {c}")
            if r == 3:
                if filler: filler()
                softmax_part()
        else:
            a(f"v_mfma_f32_16x16x32_bf16 {V(vO,4)}, {slot(sl)}, {V(vPB+4*(r-4),4)}, {V(vO,4)}")

    def q_poll():
        for i in range(2):
            a.vm(f"buffer_load_dwordx4 {V(vQ+4*i,4)}, v{vOQ}, {R(rWS)}, s{sQO} offen offset:{16*i} sc1", "Q")

    class Start:
        def __init__(self, pu): self.pu, self.n = pu, 0
        def load(self):
            n = self.n; self.n += 1
            if n == 0: unit_addr(sU0)
            kv_load(n % (8*self.pu), n % 4, sU0, f"P{n}")
            if n % 4 == 3:
                advance(n)
                unit_addr(sU0)
        def paced(self, depth):
            if f"P{self.n - depth}" in a.q: a.wait(f"P{self.n - depth}")
            self.load()
        def until_q(self, pollat):
            while self.n < pollat: self.paced(DP)
            q_poll()
            while self.n < min(pollat + DP - 1, 8*self.pu): self.paced(DP)
        def finish(self, hook=None):
            if "Q" in a.q: a.wait("Q")
            chk, ok = a.label("qcheck"), a.label("qok")
            a(f"{chk}:")
            untag(list(range(vQ, vQ+8)), vT0)
            a(f"s_cbranch_vccz {ok}" if not ({"QPst", "Q"} & set(ABL)) else f"s_branch {ok}")
            saved = list(a.q)
            q_poll()
            a("s_waitcnt vmcnt(0)")
            spin_guard(chk)
            a.q = saved
            a(f"{ok}:")
            stamp(2)
            def operands(q, bq):
                for r in range(4):
                    a(f"v_cvt_pk_bf16_f32 v{q+r}, v{q+2*r}, v{q+2*r+1}")
                for t in range(4):
                    m = 0x000f000f << (4*t)
                    a(f"s_mov_b32 vcc_lo, {m:#x}\ns_mov_b32 vcc_hi, {m:#x}")
                    for r in range(4):
                        a(f"v_cndmask_b32 v{bq+4*t+r}, 0, v{q+r}, vcc")
            operands(vQ, vBQ)
            xc_report(vQ + 4)
            N = 8 * self.pu
            a(f"v_mov_b32 v{vMX}, 0xff7f0000\ns_lshl_b32 s{sT2}, s{sW}, 14\ns_add_u32 s{sT2}, s{sT2}, {LDS_S}\nv_lshl_add_u32 v{vSA}, v{vL}, 2, s{sT2}")
            first, todo = self.n, N + D - self.n
            for c in range(N):
                want = first + (todo * (c + 1) + N - 1) // N
                while self.n < want and self.n - N < c:
                    self.paced(DP if self.n < N else max(D, DP - 1))
                if f"P{c}" in a.q: a.wait(f"P{c}")
                k_mfma(c, c)
                if c % 4 == 2 and c > 4: k_post(c // 4 - 1, 256 * (c // 4 - 1))
                if hook: hook(c)
                if N - c in (24, 18, 12, 6): {24: fin_scalar, 18: fin_vec1, 12: fin_vec2, 6: fin_vec3}[N - c]()
            while self.n < N + D: self.paced(DP)
            nu = NS - 1
            assert (nu - N // 4) % 2 == 0 and nu - N // 4 >= 4
            a(f"v_add_u32 v{vSA}, {256 * (N // 4 - 1)}, v{vSA}")
            a(f"s_mov_b32 s{sCNT}, {(nu - N // 4) // 2}\ns_mov_b32 s{sU1}, {nu}")
            if SLOW:
                assert XQ == (3, 2) and not PAIR
                a(f"s_and_b32 s{sT0}, s{sH}, 3\ns_sub_u32 s{sPS}, s{sT0}, 2\ns_cmp_ge_u32 s{sT0}, 2\ns_cselect_b32 s{sPS}, s{sPS}, 8\ns_cselect_b32 s{sND}, {NDYN + SLOW}, {NDYN}")
                a(f"s_cmp_eq_u32 s{sPS}, s{sP}\ns_cselect_b32 s{sT0}, {SLOW}, 0\ns_sub_u32 s{sU1}, s{sU1}, s{sT0}\ns_lshr_b32 s{sT0}, s{sT0}, 1\ns_sub_u32 s{sCNT}, s{sCNT}, s{sT0}")
                a(f"s_add_u32 s{sPS}, s{sPS}, {7*(nu - SLOW - NTAIL)}")
            else: a(f"s_mov_b32 s{sND}, {NDYN}")
            a(f"s_sub_u32 s{sEND}, s{sND}, 1")
            a(f"s_mov_b32 s{rS+2}, {128*MB}\ns_mov_b32 s{rS+3}, 0x20000")
            use(False)
            stamp(3)

    saddr(sT0, -3 << 17, (2, 0, 3, 21), (sH, 3, 0, 19), (sP, 0, 0, 17), (sW, 0, 0, 12))
    vaddr(vT0, vT1, (vL, 0, 5, 7), (vL, 5, 0, 15))
    a(f"s_mov_b32 s{rW+2}, {16*MB}\ns_mov_b32 s{rW+3}, 0x20000\ns_waitcnt lgkmcnt(0)\ns_mov_b64 s[{rW}:{rW+1}], s[{pCK}:{pCK+1}]")
    soft(0)
    for i, step in enumerate((16384, 49152, 16384, 0)):
        a.vm(f"buffer_load_dword v{vX+i}, v{vT0}, {R(rW)}, s{sT0} offen", "T")
        if step: a(f"s_add_u32 s{sT0}, s{sT0}, {step}")
    consts(); kv_setup(); srd(rK, pK, 128*MB); srd(rV, pV, 128*MB); masks(); kv_late()
    soft(1); soft_flush()
    st = Start(PU)
    for _ in range(DP): st.load()
    stamp(1)
    st.until_q(POLLP)
    take_tag()
    st.finish()

    a("L_bloop:")
    for r in range(8):
        n = r + D
        a(f"s_waitcnt vmcnt({D-1})")
        s_load_(n % 8, n % 4, "loop")
        k_mfma(r, r)
        if n % 4 == 3:
            advance(n)
            if n % 8 == 7:
                skip = a.label("stayk")
                a(f"s_cmp_lg_u32 s{sCNT}, 1\ns_cbranch_scc1 {skip}")
                use(True)
                a(f"s_mul_i32 s{sT1}, s{sU1}, 7\ns_sub_u32 s{sTK}, s{sTK}, s{sT1}")
                a(f"{skip}:")
            unit_addr(sU0)
        if r % 4 == 1: k_post(r // 4 + 1, 256 * (r // 4))
    a(f"v_add_u32 v{vSA}, 512, v{vSA}")
    a(f"s_sub_u32 s{sCNT}, s{sCNT}, 1\ns_cmp_lg_u32 s{sCNT}, 0\ns_cbranch_scc1 L_bloop")
    def v_addr(n):
        skip = a.label("stayv")
        advance(n)
        a(f"s_cmp_lg_u32 s{sCNT}, 1\ns_cbranch_scc1 {skip}")
        use(n % 8 != 7)
        if n % 8 == 7: claim()
        a(f"s_add_u32 s{sTK}, s{sP}, {7*(NS-1)}")
        a(f"{skip}:")
        unit_addr(sU0)
    for n in range(D, DV):
        s_load_(n, n % 4, "loop")
        assert n % 4 != 3
    xc_fetch(vQ)
    k_post(1, 0)
    a(f"v_mov_b32 v{vP}, 0xff7f0000\nds_write_b32 v{vSA}, v{vP} offset:256")
    a(f"s_lshl_b32 s{sT2}, s{sW}, 14\ns_add_u32 s{sT2}, s{sT2}, {LDS_S}\nv_lshl_add_u32 v{vSA}, v{vL}, 2, s{sT2}")
    a(f"ds_read_b32 v{vSN}, v{vSA}\nds_read_b32 v{vSN+1}, v{vSA} offset:256")
    a(f"v_mul_f32 v{vMX}, s{sC}, v{vMX}")
    allmax(vMX)
    a(f"v_mov_b32 v{vMC}, v{vU0}\ns_lshr_b32 s{sCNT}, s{sU1}, 1")
    stamp(5)
    def p_next(i):
        a(f"s_waitcnt lgkmcnt(1)\nv_fma_f32 v{vP}, v{vSN+i}, s{sC}, -v{vMC}\nv_exp_f32 v{vP}, v{vP}")
        a(f"ds_read_b32 v{vSN+i}, v{vSA} offset:{512 + 256*i}")
        a(f"v_cvt_pk_bf16_f32 v{vPN+i}, v{vP}, v{vP}\nv_add_f32 v{vLS}, v{vLS}, v{vP}")
    p_next(0)
    a("L_vloop:")
    for r in range(8):
        n = r + DV
        pb = vPB + 8 + 4*(r & 1)
        for q in range(4):
            a(f"v_and_b32_dpp v{pb+q}, v{vPN + (r >> 2)}, v{vMASK+q} row_newbcast:{4*(r&3)} {DPP}")
        a(f"s_waitcnt vmcnt({DV-1})")
        s_load_(n % 8, n % 4, "loop")
        a(f"v_mfma_f32_16x16x32_bf16 {V(vO,4)}, {slot(r)}, {V(pb,4)}, {V(vO,4)}")
        if n % 4 == 3: v_addr(n)
        if r == 1: p_next(1)
        if r == 5:
            a(f"v_add_u32 v{vSA}, 512, v{vSA}")
            p_next(0)
    a(f"s_sub_u32 s{sCNT}, s{sCNT}, 1\ns_cmp_lg_u32 s{sCNT}, 0\ns_cbranch_scc1 L_vloop")
    stamp(6)
    for n in range(DV, D2): kv_load(n, n, sU0, "loop")
    xc_check(vQ)
    a("L_dloop:")
    for half in range(2):
        for r in range(8):
            a(f"s_waitcnt vmcnt(7)")
            if r == 0:
                skip = a.label("noclaim")
                a(f"v_readfirstlane_b32 s{sIT}, v{vTK}\nv_mov_b32 v{vTK}, 64")
                a(f"s_cmp_ge_u32 s{sIT}, s{sND}\ns_cbranch_scc1 L_last{half}\ns_add_u32 s{sTK}, s{sIT}, {7*NS}")
                if SLOW: a(f"s_mul_i32 s{sT0}, s{sIT}, 7\ns_add_u32 s{sT0}, s{sT0}, s{sPS}\ns_cmp_ge_u32 s{sIT}, {NTAIL}\ns_cselect_b32 s{sTK}, s{sT0}, s{sTK}")
                unit_addr(sU0)
                a(f"s_cmp_ge_u32 s{sIT}, s{sEND}\ns_cbranch_scc1 {skip}")
                claim()
                a(f"{skip}:")
            kv_load((half*8 + 8 + r) % 16, r, sU0, "loop")
            consume(half*8 + r, r)
    a("s_branch L_dloop")
    def cx_load():
        a.vm(f"buffer_load_dwordx4 {V(vGS2,4)}, v{vCL}, {R(rWS)}, s{sCXO} offen sc1", "CX")
    for half in (1, 0):
        a(f"L_last{half}:")
        a.q = [f"R{r}" for r in range(1, 8)]
        cx_load()
        if NFA != NFB: a(f"s_mov_b32 s{sU1}, s{sFO}\ns_bitcmp1_b32 s{sS}, 2\ns_cselect_b32 s{sFO}, {4*MB}, s{sFO}")
        for r in range(8):
            if r: a.wait(f"R{r}")
            if r >= 8 - NFB: fin_dma(r - 8 + NFB, vFD)
            consume(half*8 + r, r)
            if r == 4:
                a(f"v_add_f32_dpp v{vLS}, v{vLS}, v{vLS} row_ror:8 {DPP}")
                a(f"v_add_f32_dpp v{vLS}, v{vLS}, v{vLS} row_ror:4 {DPP}")
                a(f"v_mov_b32 v{vU1}, v{vLS}")
                a(f"v_permlane16_swap_b32 v{vLS}, v{vU1}\nv_add_f32 v{vLS}, v{vLS}, v{vU1}\nv_mov_b32 v{vU1}, v{vLS}")
                a(f"v_permlane32_swap_b32 v{vLS}, v{vU1}\nv_add_f32 v{vLS}, v{vLS}, v{vU1}")
                a(f"v_and_b32 v{vU1}, s{sHI24}, v{vMC}\nv_sub_f32 v{vU1}, v{vMC}, v{vU1}")
                a(f"s_mov_b32 vcc_lo, 0xff00ff00\ns_mov_b32 vcc_hi, 0xff00ff00")
        if half: a("s_branch L_bdone")
    a("L_bdone:")
    a(f"v_cndmask_b32 v{vO}, v{vO}, v{vMC}, vcc\nv_cndmask_b32 v{vO+1}, v{vO+1}, v{vLS}, vcc\nv_cndmask_b32 v{vO+2}, v{vO+2}, v{vU1}, vcc")
    tag([vO+3, vO, vO+1, vO+2])
    setexec(0x00ff00ff00ff01ff)
    a.vm(f"buffer_store_dwordx4 {V(vO,4)}, v{vOP}, {R(rWS)}, s{sMSG} offen sc1", "OPst")
    setexec(FULL)
    tsoft(0)
    stamp(4)
    a(f"s_bitcmp1_b32 s{sS}, 2\ns_cbranch_scc1 L_ctx")
    vFA, vFB, vOO = vSC, vP, 104
    assert NFA in (0, NFB)
    def m_round():
        for i in (3, 0, 1, 2):
            a(f"buffer_load_dwordx4 {V(vMS+4*i,4)}, v{vPA+i}, {R(rWS)}, s{sMB} offen sc1")
    if PFIRST: m_round()
    for n in range(NFB, 8): fin_dma(n, vFD)
    if not PFIRST: m_round()
    for r in range(4): a(f"v_xor_b32 v{vOO+r}, s{sTAG}, v{vO+r}")
    a(f"v_mov_b32 v{vT1}, 0xff7f0000\nv_cndmask_b32 v{vMC}, v{vMC}, v{vT1}, vcc\nv_and_b32 v{vLS}, s{sHI24}, v{vLS}")
    a(f"s_mov_b32 s{sU0+1}, 0x88888888\ns_mov_b32 s{sU0+2}, 0x88888888")
    a(f"s_waitcnt vmcnt({8 - NFB if PFIRST else 0})\nL_hop1poll:")
    untag(list(range(vMS, vMS+16)), vT0)
    a(f"v_add_f32 v{vFA}, v{vMS+12}, v{vMS+14}")
    a("s_cbranch_vccz L_hop1ok")
    m_round()
    a("s_waitcnt vmcnt(0)")
    spin_guard("L_hop1poll")
    a("L_ctx:")
    if NFA != NFB: a(f"s_mov_b32 s{sFO}, s{sU1}")
    for n in range(NFA, 8): fin_dma(n, vFD)
    a(f"s_waitcnt vmcnt({1 + 8 - NFA})")
    a("L_ctxcheck:")
    untag(list(range(vGS2, vGS2+4)), vT0)
    a("s_cbranch_vccz L_ctxok")
    cx_load()
    a("s_waitcnt vmcnt(0)")
    spin_guard("L_ctxcheck")
    a("L_ctxok:")
    a(f"v_cvt_pk_bf16_f32 v{vGS2}, v{vGS2}, v{vGS2+1}\nv_cvt_pk_bf16_f32 v{vGS2+1}, v{vGS2+2}, v{vGS2+3}")
    a(f"ds_write_b64 v{vRO}, {V(vGS2,2)}\ns_branch L_final")
    a("L_hop1ok:")
    tsoft(1)
    mk3 = f"s[{sU0+1}:{sU0+2}]"
    a(f"v_cndmask_b32 v{vFA}, v{vFA}, v{vMC}, {mk3}\nv_cndmask_b32 v{vFB}, v{vMS+13}, v{vLS}, {mk3}")
    steps = ("quad_perm:[1,0,3,2]", "quad_perm:[2,3,0,1]", "row_ror:8")
    for n, st_ in enumerate(steps):
        x = vT1 if n else vFA
        a(f"v_max_f32_dpp v{vT1}, v{x}, v{x} {st_} {DPP}")
    a(f"v_sub_f32 v{vFA}, v{vFA}, v{vT1}\nv_exp_f32 v{vFA}, v{vFA}\nv_mul_f32 v{vFB}, v{vFB}, v{vFA}")
    for i in (3, 0, 1, 2):
        if i < 3: a(f"v_add_f32_dpp v{vFB}, v{vFB}, v{vFB} {steps[i]} {DPP}")
        for r in range(4):
            if i == 3: a(f"v_mul_f32_dpp v{vOO+r}, v{vFA}, v{vOO+r} quad_perm:[3,3,3,3] {DPP}")
            else: a(f"v_fmac_f32_dpp v{vOO+r}, v{vFA}, v{vMS+4*i+r} quad_perm:[{i},{i},{i},{i}] {DPP}")
    a(f"v_rcp_f32 v{vFB}, v{vFB}")
    for r in range(4):
        a(f"v_add_f32_dpp v{vOO+r}, v{vOO+r}, v{vOO+r} row_ror:8 {DPP}")
    for r in range(4):
        a(f"v_mul_f32 v{vOO+r}, v{vOO+r}, v{vFB}")
    a(f"v_cvt_pk_bf16_f32 v{vOO}, v{vOO}, v{vOO+1}\nv_cvt_pk_bf16_f32 v{vOO+2}, v{vOO+2}, v{vOO+3}")
    setexec(0x00ff00ff00ff00ff)
    a(f"ds_write_b16 v{vAW}, v{vOO}\nds_write_b16_d16_hi v{vAW}, v{vOO} offset:16")
    a(f"ds_write_b16 v{vAW}, v{vOO+2} offset:32\nds_write_b16_d16_hi v{vAW}, v{vOO+2} offset:48")
    setexec(FULL)
    a("L_final:")
    a("s_waitcnt vmcnt(0) lgkmcnt(0)\ns_barrier")
    tsoft(2)
    def f_reads(i):
        u, k = i >> 2, i & 3
        for pi in range(2):
            a(f"ds_read_b64_tr_b16 {V(vWT+4*i+2*pi,2)}, v{vFT+2*u+pi} offset:{8192*k+1024*pi}")
        a(f"ds_read_b128 {V(vBU+4*i,4)}, v{vAO+u} offset:{64*k}")
    for i in range(4): f_reads(i)
    for i in range(8):
        if i + 4 < 8: f_reads(i + 4)
        a(f"s_waitcnt lgkmcnt({3 * min(4, 7 - i)})")
        a(f"v_mfma_f32_16x16x32_bf16 {V(vY,4)}, {V(vWT+4*i,4)}, {V(vBU+4*i,4)}, {V(vY,4) if i else '0'}")
    a(f"s_add_u32 s{sT1}, s{sYG}, 4096\ns_cmp_eq_u32 s{sLOC}, 1")
    setexec(0x00ff00ff00ff00ff)
    tag(range(vY, vY+4))
    a("s_cbranch_scc1 L_ylocal")
    a(f"buffer_store_dwordx4 {V(vY,4)}, v{vAY}, {R(rWS)}, s{sYS} offen sc1\ns_branch L_ydone")
    a(f"L_ylocal:\nbuffer_store_dwordx4 {V(vY,4)}, v{vAY}, {R(rWS)}, s{sYS} offen\nL_ydone:")
    setexec(FULL)
    tsoft(3)
    stamp(11)
    a(f"s_cmp_lg_u32 s{sW}, 0\ns_cbranch_scc1 L_done")
    a("L_hop2:")
    for i in range(2):
        a(f"buffer_load_dwordx4 {V(vGS2+4*i,4)}, v{vAG}, {R(rWS)}, s{sT1 if i else sYG} offen sc1")
    a("s_waitcnt vmcnt(0)")
    untag(list(range(vGS2, vGS2+8)), vT0)
    for r in range(4):
        a(f"v_add_f32 v{vG2+r}, v{vGS2+r}, v{vGS2+4+r}")
    a("s_cbranch_vccz L_hop2ok")
    spin_guard("L_hop2")
    a("L_hop2ok:")
    tsoft(4)
    a(f"v_permlane16_swap_b32 v{vG2}, v{vG2+1}\nv_permlane16_swap_b32 v{vG2+2}, v{vG2+3}")
    a(f"v_add_f32 v{vG2}, v{vG2}, v{vG2+1}\nv_add_f32 v{vG2+2}, v{vG2+2}, v{vG2+3}")
    a(f"v_permlane32_swap_b32 v{vG2}, v{vG2+2}\nv_add_f32 v{vG2}, v{vG2}, v{vG2+2}")
    a(f"v_add_f32_dpp v{vG2}, v{vG2}, v{vG2} row_ror:8 {DPP}\nv_add_f32_dpp v{vG2}, v{vG2}, v{vG2} row_ror:4 {DPP}")
    a(f"v_cvt_pk_bf16_f32 v{vG2}, v{vG2}, v{vG2}")
    setexec(0x000f000f000f000f)
    a(f"buffer_store_short v{vG2}, v{vAF}, {R(rOUT)}, 0 offen")
    tsoft(5)
    stamp(13)
    a(f"s_cmp_lg_u32 s2, {9 if CLS == 2 else 0}\ns_cbranch_scc1 L_done\nv_mov_b32 v{vT0}, 0")
    setexec(1)
    a(f"buffer_store_dword v{vTAG}, v{vT0}, {R(rWS)}, 0 offen")
    a("L_done:")
    stamp(14)
    probe_end()
    tflush()
    a("L_end:\ns_endpgm")

    a("L_qp:")
    a.q = []
    a(f"v_lshlrev_b32 v{vT0}, 18, v{vG}\nv_lshl_add_u32 v{vOW}, v{vJ}, 4, v{vT0}")
    a(f"v_lshrrev_b32 v{vT1}, 3, v{vJ}\nv_lshlrev_b32 v{vT1}, 10, v{vT1}\nv_lshl_add_u32 v{vOX}, v{vG}, 6, v{vT1}")
    a(f"s_cmp_eq_u32 s{sP}, 0\ns_cselect_b32 s{sHJ}, {XQ[0]}, {XQ[1]}\ns_xor_b32 s{sHJ}, s{sHJ}, s{sH}")
    a(f"s_lshl_b32 s{sU1}, s{sW}, 8\ns_lshl_b32 s{sWO}, s{sW}, 20\ns_lshl_b32 s{sT2}, s{sHJ}, 8\ns_add_u32 s{sWO}, s{sWO}, s{sT2}")
    a(f"s_mov_b32 s{rW+2}, {4*MB}\ns_mov_b32 s{rW+3}, 0x20000\ns_mov_b32 s{rX+2}, 4096\ns_mov_b32 s{rX+3}, 0x20000")
    a(f"s_cmp_eq_u32 s{sP}, 0\ns_waitcnt lgkmcnt(0)")
    a(f"s_cselect_b64 s[{rW}:{rW+1}], s[{pBWQ}:{pBWQ+1}], s[{pAWQ}:{pAWQ+1}]\ns_cselect_b64 s[{rX}:{rX+1}], s[{pBX}:{pBX+1}], s[{pAX}:{pAX+1}]")
    def w_load(t):
        a.vm(f"buffer_load_dwordx4 {A(A1+4*t,4)}, v{vOW}, {R(rW)}, s{sWO} offen nt", f"W{t}")
        a(f"s_add_u32 s{sWO}, s{sWO}, 8192")
    def x_load(i):
        for u in range(2):
            a.vm(f"buffer_load_dwordx4 {V(vX+16*u+4*i,4)}, v{vOX}, {R(rX)}, s{sU1} offen offset:{2048*u+16*i}", f"X{i}")
    soft(0)
    w_load(0); w_load(1); x_load(0)
    for t in range(2, 8): w_load(t)
    consts(); masks()
    for i in range(1, 4): x_load(i)
    saddr(sT0, WS_CT, (sHJ, 0, 0, 10), (sW, 0, 0, 8))
    a(f"v_mov_b32 v{vTK}, 0\ns_cmp_eq_u32 s{sP}, 0\ns_cselect_b32 s{sT2}, s{sT0}, {WS_SIZE}")
    setexec(1)
    a.vm(f"buffer_store_dword v{vTK}, v{vTK}, {R(rWS)}, s{sT2} offen sc1", "INIT")
    setexec(FULL)
    st = Start(PUJ)
    todo = [lambda t=t: w_load(t) for t in range(8, 32)] + [lambda: None] * (8 - DP) + [st.load] * DP
    late = {4: kv_setup, 8: lambda: (srd(rK, pK, 128*MB), srd(rV, pV, 128*MB)), 12: kv_late}
    a(f"s_mov_b32 s{sSELLO}, 0x01000100\ns_mov_b32 s{sSELHI}, 0x03020302")
    for t in range(32):
        if f"X{t//8}" in a.q: a.wait(f"X{t//8}")
        if t == 0: soft(1); soft_flush()
        if f"W{t}" in a.q: a.wait(f"W{t}")
        todo.pop(0)()
        if t in late: late[t]()
        for u in range(2):
            x = vX + 16*u + (t >> 1)
            a(f"v_perm_b32 v{vT0+u}, v{x}, v{x}, s{sSELHI if t & 1 else sSELLO}")
        for u in range(2):
            for r in range(4):
                a(f"v_and_b32 v{vB+4*u+r}, v{vT0+u}, v{vMASK+r}")
        for u in range(2):
            c = V(vACC+4*u, 4) if t else "0"
            a(f"v_mfma_f32_16x16x32_bf16 {V(vACC+4*u,4)}, {A(A1+4*t,4)}, {V(vB+4*u,4)}, {c}")
    a(f"s_lshl_b32 s{sT2}, s{sW}, 11")
    a(f"v_lshrrev_b32 v{vT0}, 3, v{vJ}\nv_lshlrev_b32 v{vT0}, 9, v{vT0}\nv_lshl_add_u32 v{vT0}, v{vG}, 7, v{vT0}")
    a(f"v_and_b32 v{vT1}, 7, v{vJ}\nv_lshl_add_u32 v{vT0}, v{vT1}, 2, v{vT0}\nv_add_u32 v{vT0}, s{sT2}, v{vT0}")
    for u in range(2):
        for r in range(4):
            a(f"ds_write_b32 v{vT0}, v{vACC+4*u+r} offset:{u*1024+r*32}")
    a(f"s_lshl_b32 s{sT2}, s{sW}, 9\nv_and_b32 v{vT1}, 31, v{vL}\nv_lshl_add_u32 v{vT1}, v{vT1}, 4, s{sT2}")
    take_tag()
    a("s_barrier")
    for p in range(4):
        a(f"ds_read_b128 {V(vX+4*p,4)}, v{vT1} offset:{p*2048}")
    saddr(sT0, WS_QP, (sHJ, 0, 0, 12), (sP, 0, 0, 11))
    a("s_waitcnt lgkmcnt(0)")
    for r in range(4):
        a(f"v_add_f32 v{vX+r}, v{vX+r}, v{vX+4+r}\nv_add_f32 v{vX+8+r}, v{vX+8+r}, v{vX+12+r}")
    for r in range(4):
        a(f"v_add_f32 v{vX+r}, v{vX+r}, v{vX+8+r}")
    tag_bf16(range(vX, vX+4))
    assert "INIT" not in a.q
    setexec(0xffffffff)
    a.vm(f"buffer_store_dwordx4 {V(vX,4)}, v{vT1}, {R(rWS)}, s{sT0} offen sc1", "QPst")
    setexec(FULL)
    stamp(1)
    st.until_q(POLLQ)
    st.finish()
    a("s_branch L_bloop")

    a("L_ql:")
    a.q = []
    vOU, vOA, vOL, sUK, sQA, sQL = vOW, vOX, vTK, sWO, sCKO, sSLOT
    vQA, vD, vPK, vR = 20, 28, 44, 60
    a(f"v_lshrrev_b32 v{vT0}, 2, v{vJ}\nv_and_b32 v{vT1}, 3, v{vJ}")
    a(f"v_lshlrev_b32 v{vOL}, 6, v{vG}\nv_lshl_add_u32 v{vOL}, v{vT1}, 4, v{vOL}\nv_lshl_add_u32 v{vOU}, v{vT0}, 18, v{vOL}")
    sHU, sWU = sHJ, sC2
    a(f"s_and_b32 s{sHU}, s{sH}, 28\ns_add_u32 s{sHU}, s{sHU}, s{sW}\ns_and_b32 s{sWU}, s{sH}, 3")
    saddr(sUK, 0, (sWU, 0, 0, 20), (sHU, 0, 0, 8))
    a(f"s_mov_b32 s{rUK+2}, {4*MB}\ns_mov_b32 s{rUK+3}, 0x20000\ns_waitcnt lgkmcnt(0)\ns_mov_b64 s[{rUK}:{rUK+1}], s[{pUK}:{pUK+1}]")
    def uk_load(t):
        if f"UK{t-8}" in a.q: a.wait(f"UK{t-8}")
        a.vm(f"buffer_load_dwordx4 {A(A1+4*t,4)}, v{vOU}, {R(rUK)}, s{sUK} offen nt", f"UK{t}")
        a(f"s_add_u32 s{sUK}, s{sUK}, 8192")
    soft(0)
    for t in range(8): uk_load(t)
    a(f"v_lshlrev_b32 v{vOA}, 1, v{vOL}\nv_lshl_add_u32 v{vOA}, v{vT0}, 9, v{vOA}")
    a(f"v_lshl_add_u32 v{vOL}, v{vT0}, 15, v{vOL}")
    consts()
    soft(1); soft_flush()
    saddr(sQA, WS_QP + 2048, (sHU, 0, 0, 12))
    saddr(sQL, WS_QL, (sHU, 0, 0, 10), (sWU, 0, 0, 8))
    late = {12: masks, 16: kv_setup, 20: lambda: (srd(rK, pK, 128*MB), srd(rV, pV, 128*MB)), 24: kv_late}
    for t in range(8, 32):
        uk_load(t)
        if t in late: late[t]()
    take_tag(True)
    st = Start(PUJ)
    for t in range(32 - DP, 32):
        a.wait(f"UK{t}"); st.load()
    def qa_poll():
        for i in range(2):
            a.vm(f"buffer_load_dwordx4 {V(vQA+4*i,4)}, v{vOA}, {R(rWS)}, s{sQA} offen offset:{16*i} sc1", "QA")
    while st.n < POLLU: st.paced(DP)
    qa_poll()
    while st.n < POLLU + DP - 1: st.paced(DP)
    a.wait("QA")
    chk, ok = a.label("qacheck"), a.label("qaok")
    a(f"{chk}:")
    untag(list(range(vQA, vQA+8)), vT0)
    a(f"s_cbranch_vccz {ok}" if not ({"QPst", "Q"} & set(ABL)) else f"s_branch {ok}")
    saved = list(a.q)
    qa_poll()
    a("s_waitcnt vmcnt(0)")
    spin_guard(chk)
    a.q = saved
    a(f"{ok}:")
    q_poll()
    for r in range(4):
        a(f"v_cvt_pk_bf16_f32 v{vQA+r}, v{vQA+2*r}, v{vQA+2*r+1}")
    def fold(t):
        quadsum(vR + (t & 1), vD + 4*(t % 4), vT0)
        if t & 1: a(f"v_cvt_pk_bf16_f32 v{vPK+t//2}, v{vR}, v{vR+1}")
    for t in range(32):
        a(f"v_mfma_f32_16x16x32_bf16 {V(vD+4*(t%4),4)}, {A(A1+4*t,4)}, {V(vQA,4)}, 0")
        if t >= 2: fold(t - 2)
        if t % 8 == 4 and st.n < 8*PUJ: st.load()
    fold(30); fold(31)
    for q in range(1, 4):
        setexec(0x1111111111111111 << q)
        for r in range(4):
            a(f"v_mov_b32 v{vPK+r}, v{vPK+4*q+r}")
    setexec(FULL)
    a.vm(f"buffer_store_dwordx4 {V(vPK,4)}, v{vOL}, {R(rWS)}, s{sQL} offen sc1", "QLst")
    stamp(1)
    done = []
    def sig(c):
        if not done and ("QLst" not in a.q or c == 15):
            done.append(c); signal("QLst", WS_F1, 48)
    st.finish(sig)
    a("s_branch L_bloop")

    a("L_aux:")
    role[0] = "A"
    a.q = []
    vOR1 = 9
    vOC, vOC8 = 76, 10
    vAQ, vAD = 60, 82
    vM, vLL, vAL, vEX = 90, 91, 92, 94
    vWR, vZ, vL2 = 96, 100, 102
    vQL, vPP, vCT, vKQ, vSS = 36, 52, 104, 136, 200
    vE1, vE2 = vKQ, vKQ + 16
    aKA = A0
    vTA = 136
    sHH = sSLOT
    a(f"v_lshlrev_b32 v{vT0}, 2, v{vG}\nv_xor_b32 v{vT0}, v{vT0}, v{vJ}")
    for i in range(4):
        a(f"v_xor_b32 v{vWR+i}, {i}, v{vT0}\nv_lshlrev_b32 v{vWR+i}, 4, v{vWR+i}\nv_lshl_add_u32 v{vOC8+i}, v{vG}, 13, v{vWR+i}")
        if i: a(f"v_add_u32 v{vOC8+i}, {i*(32768-1024)}, v{vOC8+i}")
    a(f"s_lshl_b32 s{sM0}, s{sW}, 15\ns_mov_b32 s{sFILL}, 0")
    saddr(sCKO, 0, (sW, 0, 0, 20), (sH, 0, 0, 8))
    a("s_waitcnt lgkmcnt(0)")
    srd(rCK, pUV, 4*MB)
    def ck_one(n, tg, offs=vOC, step=16384):
        if n % 4 == 0:
            a(f"s_add_u32 s{sT3}, s{sM0}, s{sFILL}\ns_mov_b32 m0, s{sT3}")
            a(f"s_add_u32 s{sFILL}, s{sFILL}, 4096\ns_and_b32 s{sFILL}, s{sFILL}, 0x7fff")
        a.vm(f"buffer_load_dwordx4 v{offs+n%4}, {R(rCK)}, s{sCKO} offen offset:{(n%4)*1024} nt lds", tg)
        if n % 4 == 3:
            a(f"s_add_u32 s{sCKO}, s{sCKO}, {step}")
    soft(0)
    for n in range(8): ck_one(n, "UV0", vOC8, 16*8192)
    consts()
    if "noaux" in ABL: a("s_endpgm")
    for i in range(4):
        a(f"v_lshl_add_u32 v{vOC+i}, v{vG}, 10, v{vWR+i}\nv_lshl_add_u32 v{vWR+i}, v{vG}, 8, v{vWR+i}")
        if i: a(f"v_add_u32 v{vOC+i}, {i*3072}, v{vOC+i}")
    vaddr(vZ+1, vZ, (vL, 0, 5, 8))
    vaddr(vOR1, vT0, (vJ, 0, 0, 4), (vG, 0, 0, 10))
    a(f"v_xor_b32 v{vT1}, v{vJ}, v{vG}")
    vaddr(vT2, vT0, (vJ, 2, 1, 11), (vJ, 3, 1, 10), (vJ, 0, 2, 8), (vT1, 0, 2, 6), (vJ, 2, 1, 5), (vJ, 3, 1, 4))
    a(f"v_add_u32 v{vAQ}, s{sM0}, v{vT2}")
    for k in range(1, 4): a(f"v_xor_b32 v{vAQ+k}, {16*k}, v{vAQ}")
    a(f"v_lshrrev_b32 v{vT1}, 4, v{vL}\nv_xor_b32 v{vT1}, v{vT1}, v{vL}")
    vaddr(vT2, vT0, (vL, 4, 1, 11), (vL, 5, 1, 10), (vL, 2, 2, 8), (vL, 2, 2, 6), (vL, 4, 1, 5), (vT1, 1, 1, 4), (vL, 0, 1, 3))
    a(f"v_add_u32 v{vAD}, s{sM0}, v{vT2}")
    for k in range(1, 8): a(f"v_xor_b32 v{vAD+k}, {32*k}, v{vAD}")
    vaddr(vT2, vT0, (vG, 0, 0, 11), (vL, 2, 2, 8), (vL, 2, 2, 6), (vL, 4, 1, 5), (vL, 1, 1, 4), (vL, 0, 1, 3))
    a(f"v_add_u32 v{vTA}, s{sM0}, v{vT2}")
    for i in range(1, 16): a(f"v_xor_b32 v{vTA+i}, {16*i}, v{vTA}")
    a(f"s_lshl_b32 s{sU0}, s{sW}, 13\ns_add_u32 s{sU0}, s{sU0}, {LDS_EX}\nv_lshl_add_u32 v{vEX}, v{vL}, 4, s{sU0}")
    for i in range(4):
        a(f"v_add_u32 v{vWR+i}, s{sU0}, v{vWR+i}")
    soft(1); soft_flush()
    for k in range(1, 4):
        for n in range(8): ck_one(n, f"UV{k}", vOC8, 16*8192)
    take_tag(True)
    xc_report(vT0)
    srd(rCK, pCK, 16*MB)
    saddr(sIX, 0, (sH, 0, 3, 1), (sH, 4, 0, 0))
    a(f"s_bfe_u32 s{sHH}, s{sH}, 0x10003")
    saddr(sCKO, 0, (sIX, 0, 0, 20), (sW, 0, 0, 8))

    def flag_load(off):
        a(f"s_mov_b32 s{sU1}, {off}")
        a.vm(f"buffer_load_dword v{vT3}, v{vZ+1}, {R(rWS)}, s{sU1} offen sc1", "FL")

    def flag_wait(off):
        a.wait("FL")
        chk, ok = a.label("fcheck"), a.label("fok")
        a(f"{chk}:\nv_cmp_ne_u32 vcc, s{sFLAG}, v{vT3}\ns_cbranch_vccz {ok}")
        saved = list(a.q)
        a(f"s_sleep {FSL}")
        flag_load(off)
        a("s_waitcnt vmcnt(0)")
        spin_guard(chk)
        a.q = saved
        a(f"{ok}:")

    N1 = 10
    for k in range(4):
        a.wait(f"UV{k}")
        for nt in range(8):
            for pi in range(2):
                a(f"ds_read_b64_tr_b16 {A(A1+16*nt+4*k+2*pi,2)}, v{vTA+2*nt+pi} offset:{8192*k+1024*pi}")
        a("s_waitcnt lgkmcnt(0)")
        for n in range(8 if k < 3 else N1 - 8): ck_one(n, f"CK{k}")
    flag_load(WS_F1)
    stamp(2)
    if "noatt" in ABL: a("s_endpgm")
    for i in range(32): a(f"v_mov_b32 v{vCT+i}, 0")
    a(f"v_mov_b32 v{vM}, 0xff7f0000\ns_mov_b32 s{sIT}, 0")
    a(f"v_mov_b32 v{vL2}, 0\nv_mov_b32 v{vL2+1}, 0\ns_mov_b32 s{sC2}, s{sC}\ns_mov_b32 s{sC2+1}, s{sC}")
    a(f"v_xor_b32 v{vT1}, v{vJ}, v{vG}")
    vaddr(vT2, vT0, (vJ, 0, 0, 8), (vT1, 0, 2, 6), (vJ, 2, 0, 4))
    a(f"v_add_u32 v{vPP}, s{sU0}, v{vT2}")
    for k in range(1, 4): a(f"v_xor_b32 v{vPP+k}, {16*k}, v{vPP}")
    saddr(sT0, WS_QL, (sIX, 2, 0, 15), (sHH, 0, 0, 14), (sW, 0, 0, 8))
    flag_wait(WS_F1)
    stamp(4)
    for i in range(4):
        a.vm(f"buffer_load_dwordx4 {V(vSS+4*i,4)}, v{vOR1}, {R(rWS)}, s{sT0} offen sc1", f"QLg{i}")
        if i < 3: a(f"s_add_u32 s{sT0}, s{sT0}, 4096")
    kq_read = lambda i: a(f"ds_read_b128 {V(vKQ+4*i,4)}, v{vAQ+(i&3)} offset:{4096*(i>>2)}")
    for i in range(16): kq_read(i)
    for i in range(4):
        a.wait(f"QLg{i}")
        a(f"ds_write_b128 v{vWR+i}, {V(vSS+4*i,4)} offset:{i*1024}")
    a("s_waitcnt lgkmcnt(0)")
    for k in range(4):
        a(f"ds_read_b128 {V(vQL+4*k,4)}, v{vPP+k}")
    stamp(5)
    a("L_att:")
    a("s_waitcnt lgkmcnt(0)")
    for i in range(16):
        T, k = i >> 2, i & 3
        a(f"v_mfma_f32_16x16x32_bf16 {V(vSS+4*T,4)}, {V(vKQ+4*i,4)}, {V(vQL+4*k,4)}, {V(vSS+4*T,4) if k else '0'}")
        sg, ct = i >> 3, i & 7
        for pi in range(2):
            a(f"ds_read_b64_tr_b16 {A(aKA+4*i+2*pi,2)}, v{vAD+ct} offset:{8192*sg+4096*pi}")
        if i in (0, 3, 6, 9, 12, 15): ck_one(N1 + i // 3, "loop")
        if i >= 7 and (i - 7) % 4 == 0: a(f"ds_write_b128 v{vEX}, {V(vSS+(i-7),4)} offset:{256*(i-7)}")
    a(f"v_xor_b32 v{vT1}, 0x2000, v{vEX}\nv_xor_b32 v{vT2}, 0x4000, v{vEX}\nv_xor_b32 v{vT3}, 0x6000, v{vEX}")
    a(f"s_cmp_eq_u32 s{sIT}, 14\ns_cselect_b32 s{sCKO}, {16*MB}, s{sCKO}")
    a(f"ds_write_b128 v{vEX}, {V(vSS+12,4)} offset:3072")
    for k in range(8): a(f"v_xor_b32 v{vAD+k}, 0x4000, v{vAD+k}")
    for k in range(4): a(f"v_xor_b32 v{vAQ+k}, 0x4000, v{vAQ+k}")
    a("s_waitcnt lgkmcnt(0)\ns_barrier")
    for q in range(4):
        a(f"ds_read_b128 {V(vE1+4*q,4)}, v{vT1} offset:{1024*q}")
        a(f"ds_read_b128 {V(vE2+4*q,4)}, v{vT2} offset:{1024*q}")
        a(f"ds_read_b128 {V(vE2+16+4*q,4)}, v{vT3} offset:{1024*q}")
    a(f"v_xor_b32 v{vEX}, 0x1000, v{vEX}")
    nf = [0]
    def fill(cnt=1):
        for _ in range(cnt):
            ck_one(nf[0], "loop"); nf[0] += 1
    fill(3)
    for q in range(4):
        a(f"s_waitcnt lgkmcnt({9-3*q})")
        for r in range(4*q, 4*q+4, 2):
            a(f"v_pk_add_f32 {V(vSS+r,2)}, {V(vSS+r,2)}, {V(vE1+r,2)}\nv_pk_add_f32 {V(vE2+r,2)}, {V(vE2+r,2)}, {V(vE2+16+r,2)}")
        for r in range(4*q, 4*q+4, 2):
            a(f"v_pk_add_f32 {V(vSS+r,2)}, {V(vSS+r,2)}, {V(vE2+r,2)}")
    fill()
    a(f"s_waitcnt vmcnt({nf[0]})")
    a(f"v_max_f32 v{vT0}, v{vSS}, v{vSS+1}")
    for r in range(2, 16, 2):
        a(f"v_max3_f32 v{vT0}, v{vT0}, v{vSS+r}, v{vSS+r+1}")
    a(f"v_mov_b32 v{vT1}, v{vT0}")
    kq_read(0); kq_read(1)
    a(f"v_permlane16_swap_b32 v{vT0}, v{vT1}\nv_max_f32 v{vT0}, v{vT0}, v{vT1}\nv_mov_b32 v{vT1}, v{vT0}")
    kq_read(2); kq_read(3)
    a(f"v_permlane32_swap_b32 v{vT0}, v{vT1}\nv_max_f32 v{vT0}, v{vT0}, v{vT1}")
    a(f"v_mul_f32 v{vT0}, s{sC}, v{vT0}\nv_max_f32 v{vT0}, v{vT0}, v{vM}")
    a(f"v_sub_f32 v{vAL}, v{vM}, v{vT0}\nv_exp_f32 v{vAL}, v{vAL}\nv_mov_b32 v{vM}, v{vT0}")
    fill()
    for r in range(0, 16, 2):
        a(f"v_pk_fma_f32 {V(vSS+r,2)}, {V(vSS+r,2)}, s[{sC2}:{sC2+1}], {V(vM,2)} op_sel_hi:[1,1,0] neg_lo:[0,0,1] neg_hi:[0,0,1]")
    for r in range(16):
        a(f"v_exp_f32 v{vSS+r}, v{vSS+r}")
        if r % 4 == 1: kq_read(4 + r // 4)
        if r == 7: fill()
    fill()
    a(f"v_pk_mul_f32 {V(vL2,2)}, {V(vL2,2)}, {V(vAL,2)} op_sel_hi:[1,0]")
    for c in range(vCT, vCT+32, 2):
        a(f"v_pk_mul_f32 {V(c,2)}, {V(c,2)}, {V(vAL,2)} op_sel_hi:[1,0]")
    fill()
    for r in range(8):
        a(f"v_cvt_pk_bf16_f32 v{vPP+r}, v{vSS+2*r}, v{vSS+2*r+1}")
        a(f"v_pk_add_f32 {V(vL2,2)}, {V(vL2,2)}, {V(vSS+2*r,2)}")
    for i in range(16):
        sg, ct = i >> 3, i & 7
        a(f"v_mfma_f32_16x16x32_bf16 {V(vCT+4*ct,4)}, {A(aKA+4*i,4)}, {V(vPP+4*sg,4)}, {V(vCT+4*ct,4)}")
        if i < 8: kq_read(8 + i)
        if i in (9, 13): fill()
    assert nf[0] == N1
    a(f"s_add_u32 s{sIT}, s{sIT}, 1\ns_cmp_lt_u32 s{sIT}, 16\ns_cbranch_scc1 L_att")
    a.q = []
    stamp(6)
    if "nopost" in ABL: a("s_endpgm")
    vPUB, vPK2 = 200, 216
    a(f"v_add_f32 v{vLL}, v{vL2}, v{vL2+1}")
    a(f"v_mov_b32 v{vT1}, v{vLL}\nv_permlane16_swap_b32 v{vLL}, v{vT1}\nv_add_f32 v{vLL}, v{vLL}, v{vT1}")
    a(f"v_mov_b32 v{vT1}, v{vLL}\nv_permlane32_swap_b32 v{vLL}, v{vT1}\nv_add_f32 v{vLL}, v{vLL}, v{vT1}")
    a(f"v_lshrrev_b32 v{vT2}, 1, v{vG}\nv_xor_b32 v{vT2}, v{vT2}, v{vJ}")
    vaddr(vT1, vT0, (vJ, 0, 0, 8), (vT2, 0, 0, 4), (vG, 0, 1, 3))
    a(f"v_add_u32 v{vT1}, s{sU0}, v{vT1}")
    a("s_waitcnt vmcnt(0) lgkmcnt(0)\ns_barrier")
    for i in range(8):
        a(f"v_cvt_pk_bf16_f32 v{vPK2+2*i}, v{vCT+4*i}, v{vCT+4*i+1}\nv_cvt_pk_bf16_f32 v{vPK2+2*i+1}, v{vCT+4*i+2}, v{vCT+4*i+3}")
        a(f"v_xor_b32 v{vAD+i}, {32*i}, v{vT1}\nds_write_b64 v{vAD+i}, {V(vPK2+2*i,2)}")
    a(f"v_xor_b32 v{vT2}, v{vJ}, v{vG}\nv_lshlrev_b32 v{vT2}, 4, v{vT2}\nv_lshl_add_u32 v{vT0}, v{vG}, 8, v{vT2}\nv_add_u32 v{vT0}, s{sU0}, v{vT0}")
    for i in range(4):
        a(f"v_xor_b32 v{vAQ+i}, {64*i}, v{vT0}")
    vaddr(vT3, vT0, (vJ, 0, 0, 4), (vG, 0, 0, 14))
    saddr(sT0, WS_CP, (sHH, 0, 0, 18), (sIX, 0, 0, 10), (sW, 0, 0, 8))
    a("s_waitcnt lgkmcnt(0)")
    for i in range(4):
        a(f"ds_read_b128 {V(vPUB+4*i,4)}, v{vAQ+i} offset:{1024*i}")
    a(f"v_lshlrev_b32 v{vT0}, 3, v{vJ}")
    saddr(sT1, WS_CS, (sIX, 0, 0, 8), (sHH, 0, 0, 7), (sW, 0, 0, 23))
    setexec(0xffff)
    a.vm(f"buffer_store_dwordx2 {V(vM,2)}, v{vT0}, {R(rWS)}, s{sT1} offen sc1", "CPst")
    setexec(FULL)
    for i in range(4):
        a(f"s_waitcnt lgkmcnt({3-i})")
        a.vm(f"buffer_store_dwordx4 {V(vPUB+4*i,4)}, v{vT3}, {R(rWS)}, s{sT0} offen sc1", "CPst")
        if i < 3: a(f"s_add_u32 s{sT0}, s{sT0}, {64*KB}")
    vCB, vSTAT, vDD = 136, 52, 104
    vGS, vRW, vRR = 81, 94, 102
    fin_scalar()
    for n in range(8): fin_dma(n, vOC)
    fin_vec3()
    xc_fetch(64)
    vaddr(vGS, vT1, (vJ, 0, 2, 10), (vJ, 2, 0, 8))
    a(f"v_add3_u32 v{vAD}, v{vGS}, v{vT2}, s{sU0}")
    for k in range(1, 4): a(f"v_xor_b32 v{vAD+k}, {64*k}, v{vAD}")
    vaddr(vRW, vT1, (vJ, 0, 2, 9), (vG, 0, 0, 4))
    a(f"v_add_u32 v{vRW}, s{sU0}, v{vRW}")
    a(f"s_lshl_b32 s{sT2}, s{sW}, 9\ns_add_u32 s{sT2}, s{sT2}, {LDS_EX}\nv_add_u32 v{vRR}, s{sT2}, v{vCX}")
    saddr(sT0, WS_CP, (sH, 0, 0, 14), (sW, 0, 0, 8))
    saddr(sT1, WS_CS, (sH, 0, 0, 3))
    signal("CPst", WS_F2, vT0)
    stamp(7)
    flag_load(WS_F2)
    flag_wait(WS_F2)
    stamp(8)
    a.vm(f"buffer_load_dwordx2 {V(vSTAT,2)}, v{vGS}, {R(rWS)}, s{sT1} offen sc1", "CSg")
    for i in range(4):
        a.vm(f"buffer_load_dwordx4 {V(vPUB+4*i,4)}, v{vOR1}, {R(rWS)}, s{sT0} offen sc1", f"CPg{i}")
        if i < 3: a(f"s_add_u32 s{sT0}, s{sT0}, 4096")
    a.wait("CSg")
    a(f"v_max_f32_dpp v{vT0}, v{vSTAT}, v{vSTAT} row_ror:8 {DPP}\nv_max_f32_dpp v{vT0}, v{vT0}, v{vT0} row_ror:4 {DPP}")
    a(f"v_sub_f32 v{vSTAT}, v{vSTAT}, v{vT0}\nv_exp_f32 v{vSTAT}, v{vSTAT}\nv_mul_f32 v{vT1}, v{vSTAT}, v{vSTAT+1}")
    a(f"v_add_f32_dpp v{vT1}, v{vT1}, v{vT1} row_ror:8 {DPP}\nv_add_f32_dpp v{vT1}, v{vT1}, v{vT1} row_ror:4 {DPP}")
    a(f"v_rcp_f32 v{vT1}, v{vT1}\nv_mul_f32 v{vSTAT}, v{vSTAT}, v{vT1}")
    for i in range(4):
        a.wait(f"CPg{i}")
        a(f"ds_write_b128 v{vWR+i}, {V(vPUB+4*i,4)} offset:{i*1024}")
    a("s_waitcnt lgkmcnt(0)")
    for k in range(4):
        a(f"ds_read_b128 {V(vCB+4*k,4)}, v{vAD+k}")
    a("s_waitcnt lgkmcnt(0)")
    def ctx_fold(nt):
        d = vDD + 4*nt
        for r in range(4):
            a(f"v_mul_f32 v{d+r}, v{d+r}, v{vSTAT}")
        for ror in (8, 4):
            for r in range(4):
                a(f"v_add_f32_dpp v{d+r}, v{d+r}, v{d+r} row_ror:{ror} {DPP}")
        a(f"ds_write_b128 v{vRW}, {V(d,4)} offset:{64*nt}")
    for nt in range(8):
        d = vDD + 4*nt
        for k in range(4):
            a(f"v_mfma_f32_16x16x32_bf16 {V(d,4)}, {A(A1+16*nt+4*k,4)}, {V(vCB+4*k,4)}, {V(d,4) if k else '0'}")
        if nt >= 2: ctx_fold(nt - 2)
    ctx_fold(6); ctx_fold(7)
    a("s_waitcnt lgkmcnt(0)\ns_barrier")
    for p in range(4):
        a(f"ds_read_b128 {V(vCB+4*p,4)}, v{vRR} offset:{p*8192}")
    a("s_waitcnt lgkmcnt(0)")
    for r in range(4):
        a(f"v_add_f32 v{vCB+r}, v{vCB+r}, v{vCB+4+r}\nv_add_f32 v{vCB+8+r}, v{vCB+8+r}, v{vCB+12+r}")
    for r in range(4):
        a(f"v_add_f32 v{vCB+r}, v{vCB+r}, v{vCB+8+r}")
    tag_bf16(range(vCB, vCB+4))
    saddr(sT0, WS_CX, (sH, 0, 0, 11), (sW, 0, 0, 9))
    setexec(0xffffffff)
    a(f"buffer_store_dwordx4 {V(vCB,4)}, v{vCX}, {R(rWS)}, s{sT0} offen sc1")
    setexec(FULL)
    for r in range(4): a(f"v_xor_b32 v{vGS2+r}, s{sTAG}, v{vCB+r}")
    fin_vec2()
    xc_check(64)
    stamp(9)
    a(f"s_bitcmp1_b32 s{sS}, 2\ns_cbranch_scc1 L_ctxok")
    a(f"s_mov_b32 s{sB}, s{sW}")
    cx_load()
    fin_vec1()
    msg_addr()
    a(f"s_add_u32 s{sT1}, s{sMB}, {6*1024}\ns_mov_b32 s{sU0+1}, 0x88888888\ns_mov_b32 s{sU0+2}, 0x88888888\nv_mov_b32 v{vMC}, 0xff7f0000")
    a("L_auxpoll:")
    m_round()
    a(f"buffer_load_dwordx4 {V(vOO,4)}, v{vOP}, {R(rWS)}, s{sT1} offen sc1\ns_waitcnt vmcnt(0)")
    untag(list(range(vOO, vOO+4)) + list(range(vMS, vMS+16)), vT0)
    a(f"v_add_f32 v{vFB}, v{vOO}, v{vOO+2}\nv_add_f32 v{vFA}, v{vMS+12}, v{vMS+14}")
    a(f"v_mov_b32_dpp v{vLS}, v{vOO+1} row_newbcast:8 {DPP}")
    a(f"v_mov_b32_dpp v{vMC}, v{vFB} row_newbcast:8 row_mask:0xf bank_mask:0x3")
    a("s_cbranch_vccz L_hop1ok")
    spin_guard("L_auxpoll")
    body = a.finish()
    ref = open(os.path.join(os.path.dirname(os.path.abspath(__file__)), "..", NAME + ".s.ref")).read().split("\n")
    layout = [l for l in ref if l.startswith(";") and "@launch" not in l and "Override" not in l and "grid=ceil" not in l]
    tail = f""".section .rodata,"a"
.p2align 6
.amdhsa_kernel {NAME}_kernel
  .amdhsa_next_free_vgpr 512
  .amdhsa_next_free_sgpr 102
  .amdhsa_accum_offset 256
  .amdhsa_group_segment_fixed_size 0
  .amdhsa_kernarg_size 112
  .amdhsa_user_sgpr_count 2
  .amdhsa_user_sgpr_kernarg_segment_ptr 1
  .amdhsa_system_sgpr_workgroup_id_x 1
.end_amdhsa_kernel
"""
    return "\n".join(layout + hdr + ["; generated by tools/gen.py"]) + "\n" + body + tail

if __name__ == "__main__":
    kw = eval("dict(" + (sys.argv[2] if len(sys.argv) > 2 else "") + ")")
    out = sys.argv[1] if len(sys.argv) > 1 else os.path.join(os.path.dirname(os.path.abspath(__file__)), "..", NAME + ".s")
    open(out, "w").write(generate(**kw))
    print("wrote", out)
```

```python
import sys, os, struct
sys.path.insert(0, os.path.dirname(os.path.abspath(__file__)))
from asmlib import Asm

NAME = "concat_heads__compressed_kv_cla__mha_block_cached__decode"
KB, MB = 1024, 1 << 20
WS_XC = 32 * KB
WS_CT, WS_F1, WS_F2, WS_CS, WS_CX, WS_QP, WS_QL, WS_YA, WS_YB = [o * KB for o in (64, 96, 128, 160, 192, 256, 384, 512, 768)]
WS_OP, WS_CP, WS_SC, WS_ST, WS_SIZE = 1*MB, 2*MB, 3*MB, 6*MB, 8*MB
SCALE = 128 ** -0.5 * 1.4426950408889634
LDS_EX = 128 * KB
LDS_O = LDS_EX + 4 * KB
LDS_W = 96 * KB
SPIN = 1 << 21

def f32(x): return struct.unpack("<I", struct.pack("<f", x))[0]
def V(a, n=1): return f"v{a}" if n == 1 else f"v[{a}:{a+n-1}]"
def A(a, n=1): return f"a{a}" if n == 1 else f"a[{a}:{a+n-1}]"
def R(r): return f"s[{r}:{r+3}]"
DPP = "row_mask:0xf bank_mask:0xf"
FULL = (1 << 64) - 1

pAX, pCK, pAWQ, pUK, pUV, pAWO, pBX, pK, pV, pBWQ, pBWO, pOUT, pDBG, pWS = range(4, 32, 2)
sH, sP, sW, sTAG, sT0, sT1, sT2, sT3 = 32, 33, 34, 35, 36, 37, 38, 39
rW, rX, rWS, rK, rV, rUK, rOUT, rDBG = 40, 44, 48, 52, 56, 72, 72, 76
rCK = rK
sC2, sFILL, sWO = 60, 62, 63
sSELLO, sSELHI, sHI24, sC, sSPIN = 80, 81, 82, 83, 84
sU0, sU1, sTK, sROT, sBASE = 85, 86, 87, 88, 89
_, sQO, sMODE, sIT, sSLOT, sCKO, sYO, sOUTO = 90, 91, 92, 93, 94, 95, 96, 97
sTS = 98
sFLAG, sXT, sB, sHJ, sM0 = 68, 69, 3, 61, 56
sIX = sB
sS = 90

MAPS = {
    'L': ([[8], [9]], [[10], [11]], [12, 13, 14, 15, 16, 17, 18, 19]),
    'A': ([[12], [13]], [[15, 8], [8]], [14, 9, 10, 11, 16, 17, 18, 19]),
    'C': ([[8], [9]], [[15], [10]], [12, 13, 14, 11, 16, 17, 18, 19]),
}

def generate(D=6, DV=6, DP=7, NU=32, PAIR=0, MAP='C', ROTH=8, ROTW=1, PU=8, POLLP=46, PUJ=8, POLLQ=46, POLLU=30, LOCAL=1, PRET=1, CLS=1, NFA=0, NFB=8, PFIRST=1, XQ=(3, 2), FSL=2,
             STAMP=False, PROBE=None, AMP=0, ABL=()):
    a = Asm()
    role = ["B"]
    if ABL:
        real_vm = a.vm
        a.vm = lambda text, tg: real_vm(text.replace(R(rWS), R(rDBG)) if tg.rstrip("0123456789") in ABL else text, tg)

    vL, vG, vJ, vT0, vT1, vT2, vT3, vTAG = 1, 2, 3, 4, 5, 6, 7, 8
    vMASK = 10
    vST0, vST1 = 16, 17

    def srd(r, p, size):
        a(f"s_mov_b32 s{r}, s{p}\ns_and_b32 s{r+1}, s{p+1}, 0xffff\ns_mov_b32 s{r+2}, {size}\ns_mov_b32 s{r+3}, 0x20000")

    def saddr(dst, base, *fields):
        for n, (r, lo, w, pos) in enumerate(fields):
            if w: a(f"s_bfe_u32 s{sT2}, s{r}, {lo | (w << 16):#x}")
            elif lo: a(f"s_lshr_b32 s{sT2}, s{r}, {lo}")
            a(f"s_lshl_b32 s{sT2}, s{sT2 if (w or lo) else r}, {pos}")
            a(f"s_add_u32 s{dst}, s{sT2}, {base if n == 0 else 's%d' % dst}")

    def vaddr(dst, tmp, *fields):
        for n, (r, lo, w, pos) in enumerate(fields):
            if w: a(f"v_bfe_u32 v{tmp}, v{r}, {lo}, {w}")
            elif lo: a(f"v_lshrrev_b32 v{tmp}, {lo}, v{r}")
            src = tmp if (w or lo) else r
            a(f"v_lshlrev_b32 v{dst}, {pos}, v{src}" if n == 0 else f"v_lshl_add_u32 v{dst}, v{src}, {pos}, v{dst}")

    def stamp(i):
        if PROBE is not None:
            if PROBE == (role[0], i): a("s_memrealtime s[100:101]\ns_waitcnt lgkmcnt(0)")
            return
        if not STAMP or i == 14 or (STAMP == 3 and (role[0], i) not in (("A", 0), ("B", 0))): return
        if i: a(f"s_memrealtime s[{sTS}:{sTS+1}]\ns_waitcnt lgkmcnt(0)")
        else: a(f"s_lshl_b32 s100, s2, 2\ns_add_u32 s100, s100, s{sW}\ns_lshl_b32 s100, s100, 6\ns_add_u32 s100, s100, {WS_ST}\nv_mov_b32 v{vST0}, s100")
        a(f"v_mov_b32 v{vST1}, s{sTS}\ns_mov_b64 s[100:101], exec\ns_mov_b64 exec, 1")
        a(f"buffer_store_dword v{vST1}, v{vST0}, {R(rWS)}, 0 offen offset:{4*i}")
        if i == 0:
            a(f"s_getreg_b32 s{sTS}, hwreg(HW_REG_XCC_ID)\nv_mov_b32 v{vST1}, s{sTS}\nbuffer_store_dword v{vST1}, v{vST0}, {R(rWS)}, 0 offen offset:60")
        a("s_mov_b64 exec, s[100:101]")

    def soft(i):
        if STAMP == 2: a(f"s_memrealtime s[{76 if i == 0 else 78}:{77 if i == 0 else 79}]")

    def soft_flush():
        if STAMP == 2:
            a(f"s_waitcnt lgkmcnt(0)\ns_mov_b64 s[100:101], exec\ns_mov_b64 exec, 1")
            for i, r in ((14, 76), (7 if role[0] == "B" else 3, 78)):
                a(f"v_mov_b32 v{vST1}, s{r}\nbuffer_store_dword v{vST1}, v{vST0}, {R(rWS)}, 0 offen offset:{4*i}")
            a("s_mov_b64 exec, s[100:101]")

    TAILS = [12, 14, 16, 18, 20, 22, 24]
    def tsoft(i):
        if STAMP == 3: a(f"s_memrealtime s[{TAILS[i]}:{TAILS[i]+1}]")

    def tflush():
        if STAMP == 3:
            a(f"s_waitcnt lgkmcnt(0)\ns_mov_b64 s[100:101], exec\ns_mov_b64 exec, 1")
            for i, r in enumerate(TAILS):
                a(f"v_mov_b32 v{vST1}, s{r}\nbuffer_store_dword v{vST1}, v{vST0}, {R(rWS)}, 0 offen offset:{4*(i+7)}")
            a("s_mov_b64 exec, s[100:101]")

    def probe_end():
        if PROBE is None or PROBE[0] != role[0]: return
        lbl = a.label("probe")
        a(f"s_sub_u32 s100, s100, s{sTS}\ns_lshl_b32 s100, s100, {AMP}\ns_add_u32 s100, s100, s{sTS}")
        a(f"s_add_u32 s100, s100, 10000\n{lbl}:\ns_memrealtime s[{sTS}:{sTS+1}]\ns_waitcnt lgkmcnt(0)")
        a(f"s_sub_u32 s{sTS}, s{sTS}, s100\ns_cmp_lt_i32 s{sTS}, 0\ns_cbranch_scc0 {lbl}_x\ns_cmp_gt_i32 s{sTS}, -100000\ns_cbranch_scc1 {lbl}\n{lbl}_x:")

    def spin_guard(lbl_retry):
        a(f"s_sub_u32 s{sSPIN}, s{sSPIN}, 1\ns_cmp_lg_u32 s{sSPIN}, 0\ns_cbranch_scc1 {lbl_retry}\ns_branch L_end")

    def untag(regs, acc):
        for r in regs:
            a(f"v_xor_b32 v{r}, s{sTAG}, v{r}")
        a(f"v_or_b32 v{acc}, v{regs[0]}, v{regs[1]}")
        for i in range(2, len(regs), 2):
            a(f"v_or3_b32 v{acc}, v{acc}, v{regs[i]}, v{regs[i+1]}")
        a(f"v_and_b32 v{acc}, 0xff, v{acc}\nv_cmp_ne_u32 vcc, 0, v{acc}")

    def tag(regs):
        for r in regs:
            a(f"v_and_or_b32 v{r}, v{r}, s{sHI24}, v{vTAG}")

    def tag_bf16(regs):
        a(f"s_mov_b32 s{sT2}, 0xffff0000")
        for r in regs: a(f"v_cvt_pk_bf16_f32 v{r}, v{r}, v{r}")
        for r in regs: a(f"v_and_or_b32 v{r}, v{r}, s{sT2}, v{vTAG}")

    def quadsum(dst, src, tmp):
        a(f"v_mov_b32_dpp v{dst}, v{src} quad_perm:[0,0,0,0] {DPP}")
        a(f"v_mov_b32_dpp v{tmp}, v{src+2} quad_perm:[2,2,2,2] {DPP}")
        a(f"v_add_f32_dpp v{dst}, v{src+1}, v{dst} quad_perm:[1,1,1,1] {DPP}")
        a(f"v_add_f32_dpp v{tmp}, v{src+3}, v{tmp} quad_perm:[3,3,3,3] {DPP}")
        a(f"v_add_f32 v{dst}, v{dst}, v{tmp}")

    def setexec(mask):
        if mask == FULL: a("s_mov_b64 exec, -1")
        elif mask <= 64: a(f"s_mov_b64 exec, {mask}")
        else: a(f"s_mov_b32 exec_lo, {mask & 0xffffffff:#x}\ns_mov_b32 exec_hi, {mask >> 32:#x}")

    def consts():
        a(f"s_load_dword s{sTAG}, s[{pWS}:{pWS+1}], 0")
        srd(rWS, pWS, WS_SIZE)
        if ABL: srd(rDBG, pDBG, 256)
        a(f"s_mov_b32 s{sHI24}, 0xffffff00\ns_mov_b32 s{sC}, {f32(SCALE):#x}\ns_mov_b32 s{sSPIN}, {SPIN}")
        stamp(0)

    def take_tag(flag=False):
        a(f"s_waitcnt lgkmcnt(0)\ns_add_u32 s{sTAG}, s{sTAG}, 0x5b\ns_and_b32 s{sTAG}, s{sTAG}, 0xff\nv_mov_b32 v{vTAG}, s{sTAG}")
        if flag: a(f"s_or_b32 s{sFLAG}, s{sTAG}, 0x6b3ac500")

    def signal(tg, base, tmp):
        saddr(sXT, base, (sH, 0, 0, 8), (sW, 0, 0, 23))
        a(f"v_mov_b32 v{tmp}, s{sXT}\nv_mov_b32 v{tmp+1}, s{sFLAG}")
        if tg in a.q: a.wait(tg)
        a("s_barrier")
        setexec(1)
        a.vm(f"buffer_store_dword v{tmp+1}, v{tmp}, {R(rWS)}, 0 offen sc1", "SIG")
        setexec(FULL)

    hdr = [f"; @launch grid=(256,1,1) block=(256,1,1) lds={160*KB}"]
    a(f'.amdgcn_target "amdgcn-amd-amdhsa--gfx950"\n.text\n.globl {NAME}_kernel\n.p2align 8\n.type {NAME}_kernel,@function')
    a(f"{NAME}_kernel:")
    if STAMP or PROBE is not None: a(f"s_memrealtime s[{sTS}:{sTS+1}]")
    a("s_cmp_ge_u32 s2, 256\ns_cbranch_scc1 L_end")
    a("s_load_dwordx16 s[4:19], s[0:1], 0\ns_load_dwordx8 s[20:27], s[0:1], 64\ns_load_dwordx4 s[28:31], s[0:1], 96")
    a(f"v_lshrrev_b32 v{vT0}, 6, v0\nv_and_b32 v{vL}, 63, v0\nv_readfirstlane_b32 s{sW}, v{vT0}")
    a(f"s_lshr_b32 s{sH}, s2, 3\ns_sub_u32 s{sP}, s2, s{sH}\ns_sub_u32 s{sP}, s{sP}, 1\ns_and_b32 s{sP}, s{sP}, 7")
    a(f"v_lshrrev_b32 v{vG}, 4, v{vL}\nv_and_b32 v{vJ}, 15, v{vL}")
    a(f"s_cmp_lt_u32 s{sP}, 2\ns_cbranch_scc1 L_qp\ns_cmp_eq_u32 s{sP}, 2\ns_cbranch_scc1 L_ql\ns_cmp_eq_u32 s{sP}, 7\ns_cbranch_scc1 L_aux")

    vCA, vONE, vTK = 9, 18, 19
    sMSG = sYO
    vOW, vOX = 14, 15
    vX, vB, vACC, vQ = 20, 52, 60, 68
    vOK, vOQ, vOP, vOV = 76, 78, 79, 126
    vBQ, vPB = 80, 96
    vS, vO = 112, 116
    vMC, vLS, vSC, vP, vU0, vU1 = 120, 121, 122, 123, 124, 125
    RING = 128
    A0, A1 = 0, 128
    gv, tv, ub = MAPS[MAP] if isinstance(MAP, str) else MAP
    mk = lambda bits: sum(1 << b for b in bits)
    sup = set(sum(gv + tv, []))
    XOR = len(sup) > 4
    basis = []
    for r_ in [mk(v) for v in gv + tv] + [1 << b for b in ub]:
        for b_ in basis: r_ = min(r_, r_ ^ b_)
        assert r_, "key mapping is not a bijection"
        basis.append(r_)
    assert sup | set(ub) == set(range(8, 20))
    tval = [(mk(tv[0]) if t & 1 else 0) ^ (mk(tv[1]) if t & 2 else 0) for t in range(4)]
    gmask = mk(gv[0]) | mk(gv[1])
    timm = [v & 0xfff & ~gmask for v in tval]
    treg = sorted(set(v ^ i for v, i in zip(tval, timm)))
    tidx = [treg.index(v ^ i) for v, i in zip(tval, timm)]
    XOR = XOR or len(treg) > 2
    vAX = vOK + 1
    runs = []
    for i, b in enumerate(ub):
        if runs and runs[-1][1] + runs[-1][2] == b: runs[-1][2] += 1
        else: runs.append([i, b, 1])
    NP = (256 - 7 * NU) // 2
    assert NU % 2 == 0 and 2 <= NP <= 30 and 5 <= D <= DV <= 7 and not XOR
    rS, sINC, sCNT = 64, sMODE, sOUTO
    vOS, vSA, vMX, vS2, vSN, vPN = 62, 64, 65, 96, 66, 100
    LDS_S = 16 * KB
    sSC, sSCA = sSELLO, sSELHI
    vSL, vOSC, vLA, sCL = 102, 55, 0, sFILL
    LDS_T = 8 * KB

    def advance(n): a(f"s_add_u32 s{sTK}, s{sTK}, {inc(n)}")
    inc = lambda n: 7 if not PAIR else (13 if n % 8 == 7 else 1)
    def kv_setup():
        a(f"v_lshrrev_b32 v{vT0}, 2, v{vJ}\nv_and_b32 v{vT1}, 3, v{vJ}")
        for dst, sel in ((vOK, vT0), (vOV, vG)):
            if len(gv[0]) == 1 and gv[1] == [gv[0][0] + 1]:
                a(f"v_lshlrev_b32 v{dst}, {gv[0][0]}, v{sel}")
            else:
                a(f"v_and_b32 v{vT2}, 1, v{sel}\nv_mul_u32_u24 v{vT2}, {mk(gv[0])}, v{vT2}\nv_lshrrev_b32 v{vT3}, 1, v{sel}\nv_mul_u32_u24 v{vT3}, {mk(gv[1])}, v{vT3}\nv_xor_b32 v{dst}, v{vT2}, v{vT3}")
        a(f"v_lshl_add_u32 v{vOK}, v{vG}, 6, v{vOK}\nv_lshl_add_u32 v{vOK}, v{vT1}, 4, v{vOK}\nv_lshl_add_u32 v{vOV}, v{vJ}, 4, v{vOV}")
        if len(treg) == 2 and not XOR:
            a(f"v_xor_b32 v{vOK+1}, {treg[1]}, v{vOK}\nv_xor_b32 v{vOV+1}, {treg[1]}, v{vOV}")
        a(f"s_add_u32 s{sB}, s{sW}, s{sP}\ns_and_b32 s{sB}, s{sB}, 3")
        a(f"s_lshl_b32 s{sBASE}, s{sB}, 5\ns_add_u32 s{sBASE}, s{sBASE}, s{sH}\ns_lshl_b32 s{sBASE}, s{sBASE}, 20")
        a(f"s_mul_i32 s{sROT}, s{sH}, {ROTH}")
        if ROTW == 1: a(f"s_add_u32 s{sROT}, s{sROT}, s{sB}")
        else: a(f"s_mul_i32 s{sT2}, s{sB}, {ROTW}\ns_add_u32 s{sROT}, s{sROT}, s{sT2}")
        a(f"s_lshl_b32 s{sTK}, s{sP}, {PAIR}")

    def masks():
        a(f"v_and_b32 v{vT0}, 1, v{vL}\nv_lshlrev_b32 v{vT0}, 4, v{vT0}\nv_mov_b32 v{vT1}, 0xffff\nv_lshlrev_b32 v{vT0}, v{vT0}, v{vT1}")
        a(f"v_bfe_u32 v{vT1}, v{vL}, 1, 2")
        for r in range(4):
            a(f"v_cmp_eq_u32 vcc, {r}, v{vT1}\nv_cndmask_b32 v{vMASK+r}, 0, v{vT0}, vcc")

    def kv_late():
        a(f"v_mov_b32 v{vMC}, 0xff7f0000\nv_mov_b32 v{vLS}, 0\nv_mov_b32 v{vONE}, 1")
        for r in range(4): a(f"v_mov_b32 v{vO+r}, 0")
        a(f"v_lshlrev_b32 v{vLA}, 3, v{vL}\nds_write_b64 v{vLA}, {V(vO,2)} offset:{LDS_T}\nv_mov_b32 v{vLA}, {LDS_T}")
        saddr(sMSG, WS_CT, (sH, 0, 0, 10), (sH, 3, 0, 8))
        a(f"v_mov_b32 v{vCA}, s{sMSG}")
        saddr(sMSG, WS_OP, (sH, 0, 0, 15), (sB, 0, 0, 13), (sP, 0, 0, 10))
        a(f"v_and_b32 v{vT1}, 3, v{vJ}\nv_lshlrev_b32 v{vOQ}, 7, v{vG}\nv_lshl_add_u32 v{vOQ}, v{vT1}, 5, v{vOQ}")
        saddr(sQO, WS_QP, (sH, 0, 0, 12), (sB, 0, 0, 9))
        msg_addr()

    def msg_addr():
        a(f"v_lshlrev_b32 v{vT0}, 7, v{vG}\nv_lshl_add_u32 v{vT0}, v{vJ}, 4, v{vT0}\nv_mov_b32 v{vT1}, 512")
        a(f"v_cmp_gt_u32 vcc, 8, v{vJ}\nv_cndmask_b32 v{vOP}, v{vT1}, v{vT0}, vcc")

    def unit_addr(dst):
        a(f"s_add_u32 s{sT3}, s{sTK}, s{sROT}")
        for n, (i, b, w) in enumerate(runs):
            if XOR and n == 0:
                a(f"s_bfe_u32 s{sT1}, s{sT3}, {i | (w << 16):#x}\ns_lshl_b32 s{dst}, s{sT1}, {b}")
            else:
                a(f"s_bfe_u32 s{sT1}, s{sT3}, {i | (w << 16):#x}\ns_lshl_b32 s{sT1}, s{sT1}, {b}\ns_add_u32 s{dst}, s{sT1}, s{dst if n else sBASE}")

    def slot(i): return V(RING + 4*i, 4) if i < 32 else A(4*(i - 32), 4)

    def kv_load(sl, r, base, tg):
        isv = r >= 4
        if XOR:
            if tval[r%4]: a(f"s_xor_b32 s{sXT}, s{base}, {tval[r%4]}")
            a(f"v_xor_b32 v{vAX}, s{sXT if tval[r%4] else base}, v{vOV if isv else vOK}")
            a.vm(f"buffer_load_dwordx4 {slot(sl)}, v{vAX}, {R(rV if isv else rK)}, s{sBASE} offen nt", tg)
            return
        a.vm(f"buffer_load_dwordx4 {slot(sl)}, v{(vOV if isv else vOK) + tidx[r%4]}, {R(rV if isv else rK)}, s{base} offen offset:{timm[r%4]} nt", tg)

    def s_load_(sl, t, tg):
        if XOR:
            if tval[t]: a(f"s_xor_b32 s{sXT}, s{sU0}, {tval[t]}")
            a(f"v_xor_b32 v{vAX}, s{sXT if tval[t] else sU0}, v{vOS}")
            a.vm(f"buffer_load_dwordx4 {slot(sl)}, v{vAX}, {R(rS)}, s{sBASE} offen nt", tg)
            return
        a.vm(f"buffer_load_dwordx4 {slot(sl)}, v{vOS + tidx[t]}, {R(rS)}, s{sU0} offen offset:{timm[t]} nt", tg)

    def use(isv):
        r, v = (rV, vOV) if isv else (rK, vOK)
        a(f"s_mov_b64 s[{rS}:{rS+1}], s[{r}:{r+1}]\nv_mov_b32 v{vOS}, v{v}\nv_mov_b32 v{vOS+1}, v{v+1}")

    def k_mfma(sl, c):
        d = vS2 if (c >> 2) & 1 else vS
        a(f"v_mfma_f32_16x16x32_bf16 {V(d,4)}, {slot(sl)}, {V(vBQ+4*(c&3),4)}, {V(d,4) if c & 3 else '0'}")

    def k_post(u, off):
        quadsum(vSC, vS2 if u & 1 else vS, vU0)
        a(f"v_max_f32 v{vMX}, v{vMX}, v{vSC}\nds_write_b32 v{vSA}, v{vSC} offset:{off}")

    def allmax(x):
        a(f"v_max_f32_dpp v{vU0}, v{x}, v{x} row_ror:4 {DPP}")
        a(f"v_max_f32_dpp v{vU0}, v{vU0}, v{vU0} row_ror:8 {DPP}")
        a(f"v_mov_b32 v{vU1}, v{vU0}\nv_permlane16_swap_b32 v{vU0}, v{vU1}\nv_max_f32 v{vU0}, v{vU0}, v{vU1}")
        a(f"v_mov_b32 v{vU1}, v{vU0}\nv_permlane32_swap_b32 v{vU0}, v{vU1}\nv_max_f32 v{vU0}, v{vU0}, v{vU1}")

    def claim(off):
        setexec(1)
        if ("2v" if off else "2k") in ABL: a(f"global_atomic_add v{vCA}, v{vONE}, s[{pWS}:{pWS+1}] offset:128 sc1")
        a(f"global_atomic_add v{vTK}, v{vCA}, v{vONE}, s[{pWS}:{pWS+1}] offset:{off} sc0 sc1")
        setexec(FULL)

    rF, sFO, sYS, sCXO, sMB, sLOC, sYG = rW, 44, 45, 46, 47, 70, 71
    vFD, vFT, vAO, vAY, vAW, vAG, vAF, vCX, vRO = 20, 24, 28, 30, 31, 32, 33, 34, 35
    vPA, vCL = 50, 54
    vWT, vBU, vY, vMS, vGS2, vG2 = 128, 160, 112, 192, 224, 232
    def fin_scalar():
        if CLS == 0: a(f"s_and_b32 s{sS}, s2, 7")
        else:
            saddr(sS, 0, (2, 1, 2, 0), (2, 0, 1, 2))
            if CLS == 2: a(f"s_xor_b32 s{sS}, s{sS}, 4")
        a(f"s_and_b32 s{sT0}, s{sS}, 3\ns_bitcmp0_b32 s{sS}, 2")
        a(f"s_cselect_b64 s[{rF}:{rF+1}], s[{pBWO}:{pBWO+1}], s[{pAWO}:{pAWO+1}]")
        a(f"s_cselect_b32 s{sYS}, {WS_YB - WS_YA}, 0\ns_add_u32 s{sYS}, s{sYS}, {WS_YA}")
        saddr(sYG, f"s{sYS}", (sT0, 0, 0, 16), (sH, 2, 0, 13), (sH, 0, 2, 6))
        a(f"s_mov_b32 s{rF+2}, {4*MB}\ns_mov_b32 s{rF+3}, 0x20000")
        saddr(sFO, 0, (sH, 0, 0, 17), (sW, 0, 0, 15), (sT0, 0, 0, 8))
        saddr(sYS, f"s{sYS}", (sT0, 0, 0, 16), (sW, 1, 0, 15), (sH, 0, 0, 8), (sW, 0, 1, 7))
        saddr(sCXO, WS_CX, (sH, 0, 0, 11), (sW, 0, 0, 9))
        srd(rOUT, pOUT, 8192)
    def fin_dma(n, offs):
        if n % 4 == 0:
            a(f"s_lshl_b32 s{sT3}, s{sW}, 13\ns_add_u32 s{sT3}, s{sT3}, {LDS_W + 1024*n}\ns_mov_b32 m0, s{sT3}")
            if n: a(f"s_add_u32 s{sFO}, s{sFO}, 16384")
        a.vm(f"buffer_load_dwordx4 v{offs+n%4}, {R(rF)}, s{sFO} offen offset:{(n%4)*1024} nt lds", "FW")
    def fin_vec1():
        a(f"v_lshlrev_b32 v{vT0}, 2, v{vG}\nv_xor_b32 v{vT0}, v{vT0}, v{vJ}")
        for i in range(4):
            a(f"v_xor_b32 v{vT1}, {i}, v{vT0}\nv_lshlrev_b32 v{vT1}, 4, v{vT1}\nv_lshl_add_u32 v{vFD+i}, v{vG}, 10, v{vT1}")
            if i: a(f"v_add_u32 v{vFD+i}, {i*3072}, v{vFD+i}")
        saddr(sMB, WS_OP, (sH, 0, 0, 15), (sB, 0, 0, 13))
        vaddr(vT2, vT1, (vG, 0, 0, 7), (vJ, 0, 3, 4))
        a(f"v_lshrrev_b32 v{vT0}, 3, v{vJ}\nv_and_b32 v{vT3}, 3, v{vJ}\nv_min_u32 v{vT3}, 2, v{vT3}\nv_lshl_add_u32 v{vT3}, v{vT3}, 1, v{vT0}")
        for i in range(4):
            if i < 3: a(f"v_add_u32 v{vT1}, {2*i}, v{vT0}")
            else: a(f"v_mov_b32 v{vT1}, v{vT3}\nv_mov_b32 v{vT2}, 512")
            a(f"v_cmp_le_u32 vcc, s{sP}, v{vT1}\nv_addc_co_u32 v{vT1}, vcc, 0, v{vT1}, vcc\nv_lshl_add_u32 v{vPA+i}, v{vT1}, 10, v{vT2}")
        a(f"s_mul_i32 s{sT2}, s{sB}, 320\ns_add_u32 s{sT2}, s{sT2}, {LDS_O}")
        a(f"v_lshlrev_b32 v{vT0}, 6, v{vG}\nv_lshl_add_u32 v{vT0}, v{vJ}, 1, v{vT0}\nv_add_u32 v{vAW}, s{sT2}, v{vT0}")
    def fin_vec2():
        vaddr(vT0, vT1, (vG, 0, 0, 11), (vL, 2, 2, 8), (vL, 2, 2, 6), (vL, 4, 1, 5), (vL, 1, 1, 4), (vL, 0, 1, 3))
        a(f"s_lshl_b32 s{sT2}, s{sW}, 6\ns_add_u32 s{sT2}, s{sT2}, {LDS_W}\nv_xor_b32 v{vFT}, s{sT2}, v{vT0}")
        for i in range(1, 4): a(f"v_xor_b32 v{vFT+i}, {16*i}, v{vFT}")
        a(f"v_and_b32 v{vT0}, 3, v{vJ}\nv_lshrrev_b32 v{vT1}, 2, v{vJ}\nv_lshlrev_b32 v{vT2}, 4, v{vG}\nv_add_u32 v{vT2}, {LDS_O}, v{vT2}\ns_movk_i32 s{sT0}, 320")
        for u in range(2):
            a(f"v_cmp_eq_u32 vcc, {u}, v{vT1}\nv_cndmask_b32 v{vAO+u}, 4, v{vT0}, vcc\nv_mad_u32_u24 v{vAO+u}, v{vAO+u}, s{sT0}, v{vT2}")
        a(f"v_lshlrev_b32 v{vT1}, 2, v{vL}\nv_add_u32 v{vT1}, {LDS_O + 4*320}, v{vT1}\nv_mov_b32 v{vT2}, 0\nds_write_b32 v{vT1}, v{vT2}")
    def fin_vec3():
        vaddr(vAY, vT1, (vJ, 0, 0, 4), (vG, 0, 0, 13))
        vaddr(vAG, vT1, (vL, 2, 0, 8), (vL, 0, 2, 4))
        a(f"s_xor_b32 s{sT1}, s{sS}, 4")
        saddr(sT0, 0, (sT1, 0, 3, 8), (sH, 4, 0, 7), (sH, 0, 2, 5), (sH, 2, 2, 3))
        vaddr(vAF, vT1, (vL, 0, 2, 11), (vG, 0, 0, 1))
        a(f"v_add_u32 v{vAF}, s{sT0}, v{vAF}")
        a(f"v_and_b32 v{vT1}, 31, v{vL}\nv_lshlrev_b32 v{vCX}, 4, v{vT1}\ns_mul_i32 s{sT2}, s{sW}, 320\ns_add_u32 s{sT2}, s{sT2}, {LDS_O}\nv_lshl_add_u32 v{vRO}, v{vT1}, 3, s{sT2}")
        saddr(sT0, f"s{sYG}", (sW, 0, 1, 12), (sW, 1 if PRET else 0, 0, 24))
        a(f"s_bitcmp1_b32 s{sS}, 2\ns_cselect_b32 s{sCXO}, s{sCXO}, {'s%d' % sT0 if PRET else WS_SIZE}\ns_cselect_b64 vcc, -1, 0\nv_cndmask_b32 v{vCL}, v{vAG}, v{vCX}, vcc")

    def xc_word():
        a(f"s_getreg_b32 s{sLOC}, hwreg(HW_REG_XCC_ID, 0, 4)\ns_lshl_b32 s{sLOC}, s{sLOC}, 8\ns_or_b32 s{sLOC}, s{sLOC}, s{sTAG}\ns_or_b32 s{sLOC}, s{sLOC}, 0x5e9d0000")
    def xc_report(tmp):
        xc_word()
        saddr(sXT, WS_XC, (2, 0, 3, 8), (sH, 0, 0, 2), (sW, 0, 0, 24))
        a(f"v_mov_b32 v{tmp}, s{sXT}\nv_mov_b32 v{tmp+1}, s{sLOC}")
        setexec(1)
        a.vm(f"buffer_store_dword v{tmp+1}, v{tmp}, {R(rWS)}, 0 offen sc1", "XC")
        setexec(FULL)
    def xc_fetch(dst):
        saddr(sXT, WS_XC, (2, 0, 3, 8))
        a(f"v_lshrrev_b32 v{dst}, 2, v{vCX}")
        a.vm(f"buffer_load_dword v{dst}, v{dst}, {R(rWS)}, s{sXT} offen sc1", "XCg")
    def xc_check(src):
        a(f"v_cmp_ne_u32 vcc, s{sLOC}, v{src}\ns_cmp_eq_u64 vcc, 0\ns_cselect_b32 s{sLOC}, {LOCAL}, 0")

    def q_poll():
        for i in range(2):
            a.vm(f"buffer_load_dwordx4 {V(vQ+4*i,4)}, v{vOQ}, {R(rWS)}, s{sQO} offen offset:{16*i} sc1", "Q")

    class Start:
        def __init__(self, pu): self.pu, self.n = pu, 0
        def load(self):
            n = self.n; self.n += 1
            if n == 0: unit_addr(sU0)
            kv_load(n % (8*self.pu), n % 4, sU0, f"P{n}")
            if n % 4 == 3:
                advance(n)
                unit_addr(sU0)
        def paced(self, depth):
            if f"P{self.n - depth}" in a.q: a.wait(f"P{self.n - depth}")
            self.load()
        def until_q(self, pollat):
            while self.n < pollat: self.paced(DP)
            q_poll()
            while self.n < min(pollat + DP - 1, 8*self.pu): self.paced(DP)
        def finish(self, hook=None):
            if "Q" in a.q: a.wait("Q")
            chk, ok = a.label("qcheck"), a.label("qok")
            a(f"{chk}:")
            untag(list(range(vQ, vQ+8)), vT0)
            a(f"s_cbranch_vccz {ok}" if not ({"QPst", "Q"} & set(ABL)) else f"s_branch {ok}")
            saved = list(a.q)
            q_poll()
            a("s_waitcnt vmcnt(0)")
            spin_guard(chk)
            a.q = saved
            a(f"{ok}:")
            stamp(2)
            def operands(q, bq):
                for r in range(4):
                    a(f"v_cvt_pk_bf16_f32 v{q+r}, v{q+2*r}, v{q+2*r+1}")
                for t in range(4):
                    m = 0x000f000f << (4*t)
                    a(f"s_mov_b32 vcc_lo, {m:#x}\ns_mov_b32 vcc_hi, {m:#x}")
                    for r in range(4):
                        a(f"v_cndmask_b32 v{bq+4*t+r}, 0, v{q+r}, vcc")
            operands(vQ, vBQ)
            xc_report(vQ + 4)
            N = 8 * self.pu
            a(f"v_mov_b32 v{vMX}, 0xff7f0000\ns_lshl_b32 s{sT2}, s{sW}, 14\ns_add_u32 s{sT2}, s{sT2}, {LDS_S}\nv_lshl_add_u32 v{vSA}, v{vL}, 2, s{sT2}")
            first, todo = self.n, N + D - self.n
            for c in range(N):
                want = first + (todo * (c + 1) + N - 1) // N
                while self.n < want and self.n - N < c:
                    self.paced(DP if self.n < N else max(D, DP - 1))
                if f"P{c}" in a.q: a.wait(f"P{c}")
                k_mfma(c, c)
                if c % 4 == 2 and c > 4: k_post(c // 4 - 1, 256 * (c // 4 - 1))
                if hook: hook(c)
                if N - c in (24, 18, 12, 6): {24: fin_scalar, 18: fin_vec1, 12: fin_vec2, 6: fin_vec3}[N - c]()
            while self.n < N + D: self.paced(DP)
            assert (NU - N // 4) % 2 == 0 and NU - N // 4 >= 4
            a(f"v_add_u32 v{vSA}, {256 * (N // 4 - 1)}, v{vSA}")
            a(f"s_mov_b32 s{sCNT}, {(NU - N // 4) // 2}\ns_mov_b32 s{sINC}, {inc(3)}")
            saddr(sSC, WS_SC, (sH, 0, 0, 13 + (NP > 16)), (sB, 0, 0, 11 + (NP > 16)))
            vaddr(vOSC, vT0, (vL, 2, 0, 3))
            a(f"s_mov_b32 s{rS+2}, {128*MB}\ns_mov_b32 s{rS+3}, 0x20000")
            use(False)
            stamp(3)

    saddr(sT0, -3 << 17, (2, 0, 3, 21), (sH, 3, 0, 19), (sP, 0, 0, 17), (sW, 0, 0, 12))
    vaddr(vT0, vT1, (vL, 0, 5, 7), (vL, 5, 0, 15))
    a(f"s_mov_b32 s{rW+2}, {16*MB}\ns_mov_b32 s{rW+3}, 0x20000\ns_waitcnt lgkmcnt(0)\ns_mov_b64 s[{rW}:{rW+1}], s[{pCK}:{pCK+1}]")
    soft(0)
    for i, step in enumerate((16384, 49152, 16384, 0)):
        a.vm(f"buffer_load_dword v{vX+i}, v{vT0}, {R(rW)}, s{sT0} offen", "T")
        if step: a(f"s_add_u32 s{sT0}, s{sT0}, {step}")
    consts(); kv_setup(); srd(rK, pK, 128*MB); srd(rV, pV, 128*MB); masks(); kv_late()
    soft(1); soft_flush()
    st = Start(PU)
    for _ in range(DP): st.load()
    stamp(1)
    take_tag()
    a("s_barrier")
    st.until_q(POLLP)
    st.finish()

    late_blocks = []
    def sc_load():
        a(f"buffer_load_dwordx2 {V(vSL,2)}, v{vOSC}, {R(rDBG if 'SCld' in ABL else rWS)}, s{sSCA} offen sc1")
    def arrive(off):
        setexec(1)
        a(f"ds_add_rtn_u32 v{vT1}, v{vLA}, v{vONE} offset:{off}")
        setexec(FULL)
    def draw(isv):
        skip = a.label("nodraw")
        a(f"v_readfirstlane_b32 s{sCL}, v{vT1}\ns_cmp_lg_u32 s{sCL}, 0\ns_cbranch_scc1 {skip}")
        claim(4 * isv)
        a(f"{skip}:")
    def decode(isv, invalid):
        nopost, again, retry, skip = a.label("nopost"), a.label("again"), a.label("retry"), a.label("lastone")
        a(f"s_cmp_lg_u32 s{sCL}, 0\ns_cbranch_scc1 {nopost}\nv_add_u32 v{vTK}, 1, v{vTK}")
        setexec(1)
        a(f"ds_write_b32 v{vLA}, v{vTK} offset:4")
        a(f"{nopost}:")
        arrive(8)
        a(f"{again}:\nds_read_b32 v{vT0}, v{vLA} offset:4\ns_waitcnt lgkmcnt(0)\nv_readfirstlane_b32 s{sIT}, v{vT0}")
        a(f"s_sub_u32 s{sIT}, s{sIT}, 1\ns_cbranch_scc1 {retry}")
        late_blocks.append(lambda: (a(f"{retry}:"), spin_guard(again)))
        a(f"v_add_u32 v{vLA}, 8, v{vLA}\ns_cmp_ge_u32 s{sIT}, {NP}\ns_cbranch_scc1 {invalid}")
        if isv:
            a(f"s_lshl_b32 s{sSCA}, s{sIT}, 7\ns_add_u32 s{sSCA}, s{sSCA}, s{sSC}")
            sc_load()
        a(f"s_lshl_b32 s{sTK}, s{sIT}, 1\ns_add_u32 s{sTK}, s{sTK}, {7*NU}\ns_mov_b32 s{sINC}, 1")
        a(f"v_mov_b32 v{vTK}, 64\ns_mov_b32 s{sCL}, 0\ns_cmp_ge_u32 s{sIT}, {NP - 1}\ns_cbranch_scc1 {skip}")
        draw(isv)
        a(f"{skip}:")
    def out_of(isv):
        if isv: a(f"s_mov_b32 s{sBASE}, {128*MB}")
        else:
            use(True)
            a(f"s_lshl_b32 s{sTK}, s{sP}, {PAIR}\ns_mov_b32 s{sINC}, {inc(3)}\nv_add_u32 v{vLA}, 8, v{vLA}")
    def next_unit(n, isv, static):
        if n % 8 == 3:
            a(f"s_add_u32 s{sTK}, s{sTK}, s{sINC}")
        else:
            rare, back, done, gone = a.label("rare"), a.label("back"), a.label("done"), a.label("gone")
            if static:
                a(f"s_cmp_le_u32 s{sCNT}, 2\ns_cbranch_scc1 {rare}\n{back}:")
                advance(n)
            else: decode(isv, gone)
            a(f"{done}:")
            def block():
                if static:
                    last = a.label("last")
                    a(f"{rare}:\ns_cmp_eq_u32 s{sCNT}, 1\ns_cbranch_scc1 {last}")
                    if "solo" in ABL and not isv: a(f"v_mov_b32 v{vTK}, 64\ns_mov_b32 s{sCL}, 0\ns_cmp_lg_u32 s{sP}, 3\ns_cbranch_scc1 {back}")
                    arrive(0)
                    a("s_waitcnt lgkmcnt(0)")
                    draw(isv)
                    a(f"s_branch {back}\n{last}:")
                    decode(isv, gone)
                    a(f"s_branch {done}")
                a(f"{gone}:")
                out_of(isv)
                a(f"s_branch {done}")
            late_blocks.append(block)
        unit_addr(sU0)
    a("L_bloop:")
    for r in range(8):
        n = r + D
        a(f"s_waitcnt vmcnt({D-1})")
        s_load_(n % 8, n % 4, "loop")
        k_mfma(r, r)
        if n % 4 == 3: next_unit(n, 0, True)
        if r % 4 == 1: k_post(r // 4 + 1, 256 * (r // 4))
    a(f"v_add_u32 v{vSA}, 512, v{vSA}")
    a(f"s_sub_u32 s{sCNT}, s{sCNT}, 1\ns_cmp_lg_u32 s{sCNT}, 0\ns_cbranch_scc1 L_bloop")
    xc_fetch(vQ)
    k_post(1, 0)
    a(f"v_mov_b32 v{vP}, 0xff7f0000\nds_write_b32 v{vSA}, v{vP} offset:256")
    a(f"s_lshl_b32 s{sT2}, s{sW}, 14\ns_add_u32 s{sT2}, s{sT2}, {LDS_S}\nv_lshl_add_u32 v{vSA}, v{vL}, 2, s{sT2}")
    a(f"ds_read_b32 v{vSN}, v{vSA}\nds_read_b32 v{vSN+1}, v{vSA} offset:256")
    a(f"v_mul_f32 v{vMX}, s{sC}, v{vMX}")
    allmax(vMX)
    a(f"v_mov_b32 v{vMC}, v{vU0}\ns_mov_b32 s{sCNT}, {NU // 2}")
    def p_next(i):
        a(f"s_waitcnt lgkmcnt(1)\nv_fma_f32 v{vP}, v{vSN+i}, s{sC}, -v{vMC}\nv_exp_f32 v{vP}, v{vP}")
        a(f"ds_read_b32 v{vSN+i}, v{vSA} offset:{512 + 256*i}")
        a(f"v_cvt_pk_bf16_f32 v{vPN+i}, v{vP}, v{vP}\nv_add_f32 v{vLS}, v{vLS}, v{vP}")
    p_next(0)
    stamp(8)
    a(f"v_and_b32 v{vMX}, 1, v{vL}\nv_lshl_add_u32 v{vMX}, v{vMX}, 2, v{vOSC}\ns_mov_b32 vcc_lo, 0xaaaaaaaa\ns_mov_b32 vcc_hi, 0xaaaaaaaa")
    a(f"s_cmp_ge_u32 s{sIT}, {NP}\ns_cbranch_scc1 L_kdone")
    a("L_kdyn:")
    a(f"s_lshl_b32 s{sSCA}, s{sIT}, 7\ns_add_u32 s{sSCA}, s{sSCA}, s{sSC}")
    for r in range(8):
        n = r + D
        a(f"s_waitcnt vmcnt({D - 1})")
        s_load_(n % 8, n % 4, "loop")
        k_mfma(r, r)
        if n % 4 == 3: next_unit(n, 0, False)
        if r == 5: quadsum(vP, vS, vU0)
    quadsum(vSC, vS2, vU0)
    a(f"v_cndmask_b32 v{vP}, v{vP}, v{vSC}, vcc")
    tag([vP])
    setexec(0x3333333333333333)
    a(f"buffer_store_dword v{vP}, v{vMX}, {R(rDBG if 'SCst' in ABL else rWS)}, s{sSCA} offen sc1")
    setexec(FULL)
    a(f"s_cmp_lt_u32 s{sIT}, {NP}\ns_cbranch_scc1 L_kdyn")
    a("L_kdone:")
    stamp(5)
    for n in range(D, DV):
        s_load_(n, n % 4, "loop")
        assert n % 4 != 3
    def v_ands(r):
        for q in range(4):
            a(f"v_and_b32_dpp v{vPB+8+4*(r&1)+q}, v{vPN + (r >> 2)}, v{vMASK+q} row_newbcast:{4*(r&3)} {DPP}")
    def v_mfma(r):
        a(f"v_mfma_f32_16x16x32_bf16 {V(vO,4)}, {slot(r)}, {V(vPB+8+4*(r&1),4)}, {V(vO,4)}")
    a("L_vloop:")
    for r in range(8):
        n = r + DV
        v_ands(r)
        a(f"s_waitcnt vmcnt({DV-1})")
        s_load_(n % 8, n % 4, "loop")
        v_mfma(r)
        if n % 4 == 3: next_unit(n, 1, True)
        if r == 1: p_next(1)
        if r == 5:
            a(f"v_add_u32 v{vSA}, 512, v{vSA}")
            p_next(0)
    a(f"s_sub_u32 s{sCNT}, s{sCNT}, 1\ns_cmp_lg_u32 s{sCNT}, 0\ns_cbranch_scc1 L_vloop")
    stamp(6)
    for n in range(DV, 7): s_load_(n, n % 4, "loop")
    xc_check(vQ)
    a(f"s_cmp_ge_u32 s{sIT}, {NP}\ns_cbranch_scc1 L_none")
    a("L_vdyn:")
    for r in range(8):
        n = r + 7
        if r: v_ands(r)
        a(f"s_waitcnt vmcnt({7 if r else 6})")
        s_load_(n % 8, n % 4, "loop")
        if r == 0:
            a("L_sccheck:")
            untag([vSL, vSL+1], vT0)
            a(f"v_fma_f32 v{vP}, v{vSL}, s{sC}, -v{vMC}\nv_fma_f32 v{vSC}, v{vSL+1}, s{sC}, -v{vMC}")
            if not {"SCst", "SCld"} & set(ABL): a("s_cbranch_vccnz L_scretry")
            a(f"v_max_f32 v{vU0}, v{vP}, v{vSC}\nv_cmp_lt_f32 vcc, 0, v{vU0}\ns_cbranch_vccnz L_newmax\nL_oldmax:")
            a(f"v_exp_f32 v{vP}, v{vP}\nv_exp_f32 v{vSC}, v{vSC}")
            a(f"v_cvt_pk_bf16_f32 v{vPN}, v{vP}, v{vP}\nv_add_f32 v{vLS}, v{vLS}, v{vP}")
            a(f"v_cvt_pk_bf16_f32 v{vPN+1}, v{vSC}, v{vSC}\nv_add_f32 v{vLS}, v{vLS}, v{vSC}")
            decode(1, "L_last")
            unit_addr(sU0)
            v_ands(0)
        v_mfma(r)
        if n % 8 == 3: next_unit(n, 1, False)
    a("s_branch L_vdyn")
    a("L_scretry:")
    sc_load()
    a("s_waitcnt vmcnt(0)")
    spin_guard("L_sccheck")
    a("L_newmax:")
    a(f"v_max_f32 v{vP}, v{vSL}, v{vSL+1}\nv_mul_f32 v{vP}, s{sC}, v{vP}")
    allmax(vP)
    a(f"v_max_f32 v{vU0}, v{vU0}, v{vMC}")
    a(f"v_sub_f32 v{vU1}, v{vMC}, v{vU0}\nv_exp_f32 v{vU1}, v{vU1}\nv_mov_b32 v{vMC}, v{vU0}")
    a(f"v_fma_f32 v{vP}, v{vSL}, s{sC}, -v{vMC}\nv_fma_f32 v{vSC}, v{vSL+1}, s{sC}, -v{vMC}")
    a(f"v_mul_f32 v{vLS}, v{vLS}, v{vU1}")
    for r in range(4):
        a(f"v_mul_f32 v{vO+r}, v{vO+r}, v{vU1}")
    a("s_branch L_oldmax")
    while late_blocks: late_blocks.pop(0)()
    def cx_load():
        a.vm(f"buffer_load_dwordx4 {V(vGS2,4)}, v{vCL}, {R(rWS)}, s{sCXO} offen sc1", "CX")
    def wrap_up():
        cx_load()
        if NFA != NFB: a(f"s_mov_b32 s{sU1}, s{sFO}\ns_bitcmp1_b32 s{sS}, 2\ns_cselect_b32 s{sFO}, {4*MB}, s{sFO}")
    def stats():
        a(f"v_add_f32_dpp v{vLS}, v{vLS}, v{vLS} row_ror:8 {DPP}")
        a(f"v_add_f32_dpp v{vLS}, v{vLS}, v{vLS} row_ror:4 {DPP}")
        a(f"v_mov_b32 v{vU1}, v{vLS}")
        a(f"v_permlane16_swap_b32 v{vLS}, v{vU1}\nv_add_f32 v{vLS}, v{vLS}, v{vU1}\nv_mov_b32 v{vU1}, v{vLS}")
        a(f"v_permlane32_swap_b32 v{vLS}, v{vU1}\nv_add_f32 v{vLS}, v{vLS}, v{vU1}")
        a(f"v_and_b32 v{vU1}, s{sHI24}, v{vMC}\nv_sub_f32 v{vU1}, v{vMC}, v{vU1}")
        a(f"s_mov_b32 vcc_lo, 0xff00ff00\ns_mov_b32 vcc_hi, 0xff00ff00")
    a("L_none:")
    wrap_up()
    for n in range(NFB): fin_dma(n, vFD)
    stats()
    a("s_branch L_bdone")
    a("L_last:")
    a.q = [f"R{r}" for r in range(1, 8)]
    wrap_up()
    for r in range(8):
        v_ands(r)
        if r: a.wait(f"R{r}")
        if r >= 8 - NFB: fin_dma(r - 8 + NFB, vFD)
        v_mfma(r)
        if r == 1: stats()
    a("L_bdone:")
    a(f"v_cndmask_b32 v{vO}, v{vO}, v{vMC}, vcc\nv_cndmask_b32 v{vO+1}, v{vO+1}, v{vLS}, vcc\nv_cndmask_b32 v{vO+2}, v{vO+2}, v{vU1}, vcc")
    tag([vO+3, vO, vO+1, vO+2])
    setexec(0x00ff00ff00ff01ff)
    a.vm(f"buffer_store_dwordx4 {V(vO,4)}, v{vOP}, {R(rWS)}, s{sMSG} offen sc1", "OPst")
    setexec(FULL)
    tsoft(0)
    stamp(4)
    a(f"s_bitcmp1_b32 s{sS}, 2\ns_cbranch_scc1 L_ctx")
    vFA, vFB, vOO = vSC, vP, 104
    assert NFA in (0, NFB)
    def m_round():
        for i in (3, 0, 1, 2):
            a(f"buffer_load_dwordx4 {V(vMS+4*i,4)}, v{vPA+i}, {R(rWS)}, s{sMB} offen sc1")
    if PFIRST: m_round()
    for n in range(NFB, 8): fin_dma(n, vFD)
    if not PFIRST: m_round()
    for r in range(4): a(f"v_xor_b32 v{vOO+r}, s{sTAG}, v{vO+r}")
    a(f"v_mov_b32 v{vT1}, 0xff7f0000\nv_cndmask_b32 v{vMC}, v{vMC}, v{vT1}, vcc\nv_and_b32 v{vLS}, s{sHI24}, v{vLS}")
    a(f"s_mov_b32 s{sU0+1}, 0x88888888\ns_mov_b32 s{sU0+2}, 0x88888888")
    a(f"s_waitcnt vmcnt({8 - NFB if PFIRST else 0})\nL_hop1poll:")
    untag(list(range(vMS, vMS+16)), vT0)
    a(f"v_add_f32 v{vFA}, v{vMS+12}, v{vMS+14}")
    a("s_cbranch_vccz L_hop1ok")
    m_round()
    a("s_waitcnt vmcnt(0)")
    spin_guard("L_hop1poll")
    a("L_ctx:")
    if NFA != NFB: a(f"s_mov_b32 s{sFO}, s{sU1}")
    for n in range(NFA, 8): fin_dma(n, vFD)
    a(f"s_waitcnt vmcnt({1 + 8 - NFA})")
    a("L_ctxcheck:")
    untag(list(range(vGS2, vGS2+4)), vT0)
    a("s_cbranch_vccz L_ctxok")
    cx_load()
    a("s_waitcnt vmcnt(0)")
    spin_guard("L_ctxcheck")
    a("L_ctxok:")
    a(f"v_cvt_pk_bf16_f32 v{vGS2}, v{vGS2}, v{vGS2+1}\nv_cvt_pk_bf16_f32 v{vGS2+1}, v{vGS2+2}, v{vGS2+3}")
    a(f"ds_write_b64 v{vRO}, {V(vGS2,2)}\ns_branch L_final")
    a("L_hop1ok:")
    tsoft(1)
    mk3 = f"s[{sU0+1}:{sU0+2}]"
    a(f"v_cndmask_b32 v{vFA}, v{vFA}, v{vMC}, {mk3}\nv_cndmask_b32 v{vFB}, v{vMS+13}, v{vLS}, {mk3}")
    steps = ("quad_perm:[1,0,3,2]", "quad_perm:[2,3,0,1]", "row_ror:8")
    for n, st_ in enumerate(steps):
        x = vT1 if n else vFA
        a(f"v_max_f32_dpp v{vT1}, v{x}, v{x} {st_} {DPP}")
    a(f"v_sub_f32 v{vFA}, v{vFA}, v{vT1}\nv_exp_f32 v{vFA}, v{vFA}\nv_mul_f32 v{vFB}, v{vFB}, v{vFA}")
    for i in (3, 0, 1, 2):
        if i < 3: a(f"v_add_f32_dpp v{vFB}, v{vFB}, v{vFB} {steps[i]} {DPP}")
        for r in range(4):
            if i == 3: a(f"v_mul_f32_dpp v{vOO+r}, v{vFA}, v{vOO+r} quad_perm:[3,3,3,3] {DPP}")
            else: a(f"v_fmac_f32_dpp v{vOO+r}, v{vFA}, v{vMS+4*i+r} quad_perm:[{i},{i},{i},{i}] {DPP}")
    a(f"v_rcp_f32 v{vFB}, v{vFB}")
    for r in range(4):
        a(f"v_add_f32_dpp v{vOO+r}, v{vOO+r}, v{vOO+r} row_ror:8 {DPP}")
    for r in range(4):
        a(f"v_mul_f32 v{vOO+r}, v{vOO+r}, v{vFB}")
    a(f"v_cvt_pk_bf16_f32 v{vOO}, v{vOO}, v{vOO+1}\nv_cvt_pk_bf16_f32 v{vOO+2}, v{vOO+2}, v{vOO+3}")
    setexec(0x00ff00ff00ff00ff)
    a(f"ds_write_b16 v{vAW}, v{vOO}\nds_write_b16_d16_hi v{vAW}, v{vOO} offset:16")
    a(f"ds_write_b16 v{vAW}, v{vOO+2} offset:32\nds_write_b16_d16_hi v{vAW}, v{vOO+2} offset:48")
    setexec(FULL)
    a("L_final:")
    a("s_waitcnt vmcnt(0) lgkmcnt(0)\ns_barrier")
    tsoft(2)
    def f_reads(i):
        u, k = i >> 2, i & 3
        for pi in range(2):
            a(f"ds_read_b64_tr_b16 {V(vWT+4*i+2*pi,2)}, v{vFT+2*u+pi} offset:{8192*k+1024*pi}")
        a(f"ds_read_b128 {V(vBU+4*i,4)}, v{vAO+u} offset:{64*k}")
    for i in range(4): f_reads(i)
    for i in range(8):
        if i + 4 < 8: f_reads(i + 4)
        a(f"s_waitcnt lgkmcnt({3 * min(4, 7 - i)})")
        a(f"v_mfma_f32_16x16x32_bf16 {V(vY,4)}, {V(vWT+4*i,4)}, {V(vBU+4*i,4)}, {V(vY,4) if i else '0'}")
    a(f"s_add_u32 s{sT1}, s{sYG}, 4096\ns_cmp_eq_u32 s{sLOC}, 1")
    setexec(0x00ff00ff00ff00ff)
    tag(range(vY, vY+4))
    a("s_cbranch_scc1 L_ylocal")
    a(f"buffer_store_dwordx4 {V(vY,4)}, v{vAY}, {R(rWS)}, s{sYS} offen sc1\ns_branch L_ydone")
    a(f"L_ylocal:\nbuffer_store_dwordx4 {V(vY,4)}, v{vAY}, {R(rWS)}, s{sYS} offen\nL_ydone:")
    setexec(FULL)
    tsoft(3)
    stamp(11)
    a(f"s_cmp_lg_u32 s{sW}, 0\ns_cbranch_scc1 L_done")
    a("L_hop2:")
    for i in range(2):
        a(f"buffer_load_dwordx4 {V(vGS2+4*i,4)}, v{vAG}, {R(rWS)}, s{sT1 if i else sYG} offen sc1")
    a("s_waitcnt vmcnt(0)")
    untag(list(range(vGS2, vGS2+8)), vT0)
    for r in range(4):
        a(f"v_add_f32 v{vG2+r}, v{vGS2+r}, v{vGS2+4+r}")
    a("s_cbranch_vccz L_hop2ok")
    spin_guard("L_hop2")
    a("L_hop2ok:")
    tsoft(4)
    a(f"v_permlane16_swap_b32 v{vG2}, v{vG2+1}\nv_permlane16_swap_b32 v{vG2+2}, v{vG2+3}")
    a(f"v_add_f32 v{vG2}, v{vG2}, v{vG2+1}\nv_add_f32 v{vG2+2}, v{vG2+2}, v{vG2+3}")
    a(f"v_permlane32_swap_b32 v{vG2}, v{vG2+2}\nv_add_f32 v{vG2}, v{vG2}, v{vG2+2}")
    a(f"v_add_f32_dpp v{vG2}, v{vG2}, v{vG2} row_ror:8 {DPP}\nv_add_f32_dpp v{vG2}, v{vG2}, v{vG2} row_ror:4 {DPP}")
    a(f"v_cvt_pk_bf16_f32 v{vG2}, v{vG2}, v{vG2}")
    setexec(0x000f000f000f000f)
    a(f"buffer_store_short v{vG2}, v{vAF}, {R(rOUT)}, 0 offen")
    tsoft(5)
    stamp(13)
    a(f"s_cmp_lg_u32 s2, {9 if CLS == 2 else 0}\ns_cbranch_scc1 L_done\nv_mov_b32 v{vT0}, 0")
    setexec(1)
    a(f"buffer_store_dword v{vTAG}, v{vT0}, {R(rWS)}, 0 offen")
    a("L_done:")
    stamp(14)
    probe_end()
    tflush()
    a("L_end:\ns_endpgm")

    a("L_qp:")
    a.q = []
    a(f"v_lshlrev_b32 v{vT0}, 18, v{vG}\nv_lshl_add_u32 v{vOW}, v{vJ}, 4, v{vT0}")
    a(f"v_lshrrev_b32 v{vT1}, 3, v{vJ}\nv_lshlrev_b32 v{vT1}, 10, v{vT1}\nv_lshl_add_u32 v{vOX}, v{vG}, 6, v{vT1}")
    a(f"s_cmp_eq_u32 s{sP}, 0\ns_cselect_b32 s{sHJ}, {XQ[0]}, {XQ[1]}\ns_xor_b32 s{sHJ}, s{sHJ}, s{sH}")
    a(f"s_lshl_b32 s{sU1}, s{sW}, 8\ns_lshl_b32 s{sWO}, s{sW}, 20\ns_lshl_b32 s{sT2}, s{sHJ}, 8\ns_add_u32 s{sWO}, s{sWO}, s{sT2}")
    a(f"s_mov_b32 s{rW+2}, {4*MB}\ns_mov_b32 s{rW+3}, 0x20000\ns_mov_b32 s{rX+2}, 4096\ns_mov_b32 s{rX+3}, 0x20000")
    a(f"s_cmp_eq_u32 s{sP}, 0\ns_waitcnt lgkmcnt(0)")
    a(f"s_cselect_b64 s[{rW}:{rW+1}], s[{pBWQ}:{pBWQ+1}], s[{pAWQ}:{pAWQ+1}]\ns_cselect_b64 s[{rX}:{rX+1}], s[{pBX}:{pBX+1}], s[{pAX}:{pAX+1}]")
    def w_load(t):
        a.vm(f"buffer_load_dwordx4 {A(A1+4*t,4)}, v{vOW}, {R(rW)}, s{sWO} offen nt", f"W{t}")
        a(f"s_add_u32 s{sWO}, s{sWO}, 8192")
    def x_load(i):
        for u in range(2):
            a.vm(f"buffer_load_dwordx4 {V(vX+16*u+4*i,4)}, v{vOX}, {R(rX)}, s{sU1} offen offset:{2048*u+16*i}", f"X{i}")
    soft(0)
    w_load(0); w_load(1); x_load(0)
    for t in range(2, 8): w_load(t)
    consts(); masks()
    for i in range(1, 4): x_load(i)
    saddr(sT0, WS_CT, (sHJ, 0, 0, 10), (sHJ, 3, 0, 8), (sW, 0, 0, 23))
    a(f"v_mov_b32 v{vONE}, 0\nv_mov_b32 v{vTK}, 0\ns_cmp_eq_u32 s{sP}, 0\ns_cselect_b32 s{sT2}, s{sT0}, {WS_SIZE}")
    setexec(1)
    a.vm(f"buffer_store_dwordx2 {V(vONE,2)}, v{vTK}, {R(rWS)}, s{sT2} offen sc1", "INIT")
    setexec(FULL)
    st = Start(PUJ)
    todo = [lambda t=t: w_load(t) for t in range(8, 32)] + [lambda: None] * (8 - DP) + [st.load] * DP
    late = {4: kv_setup, 8: lambda: (srd(rK, pK, 128*MB), srd(rV, pV, 128*MB)), 12: kv_late}
    a(f"s_mov_b32 s{sSELLO}, 0x01000100\ns_mov_b32 s{sSELHI}, 0x03020302")
    for t in range(32):
        if f"X{t//8}" in a.q: a.wait(f"X{t//8}")
        if t == 0: soft(1); soft_flush()
        if f"W{t}" in a.q: a.wait(f"W{t}")
        todo.pop(0)()
        if t in late: late[t]()
        for u in range(2):
            x = vX + 16*u + (t >> 1)
            a(f"v_perm_b32 v{vT0+u}, v{x}, v{x}, s{sSELHI if t & 1 else sSELLO}")
        for u in range(2):
            for r in range(4):
                a(f"v_and_b32 v{vB+4*u+r}, v{vT0+u}, v{vMASK+r}")
        for u in range(2):
            c = V(vACC+4*u, 4) if t else "0"
            a(f"v_mfma_f32_16x16x32_bf16 {V(vACC+4*u,4)}, {A(A1+4*t,4)}, {V(vB+4*u,4)}, {c}")
    a(f"s_lshl_b32 s{sT2}, s{sW}, 11")
    a(f"v_lshrrev_b32 v{vT0}, 3, v{vJ}\nv_lshlrev_b32 v{vT0}, 9, v{vT0}\nv_lshl_add_u32 v{vT0}, v{vG}, 7, v{vT0}")
    a(f"v_and_b32 v{vT1}, 7, v{vJ}\nv_lshl_add_u32 v{vT0}, v{vT1}, 2, v{vT0}\nv_add_u32 v{vT0}, s{sT2}, v{vT0}")
    for u in range(2):
        for r in range(4):
            a(f"ds_write_b32 v{vT0}, v{vACC+4*u+r} offset:{u*1024+r*32}")
    a(f"s_lshl_b32 s{sT2}, s{sW}, 9\nv_and_b32 v{vT1}, 31, v{vL}\nv_lshl_add_u32 v{vT1}, v{vT1}, 4, s{sT2}")
    take_tag()
    a("s_barrier")
    for p in range(4):
        a(f"ds_read_b128 {V(vX+4*p,4)}, v{vT1} offset:{p*2048}")
    saddr(sT0, WS_QP, (sHJ, 0, 0, 12), (sP, 0, 0, 11))
    a("s_waitcnt lgkmcnt(0)")
    for r in range(4):
        a(f"v_add_f32 v{vX+r}, v{vX+r}, v{vX+4+r}\nv_add_f32 v{vX+8+r}, v{vX+8+r}, v{vX+12+r}")
    for r in range(4):
        a(f"v_add_f32 v{vX+r}, v{vX+r}, v{vX+8+r}")
    tag_bf16(range(vX, vX+4))
    assert "INIT" not in a.q
    setexec(0xffffffff)
    a.vm(f"buffer_store_dwordx4 {V(vX,4)}, v{vT1}, {R(rWS)}, s{sT0} offen sc1", "QPst")
    setexec(FULL)
    stamp(1)
    st.until_q(POLLQ)
    st.finish()
    a("s_branch L_bloop")

    a("L_ql:")
    a.q = []
    vOU, vOA, vOL, sUK, sQA, sQL = vOW, vOX, vTK, sWO, sCKO, sSLOT
    vQA, vD, vPK, vR = 20, 28, 44, 60
    a(f"v_lshrrev_b32 v{vT0}, 2, v{vJ}\nv_and_b32 v{vT1}, 3, v{vJ}")
    a(f"v_lshlrev_b32 v{vOL}, 6, v{vG}\nv_lshl_add_u32 v{vOL}, v{vT1}, 4, v{vOL}\nv_lshl_add_u32 v{vOU}, v{vT0}, 18, v{vOL}")
    sHU, sWU = sHJ, sC2
    a(f"s_and_b32 s{sHU}, s{sH}, 28\ns_add_u32 s{sHU}, s{sHU}, s{sW}\ns_and_b32 s{sWU}, s{sH}, 3")
    saddr(sUK, 0, (sWU, 0, 0, 20), (sHU, 0, 0, 8))
    a(f"s_mov_b32 s{rUK+2}, {4*MB}\ns_mov_b32 s{rUK+3}, 0x20000\ns_waitcnt lgkmcnt(0)\ns_mov_b64 s[{rUK}:{rUK+1}], s[{pUK}:{pUK+1}]")
    def uk_load(t):
        if f"UK{t-8}" in a.q: a.wait(f"UK{t-8}")
        a.vm(f"buffer_load_dwordx4 {A(A1+4*t,4)}, v{vOU}, {R(rUK)}, s{sUK} offen nt", f"UK{t}")
        a(f"s_add_u32 s{sUK}, s{sUK}, 8192")
    soft(0)
    for t in range(8): uk_load(t)
    a(f"v_lshlrev_b32 v{vOA}, 1, v{vOL}\nv_lshl_add_u32 v{vOA}, v{vT0}, 9, v{vOA}")
    a(f"v_lshl_add_u32 v{vOL}, v{vT0}, 15, v{vOL}")
    consts()
    soft(1); soft_flush()
    saddr(sQA, WS_QP + 2048, (sHU, 0, 0, 12))
    saddr(sQL, WS_QL, (sHU, 0, 0, 10), (sWU, 0, 0, 8))
    late = {12: masks, 16: kv_setup, 20: lambda: (srd(rK, pK, 128*MB), srd(rV, pV, 128*MB)), 24: kv_late}
    for t in range(8, 32):
        uk_load(t)
        if t in late: late[t]()
    take_tag(True)
    st = Start(PUJ)
    for t in range(32 - DP, 32):
        a.wait(f"UK{t}"); st.load()
    def qa_poll():
        for i in range(2):
            a.vm(f"buffer_load_dwordx4 {V(vQA+4*i,4)}, v{vOA}, {R(rWS)}, s{sQA} offen offset:{16*i} sc1", "QA")
    while st.n < POLLU: st.paced(DP)
    qa_poll()
    while st.n < POLLU + DP - 1: st.paced(DP)
    a.wait("QA")
    chk, ok = a.label("qacheck"), a.label("qaok")
    a(f"{chk}:")
    untag(list(range(vQA, vQA+8)), vT0)
    a(f"s_cbranch_vccz {ok}" if not ({"QPst", "Q"} & set(ABL)) else f"s_branch {ok}")
    saved = list(a.q)
    qa_poll()
    a("s_waitcnt vmcnt(0)")
    spin_guard(chk)
    a.q = saved
    a(f"{ok}:")
    q_poll()
    for r in range(4):
        a(f"v_cvt_pk_bf16_f32 v{vQA+r}, v{vQA+2*r}, v{vQA+2*r+1}")
    def fold(t):
        quadsum(vR + (t & 1), vD + 4*(t % 4), vT0)
        if t & 1: a(f"v_cvt_pk_bf16_f32 v{vPK+t//2}, v{vR}, v{vR+1}")
    for t in range(32):
        a(f"v_mfma_f32_16x16x32_bf16 {V(vD+4*(t%4),4)}, {A(A1+4*t,4)}, {V(vQA,4)}, 0")
        if t >= 2: fold(t - 2)
        if t % 8 == 4 and st.n < 8*PUJ: st.load()
    fold(30); fold(31)
    for q in range(1, 4):
        setexec(0x1111111111111111 << q)
        for r in range(4):
            a(f"v_mov_b32 v{vPK+r}, v{vPK+4*q+r}")
    setexec(FULL)
    a.vm(f"buffer_store_dwordx4 {V(vPK,4)}, v{vOL}, {R(rWS)}, s{sQL} offen sc1", "QLst")
    stamp(1)
    done = []
    def sig(c):
        if not done and ("QLst" not in a.q or c == 15):
            done.append(c); signal("QLst", WS_F1, 48)
    st.finish(sig)
    a("s_branch L_bloop")

    a("L_aux:")
    role[0] = "A"
    a.q = []
    vOR1 = 9
    vOC, vOC8 = 76, 10
    vAQ, vAD = 60, 82
    vM, vLL, vAL, vEX = 90, 91, 92, 94
    vWR, vZ, vL2 = 96, 100, 102
    vQL, vPP, vCT, vKQ, vSS = 36, 52, 104, 136, 200
    vE1, vE2 = vKQ, vKQ + 16
    aKA = A0
    vTA = 136
    sHH = sSLOT
    a(f"v_lshlrev_b32 v{vT0}, 2, v{vG}\nv_xor_b32 v{vT0}, v{vT0}, v{vJ}")
    for i in range(4):
        a(f"v_xor_b32 v{vWR+i}, {i}, v{vT0}\nv_lshlrev_b32 v{vWR+i}, 4, v{vWR+i}\nv_lshl_add_u32 v{vOC8+i}, v{vG}, 13, v{vWR+i}")
        if i: a(f"v_add_u32 v{vOC8+i}, {i*(32768-1024)}, v{vOC8+i}")
    a(f"s_lshl_b32 s{sM0}, s{sW}, 15\ns_mov_b32 s{sFILL}, 0")
    saddr(sCKO, 0, (sW, 0, 0, 20), (sH, 0, 0, 8))
    a("s_waitcnt lgkmcnt(0)")
    srd(rCK, pUV, 4*MB)
    def ck_one(n, tg, offs=vOC, step=16384):
        if n % 4 == 0:
            a(f"s_add_u32 s{sT3}, s{sM0}, s{sFILL}\ns_mov_b32 m0, s{sT3}")
            a(f"s_add_u32 s{sFILL}, s{sFILL}, 4096\ns_and_b32 s{sFILL}, s{sFILL}, 0x7fff")
        a.vm(f"buffer_load_dwordx4 v{offs+n%4}, {R(rCK)}, s{sCKO} offen offset:{(n%4)*1024} nt lds", tg)
        if n % 4 == 3:
            a(f"s_add_u32 s{sCKO}, s{sCKO}, {step}")
    soft(0)
    for n in range(8): ck_one(n, "UV0", vOC8, 16*8192)
    consts()
    if "noaux" in ABL: a("s_endpgm")
    for i in range(4):
        a(f"v_lshl_add_u32 v{vOC+i}, v{vG}, 10, v{vWR+i}\nv_lshl_add_u32 v{vWR+i}, v{vG}, 8, v{vWR+i}")
        if i: a(f"v_add_u32 v{vOC+i}, {i*3072}, v{vOC+i}")
    vaddr(vZ+1, vZ, (vL, 0, 5, 8))
    vaddr(vOR1, vT0, (vJ, 0, 0, 4), (vG, 0, 0, 10))
    a(f"v_xor_b32 v{vT1}, v{vJ}, v{vG}")
    vaddr(vT2, vT0, (vJ, 2, 1, 11), (vJ, 3, 1, 10), (vJ, 0, 2, 8), (vT1, 0, 2, 6), (vJ, 2, 1, 5), (vJ, 3, 1, 4))
    a(f"v_add_u32 v{vAQ}, s{sM0}, v{vT2}")
    for k in range(1, 4): a(f"v_xor_b32 v{vAQ+k}, {16*k}, v{vAQ}")
    a(f"v_lshrrev_b32 v{vT1}, 4, v{vL}\nv_xor_b32 v{vT1}, v{vT1}, v{vL}")
    vaddr(vT2, vT0, (vL, 4, 1, 11), (vL, 5, 1, 10), (vL, 2, 2, 8), (vL, 2, 2, 6), (vL, 4, 1, 5), (vT1, 1, 1, 4), (vL, 0, 1, 3))
    a(f"v_add_u32 v{vAD}, s{sM0}, v{vT2}")
    for k in range(1, 8): a(f"v_xor_b32 v{vAD+k}, {32*k}, v{vAD}")
    vaddr(vT2, vT0, (vG, 0, 0, 11), (vL, 2, 2, 8), (vL, 2, 2, 6), (vL, 4, 1, 5), (vL, 1, 1, 4), (vL, 0, 1, 3))
    a(f"v_add_u32 v{vTA}, s{sM0}, v{vT2}")
    for i in range(1, 16): a(f"v_xor_b32 v{vTA+i}, {16*i}, v{vTA}")
    a(f"s_lshl_b32 s{sU0}, s{sW}, 13\ns_add_u32 s{sU0}, s{sU0}, {LDS_EX}\nv_lshl_add_u32 v{vEX}, v{vL}, 4, s{sU0}")
    for i in range(4):
        a(f"v_add_u32 v{vWR+i}, s{sU0}, v{vWR+i}")
    soft(1); soft_flush()
    for k in range(1, 4):
        for n in range(8): ck_one(n, f"UV{k}", vOC8, 16*8192)
    take_tag(True)
    xc_report(vT0)
    srd(rCK, pCK, 16*MB)
    saddr(sIX, 0, (sH, 0, 3, 1), (sH, 4, 0, 0))
    a(f"s_bfe_u32 s{sHH}, s{sH}, 0x10003")
    saddr(sCKO, 0, (sIX, 0, 0, 20), (sW, 0, 0, 8))

    def flag_load(off):
        a(f"s_mov_b32 s{sU1}, {off}")
        a.vm(f"buffer_load_dword v{vT3}, v{vZ+1}, {R(rWS)}, s{sU1} offen sc1", "FL")

    def flag_wait(off):
        a.wait("FL")
        chk, ok = a.label("fcheck"), a.label("fok")
        a(f"{chk}:\nv_cmp_ne_u32 vcc, s{sFLAG}, v{vT3}\ns_cbranch_vccz {ok}")
        saved = list(a.q)
        a(f"s_sleep {FSL}")
        flag_load(off)
        a("s_waitcnt vmcnt(0)")
        spin_guard(chk)
        a.q = saved
        a(f"{ok}:")

    N1 = 10
    for k in range(4):
        a.wait(f"UV{k}")
        for nt in range(8):
            for pi in range(2):
                a(f"ds_read_b64_tr_b16 {A(A1+16*nt+4*k+2*pi,2)}, v{vTA+2*nt+pi} offset:{8192*k+1024*pi}")
        a("s_waitcnt lgkmcnt(0)")
        for n in range(8 if k < 3 else N1 - 8): ck_one(n, f"CK{k}")
    flag_load(WS_F1)
    stamp(2)
    if "noatt" in ABL: a("s_endpgm")
    for i in range(32): a(f"v_mov_b32 v{vCT+i}, 0")
    a(f"v_mov_b32 v{vM}, 0xff7f0000\ns_mov_b32 s{sIT}, 0")
    a(f"v_mov_b32 v{vL2}, 0\nv_mov_b32 v{vL2+1}, 0\ns_mov_b32 s{sC2}, s{sC}\ns_mov_b32 s{sC2+1}, s{sC}")
    a(f"v_xor_b32 v{vT1}, v{vJ}, v{vG}")
    vaddr(vT2, vT0, (vJ, 0, 0, 8), (vT1, 0, 2, 6), (vJ, 2, 0, 4))
    a(f"v_add_u32 v{vPP}, s{sU0}, v{vT2}")
    for k in range(1, 4): a(f"v_xor_b32 v{vPP+k}, {16*k}, v{vPP}")
    saddr(sT0, WS_QL, (sIX, 2, 0, 15), (sHH, 0, 0, 14), (sW, 0, 0, 8))
    flag_wait(WS_F1)
    stamp(4)
    for i in range(4):
        a.vm(f"buffer_load_dwordx4 {V(vSS+4*i,4)}, v{vOR1}, {R(rWS)}, s{sT0} offen sc1", f"QLg{i}")
        if i < 3: a(f"s_add_u32 s{sT0}, s{sT0}, 4096")
    kq_read = lambda i: a(f"ds_read_b128 {V(vKQ+4*i,4)}, v{vAQ+(i&3)} offset:{4096*(i>>2)}")
    for i in range(16): kq_read(i)
    for i in range(4):
        a.wait(f"QLg{i}")
        a(f"ds_write_b128 v{vWR+i}, {V(vSS+4*i,4)} offset:{i*1024}")
    a("s_waitcnt lgkmcnt(0)")
    for k in range(4):
        a(f"ds_read_b128 {V(vQL+4*k,4)}, v{vPP+k}")
    stamp(5)
    a("L_att:")
    a("s_waitcnt lgkmcnt(0)")
    for i in range(16):
        T, k = i >> 2, i & 3
        a(f"v_mfma_f32_16x16x32_bf16 {V(vSS+4*T,4)}, {V(vKQ+4*i,4)}, {V(vQL+4*k,4)}, {V(vSS+4*T,4) if k else '0'}")
        sg, ct = i >> 3, i & 7
        for pi in range(2):
            a(f"ds_read_b64_tr_b16 {A(aKA+4*i+2*pi,2)}, v{vAD+ct} offset:{8192*sg+4096*pi}")
        if i in (0, 3, 6, 9, 12, 15): ck_one(N1 + i // 3, "loop")
        if i >= 7 and (i - 7) % 4 == 0: a(f"ds_write_b128 v{vEX}, {V(vSS+(i-7),4)} offset:{256*(i-7)}")
    a(f"v_xor_b32 v{vT1}, 0x2000, v{vEX}\nv_xor_b32 v{vT2}, 0x4000, v{vEX}\nv_xor_b32 v{vT3}, 0x6000, v{vEX}")
    a(f"s_cmp_eq_u32 s{sIT}, 14\ns_cselect_b32 s{sCKO}, {16*MB}, s{sCKO}")
    a(f"ds_write_b128 v{vEX}, {V(vSS+12,4)} offset:3072")
    for k in range(8): a(f"v_xor_b32 v{vAD+k}, 0x4000, v{vAD+k}")
    for k in range(4): a(f"v_xor_b32 v{vAQ+k}, 0x4000, v{vAQ+k}")
    a("s_waitcnt lgkmcnt(0)\ns_barrier")
    for q in range(4):
        a(f"ds_read_b128 {V(vE1+4*q,4)}, v{vT1} offset:{1024*q}")
        a(f"ds_read_b128 {V(vE2+4*q,4)}, v{vT2} offset:{1024*q}")
        a(f"ds_read_b128 {V(vE2+16+4*q,4)}, v{vT3} offset:{1024*q}")
    a(f"v_xor_b32 v{vEX}, 0x1000, v{vEX}")
    nf = [0]
    def fill(cnt=1):
        for _ in range(cnt):
            ck_one(nf[0], "loop"); nf[0] += 1
    fill(3)
    for q in range(4):
        a(f"s_waitcnt lgkmcnt({9-3*q})")
        for r in range(4*q, 4*q+4, 2):
            a(f"v_pk_add_f32 {V(vSS+r,2)}, {V(vSS+r,2)}, {V(vE1+r,2)}\nv_pk_add_f32 {V(vE2+r,2)}, {V(vE2+r,2)}, {V(vE2+16+r,2)}")
        for r in range(4*q, 4*q+4, 2):
            a(f"v_pk_add_f32 {V(vSS+r,2)}, {V(vSS+r,2)}, {V(vE2+r,2)}")
    fill()
    a(f"s_waitcnt vmcnt({nf[0]})")
    a(f"v_max_f32 v{vT0}, v{vSS}, v{vSS+1}")
    for r in range(2, 16, 2):
        a(f"v_max3_f32 v{vT0}, v{vT0}, v{vSS+r}, v{vSS+r+1}")
    a(f"v_mov_b32 v{vT1}, v{vT0}")
    kq_read(0); kq_read(1)
    a(f"v_permlane16_swap_b32 v{vT0}, v{vT1}\nv_max_f32 v{vT0}, v{vT0}, v{vT1}\nv_mov_b32 v{vT1}, v{vT0}")
    kq_read(2); kq_read(3)
    a(f"v_permlane32_swap_b32 v{vT0}, v{vT1}\nv_max_f32 v{vT0}, v{vT0}, v{vT1}")
    a(f"v_mul_f32 v{vT0}, s{sC}, v{vT0}\nv_max_f32 v{vT0}, v{vT0}, v{vM}")
    a(f"v_sub_f32 v{vAL}, v{vM}, v{vT0}\nv_exp_f32 v{vAL}, v{vAL}\nv_mov_b32 v{vM}, v{vT0}")
    fill()
    for r in range(0, 16, 2):
        a(f"v_pk_fma_f32 {V(vSS+r,2)}, {V(vSS+r,2)}, s[{sC2}:{sC2+1}], {V(vM,2)} op_sel_hi:[1,1,0] neg_lo:[0,0,1] neg_hi:[0,0,1]")
    for r in range(16):
        a(f"v_exp_f32 v{vSS+r}, v{vSS+r}")
        if r % 4 == 1: kq_read(4 + r // 4)
        if r == 7: fill()
    fill()
    a(f"v_pk_mul_f32 {V(vL2,2)}, {V(vL2,2)}, {V(vAL,2)} op_sel_hi:[1,0]")
    for c in range(vCT, vCT+32, 2):
        a(f"v_pk_mul_f32 {V(c,2)}, {V(c,2)}, {V(vAL,2)} op_sel_hi:[1,0]")
    fill()
    for r in range(8):
        a(f"v_cvt_pk_bf16_f32 v{vPP+r}, v{vSS+2*r}, v{vSS+2*r+1}")
        a(f"v_pk_add_f32 {V(vL2,2)}, {V(vL2,2)}, {V(vSS+2*r,2)}")
    for i in range(16):
        sg, ct = i >> 3, i & 7
        a(f"v_mfma_f32_16x16x32_bf16 {V(vCT+4*ct,4)}, {A(aKA+4*i,4)}, {V(vPP+4*sg,4)}, {V(vCT+4*ct,4)}")
        if i < 8: kq_read(8 + i)
        if i in (9, 13): fill()
    assert nf[0] == N1
    a(f"s_add_u32 s{sIT}, s{sIT}, 1\ns_cmp_lt_u32 s{sIT}, 16\ns_cbranch_scc1 L_att")
    a.q = []
    stamp(6)
    if "nopost" in ABL: a("s_endpgm")
    vPUB, vPK2 = 200, 216
    a(f"v_add_f32 v{vLL}, v{vL2}, v{vL2+1}")
    a(f"v_mov_b32 v{vT1}, v{vLL}\nv_permlane16_swap_b32 v{vLL}, v{vT1}\nv_add_f32 v{vLL}, v{vLL}, v{vT1}")
    a(f"v_mov_b32 v{vT1}, v{vLL}\nv_permlane32_swap_b32 v{vLL}, v{vT1}\nv_add_f32 v{vLL}, v{vLL}, v{vT1}")
    a(f"v_lshrrev_b32 v{vT2}, 1, v{vG}\nv_xor_b32 v{vT2}, v{vT2}, v{vJ}")
    vaddr(vT1, vT0, (vJ, 0, 0, 8), (vT2, 0, 0, 4), (vG, 0, 1, 3))
    a(f"v_add_u32 v{vT1}, s{sU0}, v{vT1}")
    a("s_waitcnt vmcnt(0) lgkmcnt(0)\ns_barrier")
    for i in range(8):
        a(f"v_cvt_pk_bf16_f32 v{vPK2+2*i}, v{vCT+4*i}, v{vCT+4*i+1}\nv_cvt_pk_bf16_f32 v{vPK2+2*i+1}, v{vCT+4*i+2}, v{vCT+4*i+3}")
        a(f"v_xor_b32 v{vAD+i}, {32*i}, v{vT1}\nds_write_b64 v{vAD+i}, {V(vPK2+2*i,2)}")
    a(f"v_xor_b32 v{vT2}, v{vJ}, v{vG}\nv_lshlrev_b32 v{vT2}, 4, v{vT2}\nv_lshl_add_u32 v{vT0}, v{vG}, 8, v{vT2}\nv_add_u32 v{vT0}, s{sU0}, v{vT0}")
    for i in range(4):
        a(f"v_xor_b32 v{vAQ+i}, {64*i}, v{vT0}")
    vaddr(vT3, vT0, (vJ, 0, 0, 4), (vG, 0, 0, 14))
    saddr(sT0, WS_CP, (sHH, 0, 0, 18), (sIX, 0, 0, 10), (sW, 0, 0, 8))
    a("s_waitcnt lgkmcnt(0)")
    for i in range(4):
        a(f"ds_read_b128 {V(vPUB+4*i,4)}, v{vAQ+i} offset:{1024*i}")
    a(f"v_lshlrev_b32 v{vT0}, 3, v{vJ}")
    saddr(sT1, WS_CS, (sIX, 0, 0, 8), (sHH, 0, 0, 7), (sW, 0, 0, 23))
    setexec(0xffff)
    a.vm(f"buffer_store_dwordx2 {V(vM,2)}, v{vT0}, {R(rWS)}, s{sT1} offen sc1", "CPst")
    setexec(FULL)
    for i in range(4):
        a(f"s_waitcnt lgkmcnt({3-i})")
        a.vm(f"buffer_store_dwordx4 {V(vPUB+4*i,4)}, v{vT3}, {R(rWS)}, s{sT0} offen sc1", "CPst")
        if i < 3: a(f"s_add_u32 s{sT0}, s{sT0}, {64*KB}")
    vCB, vSTAT, vDD = 136, 52, 104
    vGS, vRW, vRR = 81, 94, 102
    fin_scalar()
    for n in range(8): fin_dma(n, vOC)
    fin_vec3()
    xc_fetch(64)
    vaddr(vGS, vT1, (vJ, 0, 2, 10), (vJ, 2, 0, 8))
    a(f"v_add3_u32 v{vAD}, v{vGS}, v{vT2}, s{sU0}")
    for k in range(1, 4): a(f"v_xor_b32 v{vAD+k}, {64*k}, v{vAD}")
    vaddr(vRW, vT1, (vJ, 0, 2, 9), (vG, 0, 0, 4))
    a(f"v_add_u32 v{vRW}, s{sU0}, v{vRW}")
    a(f"s_lshl_b32 s{sT2}, s{sW}, 9\ns_add_u32 s{sT2}, s{sT2}, {LDS_EX}\nv_add_u32 v{vRR}, s{sT2}, v{vCX}")
    saddr(sT0, WS_CP, (sH, 0, 0, 14), (sW, 0, 0, 8))
    saddr(sT1, WS_CS, (sH, 0, 0, 3))
    signal("CPst", WS_F2, vT0)
    stamp(7)
    flag_load(WS_F2)
    flag_wait(WS_F2)
    stamp(8)
    a.vm(f"buffer_load_dwordx2 {V(vSTAT,2)}, v{vGS}, {R(rWS)}, s{sT1} offen sc1", "CSg")
    for i in range(4):
        a.vm(f"buffer_load_dwordx4 {V(vPUB+4*i,4)}, v{vOR1}, {R(rWS)}, s{sT0} offen sc1", f"CPg{i}")
        if i < 3: a(f"s_add_u32 s{sT0}, s{sT0}, 4096")
    a.wait("CSg")
    a(f"v_max_f32_dpp v{vT0}, v{vSTAT}, v{vSTAT} row_ror:8 {DPP}\nv_max_f32_dpp v{vT0}, v{vT0}, v{vT0} row_ror:4 {DPP}")
    a(f"v_sub_f32 v{vSTAT}, v{vSTAT}, v{vT0}\nv_exp_f32 v{vSTAT}, v{vSTAT}\nv_mul_f32 v{vT1}, v{vSTAT}, v{vSTAT+1}")
    a(f"v_add_f32_dpp v{vT1}, v{vT1}, v{vT1} row_ror:8 {DPP}\nv_add_f32_dpp v{vT1}, v{vT1}, v{vT1} row_ror:4 {DPP}")
    a(f"v_rcp_f32 v{vT1}, v{vT1}\nv_mul_f32 v{vSTAT}, v{vSTAT}, v{vT1}")
    for i in range(4):
        a.wait(f"CPg{i}")
        a(f"ds_write_b128 v{vWR+i}, {V(vPUB+4*i,4)} offset:{i*1024}")
    a("s_waitcnt lgkmcnt(0)")
    for k in range(4):
        a(f"ds_read_b128 {V(vCB+4*k,4)}, v{vAD+k}")
    a("s_waitcnt lgkmcnt(0)")
    def ctx_fold(nt):
        d = vDD + 4*nt
        for r in range(4):
            a(f"v_mul_f32 v{d+r}, v{d+r}, v{vSTAT}")
        for ror in (8, 4):
            for r in range(4):
                a(f"v_add_f32_dpp v{d+r}, v{d+r}, v{d+r} row_ror:{ror} {DPP}")
        a(f"ds_write_b128 v{vRW}, {V(d,4)} offset:{64*nt}")
    for nt in range(8):
        d = vDD + 4*nt
        for k in range(4):
            a(f"v_mfma_f32_16x16x32_bf16 {V(d,4)}, {A(A1+16*nt+4*k,4)}, {V(vCB+4*k,4)}, {V(d,4) if k else '0'}")
        if nt >= 2: ctx_fold(nt - 2)
    ctx_fold(6); ctx_fold(7)
    a("s_waitcnt lgkmcnt(0)\ns_barrier")
    for p in range(4):
        a(f"ds_read_b128 {V(vCB+4*p,4)}, v{vRR} offset:{p*8192}")
    a("s_waitcnt lgkmcnt(0)")
    for r in range(4):
        a(f"v_add_f32 v{vCB+r}, v{vCB+r}, v{vCB+4+r}\nv_add_f32 v{vCB+8+r}, v{vCB+8+r}, v{vCB+12+r}")
    for r in range(4):
        a(f"v_add_f32 v{vCB+r}, v{vCB+r}, v{vCB+8+r}")
    tag_bf16(range(vCB, vCB+4))
    saddr(sT0, WS_CX, (sH, 0, 0, 11), (sW, 0, 0, 9))
    setexec(0xffffffff)
    a(f"buffer_store_dwordx4 {V(vCB,4)}, v{vCX}, {R(rWS)}, s{sT0} offen sc1")
    setexec(FULL)
    for r in range(4): a(f"v_xor_b32 v{vGS2+r}, s{sTAG}, v{vCB+r}")
    fin_vec2()
    xc_check(64)
    stamp(9)
    a(f"s_bitcmp1_b32 s{sS}, 2\ns_cbranch_scc1 L_ctxok")
    a(f"s_mov_b32 s{sB}, s{sW}")
    cx_load()
    fin_vec1()
    msg_addr()
    a(f"s_add_u32 s{sT1}, s{sMB}, {6*1024}\ns_mov_b32 s{sU0+1}, 0x88888888\ns_mov_b32 s{sU0+2}, 0x88888888\nv_mov_b32 v{vMC}, 0xff7f0000")
    a("L_auxpoll:")
    m_round()
    a(f"buffer_load_dwordx4 {V(vOO,4)}, v{vOP}, {R(rWS)}, s{sT1} offen sc1\ns_waitcnt vmcnt(0)")
    untag(list(range(vOO, vOO+4)) + list(range(vMS, vMS+16)), vT0)
    a(f"v_add_f32 v{vFB}, v{vOO}, v{vOO+2}\nv_add_f32 v{vFA}, v{vMS+12}, v{vMS+14}")
    a(f"v_mov_b32_dpp v{vLS}, v{vOO+1} row_newbcast:8 {DPP}")
    a(f"v_mov_b32_dpp v{vMC}, v{vFB} row_newbcast:8 row_mask:0xf bank_mask:0x3")
    a("s_cbranch_vccz L_hop1ok")
    spin_guard("L_auxpoll")
    body = a.finish()
    ref = open(os.path.join(os.path.dirname(os.path.abspath(__file__)), "..", NAME + ".s.ref")).read().split("\n")
    layout = [l for l in ref if l.startswith(";") and "@launch" not in l and "Override" not in l and "grid=ceil" not in l]
    tail = f""".section .rodata,"a"
.p2align 6
.amdhsa_kernel {NAME}_kernel
  .amdhsa_next_free_vgpr 512
  .amdhsa_next_free_sgpr 102
  .amdhsa_accum_offset 256
  .amdhsa_group_segment_fixed_size 0
  .amdhsa_kernarg_size 112
  .amdhsa_user_sgpr_count 2
  .amdhsa_user_sgpr_kernarg_segment_ptr 1
  .amdhsa_system_sgpr_workgroup_id_x 1
.end_amdhsa_kernel
"""
    return "\n".join(layout + hdr + ["; generated by tools/gen.py"]) + "\n" + body + tail

if __name__ == "__main__":
    kw = eval("dict(" + (sys.argv[2] if len(sys.argv) > 2 else "") + ")")
    out = sys.argv[1] if len(sys.argv) > 1 else os.path.join(os.path.dirname(os.path.abspath(__file__)), "..", NAME + ".s")
    open(out, "w").write(generate(**kw))
    print("wrote", out)
```

```python
import sys, os, struct
sys.path.insert(0, os.path.dirname(os.path.abspath(__file__)))
from asmlib import Asm

NAME = "concat_heads__compressed_kv_cla__mha_block_cached__decode"
KB, MB = 1024, 1 << 20
WS_XC = 32 * KB
WS_CT, WS_F1, WS_F2, WS_CS, WS_CX, WS_QP, WS_QL, WS_YA, WS_YB = [o * KB for o in (64, 96, 128, 160, 192, 256, 384, 512, 768)]
WS_OP, WS_CP, WS_SC, WS_ST, WS_SIZE = 1*MB, 2*MB, 3*MB, 6*MB, 8*MB
SCALE = 128 ** -0.5 * 1.4426950408889634
LDS_EX = 128 * KB
LDS_O = LDS_EX + 4 * KB
LDS_W = 96 * KB
SPIN = 1 << 23

def f32(x): return struct.unpack("<I", struct.pack("<f", x))[0]
def V(a, n=1): return f"v{a}" if n == 1 else f"v[{a}:{a+n-1}]"
def A(a, n=1): return f"a{a}" if n == 1 else f"a[{a}:{a+n-1}]"
def R(r): return f"s[{r}:{r+3}]"
DPP = "row_mask:0xf bank_mask:0xf"
FULL = (1 << 64) - 1

pAX, pCK, pAWQ, pUK, pUV, pAWO, pBX, pK, pV, pBWQ, pBWO, pOUT, pDBG, pWS = range(4, 32, 2)
sH, sP, sW, sTAG, sT0, sT1, sT2, sT3 = 32, 33, 34, 35, 36, 37, 38, 39
rW, rX, rWS, rK, rV, rUK, rOUT, rDBG = 40, 44, 48, 52, 56, 72, 72, 76
rCK = rK
sC2, sFILL, sWO = 60, 62, 63
sSELLO, sSELHI, sHI24, sC, sSPIN = 80, 81, 82, 83, 84
sU0, sU1, sTK, sROT, sBASE = 85, 86, 87, 88, 89
_, sQO, sMODE, sIT, sSLOT, sCKO, sYO, sOUTO = 90, 91, 92, 93, 94, 95, 96, 97
sTS = 98
sFLAG, sXT, sB, sHJ, sM0 = 68, 69, 3, 61, 56
sIX = sB
sS = 90

MAPS = {
    'L': ([[8], [9]], [[10], [11]], [12, 13, 14, 15, 16, 17, 18, 19]),
    'D': ([[8], [9]], [[15], [10]], [13, 12, 11, 14, 16, 17, 18, 19]),
    'C': ([[8], [9]], [[15], [10]], [12, 13, 14, 11, 16, 17, 18, 19]),
}

def generate(D=6, DV=6, DP=7, NU=32, PAIR=1, MAP='D', ROTH=8, ROTW=2, PU=8, POLLP=46, PUJ=8, POLLQ=46, POLLU=30, DJ=12, THB=2, THA=6, WSL=4, LOCAL=1, PRET=1, CLS=1, NFA=0, NFB=8, PFIRST=1, XQ=(3, 2), FSL=2,
             STAMP=False, PROBE=None, AMP=0, ABL=()):
    a = Asm()
    role = ["B"]
    if ABL:
        real_vm = a.vm
        a.vm = lambda text, tg: real_vm(text.replace(R(rWS), R(rDBG)) if tg.rstrip("0123456789") in ABL else text, tg)

    vL, vG, vJ, vT0, vT1, vT2, vT3, vTAG = 1, 2, 3, 4, 5, 6, 7, 8
    vMASK = 10
    vST0, vST1 = 16, 17

    def srd(r, p, size):
        a(f"s_mov_b32 s{r}, s{p}\ns_and_b32 s{r+1}, s{p+1}, 0xffff\ns_mov_b32 s{r+2}, {size}\ns_mov_b32 s{r+3}, 0x20000")

    def saddr(dst, base, *fields):
        for n, (r, lo, w, pos) in enumerate(fields):
            if w: a(f"s_bfe_u32 s{sT2}, s{r}, {lo | (w << 16):#x}")
            elif lo: a(f"s_lshr_b32 s{sT2}, s{r}, {lo}")
            a(f"s_lshl_b32 s{sT2}, s{sT2 if (w or lo) else r}, {pos}")
            a(f"s_add_u32 s{dst}, s{sT2}, {base if n == 0 else 's%d' % dst}")

    def vaddr(dst, tmp, *fields):
        for n, (r, lo, w, pos) in enumerate(fields):
            if w: a(f"v_bfe_u32 v{tmp}, v{r}, {lo}, {w}")
            elif lo: a(f"v_lshrrev_b32 v{tmp}, {lo}, v{r}")
            src = tmp if (w or lo) else r
            a(f"v_lshlrev_b32 v{dst}, {pos}, v{src}" if n == 0 else f"v_lshl_add_u32 v{dst}, v{src}, {pos}, v{dst}")

    def stamp(i):
        if PROBE is not None:
            if PROBE == (role[0], i): a("s_memrealtime s[100:101]\ns_waitcnt lgkmcnt(0)")
            return
        if not STAMP or i == 14 or (STAMP == 3 and (role[0], i) not in (("A", 0), ("B", 0))): return
        if i: a(f"s_memrealtime s[{sTS}:{sTS+1}]\ns_waitcnt lgkmcnt(0)")
        else: a(f"s_lshl_b32 s100, s2, 2\ns_add_u32 s100, s100, s{sW}\ns_lshl_b32 s100, s100, 6\ns_add_u32 s100, s100, {WS_ST}\nv_mov_b32 v{vST0}, s100")
        a(f"v_mov_b32 v{vST1}, s{sTS}\ns_mov_b64 s[100:101], exec\ns_mov_b64 exec, 1")
        a(f"buffer_store_dword v{vST1}, v{vST0}, {R(rWS)}, 0 offen offset:{4*i}")
        if i == 0:
            a(f"s_getreg_b32 s{sTS}, hwreg(HW_REG_XCC_ID)\nv_mov_b32 v{vST1}, s{sTS}\nbuffer_store_dword v{vST1}, v{vST0}, {R(rWS)}, 0 offen offset:60")
        a("s_mov_b64 exec, s[100:101]")

    def soft(i):
        if STAMP == 2: a(f"s_memrealtime s[{76 if i == 0 else 78}:{77 if i == 0 else 79}]")

    def soft_flush():
        if STAMP == 2:
            a(f"s_waitcnt lgkmcnt(0)\ns_mov_b64 s[100:101], exec\ns_mov_b64 exec, 1")
            for i, r in ((14, 76), (7 if role[0] == "B" else 3, 78)):
                a(f"v_mov_b32 v{vST1}, s{r}\nbuffer_store_dword v{vST1}, v{vST0}, {R(rWS)}, 0 offen offset:{4*i}")
            a("s_mov_b64 exec, s[100:101]")

    TAILS = [12, 14, 16, 18, 20, 22, 24]
    def tsoft(i):
        if STAMP == 3: a(f"s_memrealtime s[{TAILS[i]}:{TAILS[i]+1}]")

    def tflush():
        if STAMP == 3:
            a(f"s_waitcnt lgkmcnt(0)\ns_mov_b64 s[100:101], exec\ns_mov_b64 exec, 1")
            for i, r in enumerate(TAILS):
                a(f"v_mov_b32 v{vST1}, s{r}\nbuffer_store_dword v{vST1}, v{vST0}, {R(rWS)}, 0 offen offset:{4*(i+7)}")
            a("s_mov_b64 exec, s[100:101]")

    def probe_end():
        if PROBE is None or PROBE[0] != role[0]: return
        lbl = a.label("probe")
        a(f"s_sub_u32 s100, s100, s{sTS}\ns_lshl_b32 s100, s100, {AMP}\ns_add_u32 s100, s100, s{sTS}")
        a(f"s_add_u32 s100, s100, 10000\n{lbl}:\ns_memrealtime s[{sTS}:{sTS+1}]\ns_waitcnt lgkmcnt(0)")
        a(f"s_sub_u32 s{sTS}, s{sTS}, s100\ns_cmp_lt_i32 s{sTS}, 0\ns_cbranch_scc0 {lbl}_x\ns_cmp_gt_i32 s{sTS}, -100000\ns_cbranch_scc1 {lbl}\n{lbl}_x:")

    def spin_guard(lbl_retry):
        a(f"s_sub_u32 s{sSPIN}, s{sSPIN}, 1\ns_cmp_lg_u32 s{sSPIN}, 0\ns_cbranch_scc1 {lbl_retry}\ns_branch L_end")

    def untag(regs, acc):
        for r in regs:
            a(f"v_xor_b32 v{r}, s{sTAG}, v{r}")
        a(f"v_or_b32 v{acc}, v{regs[0]}, v{regs[1]}")
        for i in range(2, len(regs), 2):
            a(f"v_or3_b32 v{acc}, v{acc}, v{regs[i]}, v{regs[i+1]}")
        a(f"v_and_b32 v{acc}, 0xff, v{acc}\nv_cmp_ne_u32 vcc, 0, v{acc}")

    def tag(regs):
        for r in regs:
            a(f"v_and_or_b32 v{r}, v{r}, s{sHI24}, v{vTAG}")

    def tag_bf16(regs):
        a(f"s_mov_b32 s{sT2}, 0xffff0000")
        for r in regs: a(f"v_cvt_pk_bf16_f32 v{r}, v{r}, v{r}")
        for r in regs: a(f"v_and_or_b32 v{r}, v{r}, s{sT2}, v{vTAG}")

    def quadsum(dst, src, tmp):
        a(f"v_mov_b32_dpp v{dst}, v{src} quad_perm:[0,0,0,0] {DPP}")
        a(f"v_mov_b32_dpp v{tmp}, v{src+2} quad_perm:[2,2,2,2] {DPP}")
        a(f"v_add_f32_dpp v{dst}, v{src+1}, v{dst} quad_perm:[1,1,1,1] {DPP}")
        a(f"v_add_f32_dpp v{tmp}, v{src+3}, v{tmp} quad_perm:[3,3,3,3] {DPP}")
        a(f"v_add_f32 v{dst}, v{dst}, v{tmp}")

    def setexec(mask):
        if mask == FULL: a("s_mov_b64 exec, -1")
        elif mask <= 64: a(f"s_mov_b64 exec, {mask}")
        else: a(f"s_mov_b32 exec_lo, {mask & 0xffffffff:#x}\ns_mov_b32 exec_hi, {mask >> 32:#x}")

    def consts():
        a(f"s_load_dword s{sTAG}, s[{pWS}:{pWS+1}], 0")
        srd(rWS, pWS, WS_SIZE)
        if ABL: srd(rDBG, pDBG, 256)
        a(f"s_mov_b32 s{sHI24}, 0xffffff00\ns_mov_b32 s{sC}, {f32(SCALE):#x}\ns_mov_b32 s{sSPIN}, {SPIN}")
        stamp(0)

    def take_tag(flag=False):
        a(f"s_waitcnt lgkmcnt(0)\ns_add_u32 s{sTAG}, s{sTAG}, 0x5b\ns_and_b32 s{sTAG}, s{sTAG}, 0xff\nv_mov_b32 v{vTAG}, s{sTAG}")
        if flag: a(f"s_or_b32 s{sFLAG}, s{sTAG}, 0x6b3ac500")

    def signal(tg, base, tmp):
        saddr(sXT, base, (sH, 0, 0, 8), (sW, 0, 0, 23))
        a(f"v_mov_b32 v{tmp}, s{sXT}\nv_mov_b32 v{tmp+1}, s{sFLAG}")
        if tg in a.q: a.wait(tg)
        a("s_barrier")
        setexec(1)
        a.vm(f"buffer_store_dword v{tmp+1}, v{tmp}, {R(rWS)}, 0 offen sc1", "SIG")
        setexec(FULL)

    hdr = [f"; @launch grid=(256,1,1) block=(256,1,1) lds={160*KB}"]
    a(f'.amdgcn_target "amdgcn-amd-amdhsa--gfx950"\n.text\n.globl {NAME}_kernel\n.p2align 8\n.type {NAME}_kernel,@function')
    a(f"{NAME}_kernel:")
    if STAMP or PROBE is not None: a(f"s_memrealtime s[{sTS}:{sTS+1}]")
    a("s_cmp_ge_u32 s2, 256\ns_cbranch_scc1 L_end")
    a("s_load_dwordx16 s[4:19], s[0:1], 0\ns_load_dwordx8 s[20:27], s[0:1], 64\ns_load_dwordx4 s[28:31], s[0:1], 96")
    a(f"v_lshrrev_b32 v{vT0}, 6, v0\nv_and_b32 v{vL}, 63, v0\nv_readfirstlane_b32 s{sW}, v{vT0}")
    a(f"s_lshr_b32 s{sH}, s2, 3\ns_sub_u32 s{sP}, s2, s{sH}\ns_sub_u32 s{sP}, s{sP}, 1\ns_and_b32 s{sP}, s{sP}, 7")
    a(f"v_lshrrev_b32 v{vG}, 4, v{vL}\nv_and_b32 v{vJ}, 15, v{vL}")
    a(f"s_cmp_lt_u32 s{sP}, 2\ns_cbranch_scc1 L_qp\ns_cmp_eq_u32 s{sP}, 2\ns_cbranch_scc1 L_ql\ns_cmp_eq_u32 s{sP}, 7\ns_cbranch_scc1 L_aux")

    vCA, vONE, vTK = 9, 18, 19
    sMSG = sYO
    vOW, vOX = 14, 15
    vX, vB, vACC, vQ = 20, 52, 60, 68
    vOK, vOQ, vOP, vOV = 76, 78, 79, 126
    vBQ, vPB = 80, 96
    vS, vO = 112, 116
    vMC, vLS, vSC, vP, vU0, vU1 = 120, 121, 122, 123, 124, 125
    RING = 128
    A0, A1 = 0, 128
    gv, tv, ub = MAPS[MAP] if isinstance(MAP, str) else MAP
    mk = lambda bits: sum(1 << b for b in bits)
    sup = set(sum(gv + tv, []))
    XOR = len(sup) > 4
    basis = []
    for r_ in [mk(v) for v in gv + tv] + [1 << b for b in ub]:
        for b_ in basis: r_ = min(r_, r_ ^ b_)
        assert r_, "key mapping is not a bijection"
        basis.append(r_)
    assert sup | set(ub) == set(range(8, 20))
    tval = [(mk(tv[0]) if t & 1 else 0) ^ (mk(tv[1]) if t & 2 else 0) for t in range(4)]
    gmask = mk(gv[0]) | mk(gv[1])
    timm = [v & 0xfff & ~gmask for v in tval]
    treg = sorted(set(v ^ i for v, i in zip(tval, timm)))
    tidx = [treg.index(v ^ i) for v, i in zip(tval, timm)]
    XOR = XOR or len(treg) > 2
    vAX = vOK + 1
    runs = []
    for i, b in enumerate(ub):
        if runs and runs[-1][1] + runs[-1][2] == b: runs[-1][2] += 1
        else: runs.append([i, b, 1])
    NP = (256 - 7 * NU) // 2
    assert NU % 2 == 0 and 2 <= NP <= 30 and 5 <= D <= DV <= 7 and not XOR
    rS, sINC, sCNT = 64, sMODE, sOUTO
    vOS, vSA, vMX, vS2, vSN, vPN = 62, 64, 65, 96, 66, 100
    LDS_S = 16 * KB
    sSC, sSCA = sSELLO, sSELHI
    vSL, vOSC, vLA, sCL = 102, 55, 0, sFILL
    LDS_T = 8 * KB

    def advance(n): a(f"s_add_u32 s{sTK}, s{sTK}, {inc(n)}")
    inc = lambda n: 7 if not PAIR else (13 if n % 8 == 7 else 1)
    def kv_setup():
        a(f"v_lshrrev_b32 v{vT0}, 2, v{vJ}\nv_and_b32 v{vT1}, 3, v{vJ}")
        for dst, sel in ((vOK, vT0), (vOV, vG)):
            if len(gv[0]) == 1 and gv[1] == [gv[0][0] + 1]:
                a(f"v_lshlrev_b32 v{dst}, {gv[0][0]}, v{sel}")
            else:
                a(f"v_and_b32 v{vT2}, 1, v{sel}\nv_mul_u32_u24 v{vT2}, {mk(gv[0])}, v{vT2}\nv_lshrrev_b32 v{vT3}, 1, v{sel}\nv_mul_u32_u24 v{vT3}, {mk(gv[1])}, v{vT3}\nv_xor_b32 v{dst}, v{vT2}, v{vT3}")
        a(f"v_lshl_add_u32 v{vOK}, v{vG}, 6, v{vOK}\nv_lshl_add_u32 v{vOK}, v{vT1}, 4, v{vOK}\nv_lshl_add_u32 v{vOV}, v{vJ}, 4, v{vOV}")
        if len(treg) == 2 and not XOR:
            a(f"v_xor_b32 v{vOK+1}, {treg[1]}, v{vOK}\nv_xor_b32 v{vOV+1}, {treg[1]}, v{vOV}")
        a(f"s_add_u32 s{sB}, s{sW}, s{sP}\ns_and_b32 s{sB}, s{sB}, 3")
        a(f"s_lshl_b32 s{sBASE}, s{sB}, 5\ns_add_u32 s{sBASE}, s{sBASE}, s{sH}\ns_lshl_b32 s{sBASE}, s{sBASE}, 20")
        a(f"s_mul_i32 s{sROT}, s{sH}, {ROTH}")
        if ROTW == 1: a(f"s_add_u32 s{sROT}, s{sROT}, s{sB}")
        else: a(f"s_mul_i32 s{sT2}, s{sB}, {ROTW}\ns_add_u32 s{sROT}, s{sROT}, s{sT2}")
        a(f"s_lshl_b32 s{sTK}, s{sP}, {PAIR}")

    def masks():
        a(f"v_and_b32 v{vT0}, 1, v{vL}\nv_lshlrev_b32 v{vT0}, 4, v{vT0}\nv_mov_b32 v{vT1}, 0xffff\nv_lshlrev_b32 v{vT0}, v{vT0}, v{vT1}")
        a(f"v_bfe_u32 v{vT1}, v{vL}, 1, 2")
        for r in range(4):
            a(f"v_cmp_eq_u32 vcc, {r}, v{vT1}\nv_cndmask_b32 v{vMASK+r}, 0, v{vT0}, vcc")

    def kv_late():
        a(f"v_mov_b32 v{vMC}, 0xff7f0000\nv_mov_b32 v{vLS}, 0\nv_mov_b32 v{vONE}, 1")
        for r in range(4): a(f"v_mov_b32 v{vO+r}, 0")
        a(f"v_lshlrev_b32 v{vLA}, 3, v{vL}\nds_write_b64 v{vLA}, {V(vO,2)} offset:{LDS_T}\nv_mov_b32 v{vLA}, {LDS_T}")
        saddr(sMSG, WS_CT, (sH, 0, 0, 10), (sH, 3, 0, 8))
        a(f"v_mov_b32 v{vCA}, s{sMSG}")
        saddr(sMSG, WS_OP, (sH, 0, 0, 15), (sB, 0, 0, 13), (sP, 0, 0, 10))
        a(f"v_and_b32 v{vT1}, 3, v{vJ}\nv_lshlrev_b32 v{vOQ}, 7, v{vG}\nv_lshl_add_u32 v{vOQ}, v{vT1}, 5, v{vOQ}")
        saddr(sQO, WS_QP, (sH, 0, 0, 12), (sB, 0, 0, 9))
        msg_addr()

    def msg_addr():
        a(f"v_lshlrev_b32 v{vT0}, 7, v{vG}\nv_lshl_add_u32 v{vT0}, v{vJ}, 4, v{vT0}\nv_mov_b32 v{vT1}, 512")
        a(f"v_cmp_gt_u32 vcc, 8, v{vJ}\nv_cndmask_b32 v{vOP}, v{vT1}, v{vT0}, vcc")

    def unit_addr(dst):
        a(f"s_add_u32 s{sT3}, s{sTK}, s{sROT}")
        for n, (i, b, w) in enumerate(runs):
            if XOR and n == 0:
                a(f"s_bfe_u32 s{sT1}, s{sT3}, {i | (w << 16):#x}\ns_lshl_b32 s{dst}, s{sT1}, {b}")
            else:
                a(f"s_bfe_u32 s{sT1}, s{sT3}, {i | (w << 16):#x}\ns_lshl_b32 s{sT1}, s{sT1}, {b}\ns_add_u32 s{dst}, s{sT1}, s{dst if n else sBASE}")

    def slot(i): return V(RING + 4*i, 4) if i < 32 else A(4*(i - 32), 4)

    def kv_load(sl, r, base, tg):
        isv = r >= 4
        if XOR:
            if tval[r%4]: a(f"s_xor_b32 s{sXT}, s{base}, {tval[r%4]}")
            a(f"v_xor_b32 v{vAX}, s{sXT if tval[r%4] else base}, v{vOV if isv else vOK}")
            a.vm(f"buffer_load_dwordx4 {slot(sl)}, v{vAX}, {R(rV if isv else rK)}, s{sBASE} offen nt", tg)
            return
        a.vm(f"buffer_load_dwordx4 {slot(sl)}, v{(vOV if isv else vOK) + tidx[r%4]}, {R(rV if isv else rK)}, s{base} offen offset:{timm[r%4]} nt", tg)

    def s_load_(sl, t, tg):
        if XOR:
            if tval[t]: a(f"s_xor_b32 s{sXT}, s{sU0}, {tval[t]}")
            a(f"v_xor_b32 v{vAX}, s{sXT if tval[t] else sU0}, v{vOS}")
            a.vm(f"buffer_load_dwordx4 {slot(sl)}, v{vAX}, {R(rS)}, s{sBASE} offen nt", tg)
            return
        a.vm(f"buffer_load_dwordx4 {slot(sl)}, v{vOS + tidx[t]}, {R(rS)}, s{sU0} offen offset:{timm[t]} nt", tg)

    def use(isv):
        r, v = (rV, vOV) if isv else (rK, vOK)
        a(f"s_mov_b64 s[{rS}:{rS+1}], s[{r}:{r+1}]\nv_mov_b32 v{vOS}, v{v}\nv_mov_b32 v{vOS+1}, v{v+1}")

    def k_mfma(sl, c):
        d = vS2 if (c >> 2) & 1 else vS
        a(f"v_mfma_f32_16x16x32_bf16 {V(d,4)}, {slot(sl)}, {V(vBQ+4*(c&3),4)}, {V(d,4) if c & 3 else '0'}")

    def k_post(u, off):
        quadsum(vSC, vS2 if u & 1 else vS, vU0)
        a(f"v_max_f32 v{vMX}, v{vMX}, v{vSC}\nds_write_b32 v{vSA}, v{vSC} offset:{off}")

    def allmax(x):
        a(f"v_max_f32_dpp v{vU0}, v{x}, v{x} row_ror:4 {DPP}")
        a(f"v_max_f32_dpp v{vU0}, v{vU0}, v{vU0} row_ror:8 {DPP}")
        a(f"v_mov_b32 v{vU1}, v{vU0}\nv_permlane16_swap_b32 v{vU0}, v{vU1}\nv_max_f32 v{vU0}, v{vU0}, v{vU1}")
        a(f"v_mov_b32 v{vU1}, v{vU0}\nv_permlane32_swap_b32 v{vU0}, v{vU1}\nv_max_f32 v{vU0}, v{vU0}, v{vU1}")

    def claim(off):
        setexec(1)
        if ("2v" if off else "2k") in ABL: a(f"global_atomic_add v{vCA}, v{vONE}, s[{pWS}:{pWS+1}] offset:128 sc1")
        a(f"global_atomic_add v{vTK}, v{vCA}, v{vONE}, s[{pWS}:{pWS+1}] offset:{off} sc0 sc1")
        setexec(FULL)

    rF, sFO, sYS, sCXO, sMB, sLOC, sYG = rW, 44, 45, 46, 47, 70, 71
    vFD, vFT, vAO, vAY, vAW, vAG, vAF, vCX, vRO = 20, 24, 28, 30, 31, 32, 33, 34, 35
    vPA, vCL = 50, 54
    vWT, vBU, vY, vMS, vGS2, vG2 = 128, 160, 112, 192, 224, 232
    def fin_scalar():
        if CLS == 0: a(f"s_and_b32 s{sS}, s2, 7")
        else:
            saddr(sS, 0, (2, 1, 2, 0), (2, 0, 1, 2))
            if CLS == 2: a(f"s_xor_b32 s{sS}, s{sS}, 4")
        a(f"s_and_b32 s{sT0}, s{sS}, 3\ns_bitcmp0_b32 s{sS}, 2")
        a(f"s_cselect_b64 s[{rF}:{rF+1}], s[{pBWO}:{pBWO+1}], s[{pAWO}:{pAWO+1}]")
        a(f"s_cselect_b32 s{sYS}, {WS_YB - WS_YA}, 0\ns_add_u32 s{sYS}, s{sYS}, {WS_YA}")
        saddr(sYG, f"s{sYS}", (sT0, 0, 0, 16), (sH, 2, 0, 13), (sH, 0, 2, 6))
        a(f"s_mov_b32 s{rF+2}, {4*MB}\ns_mov_b32 s{rF+3}, 0x20000")
        saddr(sFO, 0, (sH, 0, 0, 17), (sW, 0, 0, 15), (sT0, 0, 0, 8))
        saddr(sYS, f"s{sYS}", (sT0, 0, 0, 16), (sW, 1, 0, 15), (sH, 0, 0, 8), (sW, 0, 1, 7))
        saddr(sCXO, WS_CX, (sH, 0, 0, 11), (sW, 0, 0, 9))
        srd(rOUT, pOUT, 8192)
    def fin_dma(n, offs):
        if n % 4 == 0:
            a(f"s_lshl_b32 s{sT3}, s{sW}, 13\ns_add_u32 s{sT3}, s{sT3}, {LDS_W + 1024*n}\ns_mov_b32 m0, s{sT3}")
            if n: a(f"s_add_u32 s{sFO}, s{sFO}, 16384")
        a.vm(f"buffer_load_dwordx4 v{offs+n%4}, {R(rF)}, s{sFO} offen offset:{(n%4)*1024} nt lds", "FW")
    def fin_vec1():
        a(f"v_lshlrev_b32 v{vT0}, 2, v{vG}\nv_xor_b32 v{vT0}, v{vT0}, v{vJ}")
        for i in range(4):
            a(f"v_xor_b32 v{vT1}, {i}, v{vT0}\nv_lshlrev_b32 v{vT1}, 4, v{vT1}\nv_lshl_add_u32 v{vFD+i}, v{vG}, 10, v{vT1}")
            if i: a(f"v_add_u32 v{vFD+i}, {i*3072}, v{vFD+i}")
        saddr(sMB, WS_OP, (sH, 0, 0, 15), (sB, 0, 0, 13))
        vaddr(vT2, vT1, (vG, 0, 0, 7), (vJ, 0, 3, 4))
        a(f"v_lshrrev_b32 v{vT0}, 3, v{vJ}\nv_and_b32 v{vT3}, 3, v{vJ}\nv_min_u32 v{vT3}, 2, v{vT3}\nv_lshl_add_u32 v{vT3}, v{vT3}, 1, v{vT0}")
        for i in range(4):
            if i < 3: a(f"v_add_u32 v{vT1}, {2*i}, v{vT0}")
            else: a(f"v_mov_b32 v{vT1}, v{vT3}\nv_mov_b32 v{vT2}, 512")
            a(f"v_cmp_le_u32 vcc, s{sP}, v{vT1}\nv_addc_co_u32 v{vT1}, vcc, 0, v{vT1}, vcc\nv_lshl_add_u32 v{vPA+i}, v{vT1}, 10, v{vT2}")
        a(f"s_mul_i32 s{sT2}, s{sB}, 320\ns_add_u32 s{sT2}, s{sT2}, {LDS_O}")
        a(f"v_lshlrev_b32 v{vT0}, 6, v{vG}\nv_lshl_add_u32 v{vT0}, v{vJ}, 1, v{vT0}\nv_add_u32 v{vAW}, s{sT2}, v{vT0}")
    def fin_vec2():
        vaddr(vT0, vT1, (vG, 0, 0, 11), (vL, 2, 2, 8), (vL, 2, 2, 6), (vL, 4, 1, 5), (vL, 1, 1, 4), (vL, 0, 1, 3))
        a(f"s_lshl_b32 s{sT2}, s{sW}, 6\ns_add_u32 s{sT2}, s{sT2}, {LDS_W}\nv_xor_b32 v{vFT}, s{sT2}, v{vT0}")
        for i in range(1, 4): a(f"v_xor_b32 v{vFT+i}, {16*i}, v{vFT}")
        a(f"v_and_b32 v{vT0}, 3, v{vJ}\nv_lshrrev_b32 v{vT1}, 2, v{vJ}\nv_lshlrev_b32 v{vT2}, 4, v{vG}\nv_add_u32 v{vT2}, {LDS_O}, v{vT2}\ns_movk_i32 s{sT0}, 320")
        for u in range(2):
            a(f"v_cmp_eq_u32 vcc, {u}, v{vT1}\nv_cndmask_b32 v{vAO+u}, 4, v{vT0}, vcc\nv_mad_u32_u24 v{vAO+u}, v{vAO+u}, s{sT0}, v{vT2}")
        a(f"v_lshlrev_b32 v{vT1}, 2, v{vL}\nv_add_u32 v{vT1}, {LDS_O + 4*320}, v{vT1}\nv_mov_b32 v{vT2}, 0\nds_write_b32 v{vT1}, v{vT2}")
    def fin_vec3():
        vaddr(vAY, vT1, (vJ, 0, 0, 4), (vG, 0, 0, 13))
        vaddr(vAG, vT1, (vL, 2, 0, 8), (vL, 0, 2, 4))
        a(f"s_xor_b32 s{sT1}, s{sS}, 4")
        saddr(sT0, 0, (sT1, 0, 3, 8), (sH, 4, 0, 7), (sH, 0, 2, 5), (sH, 2, 2, 3))
        vaddr(vAF, vT1, (vL, 0, 2, 11), (vG, 0, 0, 1))
        a(f"v_add_u32 v{vAF}, s{sT0}, v{vAF}")
        a(f"v_and_b32 v{vT1}, 31, v{vL}\nv_lshlrev_b32 v{vCX}, 4, v{vT1}\ns_mul_i32 s{sT2}, s{sW}, 320\ns_add_u32 s{sT2}, s{sT2}, {LDS_O}\nv_lshl_add_u32 v{vRO}, v{vT1}, 3, s{sT2}")
        saddr(sT0, f"s{sYG}", (sW, 0, 1, 12), (sW, 1 if PRET else 0, 0, 24))
        a(f"s_bitcmp1_b32 s{sS}, 2\ns_cselect_b32 s{sCXO}, s{sCXO}, {'s%d' % sT0 if PRET else WS_SIZE}\ns_cselect_b64 vcc, -1, 0\nv_cndmask_b32 v{vCL}, v{vAG}, v{vCX}, vcc")

    def xc_word():
        a(f"s_getreg_b32 s{sLOC}, hwreg(HW_REG_XCC_ID, 0, 4)\ns_lshl_b32 s{sLOC}, s{sLOC}, 8\ns_or_b32 s{sLOC}, s{sLOC}, s{sTAG}\ns_or_b32 s{sLOC}, s{sLOC}, 0x5e9d0000")
    def xc_report(tmp):
        xc_word()
        saddr(sXT, WS_XC, (2, 0, 3, 8), (sH, 0, 0, 2), (sW, 0, 0, 24))
        a(f"v_mov_b32 v{tmp}, s{sXT}\nv_mov_b32 v{tmp+1}, s{sLOC}")
        setexec(1)
        a.vm(f"buffer_store_dword v{tmp+1}, v{tmp}, {R(rWS)}, 0 offen sc1", "XC")
        setexec(FULL)
    def xc_fetch(dst):
        saddr(sXT, WS_XC, (2, 0, 3, 8))
        a(f"v_lshrrev_b32 v{dst}, 2, v{vCX}")
        a.vm(f"buffer_load_dword v{dst}, v{dst}, {R(rWS)}, s{sXT} offen sc1", "XCg")
    def xc_check(src):
        a(f"v_cmp_ne_u32 vcc, s{sLOC}, v{src}\ns_cmp_eq_u64 vcc, 0\ns_cselect_b32 s{sLOC}, {LOCAL}, 0")

    def q_poll():
        for i in range(2):
            a.vm(f"buffer_load_dwordx4 {V(vQ+4*i,4)}, v{vOQ}, {R(rWS)}, s{sQO} offen offset:{16*i} sc1", "Q")

    class Start:
        def __init__(self, pu): self.pu, self.n = pu, 0
        def load(self):
            n = self.n; self.n += 1
            if n == 0: unit_addr(sU0)
            kv_load(n % (8*self.pu), n % 4, sU0, f"P{n}")
            if n % 4 == 3:
                advance(n)
                unit_addr(sU0)
        def paced(self, depth):
            if f"P{self.n - depth}" in a.q: a.wait(f"P{self.n - depth}")
            self.load()
        def until_q(self, pollat):
            while self.n < pollat: self.paced(DP)
            q_poll()
            while self.n < min(pollat + DP - 1, 8*self.pu): self.paced(DP)
        def finish(self, hook=None):
            if "Q" in a.q: a.wait("Q")
            chk, ok = a.label("qcheck"), a.label("qok")
            a(f"{chk}:")
            untag(list(range(vQ, vQ+8)), vT0)
            a(f"s_cbranch_vccz {ok}" if not ({"QPst", "Q"} & set(ABL)) else f"s_branch {ok}")
            saved = list(a.q)
            q_poll()
            a("s_waitcnt vmcnt(0)")
            spin_guard(chk)
            a.q = saved
            a(f"{ok}:")
            stamp(2)
            def operands(q, bq):
                for r in range(4):
                    a(f"v_cvt_pk_bf16_f32 v{q+r}, v{q+2*r}, v{q+2*r+1}")
                for t in range(4):
                    m = 0x000f000f << (4*t)
                    a(f"s_mov_b32 vcc_lo, {m:#x}\ns_mov_b32 vcc_hi, {m:#x}")
                    for r in range(4):
                        a(f"v_cndmask_b32 v{bq+4*t+r}, 0, v{q+r}, vcc")
            operands(vQ, vBQ)
            xc_report(vQ + 4)
            N = 8 * self.pu
            a(f"v_mov_b32 v{vMX}, 0xff7f0000\ns_lshl_b32 s{sT2}, s{sW}, 14\ns_add_u32 s{sT2}, s{sT2}, {LDS_S}\nv_lshl_add_u32 v{vSA}, v{vL}, 2, s{sT2}")
            first, todo = self.n, N + D - self.n
            for c in range(N):
                want = first + (todo * (c + 1) + N - 1) // N
                while self.n < want and self.n - N < c:
                    self.paced(DP if self.n < N else max(D, DP - 1))
                if f"P{c}" in a.q: a.wait(f"P{c}")
                k_mfma(c, c)
                if c % 4 == 2 and c > 4: k_post(c // 4 - 1, 256 * (c // 4 - 1))
                if hook: hook(c)
                if N - c in (24, 18, 12, 6): {24: fin_scalar, 18: fin_vec1, 12: fin_vec2, 6: fin_vec3}[N - c]()
            while self.n < N + D: self.paced(DP)
            assert (NU - N // 4) % 2 == 0 and NU - N // 4 >= 4
            a(f"v_add_u32 v{vSA}, {256 * (N // 4 - 1)}, v{vSA}")
            a(f"s_mov_b32 s{sCNT}, {(NU - N // 4) // 2}\ns_mov_b32 s{sINC}, {inc(3)}")
            saddr(sSC, WS_SC, (sH, 0, 0, 13 + (NP > 16)), (sB, 0, 0, 11 + (NP > 16)))
            vaddr(vOSC, vT0, (vL, 2, 0, 3))
            a(f"s_mov_b32 s{rS+2}, {128*MB}\ns_mov_b32 s{rS+3}, 0x20000")
            use(False)
            stamp(3)

    saddr(sT0, -3 << 17, (2, 0, 3, 21), (sH, 3, 0, 19), (sP, 0, 0, 17), (sW, 0, 0, 12))
    vaddr(vT0, vT1, (vL, 0, 5, 7), (vL, 5, 0, 15))
    a(f"s_mov_b32 s{rW+2}, {16*MB}\ns_mov_b32 s{rW+3}, 0x20000\ns_waitcnt lgkmcnt(0)\ns_mov_b64 s[{rW}:{rW+1}], s[{pCK}:{pCK+1}]")
    soft(0)
    for i, step in enumerate((16384, 49152, 16384, 0)):
        a.vm(f"buffer_load_dword v{vX+i}, v{vT0}, {R(rW)}, s{sT0} offen", "T")
        if step: a(f"s_add_u32 s{sT0}, s{sT0}, {step}")
    consts(); kv_setup(); srd(rK, pK, 128*MB); srd(rV, pV, 128*MB); masks(); kv_late()
    soft(1); soft_flush()
    st = Start(PU)
    for _ in range(DP): st.load()
    stamp(1)
    take_tag()
    a("s_barrier")
    st.until_q(POLLP)
    st.finish()

    late_blocks = []
    def sc_load():
        a(f"buffer_load_dwordx2 {V(vSL,2)}, v{vOSC}, {R(rDBG if 'SCld' in ABL else rWS)}, s{sSCA} offen sc1")
    def arrive(off):
        setexec(1)
        a(f"ds_add_rtn_u32 v{vT1}, v{vLA}, v{vONE} offset:{off}")
        setexec(FULL)
    def draw(isv):
        skip = a.label("nodraw")
        a(f"v_readfirstlane_b32 s{sCL}, v{vT1}\ns_cmp_lg_u32 s{sCL}, 0\ns_cbranch_scc1 {skip}")
        claim(4 * isv)
        a(f"{skip}:")
    def decode(isv, invalid):
        nopost, again, retry, skip = a.label("nopost"), a.label("again"), a.label("retry"), a.label("lastone")
        a(f"s_cmp_lg_u32 s{sCL}, 0\ns_cbranch_scc1 {nopost}\nv_add_u32 v{vTK}, 1, v{vTK}")
        setexec(1)
        a(f"ds_write_b32 v{vLA}, v{vTK} offset:4")
        a(f"{nopost}:")
        arrive(8)
        a(f"{again}:\nds_read_b32 v{vT0}, v{vLA} offset:4\ns_waitcnt lgkmcnt(0)\nv_readfirstlane_b32 s{sIT}, v{vT0}")
        a(f"s_sub_u32 s{sIT}, s{sIT}, 1\ns_cbranch_scc1 {retry}")
        late_blocks.append(lambda: (a(f"{retry}:"), spin_guard(again)))
        a(f"v_add_u32 v{vLA}, 8, v{vLA}\ns_cmp_ge_u32 s{sIT}, {NP}\ns_cbranch_scc1 {invalid}")
        if isv:
            a(f"s_lshl_b32 s{sSCA}, s{sIT}, 7\ns_add_u32 s{sSCA}, s{sSCA}, s{sSC}")
            sc_load()
        a(f"s_lshl_b32 s{sTK}, s{sIT}, 1\ns_add_u32 s{sTK}, s{sTK}, {7*NU}\ns_mov_b32 s{sINC}, 1")
        a(f"v_mov_b32 v{vTK}, 64\ns_mov_b32 s{sCL}, 0\ns_cmp_ge_u32 s{sIT}, {NP - 1}\ns_cbranch_scc1 {skip}")
        draw(isv)
        a(f"{skip}:")
    def out_of(isv):
        if isv: a(f"s_mov_b32 s{sBASE}, {128*MB}")
        else:
            use(True)
            a(f"s_lshl_b32 s{sTK}, s{sP}, {PAIR}\ns_mov_b32 s{sINC}, {inc(3)}\nv_add_u32 v{vLA}, 8, v{vLA}")
    def next_unit(n, isv, static):
        if n % 8 == 3:
            a(f"s_add_u32 s{sTK}, s{sTK}, s{sINC}")
        else:
            rare, back, done, gone = a.label("rare"), a.label("back"), a.label("done"), a.label("gone")
            if static:
                a(f"s_cmp_le_u32 s{sCNT}, 2\ns_cbranch_scc1 {rare}\n{back}:")
                advance(n)
            else: decode(isv, gone)
            a(f"{done}:")
            def block():
                if static:
                    last = a.label("last")
                    a(f"{rare}:\ns_cmp_eq_u32 s{sCNT}, 1\ns_cbranch_scc1 {last}")
                    if "solo" in ABL and not isv: a(f"v_mov_b32 v{vTK}, 64\ns_mov_b32 s{sCL}, 0\ns_cmp_lg_u32 s{sP}, 3\ns_cbranch_scc1 {back}")
                    arrive(0)
                    a("s_waitcnt lgkmcnt(0)")
                    draw(isv)
                    a(f"s_branch {back}\n{last}:")
                    decode(isv, gone)
                    a(f"s_branch {done}")
                a(f"{gone}:")
                out_of(isv)
                a(f"s_branch {done}")
            late_blocks.append(block)
        unit_addr(sU0)
    a("L_bloop:")
    for r in range(8):
        n = r + D
        a(f"s_waitcnt vmcnt({D-1})")
        s_load_(n % 8, n % 4, "loop")
        k_mfma(r, r)
        if n % 4 == 3: next_unit(n, 0, True)
        if r % 4 == 1: k_post(r // 4 + 1, 256 * (r // 4))
    a(f"v_add_u32 v{vSA}, 512, v{vSA}")
    a(f"s_sub_u32 s{sCNT}, s{sCNT}, 1\ns_cmp_lg_u32 s{sCNT}, 0\ns_cbranch_scc1 L_bloop")
    xc_fetch(vQ)
    k_post(1, 0)
    a(f"v_mov_b32 v{vP}, 0xff7f0000\nds_write_b32 v{vSA}, v{vP} offset:256")
    a(f"s_lshl_b32 s{sT2}, s{sW}, 14\ns_add_u32 s{sT2}, s{sT2}, {LDS_S}\nv_lshl_add_u32 v{vSA}, v{vL}, 2, s{sT2}")
    a(f"ds_read_b32 v{vSN}, v{vSA}\nds_read_b32 v{vSN+1}, v{vSA} offset:256")
    a(f"v_mul_f32 v{vMX}, s{sC}, v{vMX}")
    allmax(vMX)
    a(f"v_mov_b32 v{vMC}, v{vU0}\ns_mov_b32 s{sCNT}, {NU // 2}")
    def p_next(i):
        a(f"s_waitcnt lgkmcnt(1)\nv_fma_f32 v{vP}, v{vSN+i}, s{sC}, -v{vMC}\nv_exp_f32 v{vP}, v{vP}")
        a(f"ds_read_b32 v{vSN+i}, v{vSA} offset:{512 + 256*i}")
        a(f"v_cvt_pk_bf16_f32 v{vPN+i}, v{vP}, v{vP}\nv_add_f32 v{vLS}, v{vLS}, v{vP}")
    p_next(0)
    stamp(8)
    a(f"v_and_b32 v{vMX}, 1, v{vL}\nv_lshl_add_u32 v{vMX}, v{vMX}, 2, v{vOSC}\ns_mov_b32 vcc_lo, 0xaaaaaaaa\ns_mov_b32 vcc_hi, 0xaaaaaaaa")
    a(f"s_cmp_ge_u32 s{sIT}, {NP}\ns_cbranch_scc1 L_kdone")
    a("L_kdyn:")
    a(f"s_lshl_b32 s{sSCA}, s{sIT}, 7\ns_add_u32 s{sSCA}, s{sSCA}, s{sSC}")
    for r in range(8):
        n = r + D
        a(f"s_waitcnt vmcnt({D - 1})")
        s_load_(n % 8, n % 4, "loop")
        k_mfma(r, r)
        if n % 4 == 3: next_unit(n, 0, False)
        if r == 5: quadsum(vP, vS, vU0)
    quadsum(vSC, vS2, vU0)
    a(f"v_cndmask_b32 v{vP}, v{vP}, v{vSC}, vcc")
    tag([vP])
    setexec(0x3333333333333333)
    a(f"buffer_store_dword v{vP}, v{vMX}, {R(rDBG if 'SCst' in ABL else rWS)}, s{sSCA} offen sc1")
    setexec(FULL)
    a(f"s_cmp_lt_u32 s{sIT}, {NP}\ns_cbranch_scc1 L_kdyn")
    a("L_kdone:")
    stamp(5)
    for n in range(D, DV):
        s_load_(n, n % 4, "loop")
        assert n % 4 != 3
    def v_ands(r):
        for q in range(4):
            a(f"v_and_b32_dpp v{vPB+8+4*(r&1)+q}, v{vPN + (r >> 2)}, v{vMASK+q} row_newbcast:{4*(r&3)} {DPP}")
    def v_mfma(r):
        a(f"v_mfma_f32_16x16x32_bf16 {V(vO,4)}, {slot(r)}, {V(vPB+8+4*(r&1),4)}, {V(vO,4)}")
    a("L_vloop:")
    for r in range(8):
        n = r + DV
        v_ands(r)
        a(f"s_waitcnt vmcnt({DV-1})")
        s_load_(n % 8, n % 4, "loop")
        v_mfma(r)
        if n % 4 == 3: next_unit(n, 1, True)
        if r == 1: p_next(1)
        if r == 5:
            a(f"v_add_u32 v{vSA}, 512, v{vSA}")
            p_next(0)
    a(f"s_sub_u32 s{sCNT}, s{sCNT}, 1\ns_cmp_lg_u32 s{sCNT}, 0\ns_cbranch_scc1 L_vloop")
    stamp(6)
    for n in range(DV, 7): s_load_(n, n % 4, "loop")
    xc_check(vQ)
    a(f"s_cmp_ge_u32 s{sIT}, {NP}\ns_cbranch_scc1 L_none")
    a("L_vdyn:")
    for r in range(8):
        n = r + 7
        if r: v_ands(r)
        a(f"s_waitcnt vmcnt({7 if r else 6})")
        s_load_(n % 8, n % 4, "loop")
        if r == 0:
            a("L_sccheck:")
            untag([vSL, vSL+1], vT0)
            a(f"v_fma_f32 v{vP}, v{vSL}, s{sC}, -v{vMC}\nv_fma_f32 v{vSC}, v{vSL+1}, s{sC}, -v{vMC}")
            if not {"SCst", "SCld"} & set(ABL): a("s_cbranch_vccnz L_scretry")
            a(f"v_max_f32 v{vU0}, v{vP}, v{vSC}\nv_cmp_lt_f32 vcc, 0, v{vU0}\ns_cbranch_vccnz L_newmax\nL_oldmax:")
            a(f"v_exp_f32 v{vP}, v{vP}\nv_exp_f32 v{vSC}, v{vSC}")
            a(f"v_cvt_pk_bf16_f32 v{vPN}, v{vP}, v{vP}\nv_add_f32 v{vLS}, v{vLS}, v{vP}")
            a(f"v_cvt_pk_bf16_f32 v{vPN+1}, v{vSC}, v{vSC}\nv_add_f32 v{vLS}, v{vLS}, v{vSC}")
            decode(1, "L_last")
            unit_addr(sU0)
            v_ands(0)
        v_mfma(r)
        if n % 8 == 3: next_unit(n, 1, False)
    a("s_branch L_vdyn")
    a("L_scretry:")
    sc_load()
    a("s_waitcnt vmcnt(0)")
    spin_guard("L_sccheck")
    a("L_newmax:")
    a(f"v_max_f32 v{vP}, v{vSL}, v{vSL+1}\nv_mul_f32 v{vP}, s{sC}, v{vP}")
    allmax(vP)
    a(f"v_max_f32 v{vU0}, v{vU0}, v{vMC}")
    a(f"v_sub_f32 v{vU1}, v{vMC}, v{vU0}\nv_exp_f32 v{vU1}, v{vU1}\nv_mov_b32 v{vMC}, v{vU0}")
    a(f"v_fma_f32 v{vP}, v{vSL}, s{sC}, -v{vMC}\nv_fma_f32 v{vSC}, v{vSL+1}, s{sC}, -v{vMC}")
    a(f"v_mul_f32 v{vLS}, v{vLS}, v{vU1}")
    for r in range(4):
        a(f"v_mul_f32 v{vO+r}, v{vO+r}, v{vU1}")
    a("s_branch L_oldmax")
    while late_blocks: late_blocks.pop(0)()
    def cx_load():
        a.vm(f"buffer_load_dwordx4 {V(vGS2,4)}, v{vCL}, {R(rWS)}, s{sCXO} offen sc1", "CX")
    def wrap_up():
        cx_load()
        if NFA != NFB: a(f"s_mov_b32 s{sU1}, s{sFO}\ns_bitcmp1_b32 s{sS}, 2\ns_cselect_b32 s{sFO}, {4*MB}, s{sFO}")
    def stats():
        a(f"v_add_f32_dpp v{vLS}, v{vLS}, v{vLS} row_ror:8 {DPP}")
        a(f"v_add_f32_dpp v{vLS}, v{vLS}, v{vLS} row_ror:4 {DPP}")
        a(f"v_mov_b32 v{vU1}, v{vLS}")
        a(f"v_permlane16_swap_b32 v{vLS}, v{vU1}\nv_add_f32 v{vLS}, v{vLS}, v{vU1}\nv_mov_b32 v{vU1}, v{vLS}")
        a(f"v_permlane32_swap_b32 v{vLS}, v{vU1}\nv_add_f32 v{vLS}, v{vLS}, v{vU1}")
        a(f"v_and_b32 v{vU1}, s{sHI24}, v{vMC}\nv_sub_f32 v{vU1}, v{vMC}, v{vU1}")
        a(f"s_mov_b32 vcc_lo, 0xff00ff00\ns_mov_b32 vcc_hi, 0xff00ff00")
    a("L_none:")
    wrap_up()
    for n in range(NFB): fin_dma(n, vFD)
    stats()
    a("s_branch L_bdone")
    a("L_last:")
    a.q = [f"R{r}" for r in range(1, 8)]
    wrap_up()
    for r in range(8):
        v_ands(r)
        if r: a.wait(f"R{r}")
        if r >= 8 - NFB: fin_dma(r - 8 + NFB, vFD)
        v_mfma(r)
        if r == 1: stats()
    a("L_bdone:")
    a(f"v_cndmask_b32 v{vO}, v{vO}, v{vMC}, vcc\nv_cndmask_b32 v{vO+1}, v{vO+1}, v{vLS}, vcc\nv_cndmask_b32 v{vO+2}, v{vO+2}, v{vU1}, vcc")
    tag([vO+3, vO, vO+1, vO+2])
    setexec(0x00ff00ff00ff01ff)
    a.vm(f"buffer_store_dwordx4 {V(vO,4)}, v{vOP}, {R(rWS)}, s{sMSG} offen sc1", "OPst")
    setexec(FULL)
    tsoft(0)
    stamp(4)
    a(f"s_bitcmp1_b32 s{sS}, 2\ns_cbranch_scc1 L_ctx")
    vFA, vFB, vOO = vSC, vP, 104
    assert NFA in (0, NFB)
    def m_round():
        for i in (3, 0, 1, 2):
            a(f"buffer_load_dwordx4 {V(vMS+4*i,4)}, v{vPA+i}, {R(rWS)}, s{sMB} offen sc1")
    if PFIRST: m_round()
    for n in range(NFB, 8): fin_dma(n, vFD)
    if not PFIRST: m_round()
    for r in range(4): a(f"v_xor_b32 v{vOO+r}, s{sTAG}, v{vO+r}")
    a(f"v_mov_b32 v{vT1}, 0xff7f0000\nv_cndmask_b32 v{vMC}, v{vMC}, v{vT1}, vcc\nv_and_b32 v{vLS}, s{sHI24}, v{vLS}")
    a(f"s_mov_b32 s{sU0+1}, 0x88888888\ns_mov_b32 s{sU0+2}, 0x88888888")
    a(f"s_waitcnt vmcnt({8 - NFB if PFIRST else 0})\nL_hop1poll:")
    untag(list(range(vMS, vMS+16)), vT0)
    a(f"v_add_f32 v{vFA}, v{vMS+12}, v{vMS+14}")
    a("s_cbranch_vccz L_hop1ok")
    m_round()
    a("s_waitcnt vmcnt(0)")
    spin_guard("L_hop1poll")
    a("L_ctx:")
    if NFA != NFB: a(f"s_mov_b32 s{sFO}, s{sU1}")
    for n in range(NFA, 8): fin_dma(n, vFD)
    a(f"s_waitcnt vmcnt({1 + 8 - NFA})")
    a("L_ctxcheck:")
    untag(list(range(vGS2, vGS2+4)), vT0)
    a("s_cbranch_vccz L_ctxok")
    cx_load()
    a("s_waitcnt vmcnt(0)")
    spin_guard("L_ctxcheck")
    a("L_ctxok:")
    a(f"v_cvt_pk_bf16_f32 v{vGS2}, v{vGS2}, v{vGS2+1}\nv_cvt_pk_bf16_f32 v{vGS2+1}, v{vGS2+2}, v{vGS2+3}")
    a(f"ds_write_b64 v{vRO}, {V(vGS2,2)}\ns_branch L_final")
    a("L_hop1ok:")
    tsoft(1)
    mk3 = f"s[{sU0+1}:{sU0+2}]"
    a(f"v_cndmask_b32 v{vFA}, v{vFA}, v{vMC}, {mk3}\nv_cndmask_b32 v{vFB}, v{vMS+13}, v{vLS}, {mk3}")
    steps = ("quad_perm:[1,0,3,2]", "quad_perm:[2,3,0,1]", "row_ror:8")
    for n, st_ in enumerate(steps):
        x = vT1 if n else vFA
        a(f"v_max_f32_dpp v{vT1}, v{x}, v{x} {st_} {DPP}")
    a(f"v_sub_f32 v{vFA}, v{vFA}, v{vT1}\nv_exp_f32 v{vFA}, v{vFA}\nv_mul_f32 v{vFB}, v{vFB}, v{vFA}")
    for i in (3, 0, 1, 2):
        if i < 3: a(f"v_add_f32_dpp v{vFB}, v{vFB}, v{vFB} {steps[i]} {DPP}")
        for r in range(4):
            if i == 3: a(f"v_mul_f32_dpp v{vOO+r}, v{vFA}, v{vOO+r} quad_perm:[3,3,3,3] {DPP}")
            else: a(f"v_fmac_f32_dpp v{vOO+r}, v{vFA}, v{vMS+4*i+r} quad_perm:[{i},{i},{i},{i}] {DPP}")
    a(f"v_rcp_f32 v{vFB}, v{vFB}")
    for r in range(4):
        a(f"v_add_f32_dpp v{vOO+r}, v{vOO+r}, v{vOO+r} row_ror:8 {DPP}")
    for r in range(4):
        a(f"v_mul_f32 v{vOO+r}, v{vOO+r}, v{vFB}")
    a(f"v_cvt_pk_bf16_f32 v{vOO}, v{vOO}, v{vOO+1}\nv_cvt_pk_bf16_f32 v{vOO+2}, v{vOO+2}, v{vOO+3}")
    setexec(0x00ff00ff00ff00ff)
    a(f"ds_write_b16 v{vAW}, v{vOO}\nds_write_b16_d16_hi v{vAW}, v{vOO} offset:16")
    a(f"ds_write_b16 v{vAW}, v{vOO+2} offset:32\nds_write_b16_d16_hi v{vAW}, v{vOO+2} offset:48")
    setexec(FULL)
    a("L_final:")
    a("s_waitcnt vmcnt(0) lgkmcnt(0)\ns_barrier")
    tsoft(2)
    def f_reads(i):
        u, k = i >> 2, i & 3
        for pi in range(2):
            a(f"ds_read_b64_tr_b16 {V(vWT+4*i+2*pi,2)}, v{vFT+2*u+pi} offset:{8192*k+1024*pi}")
        a(f"ds_read_b128 {V(vBU+4*i,4)}, v{vAO+u} offset:{64*k}")
    for i in range(4): f_reads(i)
    for i in range(8):
        if i + 4 < 8: f_reads(i + 4)
        a(f"s_waitcnt lgkmcnt({3 * min(4, 7 - i)})")
        a(f"v_mfma_f32_16x16x32_bf16 {V(vY,4)}, {V(vWT+4*i,4)}, {V(vBU+4*i,4)}, {V(vY,4) if i else '0'}")
    a(f"s_add_u32 s{sT1}, s{sYG}, 4096\ns_cmp_eq_u32 s{sLOC}, 1")
    setexec(0x00ff00ff00ff00ff)
    tag(range(vY, vY+4))
    a("s_cbranch_scc1 L_ylocal")
    a(f"buffer_store_dwordx4 {V(vY,4)}, v{vAY}, {R(rWS)}, s{sYS} offen sc1\ns_branch L_ydone")
    a(f"L_ylocal:\nbuffer_store_dwordx4 {V(vY,4)}, v{vAY}, {R(rWS)}, s{sYS} offen\nL_ydone:")
    setexec(FULL)
    tsoft(3)
    stamp(11)
    a(f"s_cmp_lg_u32 s{sW}, 0\ns_cbranch_scc1 L_done")
    a("L_hop2:")
    for i in range(2):
        a(f"buffer_load_dwordx4 {V(vGS2+4*i,4)}, v{vAG}, {R(rWS)}, s{sT1 if i else sYG} offen sc1")
    a("s_waitcnt vmcnt(0)")
    untag(list(range(vGS2, vGS2+8)), vT0)
    for r in range(4):
        a(f"v_add_f32 v{vG2+r}, v{vGS2+r}, v{vGS2+4+r}")
    a("s_cbranch_vccz L_hop2ok")
    spin_guard("L_hop2")
    a("L_hop2ok:")
    tsoft(4)
    a(f"v_permlane16_swap_b32 v{vG2}, v{vG2+1}\nv_permlane16_swap_b32 v{vG2+2}, v{vG2+3}")
    a(f"v_add_f32 v{vG2}, v{vG2}, v{vG2+1}\nv_add_f32 v{vG2+2}, v{vG2+2}, v{vG2+3}")
    a(f"v_permlane32_swap_b32 v{vG2}, v{vG2+2}\nv_add_f32 v{vG2}, v{vG2}, v{vG2+2}")
    a(f"v_add_f32_dpp v{vG2}, v{vG2}, v{vG2} row_ror:8 {DPP}\nv_add_f32_dpp v{vG2}, v{vG2}, v{vG2} row_ror:4 {DPP}")
    a(f"v_cvt_pk_bf16_f32 v{vG2}, v{vG2}, v{vG2}")
    setexec(0x000f000f000f000f)
    a(f"buffer_store_short v{vG2}, v{vAF}, {R(rOUT)}, 0 offen")
    tsoft(5)
    stamp(13)
    a(f"s_cmp_lg_u32 s2, {9 if CLS == 2 else 0}\ns_cbranch_scc1 L_done\nv_mov_b32 v{vT0}, 0")
    setexec(1)
    a(f"buffer_store_dword v{vTAG}, v{vT0}, {R(rWS)}, 0 offen")
    a("L_done:")
    stamp(14)
    probe_end()
    tflush()
    a("L_end:\ns_endpgm")

    a("L_qp:")
    a.q = []
    a(f"v_lshlrev_b32 v{vT0}, 18, v{vG}\nv_lshl_add_u32 v{vOW}, v{vJ}, 4, v{vT0}")
    a(f"v_lshrrev_b32 v{vT1}, 3, v{vJ}\nv_lshlrev_b32 v{vT1}, 10, v{vT1}\nv_lshl_add_u32 v{vOX}, v{vG}, 6, v{vT1}")
    a(f"s_cmp_eq_u32 s{sP}, 0\ns_cselect_b32 s{sHJ}, {XQ[0]}, {XQ[1]}\ns_xor_b32 s{sHJ}, s{sHJ}, s{sH}")
    a(f"s_lshl_b32 s{sU1}, s{sW}, 8\ns_lshl_b32 s{sWO}, s{sW}, 20\ns_lshl_b32 s{sT2}, s{sHJ}, 8\ns_add_u32 s{sWO}, s{sWO}, s{sT2}")
    a(f"s_mov_b32 s{rW+2}, {4*MB}\ns_mov_b32 s{rW+3}, 0x20000\ns_mov_b32 s{rX+2}, 4096\ns_mov_b32 s{rX+3}, 0x20000")
    a(f"s_cmp_eq_u32 s{sP}, 0\ns_waitcnt lgkmcnt(0)")
    a(f"s_cselect_b64 s[{rW}:{rW+1}], s[{pBWQ}:{pBWQ+1}], s[{pAWQ}:{pAWQ+1}]\ns_cselect_b64 s[{rX}:{rX+1}], s[{pBX}:{pBX+1}], s[{pAX}:{pAX+1}]")
    def w_load(t):
        a.vm(f"buffer_load_dwordx4 {A(A1+4*t,4)}, v{vOW}, {R(rW)}, s{sWO} offen nt", f"W{t}")
        a(f"s_add_u32 s{sWO}, s{sWO}, 8192")
    def x_load(i):
        for u in range(2):
            a.vm(f"buffer_load_dwordx4 {V(vX+16*u+4*i,4)}, v{vOX}, {R(rX)}, s{sU1} offen offset:{2048*u+16*i}", f"X{i}")
    soft(0)
    w_load(0); w_load(1); x_load(0)
    for t in range(2, 8): w_load(t)
    consts(); masks()
    for i in range(1, 4): x_load(i)
    saddr(sT0, WS_CT, (sHJ, 0, 0, 10), (sHJ, 3, 0, 8), (sW, 0, 0, 23))
    a(f"v_mov_b32 v{vONE}, 0\nv_mov_b32 v{vTK}, 0\ns_cmp_eq_u32 s{sP}, 0\ns_cselect_b32 s{sT2}, s{sT0}, {WS_SIZE}")
    setexec(1)
    a.vm(f"buffer_store_dwordx2 {V(vONE,2)}, v{vTK}, {R(rWS)}, s{sT2} offen sc1", "INIT")
    setexec(FULL)
    st = Start(PUJ)
    for t in range(8, DJ): w_load(t)
    todo = [lambda t=t: w_load(t) for t in range(DJ, 32)] + [lambda: None] * (DJ - DP) + [st.load] * DP
    late = {4: kv_setup, 8: lambda: (srd(rK, pK, 128*MB), srd(rV, pV, 128*MB)), 12: kv_late}
    a(f"s_mov_b32 s{sSELLO}, 0x01000100\ns_mov_b32 s{sSELHI}, 0x03020302")
    for t in range(32):
        if f"X{t//8}" in a.q: a.wait(f"X{t//8}")
        if t == 0: soft(1); soft_flush()
        if f"W{t}" in a.q: a.wait(f"W{t}")
        todo.pop(0)()
        if t in late: late[t]()
        for u in range(2):
            x = vX + 16*u + (t >> 1)
            a(f"v_perm_b32 v{vT0+u}, v{x}, v{x}, s{sSELHI if t & 1 else sSELLO}")
        for u in range(2):
            for r in range(4):
                a(f"v_and_b32 v{vB+4*u+r}, v{vT0+u}, v{vMASK+r}")
        for u in range(2):
            c = V(vACC+4*u, 4) if t else "0"
            a(f"v_mfma_f32_16x16x32_bf16 {V(vACC+4*u,4)}, {A(A1+4*t,4)}, {V(vB+4*u,4)}, {c}")
    a(f"s_lshl_b32 s{sT2}, s{sW}, 11")
    a(f"v_lshrrev_b32 v{vT0}, 3, v{vJ}\nv_lshlrev_b32 v{vT0}, 9, v{vT0}\nv_lshl_add_u32 v{vT0}, v{vG}, 7, v{vT0}")
    a(f"v_and_b32 v{vT1}, 7, v{vJ}\nv_lshl_add_u32 v{vT0}, v{vT1}, 2, v{vT0}\nv_add_u32 v{vT0}, s{sT2}, v{vT0}")
    for u in range(2):
        for r in range(4):
            a(f"ds_write_b32 v{vT0}, v{vACC+4*u+r} offset:{u*1024+r*32}")
    a(f"s_lshl_b32 s{sT2}, s{sW}, 9\nv_and_b32 v{vT1}, 31, v{vL}\nv_lshl_add_u32 v{vT1}, v{vT1}, 4, s{sT2}")
    take_tag()
    a("s_barrier")
    for p in range(4):
        a(f"ds_read_b128 {V(vX+4*p,4)}, v{vT1} offset:{p*2048}")
    saddr(sT0, WS_QP, (sHJ, 0, 0, 12), (sP, 0, 0, 11))
    a("s_waitcnt lgkmcnt(0)")
    for r in range(4):
        a(f"v_add_f32 v{vX+r}, v{vX+r}, v{vX+4+r}\nv_add_f32 v{vX+8+r}, v{vX+8+r}, v{vX+12+r}")
    for r in range(4):
        a(f"v_add_f32 v{vX+r}, v{vX+r}, v{vX+8+r}")
    tag_bf16(range(vX, vX+4))
    assert "INIT" not in a.q
    setexec(0xffffffff)
    a.vm(f"buffer_store_dwordx4 {V(vX,4)}, v{vT1}, {R(rWS)}, s{sT0} offen sc1", "QPst")
    setexec(FULL)
    stamp(1)
    st.until_q(POLLQ)
    st.finish()
    a("s_branch L_bloop")

    a("L_ql:")
    a.q = []
    vOU, vOA, vOL, sUK, sQA, sQL = vOW, vOX, vTK, sWO, sCKO, sSLOT
    vQA, vD, vPK, vR = 20, 28, 44, 60
    a(f"v_lshrrev_b32 v{vT0}, 2, v{vJ}\nv_and_b32 v{vT1}, 3, v{vJ}")
    a(f"v_lshlrev_b32 v{vOL}, 6, v{vG}\nv_lshl_add_u32 v{vOL}, v{vT1}, 4, v{vOL}\nv_lshl_add_u32 v{vOU}, v{vT0}, 18, v{vOL}")
    sHU, sWU = sHJ, sC2
    a(f"s_and_b32 s{sHU}, s{sH}, 28\ns_add_u32 s{sHU}, s{sHU}, s{sW}\ns_and_b32 s{sWU}, s{sH}, 3")
    saddr(sUK, 0, (sWU, 0, 0, 20), (sHU, 0, 0, 8))
    a(f"s_mov_b32 s{rUK+2}, {4*MB}\ns_mov_b32 s{rUK+3}, 0x20000\ns_waitcnt lgkmcnt(0)\ns_mov_b64 s[{rUK}:{rUK+1}], s[{pUK}:{pUK+1}]")
    def uk_load(t):
        if f"UK{t-DJ}" in a.q: a.wait(f"UK{t-DJ}")
        a.vm(f"buffer_load_dwordx4 {A(A1+4*t,4)}, v{vOU}, {R(rUK)}, s{sUK} offen nt", f"UK{t}")
        a(f"s_add_u32 s{sUK}, s{sUK}, 8192")
    soft(0)
    for t in range(8): uk_load(t)
    a(f"v_lshlrev_b32 v{vOA}, 1, v{vOL}\nv_lshl_add_u32 v{vOA}, v{vT0}, 9, v{vOA}")
    a(f"v_lshl_add_u32 v{vOL}, v{vT0}, 15, v{vOL}")
    consts()
    soft(1); soft_flush()
    saddr(sQA, WS_QP + 2048, (sHU, 0, 0, 12))
    saddr(sQL, WS_QL, (sHU, 0, 0, 10), (sWU, 0, 0, 8))
    late = {12: masks, 16: kv_setup, 20: lambda: (srd(rK, pK, 128*MB), srd(rV, pV, 128*MB)), 24: kv_late}
    for t in range(8, 32):
        uk_load(t)
        if t in late: late[t]()
    take_tag(True)
    st = Start(PUJ)
    for t in range(32 - DP, 32):
        a.wait(f"UK{t}"); st.load()
    def qa_poll():
        for i in range(2):
            a.vm(f"buffer_load_dwordx4 {V(vQA+4*i,4)}, v{vOA}, {R(rWS)}, s{sQA} offen offset:{16*i} sc1", "QA")
    while st.n < POLLU: st.paced(DP)
    qa_poll()
    while st.n < POLLU + DP - 1: st.paced(DP)
    a.wait("QA")
    chk, ok = a.label("qacheck"), a.label("qaok")
    a(f"{chk}:")
    untag(list(range(vQA, vQA+8)), vT0)
    a(f"s_cbranch_vccz {ok}" if not ({"QPst", "Q"} & set(ABL)) else f"s_branch {ok}")
    saved = list(a.q)
    qa_poll()
    a("s_waitcnt vmcnt(0)")
    spin_guard(chk)
    a.q = saved
    a(f"{ok}:")
    q_poll()
    for r in range(4):
        a(f"v_cvt_pk_bf16_f32 v{vQA+r}, v{vQA+2*r}, v{vQA+2*r+1}")
    def fold(t):
        quadsum(vR + (t & 1), vD + 4*(t % 4), vT0)
        if t & 1: a(f"v_cvt_pk_bf16_f32 v{vPK+t//2}, v{vR}, v{vR+1}")
    for t in range(32):
        a(f"v_mfma_f32_16x16x32_bf16 {V(vD+4*(t%4),4)}, {A(A1+4*t,4)}, {V(vQA,4)}, 0")
        if t >= 2: fold(t - 2)
        if t % 8 == 4 and st.n < 8*PUJ: st.load()
    fold(30); fold(31)
    for q in range(1, 4):
        setexec(0x1111111111111111 << q)
        for r in range(4):
            a(f"v_mov_b32 v{vPK+r}, v{vPK+4*q+r}")
    setexec(FULL)
    a.vm(f"buffer_store_dwordx4 {V(vPK,4)}, v{vOL}, {R(rWS)}, s{sQL} offen sc1", "QLst")
    stamp(1)
    done = []
    def sig(c):
        if not done and ("QLst" not in a.q or c == 15):
            done.append(c); signal("QLst", WS_F1, 48)
    st.finish(sig)
    a("s_branch L_bloop")

    a("L_aux:")
    role[0] = "A"
    a.q = []
    vOR1 = 9
    vOC, vOC8 = 76, 10
    vAQ, vAD = 60, 82
    vM, vLL, vAL, vEX = 90, 91, 92, 94
    vWR, vZ, vL2 = 96, 100, 102
    vQL, vPP, vCT, vKQ, vSS = 36, 52, 104, 136, 200
    vE1, vE2 = vKQ, vKQ + 16
    aKA = A0
    vTA = 136
    sHH = sSLOT
    a(f"v_lshlrev_b32 v{vT0}, 2, v{vG}\nv_xor_b32 v{vT0}, v{vT0}, v{vJ}")
    for i in range(4):
        a(f"v_xor_b32 v{vWR+i}, {i}, v{vT0}\nv_lshlrev_b32 v{vWR+i}, 4, v{vWR+i}\nv_lshl_add_u32 v{vOC8+i}, v{vG}, 13, v{vWR+i}")
        if i: a(f"v_add_u32 v{vOC8+i}, {i*(32768-1024)}, v{vOC8+i}")
    a(f"s_lshl_b32 s{sM0}, s{sW}, 15\ns_mov_b32 s{sFILL}, 0")
    saddr(sCKO, 0, (sW, 0, 0, 20), (sH, 0, 0, 8))
    a("s_waitcnt lgkmcnt(0)")
    srd(rCK, pUV, 4*MB)
    def ck_one(n, tg, offs=vOC, step=16384):
        if n % 4 == 0:
            a(f"s_add_u32 s{sT3}, s{sM0}, s{sFILL}\ns_mov_b32 m0, s{sT3}")
            a(f"s_add_u32 s{sFILL}, s{sFILL}, 4096\ns_and_b32 s{sFILL}, s{sFILL}, 0x7fff")
        a.vm(f"buffer_load_dwordx4 v{offs+n%4}, {R(rCK)}, s{sCKO} offen offset:{(n%4)*1024} nt lds", tg)
        if n % 4 == 3:
            a(f"s_add_u32 s{sCKO}, s{sCKO}, {step}")
    soft(0)
    for n in range(8): ck_one(n, "UV0", vOC8, 16*8192)
    consts()
    if "noaux" in ABL: a("s_endpgm")
    for i in range(4):
        a(f"v_lshl_add_u32 v{vOC+i}, v{vG}, 10, v{vWR+i}\nv_lshl_add_u32 v{vWR+i}, v{vG}, 8, v{vWR+i}")
        if i: a(f"v_add_u32 v{vOC+i}, {i*3072}, v{vOC+i}")
    vaddr(vZ+1, vZ, (vL, 0, 5, 8))
    vaddr(vOR1, vT0, (vJ, 0, 0, 4), (vG, 0, 0, 10))
    a(f"v_xor_b32 v{vT1}, v{vJ}, v{vG}")
    vaddr(vT2, vT0, (vJ, 2, 1, 11), (vJ, 3, 1, 10), (vJ, 0, 2, 8), (vT1, 0, 2, 6), (vJ, 2, 1, 5), (vJ, 3, 1, 4))
    a(f"v_add_u32 v{vAQ}, s{sM0}, v{vT2}")
    for k in range(1, 4): a(f"v_xor_b32 v{vAQ+k}, {16*k}, v{vAQ}")
    a(f"v_lshrrev_b32 v{vT1}, 4, v{vL}\nv_xor_b32 v{vT1}, v{vT1}, v{vL}")
    vaddr(vT2, vT0, (vL, 4, 1, 11), (vL, 5, 1, 10), (vL, 2, 2, 8), (vL, 2, 2, 6), (vL, 4, 1, 5), (vT1, 1, 1, 4), (vL, 0, 1, 3))
    a(f"v_add_u32 v{vAD}, s{sM0}, v{vT2}")
    for k in range(1, 8): a(f"v_xor_b32 v{vAD+k}, {32*k}, v{vAD}")
    vaddr(vT2, vT0, (vG, 0, 0, 11), (vL, 2, 2, 8), (vL, 2, 2, 6), (vL, 4, 1, 5), (vL, 1, 1, 4), (vL, 0, 1, 3))
    a(f"v_add_u32 v{vTA}, s{sM0}, v{vT2}")
    for i in range(1, 16): a(f"v_xor_b32 v{vTA+i}, {16*i}, v{vTA}")
    a(f"s_lshl_b32 s{sU0}, s{sW}, 13\ns_add_u32 s{sU0}, s{sU0}, {LDS_EX}\nv_lshl_add_u32 v{vEX}, v{vL}, 4, s{sU0}")
    for i in range(4):
        a(f"v_add_u32 v{vWR+i}, s{sU0}, v{vWR+i}")
    soft(1); soft_flush()
    for k in range(1, 4):
        for n in range(8): ck_one(n, f"UV{k}", vOC8, 16*8192)
    take_tag(True)
    xc_report(vT0)
    srd(rCK, pCK, 16*MB)
    saddr(sIX, 0, (sH, 0, 3, 1), (sH, 4, 0, 0))
    a(f"s_bfe_u32 s{sHH}, s{sH}, 0x10003")
    saddr(sCKO, 0, (sIX, 0, 0, 20), (sW, 0, 0, 8))

    def flag_load(off):
        a(f"s_mov_b32 s{sU1}, {off}")
        a.vm(f"buffer_load_dword v{vT3}, v{vZ+1}, {R(rWS)}, s{sU1} offen sc1", "FL")

    def flag_wait(off):
        a.wait("FL")
        chk, ok = a.label("fcheck"), a.label("fok")
        a(f"{chk}:\nv_cmp_ne_u32 vcc, s{sFLAG}, v{vT3}\ns_cbranch_vccz {ok}")
        saved = list(a.q)
        a(f"s_sleep {FSL}")
        flag_load(off)
        a("s_waitcnt vmcnt(0)")
        spin_guard(chk)
        a.q = saved
        a(f"{ok}:")

    N1 = 10
    for k in range(4):
        a.wait(f"UV{k}")
        for nt in range(8):
            for pi in range(2):
                a(f"ds_read_b64_tr_b16 {A(A1+16*nt+4*k+2*pi,2)}, v{vTA+2*nt+pi} offset:{8192*k+1024*pi}")
        a("s_waitcnt lgkmcnt(0)")
        for n in range(8 if k < 3 else N1 - 8): ck_one(n, f"CK{k}")
    flag_load(WS_F1)
    stamp(2)
    if "noatt" in ABL: a("s_endpgm")
    for i in range(32): a(f"v_mov_b32 v{vCT+i}, 0")
    a(f"v_mov_b32 v{vM}, 0xff7f0000\ns_mov_b32 s{sIT}, 0")
    a(f"v_mov_b32 v{vL2}, 0\nv_mov_b32 v{vL2+1}, 0\ns_mov_b32 s{sC2}, s{sC}\ns_mov_b32 s{sC2+1}, s{sC}")
    a(f"v_xor_b32 v{vT1}, v{vJ}, v{vG}")
    vaddr(vT2, vT0, (vJ, 0, 0, 8), (vT1, 0, 2, 6), (vJ, 2, 0, 4))
    a(f"v_add_u32 v{vPP}, s{sU0}, v{vT2}")
    for k in range(1, 4): a(f"v_xor_b32 v{vPP+k}, {16*k}, v{vPP}")
    saddr(sT0, WS_QL, (sIX, 2, 0, 15), (sHH, 0, 0, 14), (sW, 0, 0, 8))
    flag_wait(WS_F1)
    stamp(4)
    for i in range(4):
        a.vm(f"buffer_load_dwordx4 {V(vSS+4*i,4)}, v{vOR1}, {R(rWS)}, s{sT0} offen sc1", f"QLg{i}")
        if i < 3: a(f"s_add_u32 s{sT0}, s{sT0}, 4096")
    kq_read = lambda i: a(f"ds_read_b128 {V(vKQ+4*i,4)}, v{vAQ+(i&3)} offset:{4096*(i>>2)}")
    for i in range(16): kq_read(i)
    for i in range(4):
        a.wait(f"QLg{i}")
        a(f"ds_write_b128 v{vWR+i}, {V(vSS+4*i,4)} offset:{i*1024}")
    a("s_waitcnt lgkmcnt(0)")
    for k in range(4):
        a(f"ds_read_b128 {V(vQL+4*k,4)}, v{vPP+k}")
    stamp(5)
    a("L_att:")
    a("s_waitcnt lgkmcnt(0)")
    for i in range(16):
        T, k = i >> 2, i & 3
        a(f"v_mfma_f32_16x16x32_bf16 {V(vSS+4*T,4)}, {V(vKQ+4*i,4)}, {V(vQL+4*k,4)}, {V(vSS+4*T,4) if k else '0'}")
        sg, ct = i >> 3, i & 7
        for pi in range(2):
            a(f"ds_read_b64_tr_b16 {A(aKA+4*i+2*pi,2)}, v{vAD+ct} offset:{8192*sg+4096*pi}")
        if i in (0, 3, 6, 9, 12, 15): ck_one(N1 + i // 3, "loop")
        if i >= 7 and (i - 7) % 4 == 0: a(f"ds_write_b128 v{vEX}, {V(vSS+(i-7),4)} offset:{256*(i-7)}")
    a(f"v_xor_b32 v{vT1}, 0x2000, v{vEX}\nv_xor_b32 v{vT2}, 0x4000, v{vEX}\nv_xor_b32 v{vT3}, 0x6000, v{vEX}")
    a(f"s_cmp_eq_u32 s{sIT}, 14\ns_cselect_b32 s{sCKO}, {16*MB}, s{sCKO}")
    a(f"ds_write_b128 v{vEX}, {V(vSS+12,4)} offset:3072")
    for k in range(8): a(f"v_xor_b32 v{vAD+k}, 0x4000, v{vAD+k}")
    for k in range(4): a(f"v_xor_b32 v{vAQ+k}, 0x4000, v{vAQ+k}")
    a("s_waitcnt lgkmcnt(0)\ns_barrier")
    for q in range(4):
        a(f"ds_read_b128 {V(vE1+4*q,4)}, v{vT1} offset:{1024*q}")
        a(f"ds_read_b128 {V(vE2+4*q,4)}, v{vT2} offset:{1024*q}")
        a(f"ds_read_b128 {V(vE2+16+4*q,4)}, v{vT3} offset:{1024*q}")
    a(f"v_xor_b32 v{vEX}, 0x1000, v{vEX}")
    nf = [0]
    def fill(cnt=1):
        for _ in range(cnt):
            ck_one(nf[0], "loop"); nf[0] += 1
    fill(3)
    for q in range(4):
        a(f"s_waitcnt lgkmcnt({9-3*q})")
        for r in range(4*q, 4*q+4, 2):
            a(f"v_pk_add_f32 {V(vSS+r,2)}, {V(vSS+r,2)}, {V(vE1+r,2)}\nv_pk_add_f32 {V(vE2+r,2)}, {V(vE2+r,2)}, {V(vE2+16+r,2)}")
        for r in range(4*q, 4*q+4, 2):
            a(f"v_pk_add_f32 {V(vSS+r,2)}, {V(vSS+r,2)}, {V(vE2+r,2)}")
    fill()
    a(f"s_waitcnt vmcnt({nf[0]})")
    a(f"v_max_f32 v{vT0}, v{vSS}, v{vSS+1}")
    for r in range(2, 16, 2):
        a(f"v_max3_f32 v{vT0}, v{vT0}, v{vSS+r}, v{vSS+r+1}")
    a(f"v_mov_b32 v{vT1}, v{vT0}")
    kq_read(0); kq_read(1)
    a(f"v_permlane16_swap_b32 v{vT0}, v{vT1}\nv_max_f32 v{vT0}, v{vT0}, v{vT1}\nv_mov_b32 v{vT1}, v{vT0}")
    kq_read(2); kq_read(3)
    a(f"v_permlane32_swap_b32 v{vT0}, v{vT1}\nv_max_f32 v{vT0}, v{vT0}, v{vT1}")
    a(f"v_mul_f32 v{vT0}, s{sC}, v{vT0}\nv_max_f32 v{vT0}, v{vT0}, v{vM}")
    a(f"v_sub_f32 v{vAL}, v{vM}, v{vT0}\nv_exp_f32 v{vAL}, v{vAL}\nv_mov_b32 v{vM}, v{vT0}")
    fill()
    for r in range(0, 16, 2):
        a(f"v_pk_fma_f32 {V(vSS+r,2)}, {V(vSS+r,2)}, s[{sC2}:{sC2+1}], {V(vM,2)} op_sel_hi:[1,1,0] neg_lo:[0,0,1] neg_hi:[0,0,1]")
    for r in range(16):
        a(f"v_exp_f32 v{vSS+r}, v{vSS+r}")
        if r % 4 == 1: kq_read(4 + r // 4)
        if r == 7: fill()
    fill()
    a(f"v_pk_mul_f32 {V(vL2,2)}, {V(vL2,2)}, {V(vAL,2)} op_sel_hi:[1,0]")
    for c in range(vCT, vCT+32, 2):
        a(f"v_pk_mul_f32 {V(c,2)}, {V(c,2)}, {V(vAL,2)} op_sel_hi:[1,0]")
    fill()
    for r in range(8):
        a(f"v_cvt_pk_bf16_f32 v{vPP+r}, v{vSS+2*r}, v{vSS+2*r+1}")
        a(f"v_pk_add_f32 {V(vL2,2)}, {V(vL2,2)}, {V(vSS+2*r,2)}")
    for i in range(16):
        sg, ct = i >> 3, i & 7
        a(f"v_mfma_f32_16x16x32_bf16 {V(vCT+4*ct,4)}, {A(aKA+4*i,4)}, {V(vPP+4*sg,4)}, {V(vCT+4*ct,4)}")
        if i < 8: kq_read(8 + i)
        if i in (9, 13): fill()
    assert nf[0] == N1
    a(f"s_add_u32 s{sIT}, s{sIT}, 1\ns_cmp_lt_u32 s{sIT}, 16\ns_cbranch_scc1 L_att")
    a.q = []
    stamp(6)
    if "nopost" in ABL: a("s_endpgm")
    vPUB, vPK2 = 200, 216
    a(f"v_add_f32 v{vLL}, v{vL2}, v{vL2+1}")
    a(f"v_mov_b32 v{vT1}, v{vLL}\nv_permlane16_swap_b32 v{vLL}, v{vT1}\nv_add_f32 v{vLL}, v{vLL}, v{vT1}")
    a(f"v_mov_b32 v{vT1}, v{vLL}\nv_permlane32_swap_b32 v{vLL}, v{vT1}\nv_add_f32 v{vLL}, v{vLL}, v{vT1}")
    a(f"v_lshrrev_b32 v{vT2}, 1, v{vG}\nv_xor_b32 v{vT2}, v{vT2}, v{vJ}")
    vaddr(vT1, vT0, (vJ, 0, 0, 8), (vT2, 0, 0, 4), (vG, 0, 1, 3))
    a(f"v_add_u32 v{vT1}, s{sU0}, v{vT1}")
    a("s_waitcnt vmcnt(0) lgkmcnt(0)\ns_barrier")
    for i in range(8):
        a(f"v_cvt_pk_bf16_f32 v{vPK2+2*i}, v{vCT+4*i}, v{vCT+4*i+1}\nv_cvt_pk_bf16_f32 v{vPK2+2*i+1}, v{vCT+4*i+2}, v{vCT+4*i+3}")
        a(f"v_xor_b32 v{vAD+i}, {32*i}, v{vT1}\nds_write_b64 v{vAD+i}, {V(vPK2+2*i,2)}")
    a(f"v_xor_b32 v{vT2}, v{vJ}, v{vG}\nv_lshlrev_b32 v{vT2}, 4, v{vT2}\nv_lshl_add_u32 v{vT0}, v{vG}, 8, v{vT2}\nv_add_u32 v{vT0}, s{sU0}, v{vT0}")
    for i in range(4):
        a(f"v_xor_b32 v{vAQ+i}, {64*i}, v{vT0}")
    vaddr(vT3, vT0, (vJ, 0, 0, 4), (vG, 0, 0, 14))
    saddr(sT0, WS_CP, (sHH, 0, 0, 18), (sIX, 0, 0, 10), (sW, 0, 0, 8))
    a("s_waitcnt lgkmcnt(0)")
    for i in range(4):
        a(f"ds_read_b128 {V(vPUB+4*i,4)}, v{vAQ+i} offset:{1024*i}")
    a(f"v_lshlrev_b32 v{vT0}, 3, v{vJ}")
    saddr(sT1, WS_CS, (sIX, 0, 0, 8), (sHH, 0, 0, 7), (sW, 0, 0, 23))
    setexec(0xffff)
    a.vm(f"buffer_store_dwordx2 {V(vM,2)}, v{vT0}, {R(rWS)}, s{sT1} offen sc1", "CPst")
    setexec(FULL)
    for i in range(4):
        a(f"s_waitcnt lgkmcnt({3-i})")
        a.vm(f"buffer_store_dwordx4 {V(vPUB+4*i,4)}, v{vT3}, {R(rWS)}, s{sT0} offen sc1", "CPst")
        if i < 3: a(f"s_add_u32 s{sT0}, s{sT0}, {64*KB}")
    vCB, vSTAT, vDD = 136, 52, 104
    vGS, vRW, vRR = 81, 94, 102
    fin_scalar()
    fin_vec3()
    xc_fetch(64)
    vaddr(vGS, vT1, (vJ, 0, 2, 10), (vJ, 2, 0, 8))
    a(f"v_add3_u32 v{vAD}, v{vGS}, v{vT2}, s{sU0}")
    for k in range(1, 4): a(f"v_xor_b32 v{vAD+k}, {64*k}, v{vAD}")
    vaddr(vRW, vT1, (vJ, 0, 2, 9), (vG, 0, 0, 4))
    a(f"v_add_u32 v{vRW}, s{sU0}, v{vRW}")
    a(f"s_lshl_b32 s{sT2}, s{sW}, 9\ns_add_u32 s{sT2}, s{sT2}, {LDS_EX}\nv_add_u32 v{vRR}, s{sT2}, v{vCX}")
    saddr(sT0, WS_CP, (sH, 0, 0, 14), (sW, 0, 0, 8))
    saddr(sT1, WS_CS, (sH, 0, 0, 3))
    signal("CPst", WS_F2, vT0)
    stamp(7)
    flag_load(WS_F2)
    flag_wait(WS_F2)
    stamp(8)
    a.vm(f"buffer_load_dwordx2 {V(vSTAT,2)}, v{vGS}, {R(rWS)}, s{sT1} offen sc1", "CSg")
    for i in range(4):
        a.vm(f"buffer_load_dwordx4 {V(vPUB+4*i,4)}, v{vOR1}, {R(rWS)}, s{sT0} offen sc1", f"CPg{i}")
        if i < 3: a(f"s_add_u32 s{sT0}, s{sT0}, 4096")
    a.wait("CSg")
    a(f"v_max_f32_dpp v{vT0}, v{vSTAT}, v{vSTAT} row_ror:8 {DPP}\nv_max_f32_dpp v{vT0}, v{vT0}, v{vT0} row_ror:4 {DPP}")
    a(f"v_sub_f32 v{vSTAT}, v{vSTAT}, v{vT0}\nv_exp_f32 v{vSTAT}, v{vSTAT}\nv_mul_f32 v{vT1}, v{vSTAT}, v{vSTAT+1}")
    a(f"v_add_f32_dpp v{vT1}, v{vT1}, v{vT1} row_ror:8 {DPP}\nv_add_f32_dpp v{vT1}, v{vT1}, v{vT1} row_ror:4 {DPP}")
    a(f"v_rcp_f32 v{vT1}, v{vT1}\nv_mul_f32 v{vSTAT}, v{vSTAT}, v{vT1}")
    for i in range(4):
        a.wait(f"CPg{i}")
        a(f"ds_write_b128 v{vWR+i}, {V(vPUB+4*i,4)} offset:{i*1024}")
    a("s_waitcnt lgkmcnt(0)")
    for k in range(4):
        a(f"ds_read_b128 {V(vCB+4*k,4)}, v{vAD+k}")
    a("s_waitcnt lgkmcnt(0)")
    def ctx_fold(nt):
        d = vDD + 4*nt
        for r in range(4):
            a(f"v_mul_f32 v{d+r}, v{d+r}, v{vSTAT}")
        for ror in (8, 4):
            for r in range(4):
                a(f"v_add_f32_dpp v{d+r}, v{d+r}, v{d+r} row_ror:{ror} {DPP}")
        a(f"ds_write_b128 v{vRW}, {V(d,4)} offset:{64*nt}")
    for nt in range(8):
        d = vDD + 4*nt
        for k in range(4):
            a(f"v_mfma_f32_16x16x32_bf16 {V(d,4)}, {A(A1+16*nt+4*k,4)}, {V(vCB+4*k,4)}, {V(d,4) if k else '0'}")
        if nt >= 2: ctx_fold(nt - 2)
    ctx_fold(6); ctx_fold(7)
    a("s_waitcnt lgkmcnt(0)\ns_barrier")
    for p in range(4):
        a(f"ds_read_b128 {V(vCB+4*p,4)}, v{vRR} offset:{p*8192}")
    a("s_waitcnt lgkmcnt(0)")
    for r in range(4):
        a(f"v_add_f32 v{vCB+r}, v{vCB+r}, v{vCB+4+r}\nv_add_f32 v{vCB+8+r}, v{vCB+8+r}, v{vCB+12+r}")
    for r in range(4):
        a(f"v_add_f32 v{vCB+r}, v{vCB+r}, v{vCB+8+r}")
    tag_bf16(range(vCB, vCB+4))
    saddr(sT0, WS_CX, (sH, 0, 0, 11), (sW, 0, 0, 9))
    setexec(0xffffffff)
    a(f"buffer_store_dwordx4 {V(vCB,4)}, v{vCX}, {R(rWS)}, s{sT0} offen sc1")
    setexec(FULL)
    for r in range(4): a(f"v_xor_b32 v{vGS2+r}, s{sTAG}, v{vCB+r}")
    fin_vec2()
    xc_check(64)
    stamp(9)
    a(f"s_mov_b32 s{sB}, s{sW}")
    fin_vec1()
    msg_addr()
    a(f"s_mov_b32 s{sU0+1}, 0x88888888\ns_mov_b32 s{sU0+2}, 0x88888888\nv_mov_b32 v{vMC}, 0xff7f0000")
    assert max(THA, THB) <= 6
    saddr(sT1, WS_CT + 4, (sH, 0, 0, 10), (sH, 3, 0, 8))
    a(f"s_bitcmp1_b32 s{sS}, 2\ns_cselect_b32 s{sT0}, {NP + THA}, {NP + THB}")
    a(f"v_mov_b32 v{vT1}, 0\nL_watch:\nbuffer_load_dword v{vT2}, v{vT1}, {R(rWS)}, s{sT1} offen sc1\ns_waitcnt vmcnt(0)")
    a(f"v_cmp_le_u32 vcc, s{sT0}, v{vT2}\ns_cbranch_vccnz L_seen\ns_sleep {WSL}")
    spin_guard("L_watch")
    a("L_seen:")
    for n in range(8): fin_dma(n, vFD)
    a(f"s_bitcmp1_b32 s{sS}, 2\ns_cbranch_scc1 L_ctxok")
    cx_load()
    a(f"s_add_u32 s{sT1}, s{sMB}, {6*1024}")
    a("L_auxpoll:")
    m_round()
    a(f"buffer_load_dwordx4 {V(vOO,4)}, v{vOP}, {R(rWS)}, s{sT1} offen sc1\ns_waitcnt vmcnt(0)")
    untag(list(range(vOO, vOO+4)) + list(range(vMS, vMS+16)), vT0)
    a(f"v_add_f32 v{vFB}, v{vOO}, v{vOO+2}\nv_add_f32 v{vFA}, v{vMS+12}, v{vMS+14}")
    a(f"v_mov_b32_dpp v{vLS}, v{vOO+1} row_newbcast:8 {DPP}")
    a(f"v_mov_b32_dpp v{vMC}, v{vFB} row_newbcast:8 row_mask:0xf bank_mask:0x3")
    a("s_cbranch_vccz L_hop1ok")
    spin_guard("L_auxpoll")
    body = a.finish()
    ref = open(os.path.join(os.path.dirname(os.path.abspath(__file__)), "..", NAME + ".s.ref")).read().split("\n")
    layout = [l for l in ref if l.startswith(";") and "@launch" not in l and "Override" not in l and "grid=ceil" not in l]
    tail = f""".section .rodata,"a"
.p2align 6
.amdhsa_kernel {NAME}_kernel
  .amdhsa_next_free_vgpr 512
  .amdhsa_next_free_sgpr 102
  .amdhsa_accum_offset 256
  .amdhsa_group_segment_fixed_size 0
  .amdhsa_kernarg_size 112
  .amdhsa_user_sgpr_count 2
  .amdhsa_user_sgpr_kernarg_segment_ptr 1
  .amdhsa_system_sgpr_workgroup_id_x 1
.end_amdhsa_kernel
"""
    about = ["; generated by tools/gen.py"] + ["; " + l for l in __doc__.strip().split("\n")[2:]]
    return "\n".join(layout + hdr + about) + "\n" + body + tail

if __name__ == "__main__":
    kw = eval("dict(" + (sys.argv[2] if len(sys.argv) > 2 else "") + ")")
    out = sys.argv[1] if len(sys.argv) > 1 else os.path.join(os.path.dirname(os.path.abspath(__file__)), "..", NAME + ".s")
    open(out, "w").write(generate(**kw))
    print("wrote", out)
```

```python
import sys, os, struct
sys.path.insert(0, os.path.dirname(os.path.abspath(__file__)))
from asmlib import Asm

NAME = "concat_heads__compressed_kv_cla__mha_block_cached__decode"
KB, MB = 1024, 1 << 20
WS_XC = 32 * KB
WS_CT, WS_F1, WS_F2, WS_CS, WS_CX, WS_QP, WS_QL, WS_YA, WS_YB = [o * KB for o in (64, 96, 128, 160, 192, 256, 384, 512, 768)]
WS_OP, WS_CP, WS_SC, WS_ST, WS_SIZE = 1*MB, 2*MB, 3*MB, 6*MB, 8*MB
SCALE = 128 ** -0.5 * 1.4426950408889634
LDS_EX = 128 * KB
LDS_O = LDS_EX + 4 * KB
LDS_W = 96 * KB
SPIN = 1 << 23

def f32(x): return struct.unpack("<I", struct.pack("<f", x))[0]
def V(a, n=1): return f"v{a}" if n == 1 else f"v[{a}:{a+n-1}]"
def A(a, n=1): return f"a{a}" if n == 1 else f"a[{a}:{a+n-1}]"
def R(r): return f"s[{r}:{r+3}]"
DPP = "row_mask:0xf bank_mask:0xf"
FULL = (1 << 64) - 1

pAX, pCK, pAWQ, pUK, pUV, pAWO, pBX, pK, pV, pBWQ, pBWO, pOUT, pDBG, pWS = range(4, 32, 2)
sH, sP, sW, sTAG, sT0, sT1, sT2, sT3 = 32, 33, 34, 35, 36, 37, 38, 39
rW, rX, rWS, rK, rV, rUK, rOUT, rDBG = 40, 44, 48, 52, 56, 72, 72, 76
rCK = rK
sC2, sFILL, sWO = 60, 62, 63
sSELLO, sSELHI, sHI24, sC, sSPIN = 80, 81, 82, 83, 84
sU0, sU1, sTK, sROT, sBASE = 85, 86, 87, 88, 89
_, sQO, sMODE, sIT, sSLOT, sCKO, sYO, sOUTO = 90, 91, 92, 93, 94, 95, 96, 97
sTS = 98
sFLAG, sXT, sB, sHJ, sM0 = 68, 69, 3, 61, 56
sIX = sB
sS = 90

MAPS = {
    'L': ([[8], [9]], [[10], [11]], [12, 13, 14, 15, 16, 17, 18, 19]),
    'D': ([[8], [9]], [[15], [10]], [13, 12, 11, 14, 16, 17, 18, 19]),
    'C': ([[8], [9]], [[15], [10]], [12, 13, 14, 11, 16, 17, 18, 19]),
}

def generate(D=6, DV=6, DP=7, NU=32, JOB=0, SLOW=1, D3=7, PAIR=1, MAP='D', ROTH=8, ROTW=2, PU=8, POLLP=46, PUJ=8, POLLQ=46, POLLU=30, DJ=12, THB=2, THA=6, WSL=4, LOCAL=1, PRET=1, CLS=1, NFA=0, NFB=6, XQ=(3, 2), FSL=2,
             STAMP=False, PROBE=None, AMP=0, ABL=()):
    a = Asm()
    role = ["B"]
    if ABL:
        real_vm = a.vm
        a.vm = lambda text, tg: real_vm(text.replace(R(rWS), R(rDBG)) if tg.rstrip("0123456789") in ABL else text, tg)

    vL, vG, vJ, vT0, vT1, vT2, vT3, vTAG = 1, 2, 3, 4, 5, 6, 7, 8
    vMASK = 10
    vST0, vST1 = 16, 17

    def srd(r, p, size):
        a(f"s_mov_b32 s{r}, s{p}\ns_and_b32 s{r+1}, s{p+1}, 0xffff\ns_mov_b32 s{r+2}, {size}\ns_mov_b32 s{r+3}, 0x20000")

    def saddr(dst, base, *fields):
        for n, (r, lo, w, pos) in enumerate(fields):
            if w: a(f"s_bfe_u32 s{sT2}, s{r}, {lo | (w << 16):#x}")
            elif lo: a(f"s_lshr_b32 s{sT2}, s{r}, {lo}")
            a(f"s_lshl_b32 s{sT2}, s{sT2 if (w or lo) else r}, {pos}")
            a(f"s_add_u32 s{dst}, s{sT2}, {base if n == 0 else 's%d' % dst}")

    def vaddr(dst, tmp, *fields):
        for n, (r, lo, w, pos) in enumerate(fields):
            if w: a(f"v_bfe_u32 v{tmp}, v{r}, {lo}, {w}")
            elif lo: a(f"v_lshrrev_b32 v{tmp}, {lo}, v{r}")
            src = tmp if (w or lo) else r
            a(f"v_lshlrev_b32 v{dst}, {pos}, v{src}" if n == 0 else f"v_lshl_add_u32 v{dst}, v{src}, {pos}, v{dst}")

    def stamp(i):
        if PROBE is not None:
            if PROBE == (role[0], i): a("s_memrealtime s[100:101]\ns_waitcnt lgkmcnt(0)")
            return
        if not STAMP or i == 14 or (STAMP == 3 and (role[0], i) not in (("A", 0), ("B", 0))): return
        if i: a(f"s_memrealtime s[{sTS}:{sTS+1}]\ns_waitcnt lgkmcnt(0)")
        else: a(f"s_lshl_b32 s100, s2, 2\ns_add_u32 s100, s100, s{sW}\ns_lshl_b32 s100, s100, 6\ns_add_u32 s100, s100, {WS_ST}\nv_mov_b32 v{vST0}, s100")
        a(f"v_mov_b32 v{vST1}, s{sTS}\ns_mov_b64 s[100:101], exec\ns_mov_b64 exec, 1")
        a(f"buffer_store_dword v{vST1}, v{vST0}, {R(rWS)}, 0 offen offset:{4*i}")
        if i == 0:
            a(f"s_getreg_b32 s{sTS}, hwreg(HW_REG_XCC_ID)\nv_mov_b32 v{vST1}, s{sTS}\nbuffer_store_dword v{vST1}, v{vST0}, {R(rWS)}, 0 offen offset:60")
        a("s_mov_b64 exec, s[100:101]")

    def soft(i):
        if STAMP == 2: a(f"s_memrealtime s[{76 if i == 0 else 78}:{77 if i == 0 else 79}]")

    def soft_flush():
        if STAMP == 2:
            a(f"s_waitcnt lgkmcnt(0)\ns_mov_b64 s[100:101], exec\ns_mov_b64 exec, 1")
            for i, r in ((14, 76), (7 if role[0] == "B" else 3, 78)):
                a(f"v_mov_b32 v{vST1}, s{r}\nbuffer_store_dword v{vST1}, v{vST0}, {R(rWS)}, 0 offen offset:{4*i}")
            a("s_mov_b64 exec, s[100:101]")

    TAILS = [12, 14, 16, 18, 20, 22, 24]
    def tsoft(i):
        if STAMP == 3: a(f"s_memrealtime s[{TAILS[i]}:{TAILS[i]+1}]")

    def tflush():
        if STAMP == 3:
            a(f"s_waitcnt lgkmcnt(0)\ns_mov_b64 s[100:101], exec\ns_mov_b64 exec, 1")
            for i, r in enumerate(TAILS):
                a(f"v_mov_b32 v{vST1}, s{r}\nbuffer_store_dword v{vST1}, v{vST0}, {R(rWS)}, 0 offen offset:{4*(i+7)}")
            a("s_mov_b64 exec, s[100:101]")

    def probe_end():
        if PROBE is None or PROBE[0] != role[0]: return
        lbl = a.label("probe")
        a(f"s_sub_u32 s100, s100, s{sTS}\ns_lshl_b32 s100, s100, {AMP}\ns_add_u32 s100, s100, s{sTS}")
        a(f"s_add_u32 s100, s100, 10000\n{lbl}:\ns_memrealtime s[{sTS}:{sTS+1}]\ns_waitcnt lgkmcnt(0)")
        a(f"s_sub_u32 s{sTS}, s{sTS}, s100\ns_cmp_lt_i32 s{sTS}, 0\ns_cbranch_scc0 {lbl}_x\ns_cmp_gt_i32 s{sTS}, -100000\ns_cbranch_scc1 {lbl}\n{lbl}_x:")

    def spin_guard(lbl_retry):
        a(f"s_sub_u32 s{sSPIN}, s{sSPIN}, 1\ns_cmp_lg_u32 s{sSPIN}, 0\ns_cbranch_scc1 {lbl_retry}\ns_branch L_end")

    def untag(regs, acc):
        for r in regs:
            a(f"v_xor_b32 v{r}, s{sTAG}, v{r}")
        a(f"v_or_b32 v{acc}, v{regs[0]}, v{regs[1]}")
        for i in range(2, len(regs), 2):
            a(f"v_or3_b32 v{acc}, v{acc}, v{regs[i]}, v{regs[i+1]}")
        a(f"v_and_b32 v{acc}, 0xff, v{acc}\nv_cmp_ne_u32 vcc, 0, v{acc}")

    def tag(regs):
        for r in regs:
            a(f"v_and_or_b32 v{r}, v{r}, s{sHI24}, v{vTAG}")

    def tag_bf16(regs):
        a(f"s_mov_b32 s{sT2}, 0xffff0000")
        for r in regs: a(f"v_cvt_pk_bf16_f32 v{r}, v{r}, v{r}")
        for r in regs: a(f"v_and_or_b32 v{r}, v{r}, s{sT2}, v{vTAG}")

    def quadsum(dst, src, tmp):
        a(f"v_mov_b32_dpp v{dst}, v{src} quad_perm:[0,0,0,0] {DPP}")
        a(f"v_mov_b32_dpp v{tmp}, v{src+2} quad_perm:[2,2,2,2] {DPP}")
        a(f"v_add_f32_dpp v{dst}, v{src+1}, v{dst} quad_perm:[1,1,1,1] {DPP}")
        a(f"v_add_f32_dpp v{tmp}, v{src+3}, v{tmp} quad_perm:[3,3,3,3] {DPP}")
        a(f"v_add_f32 v{dst}, v{dst}, v{tmp}")

    def setexec(mask):
        if mask == FULL: a("s_mov_b64 exec, -1")
        elif mask <= 64: a(f"s_mov_b64 exec, {mask}")
        else: a(f"s_mov_b32 exec_lo, {mask & 0xffffffff:#x}\ns_mov_b32 exec_hi, {mask >> 32:#x}")

    def consts():
        a(f"s_load_dword s{sTAG}, s[{pWS}:{pWS+1}], 0")
        srd(rWS, pWS, WS_SIZE)
        if ABL: srd(rDBG, pDBG, 256)
        a(f"s_mov_b32 s{sHI24}, 0xffffff00\ns_mov_b32 s{sC}, {f32(SCALE):#x}\ns_mov_b32 s{sSPIN}, {SPIN}")
        stamp(0)

    def take_tag(flag=False):
        a(f"s_waitcnt lgkmcnt(0)\ns_add_u32 s{sTAG}, s{sTAG}, 0x5b\ns_and_b32 s{sTAG}, s{sTAG}, 0xff\nv_mov_b32 v{vTAG}, s{sTAG}")
        if flag: a(f"s_or_b32 s{sFLAG}, s{sTAG}, 0x6b3ac500")

    def signal(tg, base, tmp):
        saddr(sXT, base, (sH, 0, 0, 8), (sW, 0, 0, 23))
        a(f"v_mov_b32 v{tmp}, s{sXT}\nv_mov_b32 v{tmp+1}, s{sFLAG}")
        if tg in a.q: a.wait(tg)
        a("s_barrier")
        setexec(1)
        a.vm(f"buffer_store_dword v{tmp+1}, v{tmp}, {R(rWS)}, 0 offen sc1", "SIG")
        setexec(FULL)

    hdr = [f"; @launch grid=(256,1,1) block=(256,1,1) lds={160*KB}"]
    a(f'.amdgcn_target "amdgcn-amd-amdhsa--gfx950"\n.text\n.globl {NAME}_kernel\n.p2align 8\n.type {NAME}_kernel,@function')
    a(f"{NAME}_kernel:")
    if STAMP or PROBE is not None: a(f"s_memrealtime s[{sTS}:{sTS+1}]")
    a("s_cmp_ge_u32 s2, 256\ns_cbranch_scc1 L_end")
    a("s_load_dwordx16 s[4:19], s[0:1], 0\ns_load_dwordx8 s[20:27], s[0:1], 64\ns_load_dwordx4 s[28:31], s[0:1], 96")
    a(f"v_lshrrev_b32 v{vT0}, 6, v0\nv_and_b32 v{vL}, 63, v0\nv_readfirstlane_b32 s{sW}, v{vT0}")
    a(f"s_lshr_b32 s{sH}, s2, 3\ns_sub_u32 s{sP}, s2, s{sH}\ns_sub_u32 s{sP}, s{sP}, 1\ns_and_b32 s{sP}, s{sP}, 7")
    a(f"v_lshrrev_b32 v{vG}, 4, v{vL}\nv_and_b32 v{vJ}, 15, v{vL}")
    a(f"s_cmp_lt_u32 s{sP}, 2\ns_cbranch_scc1 L_qp\ns_cmp_eq_u32 s{sP}, 2\ns_cbranch_scc1 L_ql\ns_cmp_eq_u32 s{sP}, 7\ns_cbranch_scc1 L_aux")

    vCA, vONE, vTK = 9, 18, 19
    sMSG = sYO
    vOW, vOX = 14, 15
    vX, vB, vACC, vQ = 20, 52, 60, 68
    vOK, vOQ, vOP, vOV = 76, 78, 79, 126
    vBQ, vPB = 80, 96
    vS, vO = 112, 116
    vMC, vLS, vSC, vP, vU0, vU1 = 120, 121, 122, 123, 124, 125
    RING = 128
    A0, A1 = 0, 128
    gv, tv, ub = MAPS[MAP] if isinstance(MAP, str) else MAP
    mk = lambda bits: sum(1 << b for b in bits)
    sup = set(sum(gv + tv, []))
    XOR = len(sup) > 4
    basis = []
    for r_ in [mk(v) for v in gv + tv] + [1 << b for b in ub]:
        for b_ in basis: r_ = min(r_, r_ ^ b_)
        assert r_, "key mapping is not a bijection"
        basis.append(r_)
    assert sup | set(ub) == set(range(8, 20))
    tval = [(mk(tv[0]) if t & 1 else 0) ^ (mk(tv[1]) if t & 2 else 0) for t in range(4)]
    gmask = mk(gv[0]) | mk(gv[1])
    timm = [v & 0xfff & ~gmask for v in tval]
    treg = sorted(set(v ^ i for v, i in zip(tval, timm)))
    tidx = [treg.index(v ^ i) for v, i in zip(tval, timm)]
    XOR = XOR or len(treg) > 2
    vAX = vOK + 1
    runs = []
    for i, b in enumerate(ub):
        if runs and runs[-1][1] + runs[-1][2] == b: runs[-1][2] += 1
        else: runs.append([i, b, 1])
    NP = (256 - 7 * NU) // 2
    assert NU % 2 == 0 and 2 <= NP <= 26 and 5 <= D <= DV <= D3 <= 7 and DJ >= 8 and not XOR
    rS, sINC, sCNT = 64, sMODE, sOUTO
    vOS, vSA, vMX, vS2, vSN, vPN = 62, 64, 65, 96, 66, 100
    LDS_S = 16 * KB
    sSC, sSCA, sNP, sPS, sNV = sSELLO, sSELHI, sSLOT, sCKO, sWO
    NPX = NP + 3 * JOB + SLOW
    vSL, vOSC, vLA, sCL = 102, 55, 0, sFILL
    LDS_T = 8 * KB

    def advance(n): a(f"s_add_u32 s{sTK}, s{sTK}, {inc(n)}")
    inc = lambda n: 7 if not PAIR else (13 if n % 8 == 7 else 1)
    def kv_setup():
        a(f"v_lshrrev_b32 v{vT0}, 2, v{vJ}\nv_and_b32 v{vT1}, 3, v{vJ}")
        for dst, sel in ((vOK, vT0), (vOV, vG)):
            if len(gv[0]) == 1 and gv[1] == [gv[0][0] + 1]:
                a(f"v_lshlrev_b32 v{dst}, {gv[0][0]}, v{sel}")
            else:
                a(f"v_and_b32 v{vT2}, 1, v{sel}\nv_mul_u32_u24 v{vT2}, {mk(gv[0])}, v{vT2}\nv_lshrrev_b32 v{vT3}, 1, v{sel}\nv_mul_u32_u24 v{vT3}, {mk(gv[1])}, v{vT3}\nv_xor_b32 v{dst}, v{vT2}, v{vT3}")
        a(f"v_lshl_add_u32 v{vOK}, v{vG}, 6, v{vOK}\nv_lshl_add_u32 v{vOK}, v{vT1}, 4, v{vOK}\nv_lshl_add_u32 v{vOV}, v{vJ}, 4, v{vOV}")
        if len(treg) == 2 and not XOR:
            a(f"v_xor_b32 v{vOK+1}, {treg[1]}, v{vOK}\nv_xor_b32 v{vOV+1}, {treg[1]}, v{vOV}")
        a(f"s_add_u32 s{sB}, s{sW}, s{sP}\ns_and_b32 s{sB}, s{sB}, 3")
        a(f"s_lshl_b32 s{sBASE}, s{sB}, 5\ns_add_u32 s{sBASE}, s{sBASE}, s{sH}\ns_lshl_b32 s{sBASE}, s{sBASE}, 20")
        a(f"s_mul_i32 s{sROT}, s{sH}, {ROTH}")
        if ROTW == 1: a(f"s_add_u32 s{sROT}, s{sROT}, s{sB}")
        else: a(f"s_mul_i32 s{sT2}, s{sB}, {ROTW}\ns_add_u32 s{sROT}, s{sROT}, s{sT2}")
        a(f"s_lshl_b32 s{sTK}, s{sP}, {PAIR}")

    def masks():
        a(f"v_and_b32 v{vT0}, 1, v{vL}\nv_lshlrev_b32 v{vT0}, 4, v{vT0}\nv_mov_b32 v{vT1}, 0xffff\nv_lshlrev_b32 v{vT0}, v{vT0}, v{vT1}")
        a(f"v_bfe_u32 v{vT1}, v{vL}, 1, 2")
        for r in range(4):
            a(f"v_cmp_eq_u32 vcc, {r}, v{vT1}\nv_cndmask_b32 v{vMASK+r}, 0, v{vT0}, vcc")

    def kv_late():
        a(f"v_mov_b32 v{vMC}, 0xff7f0000\nv_mov_b32 v{vLS}, 0\nv_mov_b32 v{vONE}, 1")
        for r in range(4): a(f"v_mov_b32 v{vO+r}, 0")
        a(f"v_lshlrev_b32 v{vLA}, 3, v{vL}\nds_write_b64 v{vLA}, {V(vO,2)} offset:{LDS_T}\nv_mov_b32 v{vLA}, {LDS_T}")
        saddr(sMSG, WS_CT, (sH, 0, 0, 10), (sH, 3, 0, 8))
        a(f"v_mov_b32 v{vCA}, s{sMSG}")
        saddr(sMSG, WS_OP, (sH, 0, 0, 15), (sB, 0, 0, 13), (sP, 0, 0, 10))
        a(f"v_and_b32 v{vT1}, 3, v{vJ}\nv_lshlrev_b32 v{vOQ}, 7, v{vG}\nv_lshl_add_u32 v{vOQ}, v{vT1}, 5, v{vOQ}")
        saddr(sQO, WS_QP, (sH, 0, 0, 12), (sB, 0, 0, 9))
        msg_addr()

    def msg_addr():
        a(f"v_lshlrev_b32 v{vT0}, 7, v{vG}\nv_lshl_add_u32 v{vT0}, v{vJ}, 4, v{vT0}\nv_mov_b32 v{vT1}, 512")
        a(f"v_cmp_gt_u32 vcc, 8, v{vJ}\nv_cndmask_b32 v{vOP}, v{vT1}, v{vT0}, vcc")

    def unit_addr(dst):
        a(f"s_add_u32 s{sT3}, s{sTK}, s{sROT}")
        for n, (i, b, w) in enumerate(runs):
            if XOR and n == 0:
                a(f"s_bfe_u32 s{sT1}, s{sT3}, {i | (w << 16):#x}\ns_lshl_b32 s{dst}, s{sT1}, {b}")
            else:
                a(f"s_bfe_u32 s{sT1}, s{sT3}, {i | (w << 16):#x}\ns_lshl_b32 s{sT1}, s{sT1}, {b}\ns_add_u32 s{dst}, s{sT1}, s{dst if n else sBASE}")

    def slot(i): return V(RING + 4*i, 4) if i < 32 else A(4*(i - 32), 4)

    def kv_load(sl, r, base, tg):
        isv = r >= 4
        if XOR:
            if tval[r%4]: a(f"s_xor_b32 s{sXT}, s{base}, {tval[r%4]}")
            a(f"v_xor_b32 v{vAX}, s{sXT if tval[r%4] else base}, v{vOV if isv else vOK}")
            a.vm(f"buffer_load_dwordx4 {slot(sl)}, v{vAX}, {R(rV if isv else rK)}, s{sBASE} offen nt", tg)
            return
        a.vm(f"buffer_load_dwordx4 {slot(sl)}, v{(vOV if isv else vOK) + tidx[r%4]}, {R(rV if isv else rK)}, s{base} offen offset:{timm[r%4]} nt", tg)

    def s_load_(sl, t, tg):
        if XOR:
            if tval[t]: a(f"s_xor_b32 s{sXT}, s{sU0}, {tval[t]}")
            a(f"v_xor_b32 v{vAX}, s{sXT if tval[t] else sU0}, v{vOS}")
            a.vm(f"buffer_load_dwordx4 {slot(sl)}, v{vAX}, {R(rS)}, s{sBASE} offen nt", tg)
            return
        a.vm(f"buffer_load_dwordx4 {slot(sl)}, v{vOS + tidx[t]}, {R(rS)}, s{sU0} offen offset:{timm[t]} nt", tg)

    def use(isv):
        r, v = (rV, vOV) if isv else (rK, vOK)
        a(f"s_mov_b64 s[{rS}:{rS+1}], s[{r}:{r+1}]\nv_mov_b32 v{vOS}, v{v}\nv_mov_b32 v{vOS+1}, v{v+1}")

    def k_mfma(sl, c):
        d = vS2 if (c >> 2) & 1 else vS
        a(f"v_mfma_f32_16x16x32_bf16 {V(d,4)}, {slot(sl)}, {V(vBQ+4*(c&3),4)}, {V(d,4) if c & 3 else '0'}")

    def k_post(u, off):
        quadsum(vSC, vS2 if u & 1 else vS, vU0)
        a(f"v_max_f32 v{vMX}, v{vMX}, v{vSC}\nds_write_b32 v{vSA}, v{vSC} offset:{off}")

    def allmax(x):
        a(f"v_max_f32_dpp v{vU0}, v{x}, v{x} row_ror:4 {DPP}")
        a(f"v_max_f32_dpp v{vU0}, v{vU0}, v{vU0} row_ror:8 {DPP}")
        a(f"v_mov_b32 v{vU1}, v{vU0}\nv_permlane16_swap_b32 v{vU0}, v{vU1}\nv_max_f32 v{vU0}, v{vU0}, v{vU1}")
        a(f"v_mov_b32 v{vU1}, v{vU0}\nv_permlane32_swap_b32 v{vU0}, v{vU1}\nv_max_f32 v{vU0}, v{vU0}, v{vU1}")

    def claim(off):
        setexec(1)
        if ("2v" if off else "2k") in ABL: a(f"global_atomic_add v{vCA}, v{vONE}, s[{pWS}:{pWS+1}] offset:128 sc1")
        a(f"global_atomic_add v{vTK}, v{vCA}, v{vONE}, s[{pWS}:{pWS+1}] offset:{off} sc0 sc1")
        setexec(FULL)

    rF, sFO, sYS, sCXO, sMB, sLOC, sYG = rW, 44, 45, 46, 47, 70, 71
    vFD, vFT, vAO, vAY, vAW, vAG, vAF, vCX, vRO = 20, 24, 28, 30, 31, 32, 33, 34, 35
    vPA, vCL = 50, 54
    vWT, vBU, vY, vMS, vGS2, vG2 = 128, 160, 112, 192, 224, 232
    def fin_scalar():
        if CLS == 0: a(f"s_and_b32 s{sS}, s2, 7")
        else:
            saddr(sS, 0, (2, 1, 2, 0), (2, 0, 1, 2))
            if CLS == 2: a(f"s_xor_b32 s{sS}, s{sS}, 4")
        a(f"s_and_b32 s{sT0}, s{sS}, 3\ns_bitcmp0_b32 s{sS}, 2")
        a(f"s_cselect_b64 s[{rF}:{rF+1}], s[{pBWO}:{pBWO+1}], s[{pAWO}:{pAWO+1}]")
        a(f"s_cselect_b32 s{sYS}, {WS_YB - WS_YA}, 0\ns_add_u32 s{sYS}, s{sYS}, {WS_YA}")
        saddr(sYG, f"s{sYS}", (sT0, 0, 0, 16), (sH, 2, 0, 13), (sH, 0, 2, 6))
        a(f"s_mov_b32 s{rF+2}, {4*MB}\ns_mov_b32 s{rF+3}, 0x20000")
        saddr(sFO, 0, (sH, 0, 0, 17), (sW, 0, 0, 15), (sT0, 0, 0, 8))
        saddr(sYS, f"s{sYS}", (sT0, 0, 0, 16), (sW, 1, 0, 15), (sH, 0, 0, 8), (sW, 0, 1, 7))
        saddr(sCXO, WS_CX, (sH, 0, 0, 11), (sW, 0, 0, 9))
        srd(rOUT, pOUT, 8192)
    def fin_dma(n, offs):
        if n % 4 == 0:
            a(f"s_lshl_b32 s{sT3}, s{sW}, 13\ns_add_u32 s{sT3}, s{sT3}, {LDS_W + 1024*n}\ns_mov_b32 m0, s{sT3}")
            if n: a(f"s_add_u32 s{sFO}, s{sFO}, 16384")
        a.vm(f"buffer_load_dwordx4 v{offs+n%4}, {R(rF)}, s{sFO} offen offset:{(n%4)*1024} nt lds", "FW")
    def fin_vec1():
        a(f"v_lshlrev_b32 v{vT0}, 2, v{vG}\nv_xor_b32 v{vT0}, v{vT0}, v{vJ}")
        for i in range(4):
            a(f"v_xor_b32 v{vT1}, {i}, v{vT0}\nv_lshlrev_b32 v{vT1}, 4, v{vT1}\nv_lshl_add_u32 v{vFD+i}, v{vG}, 10, v{vT1}")
            if i: a(f"v_add_u32 v{vFD+i}, {i*3072}, v{vFD+i}")
        saddr(sMB, WS_OP, (sH, 0, 0, 15), (sB, 0, 0, 13))
        vaddr(vT2, vT1, (vG, 0, 0, 7), (vJ, 0, 3, 4))
        a(f"v_lshrrev_b32 v{vT0}, 3, v{vJ}\nv_and_b32 v{vT3}, 3, v{vJ}\nv_min_u32 v{vT3}, 2, v{vT3}\nv_lshl_add_u32 v{vT3}, v{vT3}, 1, v{vT0}")
        for i in range(4):
            if i < 3: a(f"v_add_u32 v{vT1}, {2*i}, v{vT0}")
            else: a(f"v_mov_b32 v{vT1}, v{vT3}\nv_mov_b32 v{vT2}, 512")
            a(f"v_cmp_le_u32 vcc, s{sP}, v{vT1}\nv_addc_co_u32 v{vT1}, vcc, 0, v{vT1}, vcc\nv_lshl_add_u32 v{vPA+i}, v{vT1}, 10, v{vT2}")
        a(f"s_mul_i32 s{sT2}, s{sB}, 320\ns_add_u32 s{sT2}, s{sT2}, {LDS_O}")
        a(f"v_lshlrev_b32 v{vT0}, 6, v{vG}\nv_lshl_add_u32 v{vT0}, v{vJ}, 1, v{vT0}\nv_add_u32 v{vAW}, s{sT2}, v{vT0}")
    def fin_vec2():
        vaddr(vT0, vT1, (vG, 0, 0, 11), (vL, 2, 2, 8), (vL, 2, 2, 6), (vL, 4, 1, 5), (vL, 1, 1, 4), (vL, 0, 1, 3))
        a(f"s_lshl_b32 s{sT2}, s{sW}, 6\ns_add_u32 s{sT2}, s{sT2}, {LDS_W}\nv_xor_b32 v{vFT}, s{sT2}, v{vT0}")
        for i in range(1, 4): a(f"v_xor_b32 v{vFT+i}, {16*i}, v{vFT}")
        a(f"v_and_b32 v{vT0}, 3, v{vJ}\nv_lshrrev_b32 v{vT1}, 2, v{vJ}\nv_lshlrev_b32 v{vT2}, 4, v{vG}\nv_add_u32 v{vT2}, {LDS_O}, v{vT2}\ns_movk_i32 s{sT0}, 320")
        for u in range(2):
            a(f"v_cmp_eq_u32 vcc, {u}, v{vT1}\nv_cndmask_b32 v{vAO+u}, 4, v{vT0}, vcc\nv_mad_u32_u24 v{vAO+u}, v{vAO+u}, s{sT0}, v{vT2}")
        a(f"v_lshlrev_b32 v{vT1}, 2, v{vL}\nv_add_u32 v{vT1}, {LDS_O + 4*320}, v{vT1}\nv_mov_b32 v{vT2}, 0\nds_write_b32 v{vT1}, v{vT2}")
    def fin_vec3():
        vaddr(vAY, vT1, (vJ, 0, 0, 4), (vG, 0, 0, 13))
        vaddr(vAG, vT1, (vL, 2, 0, 8), (vL, 0, 2, 4))
        a(f"s_xor_b32 s{sT1}, s{sS}, 4")
        saddr(sT0, 0, (sT1, 0, 3, 8), (sH, 4, 0, 7), (sH, 0, 2, 5), (sH, 2, 2, 3))
        vaddr(vAF, vT1, (vL, 0, 2, 11), (vG, 0, 0, 1))
        a(f"v_add_u32 v{vAF}, s{sT0}, v{vAF}")
        a(f"v_and_b32 v{vT1}, 31, v{vL}\nv_lshlrev_b32 v{vCX}, 4, v{vT1}\ns_mul_i32 s{sT2}, s{sW}, 320\ns_add_u32 s{sT2}, s{sT2}, {LDS_O}\nv_lshl_add_u32 v{vRO}, v{vT1}, 3, s{sT2}")
        saddr(sT0, f"s{sYG}", (sW, 0, 1, 12), (sW, 1 if PRET else 0, 0, 24))
        a(f"s_bitcmp1_b32 s{sS}, 2\ns_cselect_b32 s{sCXO}, s{sCXO}, {'s%d' % sT0 if PRET else WS_SIZE}\ns_cselect_b64 vcc, -1, 0\nv_cndmask_b32 v{vCL}, v{vAG}, v{vCX}, vcc")

    def xc_word():
        a(f"s_getreg_b32 s{sLOC}, hwreg(HW_REG_XCC_ID, 0, 4)\ns_lshl_b32 s{sLOC}, s{sLOC}, 8\ns_or_b32 s{sLOC}, s{sLOC}, s{sTAG}\ns_or_b32 s{sLOC}, s{sLOC}, 0x5e9d0000")
    def xc_report(tmp):
        xc_word()
        saddr(sXT, WS_XC, (2, 0, 3, 8), (sH, 0, 0, 2), (sW, 0, 0, 24))
        a(f"v_mov_b32 v{tmp}, s{sXT}\nv_mov_b32 v{tmp+1}, s{sLOC}")
        setexec(1)
        a.vm(f"buffer_store_dword v{tmp+1}, v{tmp}, {R(rWS)}, 0 offen sc1", "XC")
        setexec(FULL)
    def xc_fetch(dst):
        saddr(sXT, WS_XC, (2, 0, 3, 8))
        a(f"v_lshrrev_b32 v{dst}, 2, v{vCX}")
        a.vm(f"buffer_load_dword v{dst}, v{dst}, {R(rWS)}, s{sXT} offen sc1", "XCg")
    def xc_check(src):
        a(f"v_cmp_ne_u32 vcc, s{sLOC}, v{src}\ns_cmp_eq_u64 vcc, 0\ns_cselect_b32 s{sLOC}, {LOCAL}, 0")

    def pool_size():
        a(f"s_and_b32 s{sT0}, s{sH}, 3\ns_sub_u32 s{sPS}, s{sT0}, 2\ns_cmp_ge_u32 s{sT0}, 2\ns_cselect_b32 s{sPS}, s{sPS}, 8\ns_cselect_b32 s{sNP}, {NPX}, {NPX - SLOW}")

    def q_poll():
        for i in range(2):
            a.vm(f"buffer_load_dwordx4 {V(vQ+4*i,4)}, v{vOQ}, {R(rWS)}, s{sQO} offen offset:{16*i} sc1", "Q")

    class Start:
        def __init__(self, pu): self.pu, self.n = pu, 0
        def load(self):
            n = self.n; self.n += 1
            if n == 0: unit_addr(sU0)
            kv_load(n % (8*self.pu), n % 4, sU0, f"P{n}")
            if n % 4 == 3:
                advance(n)
                unit_addr(sU0)
        def paced(self, depth):
            if f"P{self.n - depth}" in a.q: a.wait(f"P{self.n - depth}")
            self.load()
        def until_q(self, pollat):
            while self.n < pollat: self.paced(DP)
            q_poll()
            while self.n < min(pollat + DP - 1, 8*self.pu): self.paced(DP)
        def finish(self, hook=None, job=0):
            if "Q" in a.q: a.wait("Q")
            chk, ok = a.label("qcheck"), a.label("qok")
            a(f"{chk}:")
            untag(list(range(vQ, vQ+8)), vT0)
            a(f"s_cbranch_vccz {ok}" if not ({"QPst", "Q"} & set(ABL)) else f"s_branch {ok}")
            saved = list(a.q)
            q_poll()
            a("s_waitcnt vmcnt(0)")
            spin_guard(chk)
            a.q = saved
            a(f"{ok}:")
            stamp(2)
            def operands(q, bq):
                for r in range(4):
                    a(f"v_cvt_pk_bf16_f32 v{q+r}, v{q+2*r}, v{q+2*r+1}")
                for t in range(4):
                    m = 0x000f000f << (4*t)
                    a(f"s_mov_b32 vcc_lo, {m:#x}\ns_mov_b32 vcc_hi, {m:#x}")
                    for r in range(4):
                        a(f"v_cndmask_b32 v{bq+4*t+r}, 0, v{q+r}, vcc")
            operands(vQ, vBQ)
            xc_report(vQ + 4)
            N = 8 * self.pu
            a(f"v_mov_b32 v{vMX}, 0xff7f0000\ns_lshl_b32 s{sT2}, s{sW}, 14\ns_add_u32 s{sT2}, s{sT2}, {LDS_S}\nv_lshl_add_u32 v{vSA}, v{vL}, 2, s{sT2}")
            first, todo = self.n, N + D - self.n
            for c in range(N):
                want = first + (todo * (c + 1) + N - 1) // N
                while self.n < want and self.n - N < c:
                    self.paced(DP if self.n < N else max(D, DP - 1))
                if f"P{c}" in a.q: a.wait(f"P{c}")
                k_mfma(c, c)
                if c % 4 == 2 and c > 4: k_post(c // 4 - 1, 256 * (c // 4 - 1))
                if hook: hook(c)
                if N - c in (24, 18, 12, 6): {24: fin_scalar, 18: fin_vec1, 12: fin_vec2, 6: fin_vec3}[N - c]()
            while self.n < N + D: self.paced(DP)
            assert (NU - N // 4) % 2 == 0 and NU - N // 4 >= 4
            a(f"v_add_u32 v{vSA}, {256 * (N // 4 - 1)}, v{vSA}")
            assert PAIR and XQ == (3, 2) and JOB <= 1 and SLOW <= 1
            pool_size()
            a(f"s_cmp_eq_u32 s{sPS}, s{sP}\ns_cselect_b32 s{sNV}, {NU // 2 - job - SLOW}, {NU // 2 - job}\ns_sub_u32 s{sCNT}, s{sNV}, {N // 8}")
            a(f"s_add_u32 s{sPS}, s{sPS}, {7 * (NU // 2 - 1 - JOB)}\ns_mov_b32 s{sINC}, {inc(3)}")
            saddr(sSC, 0, (sH, 0, 0, 2), (sB, 0, 0, 0))
            a(f"s_mul_i32 s{sSC}, s{sSC}, {128 * NPX}\ns_add_u32 s{sSC}, s{sSC}, {WS_SC}")
            vaddr(vOSC, vT0, (vL, 2, 0, 3))
            a(f"s_mov_b32 s{rS+2}, {128*MB}\ns_mov_b32 s{rS+3}, 0x20000")
            use(False)
            stamp(3)

    saddr(sT0, -3 << 17, (2, 0, 3, 21), (sH, 3, 0, 19), (sP, 0, 0, 17), (sW, 0, 0, 12))
    vaddr(vT0, vT1, (vL, 0, 5, 7), (vL, 5, 0, 15))
    a(f"s_mov_b32 s{rW+2}, {16*MB}\ns_mov_b32 s{rW+3}, 0x20000\ns_waitcnt lgkmcnt(0)\ns_mov_b64 s[{rW}:{rW+1}], s[{pCK}:{pCK+1}]")
    soft(0)
    for i, step in enumerate((16384, 49152, 16384, 0)):
        a.vm(f"buffer_load_dword v{vX+i}, v{vT0}, {R(rW)}, s{sT0} offen", "T")
        if step: a(f"s_add_u32 s{sT0}, s{sT0}, {step}")
    consts(); kv_setup(); srd(rK, pK, 128*MB); srd(rV, pV, 128*MB); masks(); kv_late()
    soft(1); soft_flush()
    st = Start(PU)
    for _ in range(DP): st.load()
    stamp(1)
    take_tag()
    a("s_barrier")
    st.until_q(POLLP)
    st.finish()

    late_blocks = []
    def sc_load():
        a(f"buffer_load_dwordx2 {V(vSL,2)}, v{vOSC}, {R(rDBG if 'SCld' in ABL else rWS)}, s{sSCA} offen sc1")
    def arrive(off):
        setexec(1)
        a(f"ds_add_rtn_u32 v{vT1}, v{vLA}, v{vONE} offset:{off}")
        setexec(FULL)
    def draw(isv):
        skip = a.label("nodraw")
        a(f"v_readfirstlane_b32 s{sCL}, v{vT1}\ns_cmp_lg_u32 s{sCL}, 0\ns_cbranch_scc1 {skip}")
        claim(4 * isv)
        a(f"{skip}:")
    def decode(isv, invalid):
        nopost, again, retry, skip = a.label("nopost"), a.label("again"), a.label("retry"), a.label("lastone")
        a(f"s_cmp_lg_u32 s{sCL}, 0\ns_cbranch_scc1 {nopost}\nv_add_u32 v{vTK}, 1, v{vTK}")
        setexec(1)
        a(f"ds_write_b32 v{vLA}, v{vTK} offset:4")
        a(f"{nopost}:")
        arrive(8)
        a(f"{again}:\nds_read_b32 v{vT0}, v{vLA} offset:4\ns_waitcnt lgkmcnt(0)\nv_readfirstlane_b32 s{sIT}, v{vT0}")
        a(f"s_sub_u32 s{sIT}, s{sIT}, 1\ns_cbranch_scc1 {retry}")
        late_blocks.append(lambda: (a(f"{retry}:"), spin_guard(again)))
        a(f"v_add_u32 v{vLA}, 8, v{vLA}\ns_cmp_ge_u32 s{sIT}, s{sNP}\ns_cbranch_scc1 {invalid}")
        if isv:
            a(f"s_lshl_b32 s{sSCA}, s{sIT}, 7\ns_add_u32 s{sSCA}, s{sSCA}, s{sSC}")
            sc_load()
        a(f"s_add_u32 s{sTK}, s{sIT}, {7*NU // 2}")
        if JOB: a(f"s_cmp_ge_u32 s{sIT}, {NP}\ns_cselect_b32 s{sT0}, {NP + 7}, 0\ns_sub_u32 s{sTK}, s{sTK}, s{sT0}")
        if SLOW: a(f"s_cmp_eq_u32 s{sIT}, {NPX - 1}\ns_cselect_b32 s{sTK}, s{sPS}, s{sTK}")
        a(f"s_lshl_b32 s{sTK}, s{sTK}, 1\ns_add_u32 s{sT0}, s{sIT}, 1")
        a(f"v_mov_b32 v{vTK}, 64\ns_mov_b32 s{sCL}, 0\ns_cmp_ge_u32 s{sT0}, s{sNP}\ns_cbranch_scc1 {skip}")
        draw(isv)
        a(f"{skip}:")
    def out_of(isv):
        if isv: a(f"s_mov_b32 s{sBASE}, {128*MB}")
        else:
            use(True)
            a(f"s_lshl_b32 s{sTK}, s{sP}, {PAIR}\ns_mov_b32 s{sINC}, {inc(3)}\nv_add_u32 v{vLA}, 8, v{vLA}")
    def next_unit(n, isv, static):
        if n % 8 == 3:
            a(f"s_add_u32 s{sTK}, s{sTK}, s{sINC}")
        else:
            rare, back, done, gone = a.label("rare"), a.label("back"), a.label("done"), a.label("gone")
            if static:
                a(f"s_cmp_le_u32 s{sCNT}, 2\ns_cbranch_scc1 {rare}\n{back}:")
                advance(n)
            else: decode(isv, gone)
            a(f"{done}:")
            def block():
                if static:
                    last = a.label("last")
                    a(f"{rare}:\ns_cmp_eq_u32 s{sCNT}, 1\ns_cbranch_scc1 {last}")
                    if "solo" in ABL and not isv: a(f"v_mov_b32 v{vTK}, 64\ns_mov_b32 s{sCL}, 0\ns_cmp_lg_u32 s{sP}, 3\ns_cbranch_scc1 {back}")
                    arrive(0)
                    a("s_waitcnt lgkmcnt(0)")
                    draw(isv)
                    a(f"s_branch {back}\n{last}:")
                    decode(isv, gone)
                    a(f"s_branch {done}")
                a(f"{gone}:")
                out_of(isv)
                a(f"s_branch {done}")
            late_blocks.append(block)
        unit_addr(sU0)
    a("L_bloop:")
    for r in range(8):
        n = r + D
        a(f"s_waitcnt vmcnt({D-1})")
        s_load_(n % 8, n % 4, "loop")
        k_mfma(r, r)
        if n % 4 == 3: next_unit(n, 0, True)
        if r % 4 == 1: k_post(r // 4 + 1, 256 * (r // 4))
    a(f"v_add_u32 v{vSA}, 512, v{vSA}")
    a(f"s_sub_u32 s{sCNT}, s{sCNT}, 1\ns_cmp_lg_u32 s{sCNT}, 0\ns_cbranch_scc1 L_bloop")
    xc_fetch(vQ)
    k_post(1, 0)
    a(f"v_mov_b32 v{vP}, 0xff7f0000\nds_write_b32 v{vSA}, v{vP} offset:256")
    a(f"s_lshl_b32 s{sT2}, s{sW}, 14\ns_add_u32 s{sT2}, s{sT2}, {LDS_S}\nv_lshl_add_u32 v{vSA}, v{vL}, 2, s{sT2}")
    a(f"ds_read_b32 v{vSN}, v{vSA}\nds_read_b32 v{vSN+1}, v{vSA} offset:256")
    a(f"v_mul_f32 v{vMX}, s{sC}, v{vMX}")
    allmax(vMX)
    a(f"v_mov_b32 v{vMC}, v{vU0}\ns_mov_b32 s{sCNT}, s{sNV}")
    def p_next(i):
        a(f"s_waitcnt lgkmcnt(1)\nv_fma_f32 v{vP}, v{vSN+i}, s{sC}, -v{vMC}\nv_exp_f32 v{vP}, v{vP}")
        a(f"ds_read_b32 v{vSN+i}, v{vSA} offset:{512 + 256*i}")
        a(f"v_cvt_pk_bf16_f32 v{vPN+i}, v{vP}, v{vP}\nv_add_f32 v{vLS}, v{vLS}, v{vP}")
    p_next(0)
    stamp(8)
    a(f"v_and_b32 v{vMX}, 1, v{vL}\nv_lshl_add_u32 v{vMX}, v{vMX}, 2, v{vOSC}\ns_mov_b32 vcc_lo, 0xaaaaaaaa\ns_mov_b32 vcc_hi, 0xaaaaaaaa")
    a(f"s_cmp_ge_u32 s{sIT}, s{sNP}\ns_cbranch_scc1 L_kdone")
    a("L_kdyn:")
    a(f"s_lshl_b32 s{sSCA}, s{sIT}, 7\ns_add_u32 s{sSCA}, s{sSCA}, s{sSC}")
    for r in range(8):
        n = r + D
        a(f"s_waitcnt vmcnt({D - 1})")
        s_load_(n % 8, n % 4, "loop")
        k_mfma(r, r)
        if n % 4 == 3: next_unit(n, 0, False)
        if r == 5: quadsum(vP, vS, vU0)
    quadsum(vSC, vS2, vU0)
    a(f"v_cndmask_b32 v{vP}, v{vP}, v{vSC}, vcc")
    tag([vP])
    setexec(0x3333333333333333)
    a(f"buffer_store_dword v{vP}, v{vMX}, {R(rDBG if 'SCst' in ABL else rWS)}, s{sSCA} offen sc1")
    setexec(FULL)
    a(f"s_cmp_lt_u32 s{sIT}, s{sNP}\ns_cbranch_scc1 L_kdyn")
    a("L_kdone:")
    stamp(5)
    for n in range(D, DV):
        s_load_(n, n % 4, "loop")
        assert n % 4 != 3
    def v_ands(r):
        for q in range(4):
            a(f"v_and_b32_dpp v{vPB+8+4*(r&1)+q}, v{vPN + (r >> 2)}, v{vMASK+q} row_newbcast:{4*(r&3)} {DPP}")
    def v_mfma(r):
        a(f"v_mfma_f32_16x16x32_bf16 {V(vO,4)}, {slot(r)}, {V(vPB+8+4*(r&1),4)}, {V(vO,4)}")
    a("L_vloop:")
    for r in range(8):
        n = r + DV
        v_ands(r)
        a(f"s_waitcnt vmcnt({DV-1})")
        s_load_(n % 8, n % 4, "loop")
        v_mfma(r)
        if n % 4 == 3: next_unit(n, 1, True)
        if r == 1: p_next(1)
        if r == 5:
            a(f"v_add_u32 v{vSA}, 512, v{vSA}")
            p_next(0)
    a(f"s_sub_u32 s{sCNT}, s{sCNT}, 1\ns_cmp_lg_u32 s{sCNT}, 0\ns_cbranch_scc1 L_vloop")
    stamp(6)
    for n in range(DV, D3): s_load_(n, n % 4, "loop")
    xc_check(vQ)
    a(f"s_cmp_ge_u32 s{sIT}, s{sNP}\ns_cbranch_scc1 L_none")
    a("L_vdyn:")
    for r in range(8):
        n = r + D3
        if r: v_ands(r)
        a(f"s_waitcnt vmcnt({D3 - 1 + (n > 7)})")
        s_load_(n % 8, n % 4, "loop")
        if r == 0:
            a("L_sccheck:")
            untag([vSL, vSL+1], vT0)
            a(f"v_fma_f32 v{vP}, v{vSL}, s{sC}, -v{vMC}\nv_fma_f32 v{vSC}, v{vSL+1}, s{sC}, -v{vMC}")
            if not {"SCst", "SCld"} & set(ABL): a("s_cbranch_vccnz L_scretry")
            a(f"v_max_f32 v{vU0}, v{vP}, v{vSC}\nv_cmp_lt_f32 vcc, 0, v{vU0}\ns_cbranch_vccnz L_newmax\nL_oldmax:")
            a(f"v_exp_f32 v{vP}, v{vP}\nv_exp_f32 v{vSC}, v{vSC}")
            a(f"v_cvt_pk_bf16_f32 v{vPN}, v{vP}, v{vP}\nv_add_f32 v{vLS}, v{vLS}, v{vP}")
            a(f"v_cvt_pk_bf16_f32 v{vPN+1}, v{vSC}, v{vSC}\nv_add_f32 v{vLS}, v{vLS}, v{vSC}")
        if n == 7:
            decode(1, "L_last")
            unit_addr(sU0)
        if r == 0: v_ands(0)
        v_mfma(r)
        if n % 8 == 3: next_unit(n, 1, False)
    a("s_branch L_vdyn")
    a("L_scretry:")
    sc_load()
    a("s_waitcnt vmcnt(0)")
    spin_guard("L_sccheck")
    a("L_newmax:")
    a(f"v_max_f32 v{vP}, v{vSL}, v{vSL+1}\nv_mul_f32 v{vP}, s{sC}, v{vP}")
    allmax(vP)
    a(f"v_max_f32 v{vU0}, v{vU0}, v{vMC}")
    a(f"v_sub_f32 v{vU1}, v{vMC}, v{vU0}\nv_exp_f32 v{vU1}, v{vU1}\nv_mov_b32 v{vMC}, v{vU0}")
    a(f"v_fma_f32 v{vP}, v{vSL}, s{sC}, -v{vMC}\nv_fma_f32 v{vSC}, v{vSL+1}, s{sC}, -v{vMC}")
    a(f"v_mul_f32 v{vLS}, v{vLS}, v{vU1}")
    for r in range(4):
        a(f"v_mul_f32 v{vO+r}, v{vO+r}, v{vU1}")
    a("s_branch L_oldmax")
    while late_blocks: late_blocks.pop(0)()
    def cx_load():
        a.vm(f"buffer_load_dwordx4 {V(vGS2,4)}, v{vCL}, {R(rWS)}, s{sCXO} offen sc1", "CX")
    def wrap_up():
        cx_load()
        if NFA != NFB: a(f"s_mov_b32 s{sU1}, s{sFO}\ns_bitcmp1_b32 s{sS}, 2\ns_cselect_b32 s{sFO}, {4*MB}, s{sFO}")
    def stats():
        a(f"v_add_f32_dpp v{vLS}, v{vLS}, v{vLS} row_ror:8 {DPP}")
        a(f"v_add_f32_dpp v{vLS}, v{vLS}, v{vLS} row_ror:4 {DPP}")
        a(f"v_mov_b32 v{vU1}, v{vLS}")
        a(f"v_permlane16_swap_b32 v{vLS}, v{vU1}\nv_add_f32 v{vLS}, v{vLS}, v{vU1}\nv_mov_b32 v{vU1}, v{vLS}")
        a(f"v_permlane32_swap_b32 v{vLS}, v{vU1}\nv_add_f32 v{vLS}, v{vLS}, v{vU1}")
        a(f"v_and_b32 v{vU1}, s{sHI24}, v{vMC}\nv_sub_f32 v{vU1}, v{vMC}, v{vU1}")
        a(f"s_mov_b32 vcc_lo, 0xff00ff00\ns_mov_b32 vcc_hi, 0xff00ff00")
    a("L_none:")
    wrap_up()
    for n in range(NFB): fin_dma(n, vFD)
    stats()
    a("s_branch L_bdone")
    a("L_last:")
    r0 = 7 - D3
    a.q = [f"R{r}" for r in range(r0 + 1, 8)]
    wrap_up()
    assert NFB <= 8 - r0
    for r in range(r0, 8):
        if r == 0 or r > r0: v_ands(r)
        if r > r0: a.wait(f"R{r}")
        if r - r0 < NFB: fin_dma(r - r0, vFD)
        v_mfma(r)
        if r == r0 + 1: stats()
    a("L_bdone:")
    a(f"v_cndmask_b32 v{vO}, v{vO}, v{vMC}, vcc\nv_cndmask_b32 v{vO+1}, v{vO+1}, v{vLS}, vcc\nv_cndmask_b32 v{vO+2}, v{vO+2}, v{vU1}, vcc")
    tag([vO+3, vO, vO+1, vO+2])
    setexec(0x00ff00ff00ff01ff)
    a.vm(f"buffer_store_dwordx4 {V(vO,4)}, v{vOP}, {R(rWS)}, s{sMSG} offen sc1", "OPst")
    setexec(FULL)
    tsoft(0)
    stamp(4)
    a(f"s_barrier\ns_bitcmp1_b32 s{sS}, 2\ns_cbranch_scc1 L_ctx")
    vFA, vFB, vOO = vSC, vP, 104
    assert NFA in (0, NFB)
    def m_round():
        for i in (3, 0, 1, 2):
            a(f"buffer_load_dwordx4 {V(vMS+4*i,4)}, v{vPA+i}, {R(rWS)}, s{sMB} offen sc1")
    m_round()
    for n in range(NFB, 8): fin_dma(n, vFD)
    for r in range(4): a(f"v_xor_b32 v{vOO+r}, s{sTAG}, v{vO+r}")
    a(f"v_mov_b32 v{vT1}, 0xff7f0000\nv_cndmask_b32 v{vMC}, v{vMC}, v{vT1}, vcc\nv_and_b32 v{vLS}, s{sHI24}, v{vLS}")
    a(f"s_mov_b32 s{sU0+1}, 0x88888888\ns_mov_b32 s{sU0+2}, 0x88888888")
    a(f"s_waitcnt vmcnt({8 - NFB})\nL_hop1poll:")
    untag(list(range(vMS, vMS+16)), vT0)
    a(f"v_add_f32 v{vFA}, v{vMS+12}, v{vMS+14}")
    a("s_cbranch_vccz L_hop1ok")
    m_round()
    a("s_waitcnt vmcnt(0)")
    spin_guard("L_hop1poll")
    a("L_ctx:")
    if NFA != NFB: a(f"s_mov_b32 s{sFO}, s{sU1}")
    for n in range(NFA, 8): fin_dma(n, vFD)
    a(f"s_waitcnt vmcnt({1 + 8 - NFA})")
    a("L_ctxcheck:")
    untag(list(range(vGS2, vGS2+4)), vT0)
    a("s_cbranch_vccz L_ctxok")
    cx_load()
    a("s_waitcnt vmcnt(0)")
    spin_guard("L_ctxcheck")
    a("L_ctxok:")
    a(f"v_cvt_pk_bf16_f32 v{vGS2}, v{vGS2}, v{vGS2+1}\nv_cvt_pk_bf16_f32 v{vGS2+1}, v{vGS2+2}, v{vGS2+3}")
    a(f"ds_write_b64 v{vRO}, {V(vGS2,2)}\ns_branch L_final")
    a("L_hop1ok:")
    tsoft(1)
    mk3 = f"s[{sU0+1}:{sU0+2}]"
    a(f"v_cndmask_b32 v{vFA}, v{vFA}, v{vMC}, {mk3}\nv_cndmask_b32 v{vFB}, v{vMS+13}, v{vLS}, {mk3}")
    steps = ("quad_perm:[1,0,3,2]", "quad_perm:[2,3,0,1]", "row_ror:8")
    for n, st_ in enumerate(steps):
        x = vT1 if n else vFA
        a(f"v_max_f32_dpp v{vT1}, v{x}, v{x} {st_} {DPP}")
    a(f"v_sub_f32 v{vFA}, v{vFA}, v{vT1}\nv_exp_f32 v{vFA}, v{vFA}\nv_mul_f32 v{vFB}, v{vFB}, v{vFA}")
    for i in (3, 0, 1, 2):
        if i < 3: a(f"v_add_f32_dpp v{vFB}, v{vFB}, v{vFB} {steps[i]} {DPP}")
        for r in range(4):
            if i == 3: a(f"v_mul_f32_dpp v{vOO+r}, v{vFA}, v{vOO+r} quad_perm:[3,3,3,3] {DPP}")
            else: a(f"v_fmac_f32_dpp v{vOO+r}, v{vFA}, v{vMS+4*i+r} quad_perm:[{i},{i},{i},{i}] {DPP}")
    a(f"v_rcp_f32 v{vFB}, v{vFB}")
    for r in range(4):
        a(f"v_add_f32_dpp v{vOO+r}, v{vOO+r}, v{vOO+r} row_ror:8 {DPP}")
    for r in range(4):
        a(f"v_mul_f32 v{vOO+r}, v{vOO+r}, v{vFB}")
    a(f"v_cvt_pk_bf16_f32 v{vOO}, v{vOO}, v{vOO+1}\nv_cvt_pk_bf16_f32 v{vOO+2}, v{vOO+2}, v{vOO+3}")
    setexec(0x00ff00ff00ff00ff)
    a(f"ds_write_b16 v{vAW}, v{vOO}\nds_write_b16_d16_hi v{vAW}, v{vOO} offset:16")
    a(f"ds_write_b16 v{vAW}, v{vOO+2} offset:32\nds_write_b16_d16_hi v{vAW}, v{vOO+2} offset:48")
    setexec(FULL)
    a("L_final:")
    a("s_waitcnt vmcnt(0) lgkmcnt(0)\ns_barrier")
    tsoft(2)
    def f_reads(i):
        u, k = i >> 2, i & 3
        for pi in range(2):
            a(f"ds_read_b64_tr_b16 {V(vWT+4*i+2*pi,2)}, v{vFT+2*u+pi} offset:{8192*k+1024*pi}")
        a(f"ds_read_b128 {V(vBU+4*i,4)}, v{vAO+u} offset:{64*k}")
    for i in range(4): f_reads(i)
    for i in range(8):
        if i + 4 < 8: f_reads(i + 4)
        a(f"s_waitcnt lgkmcnt({3 * min(4, 7 - i)})")
        a(f"v_mfma_f32_16x16x32_bf16 {V(vY,4)}, {V(vWT+4*i,4)}, {V(vBU+4*i,4)}, {V(vY,4) if i else '0'}")
    a(f"s_add_u32 s{sT1}, s{sYG}, 4096\ns_cmp_eq_u32 s{sLOC}, 1")
    setexec(0x00ff00ff00ff00ff)
    tag(range(vY, vY+4))
    a("s_cbranch_scc1 L_ylocal")
    a(f"buffer_store_dwordx4 {V(vY,4)}, v{vAY}, {R(rWS)}, s{sYS} offen sc1\ns_branch L_ydone")
    a(f"L_ylocal:\nbuffer_store_dwordx4 {V(vY,4)}, v{vAY}, {R(rWS)}, s{sYS} offen\nL_ydone:")
    setexec(FULL)
    tsoft(3)
    stamp(11)
    a(f"s_cmp_lg_u32 s{sW}, 0\ns_cbranch_scc1 L_done")
    a("L_hop2:")
    for i in range(2):
        a(f"buffer_load_dwordx4 {V(vGS2+4*i,4)}, v{vAG}, {R(rWS)}, s{sT1 if i else sYG} offen sc1")
    a("s_waitcnt vmcnt(0)")
    untag(list(range(vGS2, vGS2+8)), vT0)
    for r in range(4):
        a(f"v_add_f32 v{vG2+r}, v{vGS2+r}, v{vGS2+4+r}")
    a("s_cbranch_vccz L_hop2ok")
    spin_guard("L_hop2")
    a("L_hop2ok:")
    tsoft(4)
    a(f"v_permlane16_swap_b32 v{vG2}, v{vG2+1}\nv_permlane16_swap_b32 v{vG2+2}, v{vG2+3}")
    a(f"v_add_f32 v{vG2}, v{vG2}, v{vG2+1}\nv_add_f32 v{vG2+2}, v{vG2+2}, v{vG2+3}")
    a(f"v_permlane32_swap_b32 v{vG2}, v{vG2+2}\nv_add_f32 v{vG2}, v{vG2}, v{vG2+2}")
    a(f"v_add_f32_dpp v{vG2}, v{vG2}, v{vG2} row_ror:8 {DPP}\nv_add_f32_dpp v{vG2}, v{vG2}, v{vG2} row_ror:4 {DPP}")
    a(f"v_cvt_pk_bf16_f32 v{vG2}, v{vG2}, v{vG2}")
    setexec(0x000f000f000f000f)
    a(f"buffer_store_short v{vG2}, v{vAF}, {R(rOUT)}, 0 offen")
    tsoft(5)
    stamp(13)
    a(f"s_cmp_lg_u32 s2, {9 if CLS == 2 else 0}\ns_cbranch_scc1 L_done\nv_mov_b32 v{vT0}, 0")
    setexec(1)
    a(f"buffer_store_dword v{vTAG}, v{vT0}, {R(rWS)}, 0 offen")
    a("L_done:")
    stamp(14)
    probe_end()
    tflush()
    a("L_end:\ns_endpgm")

    a("L_qp:")
    a.q = []
    a(f"v_lshlrev_b32 v{vT0}, 18, v{vG}\nv_lshl_add_u32 v{vOW}, v{vJ}, 4, v{vT0}")
    a(f"v_lshrrev_b32 v{vT1}, 3, v{vJ}\nv_lshlrev_b32 v{vT1}, 10, v{vT1}\nv_lshl_add_u32 v{vOX}, v{vG}, 6, v{vT1}")
    a(f"s_cmp_eq_u32 s{sP}, 0\ns_cselect_b32 s{sHJ}, {XQ[0]}, {XQ[1]}\ns_xor_b32 s{sHJ}, s{sHJ}, s{sH}")
    a(f"s_lshl_b32 s{sU1}, s{sW}, 8\ns_lshl_b32 s{sWO}, s{sW}, 20\ns_lshl_b32 s{sT2}, s{sHJ}, 8\ns_add_u32 s{sWO}, s{sWO}, s{sT2}")
    a(f"s_mov_b32 s{rW+2}, {4*MB}\ns_mov_b32 s{rW+3}, 0x20000\ns_mov_b32 s{rX+2}, 4096\ns_mov_b32 s{rX+3}, 0x20000")
    a(f"s_cmp_eq_u32 s{sP}, 0\ns_waitcnt lgkmcnt(0)")
    a(f"s_cselect_b64 s[{rW}:{rW+1}], s[{pBWQ}:{pBWQ+1}], s[{pAWQ}:{pAWQ+1}]\ns_cselect_b64 s[{rX}:{rX+1}], s[{pBX}:{pBX+1}], s[{pAX}:{pAX+1}]")
    def w_load(t):
        a.vm(f"buffer_load_dwordx4 {A(A1+4*t,4)}, v{vOW}, {R(rW)}, s{sWO} offen nt", f"W{t}")
        a(f"s_add_u32 s{sWO}, s{sWO}, 8192")
    def x_load(i):
        for u in range(2):
            a.vm(f"buffer_load_dwordx4 {V(vX+16*u+4*i,4)}, v{vOX}, {R(rX)}, s{sU1} offen offset:{2048*u+16*i}", f"X{i}")
    soft(0)
    w_load(0); w_load(1); x_load(0)
    for t in range(2, 8): w_load(t)
    consts(); masks()
    for i in range(1, 4): x_load(i)
    saddr(sT0, WS_CT, (sHJ, 0, 0, 10), (sHJ, 3, 0, 8), (sW, 0, 0, 23))
    a(f"v_mov_b32 v{vONE}, 0\nv_mov_b32 v{vTK}, 0\ns_cmp_eq_u32 s{sP}, 0\ns_cselect_b32 s{sT2}, s{sT0}, {WS_SIZE}")
    setexec(1)
    a.vm(f"buffer_store_dwordx2 {V(vONE,2)}, v{vTK}, {R(rWS)}, s{sT2} offen sc1", "INIT")
    setexec(FULL)
    st = Start(PUJ)
    for t in range(8, DJ): w_load(t)
    todo = [lambda t=t: w_load(t) for t in range(DJ, 32)] + [lambda: None] * (DJ - DP) + [st.load] * DP
    late = {4: kv_setup, 8: lambda: (srd(rK, pK, 128*MB), srd(rV, pV, 128*MB)), 12: kv_late}
    a(f"s_mov_b32 s{sSELLO}, 0x01000100\ns_mov_b32 s{sSELHI}, 0x03020302")
    for t in range(32):
        if f"X{t//8}" in a.q: a.wait(f"X{t//8}")
        if t == 0: soft(1); soft_flush()
        if f"W{t}" in a.q: a.wait(f"W{t}")
        todo.pop(0)()
        if t in late: late[t]()
        for u in range(2):
            x = vX + 16*u + (t >> 1)
            a(f"v_perm_b32 v{vT0+u}, v{x}, v{x}, s{sSELHI if t & 1 else sSELLO}")
        for u in range(2):
            for r in range(4):
                a(f"v_and_b32 v{vB+4*u+r}, v{vT0+u}, v{vMASK+r}")
        for u in range(2):
            c = V(vACC+4*u, 4) if t else "0"
            a(f"v_mfma_f32_16x16x32_bf16 {V(vACC+4*u,4)}, {A(A1+4*t,4)}, {V(vB+4*u,4)}, {c}")
    a(f"s_lshl_b32 s{sT2}, s{sW}, 11")
    a(f"v_lshrrev_b32 v{vT0}, 3, v{vJ}\nv_lshlrev_b32 v{vT0}, 9, v{vT0}\nv_lshl_add_u32 v{vT0}, v{vG}, 7, v{vT0}")
    a(f"v_and_b32 v{vT1}, 7, v{vJ}\nv_lshl_add_u32 v{vT0}, v{vT1}, 2, v{vT0}\nv_add_u32 v{vT0}, s{sT2}, v{vT0}")
    for u in range(2):
        for r in range(4):
            a(f"ds_write_b32 v{vT0}, v{vACC+4*u+r} offset:{u*1024+r*32}")
    a(f"s_lshl_b32 s{sT2}, s{sW}, 9\nv_and_b32 v{vT1}, 31, v{vL}\nv_lshl_add_u32 v{vT1}, v{vT1}, 4, s{sT2}")
    take_tag()
    a("s_barrier")
    for p in range(4):
        a(f"ds_read_b128 {V(vX+4*p,4)}, v{vT1} offset:{p*2048}")
    saddr(sT0, WS_QP, (sHJ, 0, 0, 12), (sP, 0, 0, 11))
    a("s_waitcnt lgkmcnt(0)")
    for r in range(4):
        a(f"v_add_f32 v{vX+r}, v{vX+r}, v{vX+4+r}\nv_add_f32 v{vX+8+r}, v{vX+8+r}, v{vX+12+r}")
    for r in range(4):
        a(f"v_add_f32 v{vX+r}, v{vX+r}, v{vX+8+r}")
    tag_bf16(range(vX, vX+4))
    assert "INIT" not in a.q
    setexec(0xffffffff)
    a.vm(f"buffer_store_dwordx4 {V(vX,4)}, v{vT1}, {R(rWS)}, s{sT0} offen sc1", "QPst")
    setexec(FULL)
    stamp(1)
    st.until_q(POLLQ)
    st.finish(None, JOB)
    a("s_branch L_bloop")

    a("L_ql:")
    a.q = []
    vOU, vOA, vOL, sUK, sQA, sQL = vOW, vOX, vTK, sWO, sCKO, sSLOT
    vQA, vD, vPK, vR = 20, 28, 44, 60
    a(f"v_lshrrev_b32 v{vT0}, 2, v{vJ}\nv_and_b32 v{vT1}, 3, v{vJ}")
    a(f"v_lshlrev_b32 v{vOL}, 6, v{vG}\nv_lshl_add_u32 v{vOL}, v{vT1}, 4, v{vOL}\nv_lshl_add_u32 v{vOU}, v{vT0}, 18, v{vOL}")
    sHU, sWU = sHJ, sC2
    a(f"s_and_b32 s{sHU}, s{sH}, 28\ns_add_u32 s{sHU}, s{sHU}, s{sW}\ns_and_b32 s{sWU}, s{sH}, 3")
    saddr(sUK, 0, (sWU, 0, 0, 20), (sHU, 0, 0, 8))
    a(f"s_mov_b32 s{rUK+2}, {4*MB}\ns_mov_b32 s{rUK+3}, 0x20000\ns_waitcnt lgkmcnt(0)\ns_mov_b64 s[{rUK}:{rUK+1}], s[{pUK}:{pUK+1}]")
    def uk_load(t):
        if f"UK{t-DJ}" in a.q: a.wait(f"UK{t-DJ}")
        a.vm(f"buffer_load_dwordx4 {A(A1+4*t,4)}, v{vOU}, {R(rUK)}, s{sUK} offen nt", f"UK{t}")
        a(f"s_add_u32 s{sUK}, s{sUK}, 8192")
    soft(0)
    for t in range(8): uk_load(t)
    a(f"v_lshlrev_b32 v{vOA}, 1, v{vOL}\nv_lshl_add_u32 v{vOA}, v{vT0}, 9, v{vOA}")
    a(f"v_lshl_add_u32 v{vOL}, v{vT0}, 15, v{vOL}")
    consts()
    soft(1); soft_flush()
    saddr(sQA, WS_QP + 2048, (sHU, 0, 0, 12))
    saddr(sQL, WS_QL, (sHU, 0, 0, 10), (sWU, 0, 0, 8))
    late = {12: masks, 16: kv_setup, 20: lambda: (srd(rK, pK, 128*MB), srd(rV, pV, 128*MB)), 24: kv_late}
    for t in range(8, 32):
        uk_load(t)
        if t in late: late[t]()
    take_tag(True)
    st = Start(PUJ)
    for t in range(32 - DP, 32):
        a.wait(f"UK{t}"); st.load()
    def qa_poll():
        for i in range(2):
            a.vm(f"buffer_load_dwordx4 {V(vQA+4*i,4)}, v{vOA}, {R(rWS)}, s{sQA} offen offset:{16*i} sc1", "QA")
    while st.n < POLLU: st.paced(DP)
    qa_poll()
    while st.n < POLLU + DP - 1: st.paced(DP)
    a.wait("QA")
    chk, ok = a.label("qacheck"), a.label("qaok")
    a(f"{chk}:")
    untag(list(range(vQA, vQA+8)), vT0)
    a(f"s_cbranch_vccz {ok}" if not ({"QPst", "Q"} & set(ABL)) else f"s_branch {ok}")
    saved = list(a.q)
    qa_poll()
    a("s_waitcnt vmcnt(0)")
    spin_guard(chk)
    a.q = saved
    a(f"{ok}:")
    q_poll()
    for r in range(4):
        a(f"v_cvt_pk_bf16_f32 v{vQA+r}, v{vQA+2*r}, v{vQA+2*r+1}")
    def fold(t):
        quadsum(vR + (t & 1), vD + 4*(t % 4), vT0)
        if t & 1: a(f"v_cvt_pk_bf16_f32 v{vPK+t//2}, v{vR}, v{vR+1}")
    for t in range(32):
        a(f"v_mfma_f32_16x16x32_bf16 {V(vD+4*(t%4),4)}, {A(A1+4*t,4)}, {V(vQA,4)}, 0")
        if t >= 2: fold(t - 2)
        if t % 8 == 4 and st.n < 8*PUJ: st.load()
    fold(30); fold(31)
    for q in range(1, 4):
        setexec(0x1111111111111111 << q)
        for r in range(4):
            a(f"v_mov_b32 v{vPK+r}, v{vPK+4*q+r}")
    setexec(FULL)
    a.vm(f"buffer_store_dwordx4 {V(vPK,4)}, v{vOL}, {R(rWS)}, s{sQL} offen sc1", "QLst")
    stamp(1)
    done = []
    def sig(c):
        if not done and ("QLst" not in a.q or c == 15):
            done.append(c); signal("QLst", WS_F1, 48)
    st.finish(sig, JOB)
    a("s_branch L_bloop")

    a("L_aux:")
    role[0] = "A"
    a.q = []
    vOR1 = 9
    vOC, vOC8 = 76, 10
    vAQ, vAD = 60, 82
    vM, vLL, vAL, vEX = 90, 91, 92, 94
    vWR, vZ, vL2 = 96, 100, 102
    vQL, vPP, vCT, vKQ, vSS = 36, 52, 104, 136, 200
    vE1, vE2 = vKQ, vKQ + 16
    aKA = A0
    vTA = 136
    sHH = sSLOT
    a(f"v_lshlrev_b32 v{vT0}, 2, v{vG}\nv_xor_b32 v{vT0}, v{vT0}, v{vJ}")
    for i in range(4):
        a(f"v_xor_b32 v{vWR+i}, {i}, v{vT0}\nv_lshlrev_b32 v{vWR+i}, 4, v{vWR+i}\nv_lshl_add_u32 v{vOC8+i}, v{vG}, 13, v{vWR+i}")
        if i: a(f"v_add_u32 v{vOC8+i}, {i*(32768-1024)}, v{vOC8+i}")
    a(f"s_lshl_b32 s{sM0}, s{sW}, 15\ns_mov_b32 s{sFILL}, 0")
    saddr(sCKO, 0, (sW, 0, 0, 20), (sH, 0, 0, 8))
    a("s_waitcnt lgkmcnt(0)")
    srd(rCK, pUV, 4*MB)
    def ck_one(n, tg, offs=vOC, step=16384):
        if n % 4 == 0:
            a(f"s_add_u32 s{sT3}, s{sM0}, s{sFILL}\ns_mov_b32 m0, s{sT3}")
            a(f"s_add_u32 s{sFILL}, s{sFILL}, 4096\ns_and_b32 s{sFILL}, s{sFILL}, 0x7fff")
        a.vm(f"buffer_load_dwordx4 v{offs+n%4}, {R(rCK)}, s{sCKO} offen offset:{(n%4)*1024} nt lds", tg)
        if n % 4 == 3:
            a(f"s_add_u32 s{sCKO}, s{sCKO}, {step}")
    soft(0)
    for n in range(8): ck_one(n, "UV0", vOC8, 16*8192)
    consts()
    if "noaux" in ABL: a("s_endpgm")
    for i in range(4):
        a(f"v_lshl_add_u32 v{vOC+i}, v{vG}, 10, v{vWR+i}\nv_lshl_add_u32 v{vWR+i}, v{vG}, 8, v{vWR+i}")
        if i: a(f"v_add_u32 v{vOC+i}, {i*3072}, v{vOC+i}")
    vaddr(vZ+1, vZ, (vL, 0, 5, 8))
    vaddr(vOR1, vT0, (vJ, 0, 0, 4), (vG, 0, 0, 10))
    a(f"v_xor_b32 v{vT1}, v{vJ}, v{vG}")
    vaddr(vT2, vT0, (vJ, 2, 1, 11), (vJ, 3, 1, 10), (vJ, 0, 2, 8), (vT1, 0, 2, 6), (vJ, 2, 1, 5), (vJ, 3, 1, 4))
    a(f"v_add_u32 v{vAQ}, s{sM0}, v{vT2}")
    for k in range(1, 4): a(f"v_xor_b32 v{vAQ+k}, {16*k}, v{vAQ}")
    a(f"v_lshrrev_b32 v{vT1}, 4, v{vL}\nv_xor_b32 v{vT1}, v{vT1}, v{vL}")
    vaddr(vT2, vT0, (vL, 4, 1, 11), (vL, 5, 1, 10), (vL, 2, 2, 8), (vL, 2, 2, 6), (vL, 4, 1, 5), (vT1, 1, 1, 4), (vL, 0, 1, 3))
    a(f"v_add_u32 v{vAD}, s{sM0}, v{vT2}")
    for k in range(1, 8): a(f"v_xor_b32 v{vAD+k}, {32*k}, v{vAD}")
    vaddr(vT2, vT0, (vG, 0, 0, 11), (vL, 2, 2, 8), (vL, 2, 2, 6), (vL, 4, 1, 5), (vL, 1, 1, 4), (vL, 0, 1, 3))
    a(f"v_add_u32 v{vTA}, s{sM0}, v{vT2}")
    for i in range(1, 16): a(f"v_xor_b32 v{vTA+i}, {16*i}, v{vTA}")
    a(f"s_lshl_b32 s{sU0}, s{sW}, 13\ns_add_u32 s{sU0}, s{sU0}, {LDS_EX}\nv_lshl_add_u32 v{vEX}, v{vL}, 4, s{sU0}")
    for i in range(4):
        a(f"v_add_u32 v{vWR+i}, s{sU0}, v{vWR+i}")
    soft(1); soft_flush()
    for k in range(1, 4):
        for n in range(8): ck_one(n, f"UV{k}", vOC8, 16*8192)
    take_tag(True)
    xc_report(vT0)
    srd(rCK, pCK, 16*MB)
    saddr(sIX, 0, (sH, 0, 3, 1), (sH, 4, 0, 0))
    a(f"s_bfe_u32 s{sHH}, s{sH}, 0x10003")
    saddr(sCKO, 0, (sIX, 0, 0, 20), (sW, 0, 0, 8))

    def flag_load(off):
        a(f"s_mov_b32 s{sU1}, {off}")
        a.vm(f"buffer_load_dword v{vT3}, v{vZ+1}, {R(rWS)}, s{sU1} offen sc1", "FL")

    def flag_wait(off):
        a.wait("FL")
        chk, ok = a.label("fcheck"), a.label("fok")
        a(f"{chk}:\nv_cmp_ne_u32 vcc, s{sFLAG}, v{vT3}\ns_cbranch_vccz {ok}")
        saved = list(a.q)
        a(f"s_sleep {FSL}")
        flag_load(off)
        a("s_waitcnt vmcnt(0)")
        spin_guard(chk)
        a.q = saved
        a(f"{ok}:")

    N1 = 10
    for k in range(4):
        a.wait(f"UV{k}")
        for nt in range(8):
            for pi in range(2):
                a(f"ds_read_b64_tr_b16 {A(A1+16*nt+4*k+2*pi,2)}, v{vTA+2*nt+pi} offset:{8192*k+1024*pi}")
        a("s_waitcnt lgkmcnt(0)")
        for n in range(8 if k < 3 else N1 - 8): ck_one(n, f"CK{k}")
    flag_load(WS_F1)
    stamp(2)
    if "noatt" in ABL: a("s_endpgm")
    for i in range(32): a(f"v_mov_b32 v{vCT+i}, 0")
    a(f"v_mov_b32 v{vM}, 0xff7f0000\ns_mov_b32 s{sIT}, 0")
    a(f"v_mov_b32 v{vL2}, 0\nv_mov_b32 v{vL2+1}, 0\ns_mov_b32 s{sC2}, s{sC}\ns_mov_b32 s{sC2+1}, s{sC}")
    a(f"v_xor_b32 v{vT1}, v{vJ}, v{vG}")
    vaddr(vT2, vT0, (vJ, 0, 0, 8), (vT1, 0, 2, 6), (vJ, 2, 0, 4))
    a(f"v_add_u32 v{vPP}, s{sU0}, v{vT2}")
    for k in range(1, 4): a(f"v_xor_b32 v{vPP+k}, {16*k}, v{vPP}")
    saddr(sT0, WS_QL, (sIX, 2, 0, 15), (sHH, 0, 0, 14), (sW, 0, 0, 8))
    flag_wait(WS_F1)
    stamp(4)
    for i in range(4):
        a.vm(f"buffer_load_dwordx4 {V(vSS+4*i,4)}, v{vOR1}, {R(rWS)}, s{sT0} offen sc1", f"QLg{i}")
        if i < 3: a(f"s_add_u32 s{sT0}, s{sT0}, 4096")
    kq_read = lambda i: a(f"ds_read_b128 {V(vKQ+4*i,4)}, v{vAQ+(i&3)} offset:{4096*(i>>2)}")
    for i in range(16): kq_read(i)
    for i in range(4):
        a.wait(f"QLg{i}")
        a(f"ds_write_b128 v{vWR+i}, {V(vSS+4*i,4)} offset:{i*1024}")
    a("s_waitcnt lgkmcnt(0)")
    for k in range(4):
        a(f"ds_read_b128 {V(vQL+4*k,4)}, v{vPP+k}")
    stamp(5)
    a("L_att:")
    a("s_waitcnt lgkmcnt(0)")
    for i in range(16):
        T, k = i >> 2, i & 3
        a(f"v_mfma_f32_16x16x32_bf16 {V(vSS+4*T,4)}, {V(vKQ+4*i,4)}, {V(vQL+4*k,4)}, {V(vSS+4*T,4) if k else '0'}")
        sg, ct = i >> 3, i & 7
        for pi in range(2):
            a(f"ds_read_b64_tr_b16 {A(aKA+4*i+2*pi,2)}, v{vAD+ct} offset:{8192*sg+4096*pi}")
        if i in (0, 3, 6, 9, 12, 15): ck_one(N1 + i // 3, "loop")
        if i >= 7 and (i - 7) % 4 == 0: a(f"ds_write_b128 v{vEX}, {V(vSS+(i-7),4)} offset:{256*(i-7)}")
    a(f"v_xor_b32 v{vT1}, 0x2000, v{vEX}\nv_xor_b32 v{vT2}, 0x4000, v{vEX}\nv_xor_b32 v{vT3}, 0x6000, v{vEX}")
    a(f"s_cmp_eq_u32 s{sIT}, 14\ns_cselect_b32 s{sCKO}, {16*MB}, s{sCKO}")
    a(f"ds_write_b128 v{vEX}, {V(vSS+12,4)} offset:3072")
    for k in range(8): a(f"v_xor_b32 v{vAD+k}, 0x4000, v{vAD+k}")
    for k in range(4): a(f"v_xor_b32 v{vAQ+k}, 0x4000, v{vAQ+k}")
    a("s_waitcnt lgkmcnt(0)\ns_barrier")
    for q in range(4):
        a(f"ds_read_b128 {V(vE1+4*q,4)}, v{vT1} offset:{1024*q}")
        a(f"ds_read_b128 {V(vE2+4*q,4)}, v{vT2} offset:{1024*q}")
        a(f"ds_read_b128 {V(vE2+16+4*q,4)}, v{vT3} offset:{1024*q}")
    a(f"v_xor_b32 v{vEX}, 0x1000, v{vEX}")
    nf = [0]
    def fill(cnt=1):
        for _ in range(cnt):
            ck_one(nf[0], "loop"); nf[0] += 1
    fill(3)
    for q in range(4):
        a(f"s_waitcnt lgkmcnt({9-3*q})")
        for r in range(4*q, 4*q+4, 2):
            a(f"v_pk_add_f32 {V(vSS+r,2)}, {V(vSS+r,2)}, {V(vE1+r,2)}\nv_pk_add_f32 {V(vE2+r,2)}, {V(vE2+r,2)}, {V(vE2+16+r,2)}")
        for r in range(4*q, 4*q+4, 2):
            a(f"v_pk_add_f32 {V(vSS+r,2)}, {V(vSS+r,2)}, {V(vE2+r,2)}")
    fill()
    a(f"s_waitcnt vmcnt({nf[0]})")
    a(f"v_max_f32 v{vT0}, v{vSS}, v{vSS+1}")
    for r in range(2, 16, 2):
        a(f"v_max3_f32 v{vT0}, v{vT0}, v{vSS+r}, v{vSS+r+1}")
    a(f"v_mov_b32 v{vT1}, v{vT0}")
    kq_read(0); kq_read(1)
    a(f"v_permlane16_swap_b32 v{vT0}, v{vT1}\nv_max_f32 v{vT0}, v{vT0}, v{vT1}\nv_mov_b32 v{vT1}, v{vT0}")
    kq_read(2); kq_read(3)
    a(f"v_permlane32_swap_b32 v{vT0}, v{vT1}\nv_max_f32 v{vT0}, v{vT0}, v{vT1}")
    a(f"v_mul_f32 v{vT0}, s{sC}, v{vT0}\nv_max_f32 v{vT0}, v{vT0}, v{vM}")
    a(f"v_sub_f32 v{vAL}, v{vM}, v{vT0}\nv_exp_f32 v{vAL}, v{vAL}\nv_mov_b32 v{vM}, v{vT0}")
    fill()
    for r in range(0, 16, 2):
        a(f"v_pk_fma_f32 {V(vSS+r,2)}, {V(vSS+r,2)}, s[{sC2}:{sC2+1}], {V(vM,2)} op_sel_hi:[1,1,0] neg_lo:[0,0,1] neg_hi:[0,0,1]")
    for r in range(16):
        a(f"v_exp_f32 v{vSS+r}, v{vSS+r}")
        if r % 4 == 1: kq_read(4 + r // 4)
        if r == 7: fill()
    fill()
    a(f"v_pk_mul_f32 {V(vL2,2)}, {V(vL2,2)}, {V(vAL,2)} op_sel_hi:[1,0]")
    for c in range(vCT, vCT+32, 2):
        a(f"v_pk_mul_f32 {V(c,2)}, {V(c,2)}, {V(vAL,2)} op_sel_hi:[1,0]")
    fill()
    for r in range(8):
        a(f"v_cvt_pk_bf16_f32 v{vPP+r}, v{vSS+2*r}, v{vSS+2*r+1}")
        a(f"v_pk_add_f32 {V(vL2,2)}, {V(vL2,2)}, {V(vSS+2*r,2)}")
    for i in range(16):
        sg, ct = i >> 3, i & 7
        a(f"v_mfma_f32_16x16x32_bf16 {V(vCT+4*ct,4)}, {A(aKA+4*i,4)}, {V(vPP+4*sg,4)}, {V(vCT+4*ct,4)}")
        if i < 8: kq_read(8 + i)
        if i in (9, 13): fill()
    assert nf[0] == N1
    a(f"s_add_u32 s{sIT}, s{sIT}, 1\ns_cmp_lt_u32 s{sIT}, 16\ns_cbranch_scc1 L_att")
    a.q = []
    stamp(6)
    if "nopost" in ABL: a("s_endpgm")
    vPUB, vPK2 = 200, 216
    a(f"v_add_f32 v{vLL}, v{vL2}, v{vL2+1}")
    a(f"v_mov_b32 v{vT1}, v{vLL}\nv_permlane16_swap_b32 v{vLL}, v{vT1}\nv_add_f32 v{vLL}, v{vLL}, v{vT1}")
    a(f"v_mov_b32 v{vT1}, v{vLL}\nv_permlane32_swap_b32 v{vLL}, v{vT1}\nv_add_f32 v{vLL}, v{vLL}, v{vT1}")
    a(f"v_lshrrev_b32 v{vT2}, 1, v{vG}\nv_xor_b32 v{vT2}, v{vT2}, v{vJ}")
    vaddr(vT1, vT0, (vJ, 0, 0, 8), (vT2, 0, 0, 4), (vG, 0, 1, 3))
    a(f"v_add_u32 v{vT1}, s{sU0}, v{vT1}")
    a("s_waitcnt vmcnt(0) lgkmcnt(0)\ns_barrier")
    for i in range(8):
        a(f"v_cvt_pk_bf16_f32 v{vPK2+2*i}, v{vCT+4*i}, v{vCT+4*i+1}\nv_cvt_pk_bf16_f32 v{vPK2+2*i+1}, v{vCT+4*i+2}, v{vCT+4*i+3}")
        a(f"v_xor_b32 v{vAD+i}, {32*i}, v{vT1}\nds_write_b64 v{vAD+i}, {V(vPK2+2*i,2)}")
    a(f"v_xor_b32 v{vT2}, v{vJ}, v{vG}\nv_lshlrev_b32 v{vT2}, 4, v{vT2}\nv_lshl_add_u32 v{vT0}, v{vG}, 8, v{vT2}\nv_add_u32 v{vT0}, s{sU0}, v{vT0}")
    for i in range(4):
        a(f"v_xor_b32 v{vAQ+i}, {64*i}, v{vT0}")
    vaddr(vT3, vT0, (vJ, 0, 0, 4), (vG, 0, 0, 14))
    saddr(sT0, WS_CP, (sHH, 0, 0, 18), (sIX, 0, 0, 10), (sW, 0, 0, 8))
    a("s_waitcnt lgkmcnt(0)")
    for i in range(4):
        a(f"ds_read_b128 {V(vPUB+4*i,4)}, v{vAQ+i} offset:{1024*i}")
    a(f"v_lshlrev_b32 v{vT0}, 3, v{vJ}")
    saddr(sT1, WS_CS, (sIX, 0, 0, 8), (sHH, 0, 0, 7), (sW, 0, 0, 23))
    setexec(0xffff)
    a.vm(f"buffer_store_dwordx2 {V(vM,2)}, v{vT0}, {R(rWS)}, s{sT1} offen sc1", "CPst")
    setexec(FULL)
    for i in range(4):
        a(f"s_waitcnt lgkmcnt({3-i})")
        a.vm(f"buffer_store_dwordx4 {V(vPUB+4*i,4)}, v{vT3}, {R(rWS)}, s{sT0} offen sc1", "CPst")
        if i < 3: a(f"s_add_u32 s{sT0}, s{sT0}, {64*KB}")
    vCB, vSTAT, vDD = 136, 52, 104
    vGS, vRW, vRR = 81, 94, 102
    fin_scalar()
    fin_vec3()
    xc_fetch(64)
    vaddr(vGS, vT1, (vJ, 0, 2, 10), (vJ, 2, 0, 8))
    a(f"v_add3_u32 v{vAD}, v{vGS}, v{vT2}, s{sU0}")
    for k in range(1, 4): a(f"v_xor_b32 v{vAD+k}, {64*k}, v{vAD}")
    vaddr(vRW, vT1, (vJ, 0, 2, 9), (vG, 0, 0, 4))
    a(f"v_add_u32 v{vRW}, s{sU0}, v{vRW}")
    a(f"s_lshl_b32 s{sT2}, s{sW}, 9\ns_add_u32 s{sT2}, s{sT2}, {LDS_EX}\nv_add_u32 v{vRR}, s{sT2}, v{vCX}")
    saddr(sT0, WS_CP, (sH, 0, 0, 14), (sW, 0, 0, 8))
    saddr(sT1, WS_CS, (sH, 0, 0, 3))
    signal("CPst", WS_F2, vT0)
    stamp(7)
    flag_load(WS_F2)
    flag_wait(WS_F2)
    stamp(8)
    a.vm(f"buffer_load_dwordx2 {V(vSTAT,2)}, v{vGS}, {R(rWS)}, s{sT1} offen sc1", "CSg")
    for i in range(4):
        a.vm(f"buffer_load_dwordx4 {V(vPUB+4*i,4)}, v{vOR1}, {R(rWS)}, s{sT0} offen sc1", f"CPg{i}")
        if i < 3: a(f"s_add_u32 s{sT0}, s{sT0}, 4096")
    a.wait("CSg")
    a(f"v_max_f32_dpp v{vT0}, v{vSTAT}, v{vSTAT} row_ror:8 {DPP}\nv_max_f32_dpp v{vT0}, v{vT0}, v{vT0} row_ror:4 {DPP}")
    a(f"v_sub_f32 v{vSTAT}, v{vSTAT}, v{vT0}\nv_exp_f32 v{vSTAT}, v{vSTAT}\nv_mul_f32 v{vT1}, v{vSTAT}, v{vSTAT+1}")
    a(f"v_add_f32_dpp v{vT1}, v{vT1}, v{vT1} row_ror:8 {DPP}\nv_add_f32_dpp v{vT1}, v{vT1}, v{vT1} row_ror:4 {DPP}")
    a(f"v_rcp_f32 v{vT1}, v{vT1}\nv_mul_f32 v{vSTAT}, v{vSTAT}, v{vT1}")
    for i in range(4):
        a.wait(f"CPg{i}")
        a(f"ds_write_b128 v{vWR+i}, {V(vPUB+4*i,4)} offset:{i*1024}")
    a("s_waitcnt lgkmcnt(0)")
    for k in range(4):
        a(f"ds_read_b128 {V(vCB+4*k,4)}, v{vAD+k}")
    a("s_waitcnt lgkmcnt(0)")
    def ctx_fold(nt):
        d = vDD + 4*nt
        for r in range(4):
            a(f"v_mul_f32 v{d+r}, v{d+r}, v{vSTAT}")
        for ror in (8, 4):
            for r in range(4):
                a(f"v_add_f32_dpp v{d+r}, v{d+r}, v{d+r} row_ror:{ror} {DPP}")
        a(f"ds_write_b128 v{vRW}, {V(d,4)} offset:{64*nt}")
    for nt in range(8):
        d = vDD + 4*nt
        for k in range(4):
            a(f"v_mfma_f32_16x16x32_bf16 {V(d,4)}, {A(A1+16*nt+4*k,4)}, {V(vCB+4*k,4)}, {V(d,4) if k else '0'}")
        if nt >= 2: ctx_fold(nt - 2)
    ctx_fold(6); ctx_fold(7)
    a("s_waitcnt lgkmcnt(0)\ns_barrier")
    for p in range(4):
        a(f"ds_read_b128 {V(vCB+4*p,4)}, v{vRR} offset:{p*8192}")
    a("s_waitcnt lgkmcnt(0)")
    for r in range(4):
        a(f"v_add_f32 v{vCB+r}, v{vCB+r}, v{vCB+4+r}\nv_add_f32 v{vCB+8+r}, v{vCB+8+r}, v{vCB+12+r}")
    for r in range(4):
        a(f"v_add_f32 v{vCB+r}, v{vCB+r}, v{vCB+8+r}")
    tag_bf16(range(vCB, vCB+4))
    saddr(sT0, WS_CX, (sH, 0, 0, 11), (sW, 0, 0, 9))
    setexec(0xffffffff)
    a(f"buffer_store_dwordx4 {V(vCB,4)}, v{vCX}, {R(rWS)}, s{sT0} offen sc1")
    setexec(FULL)
    for r in range(4): a(f"v_xor_b32 v{vGS2+r}, s{sTAG}, v{vCB+r}")
    fin_vec2()
    xc_check(64)
    stamp(9)
    a(f"s_mov_b32 s{sB}, s{sW}")
    fin_vec1()
    msg_addr()
    a(f"s_mov_b32 s{sU0+1}, 0x88888888\ns_mov_b32 s{sU0+2}, 0x88888888\nv_mov_b32 v{vMC}, 0xff7f0000")
    assert max(THA, THB) <= 6
    saddr(sT1, WS_CT + 4, (sH, 0, 0, 10), (sH, 3, 0, 8))
    pool_size()
    a(f"s_bitcmp1_b32 s{sS}, 2\ns_cselect_b32 s{sT0}, {THA}, {THB}\ns_add_u32 s{sT0}, s{sT0}, s{sNP}")
    a(f"v_mov_b32 v{vT1}, 0\nL_watch:\nbuffer_load_dword v{vT2}, v{vT1}, {R(rWS)}, s{sT1} offen sc1\ns_waitcnt vmcnt(0)")
    a(f"v_cmp_le_u32 vcc, s{sT0}, v{vT2}\ns_cbranch_vccnz L_seen\ns_sleep {WSL}")
    spin_guard("L_watch")
    a("L_seen:")
    for n in range(8): fin_dma(n, vFD)
    a(f"s_bitcmp1_b32 s{sS}, 2\ns_cbranch_scc1 L_ctxok")
    cx_load()
    a(f"s_add_u32 s{sT1}, s{sMB}, {6*1024}")
    a("L_auxpoll:")
    m_round()
    a(f"buffer_load_dwordx4 {V(vOO,4)}, v{vOP}, {R(rWS)}, s{sT1} offen sc1\ns_waitcnt vmcnt(0)")
    untag(list(range(vOO, vOO+4)) + list(range(vMS, vMS+16)), vT0)
    a(f"v_add_f32 v{vFB}, v{vOO}, v{vOO+2}\nv_add_f32 v{vFA}, v{vMS+12}, v{vMS+14}")
    a(f"v_mov_b32_dpp v{vLS}, v{vOO+1} row_newbcast:8 {DPP}")
    a(f"v_mov_b32_dpp v{vMC}, v{vFB} row_newbcast:8 row_mask:0xf bank_mask:0x3")
    a("s_cbranch_vccz L_hop1ok")
    spin_guard("L_auxpoll")
    body = a.finish()
    ref = open(os.path.join(os.path.dirname(os.path.abspath(__file__)), "..", NAME + ".s.ref")).read().split("\n")
    layout = [l for l in ref if l.startswith(";") and "@launch" not in l and "Override" not in l and "grid=ceil" not in l]
    tail = f""".section .rodata,"a"
.p2align 6
.amdhsa_kernel {NAME}_kernel
  .amdhsa_next_free_vgpr 512
  .amdhsa_next_free_sgpr 102
  .amdhsa_accum_offset 256
  .amdhsa_group_segment_fixed_size 0
  .amdhsa_kernarg_size 112
  .amdhsa_user_sgpr_count 2
  .amdhsa_user_sgpr_kernarg_segment_ptr 1
  .amdhsa_system_sgpr_workgroup_id_x 1
.end_amdhsa_kernel
"""
    about = ["; generated by tools/gen.py"] + ["; " + l for l in __doc__.strip().split("\n")[2:]]
    return "\n".join(layout + hdr + about) + "\n" + body + tail

if __name__ == "__main__":
    kw = eval("dict(" + (sys.argv[2] if len(sys.argv) > 2 else "") + ")")
    out = sys.argv[1] if len(sys.argv) > 1 else os.path.join(os.path.dirname(os.path.abspath(__file__)), "..", NAME + ".s")
    open(out, "w").write(generate(**kw))
    print("wrote", out)
```
